```python
import torch

def _softmax(x, axis=-1):
    return torch.softmax(x, dim=axis)

def _gelu(x):
    return torch.nn.functional.gelu(x, approximate='tanh')

def _silu(x):
    return torch.nn.functional.silu(x)

def _sigmoid(x):
    return torch.sigmoid(x)

def _layernorm(x, axis=-1, eps=1e-05):
    m = x.mean(dim=axis, keepdim=True)
    v = x.var(dim=axis, keepdim=True, unbiased=False)
    return (x - m) / torch.sqrt(v + eps)

def _scatter_add(tgt, idx, src, axis=0):
    return tgt.clone().index_add_(axis, idx, src)

def _segment_sum(src, seg, n):
    out = torch.zeros((n,) + src.shape[1:], dtype=src.dtype)
    return out.index_add_(0, seg, src)

def _pad(x, pw):
    flat = tuple((v for pair in reversed(pw) for v in pair))
    return torch.nn.functional.pad(x, flat)
kernel_name = 'concat_heads__memory_aug_recurrent_mem_tr__sliding_block__prompt'

def setup_inputs():

    _w = lambda a: (lambda t: t.to(torch.bfloat16) if t.is_floating_point() else t)(torch.as_tensor(a))

    def _A_setup():
        B, S, Dm = (1, 2048, 640)
        H, Dh = (32, 192)
        M, seg = (8, 32)
        seg = min(seg, S)
        S = S // seg * seg
        return {'x': _w((lambda *s: torch.randn(*s, dtype=torch.bfloat16) * 0.05)(B, S, Dm)), 'mem0': _w((lambda *s: torch.randn(*s, dtype=torch.bfloat16) * 1.6)(B, M, Dm)), 'Wq': _w((lambda *s: torch.randn(*s, dtype=torch.bfloat16) * 0.8)(Dm, H, Dh) * Dm ** (-0.5)), 'Wk': _w((lambda *s: torch.randn(*s, dtype=torch.bfloat16) * 0.8)(Dm, H, Dh) * Dm ** (-0.5)), 'Wv': _w((lambda *s: torch.randn(*s, dtype=torch.bfloat16) * 1.6)(Dm, H, Dh) * Dm ** (-0.5)), 'Wo': _w((lambda *s: torch.randn(*s, dtype=torch.bfloat16) * 1.6)(H, Dh, Dm) * (H * Dh) ** (-0.5)), 'seg_len': seg}
    _A_in = _A_setup()

    def _B_setup():
        B, S, D = (1, 2048, 640)
        return {'x': _w((lambda *s: torch.randn(*s, dtype=torch.bfloat16) * 0.2)(B, S, D)), 'wqkv': _w((lambda *s: torch.randn(*s, dtype=torch.bfloat16) * 0.2)(D, 3 * D)), 'wo': _w((lambda *s: torch.randn(*s, dtype=torch.bfloat16) * 0.05)(D, D))}
    _B_in = _B_setup()
    return {'A_x': _A_in['x'], 'A_mem0': _A_in['mem0'], 'A_Wq': _A_in['Wq'], 'A_Wk': _A_in['Wk'], 'A_Wv': _A_in['Wv'], 'A_Wo': _A_in['Wo'], 'A_seg_len': _A_in['seg_len'], 'B_x': _B_in['x'], 'B_wqkv': _B_in['wqkv'], 'B_wo': _B_in['wo']}

def reference(A_x, A_mem0, A_Wq, A_Wk, A_Wv, A_Wo, A_seg_len, B_x, B_wqkv, B_wo):

    def _A_ref(x, mem0, Wq, Wk, Wv, Wo, seg_len):
        B, S, Dm = x.shape
        H, Dh = (Wq.shape[1], Wq.shape[2])
        M = mem0.shape[1]
        scale = Dh ** (-0.5)
        n_seg = S // seg_len
        L = M + seg_len
        idx = torch.arange(L)
        mask = (idx[:, None] < M) | (idx[:, None] >= idx[None, :])
        mem = mem0
        outs = []
        for s in range(n_seg):
            xs = x[:, s * seg_len:(s + 1) * seg_len, :].clone()
            h = torch.concatenate([mem, xs], axis=1)
            q = torch.einsum('btd,dhe->bhte', h, Wq)
            k = torch.einsum('btd,dhe->bhte', h, Wk)
            v = torch.einsum('btd,dhe->bhte', h, Wv)
            scores = torch.einsum('bhqe,bhke->bhqk', q, k) * scale
            scores = torch.where(mask[None, None], scores, -1000000000.0)
            p = _softmax(scores, axis=-1)
            o = torch.einsum('bhqk,bhke->bhqe', p, v)
            o = torch.einsum('bhte,hed->btd', o, Wo)
            mem = o[:, :M, :].clone()
            outs.append(o[:, M:, :])
        return torch.concatenate(outs, axis=1)

    def _B_ref(x, wqkv, wo):
        B, S, D = x.shape
        H = 32
        Dh = D // H
        W = 256
        qkv = (lambda x, *d: x.permute(*d))((x @ wqkv).reshape(B, S, 3, H, Dh), 2, 0, 3, 1, 4)
        q, k, v = (qkv[0], qkv[1], qkv[2])
        scores = torch.einsum('bhqd,bhkd->bhqk', q, k) * Dh ** (-0.5)
        idx = torch.arange(S)
        mask = (idx[:, None] - idx[None, :] >= 0) & (idx[:, None] - idx[None, :] < W)
        scores = torch.where(mask[None, None], scores, -1000000000.0)
        p = _softmax(scores, axis=-1)
        o = torch.einsum('bhqk,bhkd->bhqd', p, v)
        return (lambda x, *d: x.permute(*d))(o, 0, 2, 1, 3).reshape(B, S, D) @ wo
    a = _A_ref(A_x, A_mem0, A_Wq, A_Wk, A_Wv, A_Wo, A_seg_len)
    b = _B_ref(B_x, B_wqkv, B_wo)
    return torch.concatenate([a, b], axis=-1)
```

```python
class Asm:
    def __init__(self):
        self.L = []
        self.uid = 0
    def e(self, s):
        for line in s.split("\n"):
            line = line.strip()
            if line:
                self.L.append(line if line.endswith(":") else "  " + line)
    def label(self, s): self.L.append(s + ":")
    def newlabel(self, p="L"):
        self.uid += 1
        return f"{p}_{self.uid}"
    def nop(self, n):
        while n > 0:
            k = min(n, 16); self.e(f"s_nop {k-1}"); n -= k
    def text(self): return "\n".join(self.L)

def vr(a, n=1, t="v"):
    return f"{t}{a}" if n == 1 else f"{t}[{a}:{a+n-1}]"
def ar(a, n=1): return vr(a, n, "a")
def sr(a, n=1): return vr(a, n, "s")

def interleave(main, fill, slots=None):
    out = []
    for i, m in enumerate(main):
        out.append(m)
        if i < len(fill): out.extend(fill[i])
    for j in range(len(main), len(fill)): out.extend(fill[j])
    return out

def spread(items, nslots, start=0, per=None):
    f = [[] for _ in range(nslots)]
    n = len(items)
    if n == 0: return f
    avail = nslots - start
    for i, it in enumerate(items):
        k = start + (i // per if per else (i * avail) // n)
        k = min(k, nslots - 1)
        f[k].extend(it)
    return f
def merge(*fs):
    n = max(len(f) for f in fs)
    return [sum((f[i] if i < len(f) else [] for f in fs), []) for i in range(n)]
```

```python
import sys
sys.path.insert(0, "work")
from asmlib import *
from layout import *
import chain
from worker import *

NAME = "concat_heads__memory_aug_recurrent_mem_tr__sliding_block__prompt_kernel"

def schedule(split0=True):
    D = {T_K: 10.5, T_Q: 10.5, T_BQ: 10.5, T_BO: 9.0, T_BA: 3.5, T_P: 3.0, T_PZ: 6.0}
    lists = [[] for _ in range(192)]
    t = [0.0]*192
    heads3 = [list(range(0,6)), list(range(6,12)), list(range(12,17)), list(range(17,22)), list(range(22,27)), list(range(27,32))]
    headsq = [list(range(0,4)), list(range(4,8)), list(range(8,14)), list(range(14,20)), list(range(20,26)), list(range(26,32))]
    import heapq
    for x in range(6):
        q = []
        H = heads3[x]
        groups = [(0,), (1, 2), (3, 4, 5), (6, 7)]
        for gi, g in enumerate(groups):
            if gi == 0 and split0:
                for z in (1, 2): q += [(enc(T_VU, 0, h, z), 14.5) for h in H]
            else:
                q += [(enc(T_VU, m, h), 19.0) for h in H for m in g]
            q += [(enc(T_K, m, h), D[T_K]) for h in H for m in g]
        for g in [(0, 1, 2), (3, 4, 5), (6, 7)]:
            q += [(enc(T_Q, m, h), D[T_Q]) for h in headsq[x] for m in g]
        for w, d in q:
            i = min(range(32*x, 32*x+32), key=lambda i: t[i])
            lists[i].append(w); t[i] += d
    g = [(enc(T_BQ, m, n), D[T_BQ]) for m in range(8) for n in range(10)]
    g += [(enc(T_BA, b, h), D[T_BA]) for b in range(16) for h in range(32)]
    g += [(enc(T_BO, m, n), D[T_BO]) for m in range(8) for n in range(4)]
    for w, d in g:
        i = min(range(192), key=lambda i: t[i]); lists[i].append(w); t[i] += d
    t0, dt = 16.0, 2.0
    for s in range(64):
        ready = t0 + dt*(s+2)
        for hg in range(8):
            i = min(range(192), key=lambda i: t[i]); lists[i].append(enc(T_P, s, hg)); t[i] = max(t[i] + D[T_P], ready + 1)
        for cg in range(10):
            i = min(range(192), key=lambda i: t[i]); lists[i].append(enc(T_PZ, s, cg)); t[i] = max(t[i] + D[T_PZ], ready + 3)
    return lists, t

def init_work(a):
    a.e("s_load_dwordx2 s[32:33], s[0:1], 0"); a.e("s_load_dwordx2 s[34:35], s[0:1], 56")
    a.e("v_and_b32 v1, 63, v0"); a.e("v_lshlrev_b32 v4, 4, v1")
    a.e("v_and_b32 v5, 31, v1"); a.e("v_mul_u32_u24 v5, 1280, v5"); a.e("v_lshrrev_b32 v6, 5, v1"); a.e("v_lshl_add_u32 v5, v6, 6, v5")
    a.e("s_waitcnt lgkmcnt(0)")
    a.e("s_cmp_lt_u32 s2, 128"); a.e("s_cselect_b32 s12, s32, s34"); a.e("s_cselect_b32 s13, s33, s35"); a.e(f"s_cselect_b32 s25, 0, {WS_XFB-WS_XFA}"); a.e(f"s_add_u32 s25, s25, {WS_XFA}")
    a.e("s_mov_b32 s14, 2621440"); a.e("s_mov_b32 s15, 0x20000")
    a.e("s_bfe_u32 s26, s2, 0x60001"); a.e("s_mul_i32 s26, s26, 40960")
    a.e("s_and_b32 s27, s2, 1"); a.e("s_mul_i32 s27, s27, 5")
    a.e("s_lshl_b32 s28, s27, 7"); a.e("s_add_u32 s28, s28, s26"); a.e("s_lshl_b32 s29, s24, 4"); a.e("s_add_u32 s28, s28, s29")
    a.e("s_lshl_b32 s27, s27, 12"); a.e("s_add_u32 s27, s27, s26"); a.e("s_add_u32 s27, s27, s25"); a.e("s_lshl_b32 s29, s24, 10"); a.e("s_add_u32 s27, s27, s29")
    for i in range(5): a.e(f"buffer_load_dwordx4 {vr(8+4*i,4)}, v5, s[12:15], s28 offen offset:{128*i}")
    for q in range(4): a.e(f"v_mov_b32 v{28+q}, -1"); a.e(f"v_mov_b32 v{32+q}, 0")
    a.e("s_lshr_b32 s28, s2, 2"); a.e("s_lshl_b32 s29, s28, 16"); a.e("s_lshl_b32 s28, s28, 8"); a.e("s_and_b32 s28, s28, 0x2000"); a.e("s_xor_b32 s28, s28, s47"); a.e("s_add_u32 s29, s29, s28")
    a.e("s_and_b32 s28, s2, 3"); a.e("s_lshl_b32 s28, s28, 14"); a.e("s_add_u32 s29, s29, s28"); a.e("s_lshl_b32 s28, s24, 11"); a.e("s_add_u32 s29, s29, s28")
    a.e("buffer_store_dwordx4 v[28:31], v4, s[8:11], s29 offen sc1"); a.e("buffer_store_dwordx4 v[28:31], v4, s[8:11], s29 offen offset:1024 sc1")
    a.e("s_cmp_eq_u32 s24, 3"); a.e("s_cbranch_scc1 I_w3")
    a.e("s_mul_i32 s28, s2, 3"); a.e("s_add_u32 s28, s28, s24"); a.e("s_cmp_ge_u32 s28, 384"); a.e("s_cselect_b32 s29, 384, 0"); a.e(f"s_cselect_b32 s30, {LOC_STRIDE}, 0"); a.e(f"s_add_u32 s30, s30, {WS_LOC}")
    a.e("s_sub_u32 s28, s28, s29"); a.e("s_lshl_b32 s29, s28, 10"); a.e("s_add_u32 s29, s29, s30"); a.e("s_lshr_b32 s28, s28, 1"); a.e("s_cmp_eq_u32 s28, 8"); a.e("s_cbranch_scc1 I_z")
    a.e("buffer_store_dwordx4 v[28:31], v4, s[8:11], s29 offen sc1"); a.e("s_branch I_d")
    a.label("I_w3")
    a.e("s_cmp_ge_u32 s2, 64"); a.e("s_cbranch_scc1 I_d")
    a.e("s_lshl_b32 s29, s2, 10"); a.e(f"s_add_u32 s29, s29, {WS_FLAGS}")
    a.label("I_z")
    a.e("buffer_store_dwordx4 v[32:35], v4, s[8:11], s29 offen sc1")
    a.label("I_d")
    a.e("s_waitcnt vmcnt(2)")
    for i in range(5):
        a.e(f"buffer_store_dwordx4 {vr(8+4*i,4)}, v4, s[8:11], s27 offen sc1"); a.e("s_add_u32 s27, s27, 4096")
    a.e("s_waitcnt vmcnt(0)")

def census_wait(a, lab):
    a.e("v_mbcnt_lo_u32_b32 v3, -1, 0"); a.e("v_and_b32 v3, 15, v3"); a.e("v_min_u32 v3, 8, v3")
    a.e("v_and_b32 v4, 1, v3"); a.e("v_lshlrev_b32 v3, 2, v3"); a.e("v_lshl_add_u32 v3, v4, 7, v3")
    a.label(lab)
    a.e("buffer_load_dword v2, v3, s[4:7], 0 offen sc1")
    guard(a)
    a.e("s_waitcnt vmcnt(0)")
    for i in range(9): a.e(f"v_readlane_b32 s{84+i}, v2, {i}")
    a.e("s_mov_b32 s93, 0")
    for i in range(8): a.e(f"s_add_u32 s93, s93, s{84+i}")
    a.e("s_add_u32 s94, s84, s85"); a.e("s_sub_u32 s94, s94, s92"); a.e("s_sub_u32 s93, s93, 256"); a.e("s_or_b32 s93, s93, s94")
    a.e("s_cmp_eq_u32 s93, 0"); a.e(f"s_cbranch_scc1 {lab}_ok"); a.e("s_sleep 2"); a.e(f"s_branch {lab}")
    a.label(f"{lab}_ok")

def atomic_rank(a, lab, voff_expr, dst):
    a.e("s_cmp_lg_u32 s24, 0"); a.e(f"s_cbranch_scc1 {lab}")
    a.e("v_mov_b32 v3, 1"); a.e("v_mov_b32 v4, s25"); a.e("s_mov_b64 exec, 1")
    a.e("buffer_atomic_add v3, v4, s[4:7], 0 offen sc0 sc1")
    a.e("s_waitcnt vmcnt(0)")
    a.e("v_mov_b32 v4, 0"); a.e("ds_write_b32 v4, v3"); a.e("s_waitcnt lgkmcnt(0)"); a.e("s_mov_b64 exec, -1")
    a.label(lab)
    a.e("s_barrier")
    a.e("v_mov_b32 v4, 0"); a.e("ds_read_b32 v3, v4"); a.e("s_waitcnt lgkmcnt(0)")
    a.e(f"v_readfirstlane_b32 {dst}, v3")
    a.e("s_barrier")

def build(prof=0, only=None, lists=None, nochain=False, budget=1 << 22, force_slow=False, qk={}, vo={}, proftask=False, flip=0):
    a = Asm()
    if lists is None: lists, _ = schedule()
    if only is not None: lists = [[w for w in l if (w & 255) in only] for l in lists]
    maxlen = max(len(l) for l in lists) + 1
    a.e("s_cmp_ge_u32 s2, 256"); a.e("s_cbranch_scc1 L_end")
    a.e("""
s_load_dwordx2 s[8:9], s[0:1], 96
s_load_dwordx2 s[4:5], s[0:1], 88
s_getreg_b32 s3, hwreg(HW_REG_XCC_ID)
s_and_b32 s3, s3, 7
v_lshrrev_b32 v1, 6, v0
s_nop 0
v_readfirstlane_b32 s24, v1
s_waitcnt lgkmcnt(0)
s_mov_b32 s10, 0x10000000
s_mov_b32 s11, 0x20000
s_mov_b32 s6, 256
s_mov_b32 s7, 0x20000
""")
    a.e(f"s_mov_b32 s82, {budget}"); a.e(f"s_mov_b32 s47, {flip*8192}")
    if prof or proftask:
        a.e("s_mov_b32 s56, s8"); a.e("s_mov_b32 s57, s9"); a.e("s_mov_b32 s58, 0x10000000"); a.e("s_mov_b32 s59, 0x20000"); a.e("s_mov_b32 s83, 0")
        a.e("s_memrealtime s[96:97]")
    if force_slow: a.e("s_lshr_b32 s3, s2, 5"); a.e("s_mul_i32 s3, s3, 3"); a.e("s_and_b32 s3, s3, 7"); a.e("s_max_u32 s3, s3, 1")
    a.e("s_and_b32 s25, s3, 1"); a.e("s_lshl_b32 s25, s25, 7"); a.e("s_lshl_b32 s26, s3, 2"); a.e("s_add_u32 s95, s25, s26")
    a.e("s_cmp_ge_u32 s3, 2"); a.e("s_cbranch_scc1 M_late")
    a.e("s_mov_b32 s25, s95")
    atomic_rank(a, "M_a1", None, "s26")
    a.e("s_mov_b32 s80, s26")
    init_work(a)
    a.e("s_barrier")
    a.e("s_cmp_lg_u32 s24, 0"); a.e("s_cbranch_scc1 M_b")
    a.e("v_mov_b32 v3, 1"); a.e("v_mov_b32 v4, 32"); a.e("s_mov_b64 exec, 1")
    a.e("buffer_atomic_add v3, v4, s[4:7], 0 offen sc1"); a.e("s_mov_b64 exec, -1")
    a.label("M_b")
    a.e("s_cmp_ge_u32 s80, 32"); a.e("s_cbranch_scc1 M_worker")
    a.e("s_mov_b32 s25, s3"); a.e("s_mov_b32 s26, s80"); a.e("s_branch M_chain")
    a.label("M_late")
    a.L += [l.replace("I_", "J_") for l in _sub(init_work)]
    a.e("s_barrier")
    a.e("s_mov_b32 s25, s95")
    atomic_rank(a, "M_a2", None, "s80")
    a.label("M_worker")
    census_wait(a, "M_cw")
    a.e("s_mov_b32 s79, s80")
    a.e("s_cmp_lt_u32 s3, 2"); a.e("s_cselect_b32 s25, 32, 0"); a.e("s_sub_u32 s79, s79, s25")
    for x in range(7):
        if x < 2: a.e(f"s_max_u32 s25, s{84+x}, 32"); a.e("s_sub_u32 s25, s25, 32")
        else: a.e(f"s_mov_b32 s25, s{84+x}")
        a.e(f"s_cmp_gt_u32 s3, {x}"); a.e("s_cselect_b32 s25, s25, 0"); a.e("s_add_u32 s79, s79, s25")
    a.e("s_min_u32 s25, s84, 32"); a.e("s_sub_u32 s27, 32, s25"); a.e("s_min_u32 s26, s85, 32"); a.e("s_sub_u32 s28, 32, s26")
    a.e("s_cmp_lt_u32 s79, s27"); a.e("s_cbranch_scc0 M_n0")
    a.e("s_add_u32 s26, s25, s79"); a.e("s_mov_b32 s25, 0"); a.e("s_branch M_chain")
    a.label("M_n0"); a.e("s_sub_u32 s79, s79, s27")
    a.e("s_cmp_lt_u32 s79, s28"); a.e("s_cbranch_scc0 M_n1")
    a.e("s_add_u32 s26, s26, s79"); a.e("s_mov_b32 s25, 1"); a.e("s_branch M_chain")
    a.label("M_n1"); a.e("s_sub_u32 s79, s79, s28")
    if proftask: a.e("s_lshl_b32 s98, s79, 9"); a.e(f"s_add_u32 s98, s98, {WS_PROF+65536}")
    worker(a, "W_table", maxlen)
    a.e("s_branch L_fin")
    a.label("M_chain")
    if nochain: a.e("s_branch L_fin")
    if prof or proftask:
        a.e("s_lshl_b32 s39, s25, 5"); a.e("s_add_u32 s39, s39, s26"); a.e("s_lshl_b32 s39, s39, 2"); a.e("s_add_u32 s39, s39, s24"); a.e("s_lshl_b32 s39, s39, 6"); a.e(f"s_add_u32 s39, s39, {WS_PROF}")
    a.e("s_cmp_ge_u32 s26, 16"); a.e("s_cbranch_scc1 M_vo")
    a.e("s_lshl_b32 s27, s25, 4"); a.e("s_add_u32 s27, s27, s26")
    chain.qk_role(a, prof=prof, cw=census_wait, **qk)
    a.e("s_branch L_cfin")
    a.label("M_vo")
    a.e("s_sub_u32 s26, s26, 16"); a.e("s_lshl_b32 s27, s25, 4"); a.e("s_add_u32 s27, s27, s26")
    chain.vo_role(a, prof=prof, cw=census_wait, **vo)
    a.label("L_cfin")
    if prof or proftask:
        a.e("""
s_memrealtime s[80:81]
s_waitcnt lgkmcnt(0)
s_mov_b64 exec, 1
v_mov_b32 v2, s39
v_mov_b32 v4, s96
v_mov_b32 v5, s98
v_mov_b32 v6, s80
v_mov_b32 v7, s83
buffer_store_dwordx4 v[4:7], v2, s[56:59], 0 offen offset:32
s_waitcnt vmcnt(0)
""")
    a.label("L_abort")
    a.label("L_fin")
    a.label("L_end")
    a.e("s_endpgm")
    a.e(".p2align 2")
    a.label("W_table")
    for l in lists:
        a.e(".long " + ",".join(str(w) for w in l + [0]*(maxlen-len(l))))
    txt = a.text()
    pt = "s_memrealtime s[100:101]\n  s_waitcnt lgkmcnt(0)\n  v_mov_b32 v2, s78\n  v_mov_b32 v3, s100\n  v_mov_b32 v4, s98\n  s_mov_b64 exec, 1\n  buffer_store_dwordx2 v[2:3], v4, s[8:11], 0 offen\n  s_mov_b64 exec, -1\n  s_add_u32 s98, s98, 8" if proftask else "s_nop 0"
    txt = txt.replace("PROFTASK", pt)
    txt = txt.replace("LOOPSTART", "s_memrealtime s[98:99]\n  s_waitcnt lgkmcnt(0)" if (prof or proftask) else "s_nop 0")
    return txt
WS_PROF = 200*MB
def _sub(f):
    b = Asm(); f(b); return b.L

HEADER = open("concat_heads__memory_aug_recurrent_mem_tr__sliding_block__prompt.s.ref").read().split("; Override")[0] if __name__ == "__main__" else ""
def full(body, name=NAME, header=""):
    return f"""{header}; @launch grid=(256,1,1) block=(256,1,1) lds=163840
.amdgcn_target "amdgcn-amd-amdhsa--gfx950"
.text
.globl {name}
.p2align 8
.type {name},@function
{name}:
{body}
.section .rodata,"a"
.p2align 6
.amdhsa_kernel {name}
  .amdhsa_next_free_vgpr 512
  .amdhsa_next_free_sgpr 102
  .amdhsa_accum_offset 256
  .amdhsa_group_segment_fixed_size 0
  .amdhsa_kernarg_size 104
  .amdhsa_user_sgpr_count 2
  .amdhsa_user_sgpr_kernarg_segment_ptr 1
  .amdhsa_system_sgpr_workgroup_id_x 1
  .amdhsa_float_denorm_mode_32 3
.end_amdhsa_kernel
"""
if __name__ == "__main__":
    txt = full(build(), header=HEADER)
    open("concat_heads__memory_aug_recurrent_mem_tr__sliding_block__prompt.s", "w").write(txt)
    print(len(txt))
```

```python
import math
from asmlib import *
from layout import *

SM64 = "v_smfmac_f32_16x16x64_bf16"
SM32 = "v_smfmac_f32_16x16x32_bf16"
CEXP = 192**-0.5 * math.log2(math.e)
import struct
def fbits(x): return struct.unpack("<I", struct.pack("<f", x))[0]


def load_weights(a, chunks, tmp):
    n = len(chunks)
    issued = 0
    cnt_after = []
    def can_issue(k, nxt):
        c = chunks[nxt]
        for q in range(k, nxt):
            d = chunks[q]
            if c['off'] < d['off'] + d['size'] and d['off'] < c['off'] + c['size']: return False
        for q in range(0, k):
            d = chunks[q]
            if d['res'] and c['off'] < d['off'] + d['size'] and d['off'] < c['off'] + c['size']: raise Exception("overlap resident")
        out = sum(len(chunks[q]['dma']) for q in range(k, nxt+1))
        return out <= 36
    def issue_some(k):
        nonlocal issued
        while issued < n and can_issue(k, issued):
            for it in chunks[issued]['dma']: a.e("\n".join(it))
            issued += 1
    issue_some(0)
    for k in range(n):
        c = chunks[k]
        after = sum(len(chunks[q]['dma']) for q in range(k+1, issued))
        a.e(f"s_waitcnt vmcnt({after})")
        a.e("s_barrier")
        issue_some(k)
        for ins in c['pre']: a.e(ins)
        for i, ins in enumerate(c['tr']):
            a.e(ins)
            if i % 12 == 11: a.e("s_waitcnt lgkmcnt(4)")
        a.e("s_waitcnt lgkmcnt(0)")
        if c['res']:
            a.e("s_barrier")
            for ins in c['res']: a.e(ins)
            a.e("s_waitcnt lgkmcnt(0)")
    a.e("s_barrier")

def common_consts(a, vIdx, vSB, vStW, vH2, vMk, MEMIMG):
    a.e("v_and_b32 v2, 8, v1")
    a.e("v_cmp_eq_u32 vcc, 0, v2")
    a.e("v_mov_b32 v3, 0xeeeeeeee")
    a.e("v_mov_b32 v4, 0x44444444")
    a.e(f"v_cndmask_b32 v{vIdx}, v3, v4, vcc")
    a.e("v_lshrrev_b32 v2, 5, v1")
    a.e("v_bfe_u32 v3, v1, 3, 1")
    a.e("v_cmp_eq_u32 s[30:31], v2, v3")
    a.e("v_and_b32 v2, 1, v1")
    a.e("v_lshlrev_b32 v2, 4, v2")
    a.e("v_mov_b32 v3, 0x3f80")
    a.e("v_lshlrev_b32 v3, v2, v3")
    a.e("v_bfe_u32 v4, v1, 1, 2")
    for q in range(4):
        a.e(f"v_cmp_eq_u32 vcc, {q}, v4")
        a.e("s_and_b64 vcc, vcc, s[30:31]")
        a.e(f"v_cndmask_b32 v{vSB+q}, 0, v3, vcc")
    a.e("v_lshrrev_b32 v2, 4, v1")
    a.e("s_mul_i32 s30, s24, 20")
    a.e("v_add_u32 v2, s30, v2")
    a.e("v_lshlrev_b32 v2, 7, v2")
    a.e("v_and_b32 v3, 7, v1")
    a.e("v_lshl_add_u32 v2, v3, 4, v2")
    a.e("v_bfe_u32 v3, v1, 3, 1")
    a.e("v_lshl_add_u32 v2, v3, 3, v2")
    a.e(f"v_add_u32 v{vStW}, {MEMIMG}, v2")
    a.e("v_bfe_u32 v2, v1, 4, 1")
    a.e("v_lshlrev_b32 v2, 12, v2")
    a.e("v_bfe_u32 v3, v1, 2, 2")
    a.e("v_lshl_add_u32 v2, v3, 7, v2")
    a.e("v_lshrrev_b32 v3, 5, v1")
    a.e("v_lshl_add_u32 v2, v3, 6, v2")
    a.e("v_and_b32 v3, 3, v1")
    a.e(f"v_lshl_add_u32 v{vH2}, v3, 4, v2")
    a.e("v_and_b32 v2, 15, v1")
    a.e(f"v_mul_u32_u24 v{vMk}, {MKS[0]}, v2")
    for k in range(5):
        a.e(f"s_mul_i32 s30, s24, 5")
        a.e(f"s_add_u32 s30, s30, {k}")
        a.e(f"s_lshr_b32 s31, s30, 3")
        a.e(f"s_lshl_b32 s31, s31, 14")
        a.e(f"s_and_b32 s30, s30, 7")
        a.e(f"s_lshl_b32 s30, s30, 9")
        a.e(f"s_add_u32 s{40+k}, s30, s31")
    a.e(f"s_mul_i32 s46, s25, {LOC_STRIDE}")
    a.e(f"s_add_u32 s46, s46, {WS_LOC}")
    a.e(f"s_add_u32 s45, s46, {LOC_MK}")

def h2_base(a, dst, stepreg_plus):
    a.e(f"s_add_u32 s30, s28, 1")
    a.e(f"s_lshl_b32 {dst}, s30, 16")
    a.e(f"s_lshl_b32 s30, s30, 8")
    a.e(f"s_and_b32 s30, s30, 0x2000")
    a.e(f"s_xor_b32 s30, s30, s47")
    a.e(f"s_add_u32 {dst}, {dst}, s30")

def stage_mem0(a, MEMIMG, tmp):
    for i in range(3):
        a.e(f"v_add_u32 v2, {256*i}, v0")
        a.e("v_min_u32 v2, 639, v2")
        a.e("v_and_b32 v3, 7, v2")
        a.e("v_mul_u32_u24 v3, 1280, v3")
        a.e("v_lshrrev_b32 v4, 3, v2")
        a.e("v_lshl_add_u32 v3, v4, 4, v3")
        a.e(f"buffer_load_dwordx4 {vr(tmp+4*i,4)}, v3, s[20:23], 0 offen")
        a.e(f"v_lshlrev_b32 v{tmp+12+i}, 4, v2")
    a.e("s_waitcnt vmcnt(0)")
    for i in range(3):
        a.e(f"v_add_u32 v{tmp+12+i}, {MEMIMG}, v{tmp+12+i}")
        a.e(f"ds_write_b128 v{tmp+12+i}, {vr(tmp+4*i,4)}")
    a.e("s_waitcnt lgkmcnt(0)")

PSEL = [0]
MKS = [128]
def ts(a, prof, idx, sel=0):
    if prof and (sel == PSEL[0] or idx in (0, 5, 6)): a.e(f"s_memtime s[{60+2*idx}:{61+2*idx}]")

def h2_stage(a, lab, PD, D0, D1, vSB, vStW, vH2, vMk, tmpv, presleep, prof, after=None, nafter=0):
    h2_base(a, "s53", None)
    for k in range(5): a.e(f"s_add_u32 s{48+k}, s53, s{40+k}")
    a.e("s_add_u32 s30, s28, 1")
    for i in range(presleep): a.e("s_sleep 1")
    a.label(f"{lab}_mk")
    a.e(f"buffer_load_dword v{tmpv}, v{vMk}, s[8:11], s45 offen sc1")
    a.e("s_sub_u32 s82, s82, 1"); a.e("s_cbranch_scc1 L_abort")
    a.e("s_waitcnt vmcnt(0)")
    a.e(f"v_cmp_gt_u32 vcc, s30, v{tmpv}")
    a.e(f"s_cbranch_vccnz {lab}_mk")
    ts(a, prof, 5)
    def body(extra, aft, again):
        for k in range(5):
            a.e(f"buffer_load_dwordx4 {vr(PD+4*k,4)}, v{vH2}, s[8:11], s{48+k} offen sc1")
        if aft: aft()
        for k in range(5):
            a.e(f"s_waitcnt vmcnt({4-k+extra})")
            if again.endswith("r") and aft is after: ts(a, prof, [1,2,3,4,7][k], 1)
            r = PD+4*k
            if k == 0: a.e(f"v_max3_u32 v{tmpv}, v{r}, v{r+1}, v{r+2}"); a.e(f"v_max_u32 v{tmpv}, v{tmpv}, v{r+3}")
            else: a.e(f"v_max3_u32 v{tmpv}, v{r}, v{r+1}, v{tmpv}"); a.e(f"v_max3_u32 v{tmpv}, v{r+2}, v{r+3}, v{tmpv}")
            a.e(f"v_mfma_f32_16x16x32_bf16 {vr(r,4)}, {vr(r,4)}, {vr(vSB,4)}, 0")
            if k >= 3:
                q = PD+4*(k-3)
                a.e(f"v_cvt_pk_bf16_f32 v{q}, v{q}, v{q+1}")
                a.e(f"v_cvt_pk_bf16_f32 v{q+1}, v{q+2}, v{q+3}")
                a.e(f"ds_write_b64 v{vStW}, {vr(q,2)} offset:{512*(k-3)}")
        a.e(f"v_cmp_eq_u32 vcc, -1, v{tmpv}")
        for k in (2, 3, 4):
            q = PD+4*k
            if k == 4: a.nop(1)
            a.e(f"v_cvt_pk_bf16_f32 v{q}, v{q}, v{q+1}")
            a.e(f"v_cvt_pk_bf16_f32 v{q+1}, v{q+2}, v{q+3}")
            a.e(f"ds_write_b64 v{vStW}, {vr(q,2)} offset:{512*k}")
        a.e(again)
    body(nafter, after, f"s_cbranch_vccnz {lab}_h2r")
    a.label(f"{lab}_h2done")
    a.e("s_waitcnt lgkmcnt(0)")
    a.e("s_barrier")
    def retry():
        a.label(f"{lab}_h2r")
        if prof: a.e("s_add_u32 s83, s83, 1")
        body(0, lambda: (a.e("s_sub_u32 s82, s82, 1"), a.e("s_cbranch_scc1 L_abort")), f"s_cbranch_vccnz {lab}_h2r")
        a.e(f"s_branch {lab}_h2done")
    return retry

def prof_dump(a, prof, lab):
    if not prof: return
    a.e(f"s_cmp_lg_u32 s28, {prof}")
    a.e(f"s_cbranch_scc1 {lab}_nodump")
    a.e("s_waitcnt lgkmcnt(0)")
    a.e("s_mov_b64 exec, 1")
    a.e("v_mov_b32 v2, s39")
    for i in range(8):
        a.e(f"v_mov_b32 v3, s{60+2*i}")
        a.e(f"buffer_store_dword v3, v2, s[56:59], 0 offen offset:{4*i}")
        a.e("s_nop 1")
    a.e("s_mov_b64 exec, -1")
    a.label(f"{lab}_nodump")

def qk_role(a, slow=False, cw=None, pre="QK", prof=0, mk_sleep=2, nsteps=64, upf=0, pf_sleep=0, pfpos=(2,11), x_yc=1, x_km=1, x_kx=1, yc_sleep=0, hk_sleep=0):
    LST = "sc1" if slow else ""
    MEMIMG = 98304; SCR = 108544
    vIdx, vMask, vI, vSB = 8, 9, 10, 12
    vArd, vStW, vH2, vMk, vKx32, vKx16, vScW0, vScW1, vScWm, vScR, vScRm, vPx, vPm, vKmA, vKmB, vL16 = range(16, 32)
    RING = 32; TMP = 48; ACC = 60; KX = 72; BST = 84
    WV = 132
    TMP = 48; ACC = 56; KX = 68; BST = 80; WV = 128
    def wreg(o): return ar(8*o, 8) if o < 32 else vr(WV + 8*(o-32), 8)
    def wsub(o, k): return ar(8*o+k, 2) if o < 32 else vr(WV + 8*(o-32)+k, 2)
    a.e("v_and_b32 v1, 63, v0")
    a.e("s_load_dwordx4 s[32:35], s[0:1], 16")
    a.e("s_load_dwordx2 s[20:21], s[0:1], 8")
    a.e("s_waitcnt lgkmcnt(0)")
    a.e("s_cmp_lt_u32 s24, 2")
    a.e("s_cselect_b32 s12, s32, s34")
    a.e("s_cselect_b32 s13, s33, s35")
    a.e("s_mov_b32 s14, 7864320")
    a.e("s_mov_b32 s15, 0x20000")
    a.e("s_mov_b32 s22, 10240")
    a.e("s_mov_b32 s23, 0x20000")
    DV = 40
    for i in range(6):
        a.e("s_and_b32 s30, s24, 1")
        a.e("s_mul_i32 s30, s30, 384")
        a.e(f"s_add_u32 s30, s30, {64*i}")
        a.e("v_add_u32 v2, s30, v1")
        a.e("v_mul_u32_u24 v3, 2731, v2")
        a.e("v_lshrrev_b32 v3, 16, v3")
        a.e("v_mul_u32_u24 v4, 24, v3")
        a.e("v_sub_u32 v4, v2, v4")
        a.e("v_mul_u32_u24 v3, 12288, v3")
        a.e(f"v_lshl_add_u32 v{DV+i}, v4, 4, v3")
    a.e("v_bfe_u32 v2, v1, 3, 1")
    a.e("v_mul_u32_u24 v2, 12288, v2")
    a.e("v_lshrrev_b32 v3, 4, v1")
    a.e("v_lshlrev_b32 v3, 2, v3")
    a.e("v_bfe_u32 v4, v1, 2, 1")
    a.e("v_add_u32 v3, v3, v4")
    a.e("v_mul_u32_u24 v3, 384, v3")
    a.e("v_add_u32 v2, v2, v3")
    a.e("s_mul_i32 s30, s24, 48")
    a.e("s_and_b32 s31, s24, 1")
    a.e("s_lshl_b32 s32, s31, 4")
    a.e("s_add_u32 s32, s32, s30")
    a.e("s_xor_b32 s31, s31, 1")
    a.e("s_lshl_b32 s33, s31, 5")
    a.e("s_add_u32 s33, s33, s30")
    a.e("v_bfe_u32 v3, v1, 1, 1")
    a.e("v_and_b32 v4, 1, v1")
    a.e("v_lshlrev_b32 v3, 4, v3")
    a.e("v_lshl_add_u32 v3, v4, 2, v3")
    a.e("v_add_u32 v3, s32, v3")
    a.e(f"v_lshl_add_u32 v{DV+6}, v3, 1, v2")
    a.e(f"v_add_u32 v{DV+7}, 16, v{DV+6}")
    a.e("v_and_b32 v3, 3, v1")
    a.e("v_lshlrev_b32 v3, 2, v3")
    a.e("v_add_u32 v3, s33, v3")
    a.e(f"v_lshl_add_u32 v{DV+8}, v3, 1, v2")
    a.e(f"v_lshlrev_b32 v{vL16}, 4, v1")
    a.e("s_mul_i32 s34, s27, 384")
    a.e("s_mul_i32 s35, s24, 6144")
    a.e(f"v_add_u32 v{DV+12}, s35, v{vL16}")
    chunks = []
    for k in range(20):
        off = ((k+2) % 6)*24576
        dma = []
        for i in range(6):
            p = []
            if i == 0:
                p += [f"s_add_u32 m0, s35, {off}", f"s_add_u32 s36, s34, {k*32*12288}"]
            else:
                p += ["s_add_u32 m0, m0, 1024", "s_nop 0"]
            dma.append(p + [f"buffer_load_dwordx4 v{DV+i}, s[12:15], s36 offen lds"])
        prel = [f"v_add_u32 v{DV+9+t}, {off}, v{DV+6+t}" for t in range(3)]
        tr = []
        for t in range(3):
            for H in range(2):
                for p in range(2):
                    dst = wsub(k*3+t, 4*H+2*p) if k < 16 else vr(BST + 8*t + 4*H + 2*p, 2)
                    tr.append(f"ds_read_b64_tr_b16 {dst}, v{DV+9+t} offset:{(16*H+2*p)*384}")
        res = None
        if k >= 16:
            res = [f"v_add_u32 v2, {off}, v{DV+12}"] + [f"ds_write_b128 v2, {vr(BST+4*q,4)} offset:{1024*q}" for q in range(6)]
        chunks.append(dict(off=off, size=24576, dma=dma, pre=prel, tr=tr, res=res))
    load_weights(a, chunks, None)
    if cw:
        cw(a, f"{pre}_cw")
        a.e("s_min_u32 s81, s84, s85")
    common_consts(a, vIdx, vSB, vStW, vH2, vMk, MEMIMG)
    a.e("v_lshrrev_b32 v2, 4, v1")
    a.e("v_bfe_u32 v3, v1, 2, 2")
    a.e("v_cmp_eq_u32 s[30:31], v2, v3")
    a.e("v_and_b32 v2, 1, v1")
    a.e("v_lshlrev_b32 v2, 4, v2")
    a.e("v_mov_b32 v3, 0x3f80")
    a.e("v_lshlrev_b32 v3, v2, v3")
    a.e("v_bfe_u32 v4, v1, 1, 1")
    for q in range(2):
        a.e(f"v_cmp_eq_u32 vcc, {q}, v4")
        a.e("s_and_b64 vcc, vcc, s[30:31]")
        a.e(f"v_cndmask_b32 v{vI+q}, 0, v3, vcc")
    a.e(f"v_mov_b32 v{vMask}, 0x7fff7fff")
    a.e("v_lshrrev_b32 v2, 4, v1")
    a.e("v_and_b32 v3, 7, v1")
    a.e("v_lshlrev_b32 v2, 7, v2")
    a.e("v_lshl_add_u32 v2, v3, 4, v2")
    a.e(f"v_add_u32 v{vArd}, {MEMIMG}, v2")
    a.e("v_bfe_u32 v2, v1, 2, 1"); a.e("v_lshlrev_b32 v2, 2, v2")
    a.e("v_bfe_u32 v3, v1, 3, 1"); a.e("v_lshl_add_u32 v2, v3, 1, v2")
    a.e("v_and_b32 v3, 1, v1"); a.e("v_add_u32 v2, v2, v3")
    a.e("v_bfe_u32 v3, v1, 1, 1"); a.e("v_lshl_add_u32 v2, v3, 3, v2")
    a.e("v_bfe_u32 v3, v1, 4, 1"); a.e("v_lshl_add_u32 v2, v3, 5, v2")
    a.e("v_lshlrev_b32 v2, 4, v2")
    a.e("v_lshrrev_b32 v3, 5, v1")
    a.e("s_lshl_b32 s30, s32, 6")
    a.e("s_lshl_b32 s31, s33, 6")
    a.e("v_lshl_add_u32 v4, v3, 10, v2"); a.e(f"v_add_u32 v{vKx32}, s30, v4")
    a.e("v_lshl_add_u32 v4, v3, 3, v2"); a.e(f"v_add_u32 v{vKx16}, s31, v4")
    a.e("v_and_b32 v2, 7, v1"); a.e("v_lshlrev_b32 v2, 4, v2")
    a.e("v_lshrrev_b32 v3, 4, v1"); a.e("v_lshl_add_u32 v4, v3, 7, v2")
    a.e("s_lshl_b32 s30, s32, 4"); a.e(f"v_add_u32 v{vKmA}, s30, v4")
    a.e("v_bfe_u32 v3, v1, 4, 1"); a.e("v_lshl_add_u32 v4, v3, 7, v2")
    a.e("v_lshrrev_b32 v3, 5, v1"); a.e("v_lshl_add_u32 v4, v3, 3, v4")
    a.e("s_lshl_b32 s30, s33, 4"); a.e(f"v_add_u32 v{vKmB}, s30, v4")
    a.e("s_mul_i32 s30, s24, 1536"); a.e(f"s_add_u32 s30, s30, {SCR}")
    a.e("v_and_b32 v2, 7, v1"); a.e("v_lshrrev_b32 v3, 4, v1")
    a.e("v_xor_b32 v4, v3, v2"); a.e("v_lshl_add_u32 v4, v2, 3, v4"); a.e("v_lshlrev_b32 v4, 4, v4")
    a.e(f"v_add_u32 v{vScW0}, s30, v4"); a.e(f"v_xor_b32 v4, 64, v4"); a.e(f"v_add_u32 v{vScW1}, s30, v4")
    a.e("v_bfe_u32 v3, v1, 4, 1"); a.e("v_lshl_add_u32 v4, v2, 1, v3")
    a.e("v_lshrrev_b32 v3, 5, v1"); a.e("v_xor_b32 v3, 1, v3"); a.e("v_lshl_add_u32 v4, v3, 4, v4")
    a.e("v_lshlrev_b32 v4, 4, v4"); a.e("v_add_u32 v4, 1024, v4"); a.e(f"v_add_u32 v{vScWm}, s30, v4")
    a.e("v_lshrrev_b32 v2, 3, v1"); a.e("v_xor_b32 v3, v2, v1"); a.e("v_lshlrev_b32 v3, 4, v3")
    a.e(f"v_add_u32 v{vScR}, {SCR}, v3")
    a.e("v_and_b32 v3, 0x39, v1"); a.e("v_bfe_u32 v4, v1, 1, 1"); a.e("v_lshl_add_u32 v3, v4, 2, v3"); a.e("v_bfe_u32 v4, v1, 2, 1"); a.e("v_lshl_add_u32 v3, v4, 1, v3")
    a.e("v_lshlrev_b32 v3, 2, v3"); a.e(f"v_add_u32 v{vScRm}, {SCR+1024}, v3")
    a.e(f"v_lshlrev_b32 v{vPx}, 3, v1")
    a.e("v_lshrrev_b32 v3, 1, v1"); a.e("v_lshlrev_b32 v3, 2, v3"); a.e(f"v_add_u32 v{vPm}, 512, v3")
    a.e("s_mul_i32 s37, s26, 640"); a.e("s_add_u32 s37, s37, s46")
    a.e(f"s_mul_i32 s38, s27, 12288"); a.e(f"s_add_u32 s38, s38, {WS_K}")
    a.e(f"s_mul_i32 s54, s27, 3072"); a.e(f"s_add_u32 s54, s54, {WS_KM}")
    a.e(f"s_lshl_b32 s55, s27, 2"); a.e(f"s_add_u32 s55, s55, {WS_FLAGS}")
    a.e(f"s_lshl_b32 s34, s27, 7"); a.e(f"s_add_u32 s34, s34, {WS_FLAGS+F_KM}")
    a.e("s_mov_b32 s28, 0"); a.e("s_mov_b32 s29, 0")
    a.e(f"s_mov_b32 s36, {fbits(CEXP)}")
    def kflag_wait(lab, stepexpr_reg):
        a.e(f"s_lshr_b32 s30, {stepexpr_reg}, 3")
        a.e("s_lshl_b32 s30, s30, 7"); a.e("s_add_u32 s30, s30, s55")
        a.e("v_mov_b32 v3, 0")
        a.label(lab)
        a.e(f"buffer_load_dword v2, v3, s[8:11], s30 offen offset:{F_K} sc1")
        a.e("s_sub_u32 s82, s82, 1"); a.e("s_cbranch_scc1 L_abort")
        a.e("s_waitcnt vmcnt(0)")
        a.e("v_cmp_eq_u32 vcc, 0, v2")
        a.e(f"s_cbranch_vccnz {lab}")
    def kx_loads():
        for t in range(2):
            a.e(f"buffer_load_dwordx4 {vr(KX+4*t,4)}, v{vKx32}, s[8:11], s38 offen offset:{256*t} sc1")
        for t in range(2):
            a.e(f"buffer_load_dwordx2 {vr(KX+8+2*t,2)}, v{vKx16}, s[8:11], s38 offen offset:{256*t} sc1")
        if x_kx: a.e(f"s_add_u32 s38, s38, {32*12288}")
    a.e(f"v_add_u32 v6, s35, v{vL16}"); a.e("v_add_u32 v7, 49152, v6")

    def lrd(L, st):
        b = 6 + (L >> 1)
        return [f"ds_read_b128 {vr(BST+24*st+4*q,4)}, v{b} offset:{(L&1)*24576 + 1024*q}" for q in range(6)]
    def idle_prep():
        for q in range(12): a.e(f"v_mov_b32 v{ACC+q}, 0")
        for ins in lrd(0, 0) + lrd(1, 1): a.e(ins)
    kflag_wait(f"{pre}_kf0", "s28")
    kx_loads()
    stage_mem0(a, MEMIMG, RING)
    a.e("v_lshrrev_b32 v2, 2, v1"); a.e("v_and_b32 v3, 3, v1"); a.e("v_lshlrev_b32 v3, 2, v3"); a.e("v_lshl_add_u32 v0, v2, 7, v3")
    idle_prep()
    a.e("s_waitcnt lgkmcnt(0)")
    a.e("s_barrier")
    a.e("LOOPSTART")
    def emit_loop(pre, LST, prof):
        a.label(f"{pre}_loop")
        ts(a, prof, 0)
        regk = list(range(16)); order = []
        lpos = {2: 0, 6: 1, 12: 2, 17: 3}
        for p in range(20): order.append(16+lpos[p] if p in lpos else regk.pop(0))
        def aread(p): return f"ds_read_b128 {vr(RING+4*(p%4),4)}, v{vArd} offset:{512*order[p]}"
        for p in range(3): a.e(aread(p))
        lq = []
        lq += [("A", 0), ("A", 1), ("A", 2)]
        pendL = {3: lrd(2, 0), 7: lrd(3, 1)}
        extra_q = []
        for p in range(20):
            k = order[p]
            need = [("A", p)] + ([("L", k-16)] if k >= 18 else [])
            last = max(i for i, t in enumerate(lq) if t in need)
            a.e(f"s_waitcnt lgkmcnt({len(lq)-1-last})")
            lq = lq[last+1:]
            if p in pendL: extra_q = [(ins, ("L", 2 if p == 3 else 3)) for ins in pendL[p]]
            for t in range(3):
                B = wreg(k*3+t) if k < 16 else vr(BST + 24*((k-16)&1) + 8*t, 8)
                a.e(f"{SM64} {vr(ACC+4*t,4)}, {vr(RING+4*(p%4),4)}, {B}, v{vIdx}")
                if t == 0 and p+3 < 20:
                    a.e(aread(p+3)); lq.append(("A", p+3))
                elif t > 0 and extra_q:
                    ins, tag = extra_q.pop(0); a.e(ins); lq.append(tag)
                if upf and t == 2 and p in pfpos:
                    i = pfpos.index(p)
                    if i == 0: a.e(f"s_mov_b32 s87, s84")
                    a.e(f"buffer_load_dword v{TMP+6}, v0, s[8:11], s87 offen offset:{2048*i}")
        ts(a, prof, 1)
        X = TMP; T = RING; XO = BST; S = BST+8
        a.nop(3)
        for t in range(3):
            if t == 2: a.nop(1)
            a.e(f"v_cvt_pk_bf16_f32 v{X+2*t}, v{ACC+4*t}, v{ACC+4*t+1}")
            a.e(f"v_cvt_pk_bf16_f32 v{X+2*t+1}, v{ACC+4*t+2}, v{ACC+4*t+3}")
            if t > 0: a.e(f"v_mfma_f32_16x16x16_bf16 {vr(T+4*(t-1),4)}, {vr(X+2*(t-1),2)}, {vr(vI,2)}, 0")
        a.nop(1)
        a.e(f"v_mfma_f32_16x16x16_bf16 {vr(T+8,4)}, {vr(X+4,2)}, {vr(vI,2)}, 0")
        a.e(f"s_waitcnt vmcnt({2 if upf else 0})")
        a.nop(2)
        a.e(f"v_cvt_pk_bf16_f32 v{XO}, v{T}, v{T+1}"); a.e(f"v_cvt_pk_bf16_f32 v{XO+1}, v{T+2}, v{T+3}")
        a.nop(1)
        a.e(f"v_cvt_pk_bf16_f32 v{XO+2}, v{T+4}, v{T+5}"); a.e(f"v_cvt_pk_bf16_f32 v{XO+3}, v{T+6}, v{T+7}")
        a.nop(2)
        a.e(f"v_mfma_f32_16x16x32_bf16 {vr(S,4)}, {vr(KX,4)}, {vr(XO,4)}, 0")
        a.e(f"v_cvt_pk_bf16_f32 v{XO+4}, v{T+8}, v{T+9}"); a.e(f"v_cvt_pk_bf16_f32 v{XO+5}, v{T+10}, v{T+11}")
        a.e(f"v_mfma_f32_16x16x32_bf16 {vr(S+4,4)}, {vr(KX+4,4)}, {vr(XO,4)}, 0")
        a.e(f"v_mfma_f32_16x16x32_bf16 {vr(S+8,4)}, {vr(XO,4)}, {vr(XO,4)}, 0")
        a.e(f"v_mfma_f32_16x16x16_bf16 {vr(S,4)}, {vr(KX+8,2)}, {vr(XO+4,2)}, {vr(S,4)}")
        a.e(f"v_mfma_f32_16x16x16_bf16 {vr(S+4,4)}, {vr(KX+10,2)}, {vr(XO+4,2)}, {vr(S+4,4)}")
        a.e(f"v_mfma_f32_16x16x16_bf16 {vr(S+8,4)}, {vr(XO+4,2)}, {vr(XO+4,2)}, {vr(S+8,4)}")
        a.e("s_mov_b32 exec_lo, 0x00ff00ff"); a.e("s_mov_b32 exec_hi, 0x00ff00ff")
        a.nop(4)
        a.e(f"ds_write_b128 v{vScW0}, {vr(S,4)}")
        a.nop(3)
        a.e(f"ds_write_b128 v{vScW1}, {vr(S+4,4)}")
        a.nop(3)
        a.e(f"ds_write_b128 v{vScWm}, {vr(S+8,4)}")
        a.e("s_mov_b64 exec, -1")
        a.e(f"s_cmp_eq_u32 s28, {nsteps-1}")
        a.e(f"s_cbranch_scc1 {pre}_last")
        a.e("s_cmp_lg_u32 s24, 0")
        a.e("s_waitcnt lgkmcnt(0)")
        a.e("s_barrier")
        a.e(f"s_cbranch_scc1 {pre}_nosm")
        ts(a, prof, 2)
        R = BST+24; M = BST+40; W = RING
        for w in range(4):
            a.e(f"ds_read_b128 {vr(R+4*w,4)}, v{vScR} offset:{1536*w}")
            a.e(f"ds_read_b32 v{M+w}, v{vScRm} offset:{1536*w}")
        a.e("s_waitcnt lgkmcnt(4)")
        a.e(f"v_pk_add_f32 {vr(R,2)}, {vr(R,2)}, {vr(R+4,2)}"); a.e(f"v_pk_add_f32 {vr(R+2,2)}, {vr(R+2,2)}, {vr(R+6,2)}")
        a.e(f"v_add_f32 v{M}, v{M}, v{M+1}")
        a.e("s_waitcnt lgkmcnt(0)")
        a.e(f"v_pk_add_f32 {vr(R+8,2)}, {vr(R+8,2)}, {vr(R+12,2)}"); a.e(f"v_pk_add_f32 {vr(R+10,2)}, {vr(R+10,2)}, {vr(R+14,2)}")
        a.e(f"v_add_f32 v{M+2}, v{M+2}, v{M+3}")
        a.e(f"v_pk_add_f32 {vr(R,2)}, {vr(R,2)}, {vr(R+8,2)}"); a.e(f"v_pk_add_f32 {vr(R+2,2)}, {vr(R+2,2)}, {vr(R+10,2)}")
        a.e(f"v_add_f32 v{M}, v{M}, v{M+2}")
        a.e(f"v_max3_f32 v{W}, v{R}, v{R+1}, v{R+2}")
        a.e(f"v_max3_f32 v{W}, v{W}, v{R+3}, v{M}")
        for d in ("quad_perm:[1,0,3,2]", "quad_perm:[2,3,0,1]", "row_half_mirror"):
            a.nop(2)
            a.e(f"v_max_f32_dpp v{W}, v{W}, v{W} {d} row_mask:0xf bank_mask:0xf")
        a.e(f"v_mul_f32 v{W}, s36, v{W}")
        vals = [R, R+1, R+2, R+3, M]
        for v in vals: a.e(f"v_fma_f32 v{v}, v{v}, s36, -v{W}")
        for v in vals: a.e(f"v_exp_f32 v{v}, v{v}")
        a.e(f"v_add_f32 v{W}, v{R}, v{R+1}")
        a.e(f"v_add_f32 v{W+1}, v{R+2}, v{R+3}")
        a.e(f"v_add_f32 v{W}, v{W}, v{M}")
        a.e(f"v_add_f32 v{W}, v{W}, v{W+1}")
        for d in ("quad_perm:[1,0,3,2]", "quad_perm:[2,3,0,1]", "row_half_mirror"):
            a.nop(2)
            a.e(f"v_add_f32_dpp v{W}, v{W}, v{W} {d} row_mask:0xf bank_mask:0xf")
        a.e(f"v_rcp_f32 v{W}, v{W}")
        a.nop(1)
        a.e(f"v_mul_f32 v{M}, v{M}, v{W}")
        for v in vals[:4]: a.e(f"v_mul_f32 v{v}, v{v}, v{W}")
        a.e(f"v_mov_b32_dpp v{W+2}, v{M} quad_perm:[0,0,2,2] row_mask:0xf bank_mask:0xf")
        a.e(f"v_mov_b32_dpp v{W+3}, v{M} quad_perm:[1,1,3,3] row_mask:0xf bank_mask:0xf")
        a.e(f"v_cvt_pk_bf16_f32 v{W+4}, v{R}, v{R+1}")
        a.e(f"v_cvt_pk_bf16_f32 v{W+5}, v{R+2}, v{R+3}")
        a.e(f"v_cvt_pk_bf16_f32 v{W+6}, v{W+2}, v{W+3}")
        for q in (4, 5): a.e(f"v_bfi_b32 v{W+q}, v{vMask}, v{W+q}, s29")
        a.e(f"buffer_store_dwordx2 {vr(W+4,2)}, v{vPx}, s[8:11], s37 offen {LST}")
        a.e(f"v_bfi_b32 v{W+6}, v{vMask}, v{W+6}, s29")
        a.e(f"buffer_store_dword v{W+6}, v{vPm}, s[8:11], s37 offen {LST}")
        ts(a, prof, 3)
        a.label(f"{pre}_nosm")
        a.e("s_barrier")
        for i in range(hk_sleep): a.e("s_sleep 1")
        def yload():
            a.e("s_add_u32 s30, s85, s89")
            for q in range(4): a.e(f"buffer_load_dwordx4 {vr(BST+24+4*q,4)}, v{vL16}, s[8:11], s30 offen offset:{1024*q} sc1")
        def km_export():
            a.e("s_mov_b32 exec_lo, 0xff00ff00"); a.e("s_mov_b32 exec_hi, 0xff00ff00")
            if x_km:
                a.e(f"buffer_store_dwordx4 {vr(XO,4)}, v{vKmA}, s[8:11], s54 offen sc1")
                a.e(f"buffer_store_dwordx2 {vr(XO+4,2)}, v{vKmB}, s[8:11], s54 offen sc1")
            a.e("s_mov_b64 exec, -1")
            a.e(f"s_add_u32 s54, s54, {32*3072}")
        a.e("s_add_u32 s31, s28, 1"); a.e("s_and_b32 s30, s31, 7"); a.e("s_cmp_lg_u32 s30, 0")
        a.e(f"s_cbranch_scc1 {pre}_nokf")
        kflag_wait(f"{pre}_kf", "s31")
        a.label(f"{pre}_nokf")
        kx_loads()
        km_export()
        a.e("s_cmp_lg_u32 s24, 3"); a.e(f"s_cbranch_scc1 {pre}_nofl")
        a.e("v_mov_b32 v4, s28"); a.e("v_mov_b32 v5, 0"); a.e("s_mov_b64 exec, 1")
        a.e(f"buffer_store_dword v4, v5, s[8:11], s34 offen sc1")
        a.e("s_mov_b64 exec, -1")
        a.label(f"{pre}_nofl")
        a.nop(2)
        idle_prep()
        ts(a, prof, 4)
        retry = h2_stage(a, pre, RING, TMP+4, 2, vSB, vStW, vH2, vMk, 1, mk_sleep, prof)
        ts(a, prof, 6)
        prof_dump(a, prof, pre)
        a.e("s_add_u32 s28, s28, 1"); a.e("s_xor_b32 s29, s29, 0x80008000")
        a.e(f"s_branch {pre}_loop")
        retry()
        a.label(f"{pre}_last")
        km_export()
        a.e("s_waitcnt vmcnt(0)")
        a.e("s_barrier")
        a.e(f"v_mov_b32 v2, {nsteps}"); a.e("v_mov_b32 v3, 0"); a.e("s_mov_b64 exec, 1")
        a.e(f"buffer_store_dword v2, v3, s[8:11], s34 offen sc1")
        a.e("s_waitcnt vmcnt(0)")
        a.e("s_mov_b64 exec, -1")
        a.e(f"s_branch {pre0}_end")
    pre0 = pre
    if cw:
        a.e("s_cmp_lt_u32 s81, 32"); a.e(f"s_cbranch_scc1 {pre}S_loop")
        emit_loop(pre, "", prof)
        emit_loop(pre + "S", "sc1", 0)
    else:
        emit_loop(pre, LST, prof)
    a.label(f"{pre}_end")

def vo_role(a, slow=False, cw=None, pre="VO", prof=0, mk_sleep=0, p_sleep=1, y_sleep=3, nsteps=64, uload=1, upol="", upre=1, vsp=3, mkw_sleep=3, rs_sleep=2, uwait=0, ustep=1, novm=0):
    LST = "sc1" if slow else ""
    WOL = 49152; MEMIMG = 131072; VBUF = 141312; RSC = 144384
    vIdx, vSB = 8, 10
    vAst, vStW, vH2, vMk, vVw0, vVw1, vVr, vYst, vYs0, vYs2, vU0, vU1, vU2, vPx, vPm, vRw, vRr, vPub = range(14, 32)
    vL16 = 9
    PR = 32; ACC = 52; U = 72; BST = 120; WV = 160; VA = BST+24; vYs4 = 9
    def wreg(o): return ar(8*o, 8) if o < 32 else vr(WV + 8*(o-32), 8)
    def wsub(o, k): return ar(8*o+k, 2) if o < 32 else vr(WV + 8*(o-32)+k, 2)
    a.e("v_and_b32 v1, 63, v0")
    a.e("s_load_dwordx4 s[32:35], s[0:1], 32")
    a.e("s_load_dwordx2 s[20:21], s[0:1], 8")
    a.e("s_waitcnt lgkmcnt(0)")
    a.e("s_mov_b32 s12, s32"); a.e("s_mov_b32 s13, s33"); a.e("s_mov_b32 s14, 7864320"); a.e("s_mov_b32 s15, 0x20000")
    a.e("s_mov_b32 s16, s34"); a.e("s_mov_b32 s17, s35"); a.e("s_mov_b32 s18, 7864320"); a.e("s_mov_b32 s19, 0x20000")
    a.e("s_mov_b32 s22, 10240"); a.e("s_mov_b32 s23, 0x20000")
    DV = 72
    a.e("s_lshr_b32 s31, s24, 1"); a.e(f"s_mul_i32 s31, s31, {320*12288}")
    for i in range(6):
        a.e("s_and_b32 s30, s24, 1")
        a.e("s_mul_i32 s30, s30, 384")
        a.e(f"s_add_u32 s30, s30, {64*i}")
        a.e("v_add_u32 v2, s30, v1")
        a.e("v_mul_u32_u24 v3, 2731, v2")
        a.e("v_lshrrev_b32 v3, 16, v3")
        a.e("v_mul_u32_u24 v4, 24, v3")
        a.e("v_sub_u32 v4, v2, v4")
        a.e("v_mul_u32_u24 v3, 12288, v3")
        a.e(f"v_lshl_add_u32 v3, v4, 4, v3")
        a.e(f"v_add_u32 v{DV+i}, s31, v3")
    a.e(f"v_lshlrev_b32 v{vL16}, 4, v1")
    a.e("v_lshrrev_b32 v3, 4, v1"); a.e("v_lshlrev_b32 v3, 2, v3"); a.e("v_bfe_u32 v4, v1, 2, 1"); a.e("v_add_u32 v5, v3, v4")
    a.e("v_bfe_u32 v2, v1, 3, 1")
    a.e("v_mul_u32_u24 v3, 12288, v2"); a.e("v_mul_u32_u24 v4, 384, v5"); a.e("v_add_u32 v3, v3, v4")
    a.e("v_and_b32 v4, 3, v1"); a.e("v_lshl_add_u32 v3, v4, 3, v3")
    a.e("s_mul_i32 s30, s24, 96"); a.e(f"v_add_u32 v{DV+6}, s30, v3")
    a.e("v_mul_u32_u24 v3, 1280, v5"); a.e("v_lshl_add_u32 v3, v2, 5, v3"); a.e("v_lshl_add_u32 v3, v4, 3, v3")
    a.e("s_mul_i32 s30, s24, 320"); a.e(f"v_add_u32 v{DV+7}, s30, v3")
    a.e("s_mul_i32 s34, s27, 384")
    a.e("s_mul_i32 s35, s24, 6144")
    a.e("s_mul_i32 s37, s24, 5120")
    a.e("s_mul_i32 s38, s27, 245760")
    a.e(f"v_add_u32 v6, s35, v{vL16}")
    a.e(f"v_add_u32 v{DV+9}, s37, v{vL16}")
    a.e(f"v_add_u32 v7, {WOL}, v{DV+9}")
    chunks = []
    ring = [0]
    def nextslot():
        o = (ring[0] % 6)*24576; ring[0] += 1; return o
    def wv_chunk(io, off, res):
        dma = []
        for i in range(6):
            p = [f"s_add_u32 m0, s35, {off}", f"s_add_u32 s36, s34, {io*32*12288}"] if i == 0 else ["s_add_u32 m0, m0, 1024", "s_nop 0"]
            dma.append(p + [f"buffer_load_dwordx4 v{DV+i}, s[12:15], s36 offen lds"])
        tr = []
        for s_ in range(3):
            for H in range(2):
                for p in range(2):
                    dst = vr(BST+8*s_+4*H+2*p, 2) if res else wsub(io*3+s_, 4*H+2*p)
                    tr.append(f"ds_read_b64_tr_b16 {dst}, v{DV+8} offset:{(16*H+2*p)*384 + 32*s_}")
        r = [f"ds_write_b128 v6, {vr(BST+4*q,4)} offset:{off+1024*q}" for q in range(6)] if res else None
        return dict(off=off, size=24576, dma=dma, pre=[f"v_add_u32 v{DV+8}, {off}, v{DV+6}"], tr=tr, res=r)
    def wo_chunk(ep, H, off, res):
        dma = []
        for i in range(5):
            p = [f"s_add_u32 m0, s37, {off}", f"s_add_u32 s36, s38, {(2*ep+H)*20480}"] if i == 0 else ["s_add_u32 m0, m0, 1024", "s_add_u32 s36, s36, 1024"]
            dma.append(p + [f"buffer_load_dwordx4 v{DV+9}, s[16:19], s36 offen lds"])
        tr = []
        for t in range(5):
            for p in range(2):
                dst = vr(BST+4*t+2*p, 2) if res else wsub(24+ep*5+t, 4*H+2*p)
                tr.append(f"ds_read_b64_tr_b16 {dst}, v{DV+8} offset:{2*p*1280 + 64*t}")
        r = [f"v_add_u32 v2, {off}, v{DV+9}"] + [f"ds_write_b128 v2, {vr(BST+4*t,4)} offset:{1024*t}" for t in range(5)] if res else None
        return dict(off=off, size=20480, dma=dma, pre=[f"v_add_u32 v{DV+8}, {off}, v{DV+7}"], tr=tr, res=r)
    ring[0] = 2
    for io in range(8): chunks.append(wv_chunk(io, nextslot(), False))
    for ep in range(4):
        for H in range(2): chunks.append(wo_chunk(ep, H, nextslot(), False))
    chunks.append(wv_chunk(8, 0, True)); chunks.append(wv_chunk(9, 24576, True))
    for ep in (4, 5):
        for H in range(2): chunks.append(wo_chunk(ep, H, WOL + (ep-4)*40960 + H*20480, True))
    load_weights(a, chunks, None)
    if cw:
        cw(a, f"{pre}_cw")
        a.e("s_min_u32 s81, s84, s85")
    common_consts(a, vIdx, vSB, vStW, vH2, vMk, MEMIMG)
    a.e("v_lshrrev_b32 v2, 4, v1"); a.e("v_bfe_u32 v3, v1, 3, 1"); a.e("v_mul_u32_u24 v3, 40, v3"); a.e("v_add_u32 v2, v2, v3")
    a.e("v_lshlrev_b32 v2, 7, v2"); a.e("v_and_b32 v3, 7, v1"); a.e("v_lshl_add_u32 v2, v3, 4, v2")
    a.e(f"v_add_u32 v{vAst}, {MEMIMG}, v2")
    a.e("v_and_b32 v2, 15, v1"); a.e("v_lshlrev_b32 v2, 4, v2"); a.e("v_bfe_u32 v3, v1, 4, 1"); a.e("v_lshl_add_u32 v2, v3, 3, v2")
    a.e("s_mul_i32 s30, s24, 768"); a.e(f"s_add_u32 s30, s30, {VBUF}")
    a.e("v_add_u32 v2, s30, v2"); a.e(f"v_add_u32 v{vVw1}, 512, v2")
    a.e("v_lshrrev_b32 v3, 5, v1"); a.e(f"v_mul_u32_u24 v3, 4096, v3"); a.e(f"v_add_u32 v{vVw1}, v3, v{vVw1}")
    a.e("v_lshrrev_b32 v3, 5, v1"); a.e(f"v_lshl_add_u32 v{vVw0}, v3, 8, v2")
    a.e("v_lshrrev_b32 v2, 4, v1"); a.e("v_bfe_u32 v3, v1, 2, 2"); a.e("v_lshl_add_u32 v2, v2, 3, v3"); a.e("v_lshlrev_b32 v2, 4, v2")
    a.e("v_and_b32 v3, 1, v1"); a.e("v_lshl_add_u32 v2, v3, 3, v2"); a.e(f"v_add_u32 v{vVr}, {VBUF}, v2")
    a.e("v_and_b32 v2, 15, v1"); a.e("v_lshrrev_b32 v3, 5, v1"); a.e("v_lshl_add_u32 v2, v3, 4, v2"); a.e("v_lshlrev_b32 v2, 4, v2")
    a.e("v_bfe_u32 v3, v1, 4, 1"); a.e("v_lshl_add_u32 v2, v3, 3, v2")
    a.e("s_mul_i32 s30, s24, 2560"); a.e(f"v_add_u32 v{vYst}, s30, v2")
    a.e("v_lshrrev_b32 v2, 4, v1"); a.e("s_lshl_b32 s30, s24, 2"); a.e("v_add_u32 v2, s30, v2"); a.e("v_mul_u32_u24 v2, 10240, v2")
    a.e("s_mul_i32 s30, s26, 640"); a.e("v_add_u32 v2, s30, v2")
    a.e("v_and_b32 v3, 15, v1"); a.e(f"v_lshl_add_u32 v{vYs0}, v3, 4, v2")
    a.e("v_and_b32 v3, 7, v1"); a.e("v_add_u32 v3, 32, v3"); a.e(f"v_lshl_add_u32 v{vYs2}, v3, 4, v2")
    a.e("v_lshrrev_b32 v4, 5, v1"); a.e("v_lshlrev_b32 v4, 10, v4"); a.e("v_bfe_u32 v3, v1, 4, 1"); a.e("v_lshl_add_u32 v4, v3, 4, v4")
    a.e("s_mul_i32 s30, s26, 40")
    for t in range(3):
        a.e(f"v_and_b32 v2, {15 if t < 2 else 7}, v1"); a.e(f"v_add_u32 v2, {16*t}, v2"); a.e("v_add_u32 v2, s30, v2")
        a.e("v_lshrrev_b32 v3, 5, v2"); a.e("v_lshl_add_u32 v3, v3, 11, v4")
        a.e("v_and_b32 v2, 31, v2"); a.e(f"v_lshl_add_u32 v{vU0+t}, v2, 5, v3")
    a.e("s_mul_i32 s30, s24, 2560")
    a.e("v_lshrrev_b32 v2, 5, v1"); a.e("v_mul_u32_u24 v2, 640, v2"); a.e("v_and_b32 v3, 7, v1"); a.e("v_lshl_add_u32 v2, v3, 6, v2")
    a.e("v_bfe_u32 v4, v1, 4, 1"); a.e("v_lshl_add_u32 v2, v4, 5, v2"); a.e("v_bfe_u32 v4, v1, 3, 1"); a.e("v_lshl_add_u32 v2, v4, 4, v2")
    a.e(f"v_add_u32 v{vPx}, s30, v2")
    a.e("v_lshrrev_b32 v2, 4, v1"); a.e("v_mul_u32_u24 v2, 640, v2"); a.e("v_lshl_add_u32 v2, v3, 4, v2"); a.e("v_lshl_add_u32 v2, v4, 3, v2")
    a.e("v_add_u32 v2, 512, v2"); a.e(f"v_add_u32 v{vPm}, s30, v2")
    a.e("s_mul_i32 s30, s24, 3072"); a.e(f"s_add_u32 s30, s30, {RSC}"); a.e(f"v_add_u32 v{vRw}, s30, v{vL16}")
    a.e("v_min_u32 v2, 39, v1"); a.e("v_lshrrev_b32 v3, 1, v2"); a.e("s_and_b32 s30, s24, 1"); a.e("s_mul_i32 s30, s30, 20"); a.e("v_add_u32 v3, s30, v3")
    a.e("v_and_b32 v2, 1, v2")
    a.e("v_lshrrev_b32 v4, 4, v3"); a.e("v_lshlrev_b32 v4, 10, v4"); a.e("v_and_b32 v5, 15, v3"); a.e("v_lshl_add_u32 v4, v5, 4, v4"); a.e("v_lshl_add_u32 v4, v2, 8, v4")
    a.e(f"v_add_u32 v{vRr}, {RSC}, v4")
    a.e("s_mul_i32 s30, s26, 40"); a.e("v_add_u32 v3, s30, v3")
    a.e("v_lshrrev_b32 v4, 8, v3"); a.e("v_lshlrev_b32 v4, 14, v4"); a.e("v_and_b32 v3, 255, v3"); a.e("v_lshl_add_u32 v4, v3, 4, v4"); a.e("v_lshl_add_u32 v4, v2, 3, v4")
    a.e("s_lshl_b32 s30, s25, 12"); a.e(f"v_add_u32 v{vPub}, s30, v4")
    a.e(f"s_add_u32 s32, s46, {LOC_Y}")
    a.e("s_mul_i32 s33, s26, 10240"); a.e("s_add_u32 s33, s33, s32")
    a.e("s_lshl_b32 s30, s25, 4"); a.e("s_lshl_b32 s31, s24, 2"); a.e("s_add_u32 s30, s30, s31")
    a.e("s_mul_i32 s38, s30, 40960"); a.e(f"s_add_u32 s38, s38, {WS_U}")
    a.e("s_mul_i32 s54, s27, 10240"); a.e(f"s_add_u32 s54, s54, {WS_YA}")
    a.e(f"s_add_u32 s88, s46, {LOC_DUMMY}"); a.e(f"s_add_u32 s36, s32, 163840")
    a.e(f"s_lshl_b32 s34, s27, 7"); a.e(f"s_add_u32 s34, s34, {WS_FLAGS+F_YR}")

    a.e(f"s_lshl_b32 s55, s25, 7"); a.e(f"s_add_u32 s55, s55, {WS_FLAGS+F_U}")
    a.e(f"s_mul_i32 s35, s26, {MKS[0]}"); a.e("s_add_u32 s35, s35, s45")
    a.e("s_mov_b32 s28, 0"); a.e("s_mov_b32 s29, 0"); a.e("s_mov_b32 s37, 0")
    def uflag_wait(lab, reg):
        a.e(f"s_lshr_b32 s30, {reg}, 3"); a.e("s_lshl_b32 s30, s30, 8"); a.e("s_add_u32 s30, s30, s55")
        a.e("v_mbcnt_lo_u32_b32 v3, -1, 0"); a.e("v_and_b32 v3, 31, v3"); a.e("v_lshlrev_b32 v3, 2, v3")
        a.label(lab)
        a.e(f"buffer_load_dword v2, v3, s[8:11], s30 offen sc1")
        a.e("s_sub_u32 s82, s82, 1"); a.e("s_cbranch_scc1 L_abort")
        a.e("s_waitcnt vmcnt(0)")
        a.e("v_cmp_eq_u32 vcc, 0, v2")
        a.e(f"s_cbranch_vccnz {lab}")
    def u_loads():
        it = []
        for hh in range(4):
            for t in range(3):
                r = U + (t*2 + (hh >> 1))*8 + (hh & 1)*4
                p = []
                if t == 0: p = [f"s_add_u32 s31, s38, {hh*40960}"]
                it.append(p + [f"buffer_load_dwordx4 {vr(r,4)}, v{vU0+t}, s[8:11], s31 offen {upol}"])
        it[-1].append(f"s_add_u32 s38, s38, {32*40960}")
        return it
    def lv(L): return [f"ds_read_b128 {vr(BST+4*q,4)}, v6 offset:{L*24576 + 1024*q}" for q in range(6)]
    def lo(L): return [f"ds_read_b128 {vr(BST+8*t+4*H,4)}, v{5 if L else 7} offset:{H*20480 + 1024*t}" for t in range(5) for H in range(2)]
    def idle_prep():
        for ins in lv(0): a.e(ins)
        for q in range(12): a.e(f"v_mov_b32 v{VA+q}, 0")
        for q in range(20): a.e(f"v_mov_b32 v{ACC+q}, 0")
        a.e("v_add_u32 v5, 40960, v7")
        for hh in range(4): a.e(f"s_add_u32 s{92+hh}, s38, {hh*40960}")
        a.e(f"s_add_u32 s38, s38, {32*40960*ustep}")
    a.e("v_and_b32 v2, 15, v1"); a.e("v_bfe_u32 v3, v1, 4, 1"); a.e("v_lshl_add_u32 v2, v3, 5, v2"); a.e("v_lshrrev_b32 v3, 5, v1"); a.e("v_lshl_add_u32 v2, v3, 4, v2")
    a.e("v_lshlrev_b32 v2, 4, v2"); a.e("s_mul_i32 s30, s24, 2560"); a.e(f"v_add_u32 v{vYs4}, s30, v2")
    for q in range(4): a.e(f"v_mov_b32 v{U+32+q}, -1")
    uflag_wait(f"{pre}_uf0", "s28")
    stage_mem0(a, MEMIMG, PR)
    idle_prep()
    a.e("s_waitcnt lgkmcnt(0)")
    a.e("s_barrier")
    a.e("LOOPSTART")
    def emit_loop(pre, LST, prof):
        a.label(f"{pre}_loop")
        ts(a, prof, 0)
        order = [0, 8, 1, 2, 3, 4, 5, 9, 6, 7]
        def aread(p): return f"ds_read_b128 {vr(PR+4*(p%4),4)}, v{vAst} offset:{512*order[p]}"
        for p in range(3): a.e(aread(p))
        lq = [("A", 0), ("A", 1), ("A", 2)]
        ex = []
        def uld(hh, t): return [f"buffer_load_dwordx4 {vr(U + (t*2 + (hh >> 1))*8 + (hh & 1)*4,4)}, v{vU0+t}, s[8:11], s{92+hh} offen {upol}"]
        vm = [uld(hh, t) for hh in range(4) for t in range(2)]
        vm += [[f"buffer_store_dwordx4 {vr(U+36,4)}, v{vYs4}, s[8:11], s88 offen sc1"], [f"buffer_store_dwordx4 {vr(U+40,4)}, v{vYs4}, s[8:11], s88 offen offset:1024 sc1"],
               [f"buffer_store_dwordx2 {vr(U+44,2)}, v{vYst}, s[8:11], s88 offen offset:2048 sc1"],
               [f"buffer_store_dwordx4 {vr(U+32,4)}, v{vYs0}, s[8:11], s36 offen {LST}"], [f"buffer_store_dwordx4 {vr(U+32,4)}, v{vYs0}, s[8:11], s36 offen offset:256 {LST}"],
               [f"buffer_store_dwordx4 {vr(U+32,4)}, v{vYs2}, s[8:11], s36 offen {LST}"]]
        vm += [uld(hh, 2) for hh in range(4)]
        if novm == 1: vm = []
        if novm == 2: vm = [x for x in vm if "sc1" not in x[0]]
        if novm == 3: vm = [x for x in vm if "store" not in x[0]]
        if novm == 4: vm = [x for x in vm if "store" in x[0]]
        def vmpop():
            if vm: a.e("\n".join(vm.pop(0)))
        for i in range(upre): vmpop()
        zz = []
        def lop(i):
            return [f"ds_read_b128 {vr(BST+8*(i%5)+4*H,4)}, v{5 if i >= 5 else 7} offset:{H*20480 + 1024*(i%5)}" for H in range(2)]
        cnt = 0
        for p in range(10):
            io = order[p]
            need = [("A", p)] + ([("L", 1)] if io == 9 else [])
            last = max(i for i, t in enumerate(lq) if t in need)
            a.e(f"s_waitcnt lgkmcnt({len(lq)-1-last})")
            lq = lq[last+1:]
            if p == 2: ex = lv(1)
            if p == 8: ex = lop(0) + lop(1) + lop(2)
            for t in range(3):
                B = wreg(io*3+t) if io < 8 else vr(BST+8*t, 8)
                a.e(f"{SM64} {vr(VA+4*t,4)}, {vr(PR+4*(p%4),4)}, {B}, v{vIdx}")
                cnt += 1
                if t == 0 and p+3 < 10:
                    a.e(aread(p+3)); lq.append(("A", p+3))
                    if zz: a.e(zz.pop())
                elif p >= 8:
                    if ex: a.e(ex.pop(0)); lq.append(("O", 0))
                    if zz: a.e(zz.pop())
                elif t == 1 and ex:
                    a.e(ex.pop(0)); a.e(ex.pop(0)); lq += [("L", 1)]*2
                elif t < 2 or cnt % vsp:
                    for q in range(2):
                        if zz: a.e(zz.pop())
                if cnt % vsp == 0: vmpop()
        assert not zz and not ex
        ts(a, prof, 1); ts(a, prof, 1, 2)
        a.nop(4)
        F = PR
        for q in range(4): a.e(f"v_permlane32_swap_b32 v{VA+q}, v{VA+4+q}")
        for q in range(4): a.e(f"v_permlane32_swap_b32 v{VA+8+q}, v{F+4+q}")
        a.e(f"v_pk_add_f32 {vr(F,2)}, {vr(VA,2)}, {vr(VA+4,2)}"); a.e(f"v_pk_add_f32 {vr(F+2,2)}, {vr(VA+2,2)}, {vr(VA+6,2)}")
        a.e(f"v_cvt_pk_bf16_f32 v{F}, v{F}, v{F+1}"); a.e(f"v_cvt_pk_bf16_f32 v{F+1}, v{F+2}, v{F+3}")
        a.e(f"v_pk_add_f32 {vr(F+4,2)}, {vr(VA+8,2)}, {vr(F+4,2)}"); a.e(f"v_pk_add_f32 {vr(F+6,2)}, {vr(VA+10,2)}, {vr(F+6,2)}")
        a.e(f"ds_write_b64 v{vVw0}, {vr(F,2)}")
        a.e(f"v_cvt_pk_bf16_f32 v{F+4}, v{F+4}, v{F+5}"); a.e(f"v_cvt_pk_bf16_f32 v{F+5}, v{F+6}, v{F+7}")
        a.e(f"ds_write_b64 v{vVw1}, {vr(F+4,2)}")
        ts(a, prof, 2, 2)
        vmpop()
        a.e("s_waitcnt lgkmcnt(0)")
        a.e("s_barrier")
        ts(a, prof, 3, 2)
        def areg(e): return PR+12 if e == 4 else PR+16 if e == 5 else PR+4*(e % 3)
        def vread(e): return [f"ds_read_b64_tr_b16 {vr(areg(e)+2*h,2)}, v{vVr} offset:{512*e + 64*h}" for h in range(2)]
        lq = []
        for e in (0, 4, 1):
            for ins in vread(e): a.e(ins); lq.append(("A", e))
        vmpop(); vmpop()
        seq = []; r = [(e, t) for e in range(4) for t in range(5)]; l = [(4+i//5, i%5) for i in range(10)]
        for pos in range(30): seq.append(l.pop(0) if pos % 3 == 2 else r.pop(0))
        pend = [(0, ("O", 3), lop(3)), (0, ("A", 2), vread(2)), (0, ("O", 4), lop(4)), (3, ("O", 5), lop(5)), (3, ("A", 5), vread(5)), (6, ("O", 6), lop(6)),
                (7, ("A", 3), vread(3)), (9, ("O", 7), lop(7)), (12, ("O", 8), lop(8)), (15, ("O", 9), lop(9))]
        flat = [(p0, tag, ins) for p0, tag, inss in pend for ins in inss]
        for pos, (e, t) in enumerate(seq):
            need = [("A", e)] + ([("O", (e-4)*5+t)] if e >= 4 else [])
            idxs = [i for i, tg in enumerate(lq) if tg in need]
            assert not any(tag in need for _, tag, _ in flat), (pos, need)
            if idxs:
                last = max(idxs)
                a.e(f"s_waitcnt lgkmcnt({len(lq)-1-last})")
                lq = lq[last+1:]
            B = wreg(24+e*5+t) if e < 4 else vr(BST+8*t, 8)
            a.e(f"{SM64} {vr(ACC+4*t,4)}, {vr(areg(e),4)}, {B}, v{vIdx}")
            if pos == 0: ts(a, prof, 4, 2)
            if flat and flat[0][0] <= pos:
                _, tag, ins = flat.pop(0); a.e(ins); lq.append(tag)
            if pos % 4 == 3: vmpop()
        assert not vm and not flat
        ts(a, prof, 2); ts(a, prof, 7, 2)
        YC = PR
        def ycvt(t):
            a.e(f"v_cvt_pk_bf16_f32 v{YC+2*t}, v{ACC+4*t}, v{ACC+4*t+1}")
            a.e(f"v_cvt_pk_bf16_f32 v{YC+2*t+1}, v{ACC+4*t+2}, v{ACC+4*t+3}")
        def ymin(t):
            a.e(f"v_min_u32 v{YC+2*t}, -2, v{YC+2*t}"); a.e(f"v_min_u32 v{YC+2*t+1}, -2, v{YC+2*t+1}")
        def ystores(so, fl):
            ycvt(0); ycvt(1); ymin(0); ymin(1); ycvt(2)
            a.e(f"v_permlane16_swap_b32 v{YC}, v{YC+2}"); a.e(f"v_permlane16_swap_b32 v{YC+1}, v{YC+3}")
            ycvt(3)
            a.e(f"buffer_store_dwordx4 {vr(YC,4)}, v{vYs4}, s[8:11], {so} offen {fl}")
            ymin(2); ymin(3); ycvt(4)
            a.e(f"v_permlane16_swap_b32 v{YC+4}, v{YC+6}"); a.e(f"v_permlane16_swap_b32 v{YC+5}, v{YC+7}")
            ymin(4)
            a.e(f"buffer_store_dwordx4 {vr(YC+4,4)}, v{vYs4}, s[8:11], {so} offen offset:1024 {fl}")
            a.e(f"buffer_store_dwordx2 {vr(YC+8,2)}, v{vYst}, s[8:11], {so} offen offset:2048 {fl}")
        if uwait == 1:
            a.e("s_waitcnt vmcnt(0)"); ts(a, prof, 1)
        a.e(f"s_cmp_eq_u32 s28, {nsteps-1}")
        a.e(f"s_cbranch_scc1 {pre}_last")
        a.e("s_add_u32 s31, s33, s37")
        ystores("s31", LST)
        if uwait == 2:
            ts(a, prof, 1); a.e("s_waitcnt vmcnt(0)"); ts(a, prof, 2)
        YS = BST; P0 = BST+12; RA = BST+24
        for q in range(12): a.e(f"v_mov_b32 v{RA+q}, 0")
        a.e("s_add_u32 s31, s32, s37")
        h2_base(a, "s53", None)
        for i in range(y_sleep): a.e("s_sleep 1")
        def yload():
            a.e(f"buffer_load_dwordx4 {vr(YS,4)}, v{vYs0}, s[8:11], s31 offen sc1")
            a.e(f"buffer_load_dwordx4 {vr(YS+4,4)}, v{vYs0}, s[8:11], s31 offen offset:256 sc1")
            a.e(f"buffer_load_dwordx4 {vr(YS+8,4)}, v{vYs2}, s[8:11], s31 offen sc1")
        def ycheck():
            a.e(f"v_max3_u32 v1, v{YS}, v{YS+1}, v{YS+2}")
            for q in (3, 5, 7, 9): a.e(f"v_max3_u32 v1, v{YS+q}, v{YS+q+1}, v1")
            a.e(f"v_max_u32 v1, v{YS+11}, v1")
            a.e("v_cmp_eq_u32 vcc, -1, v1")
        def pload(P):
            a.e(f"buffer_load_dwordx4 {vr(P,4)}, v{vPx}, s[8:11], s46 offen sc1")
            a.e(f"buffer_load_dwordx4 {vr(P+4,4)}, v{vPx}, s[8:11], s46 offen offset:1280 sc1")
            a.e(f"buffer_load_dwordx2 {vr(P+8,2)}, v{vPm}, s[8:11], s46 offen sc1")
        tb = 0
        for i in range(8):
            A_, B_, C_ = (i >> 2) & 1, (i >> 1) & 1, i & 1
            if (A_ ^ C_) | (B_ ^ C_): tb |= 1 << i
        yload()
        for i in range(p_sleep): a.e("s_sleep 1")
        pload(P0)
        a.e("s_waitcnt vmcnt(3)")
        ycheck()
        a.e(f"s_cbranch_vccnz {pre}_ybad")
        ts(a, prof, 3)
        a.label(f"{pre}_mf")
        P = P0
        a.e("s_waitcnt vmcnt(2)")
        for t in range(3):
            a.e(f"{SM64} {vr(RA+4*t,4)}, {vr(P,4)}, {vr(U+16*t,8)}, v{vIdx}")
            if t < 2: a.e(f"v_bitop3_b32 v{1+t}, v{P+2*t}, v{P+2*t+1}, s29 bitop3:{tb}")
        a.e("s_waitcnt vmcnt(1)")
        for t in range(3):
            a.e(f"{SM64} {vr(RA+4*t,4)}, {vr(P+4,4)}, {vr(U+16*t+8,8)}, v{vIdx}")
            if t < 2: a.e(f"v_bitop3_b32 v{3+t}, v{P+4+2*t}, v{P+4+2*t+1}, s29 bitop3:{tb}")
            else: a.e("v_or3_b32 v1, v1, v2, v3")
        a.e("s_waitcnt vmcnt(0)")
        for t in range(3):
            a.e(f"{SM32} {vr(RA+4*t,4)}, {vr(P+8,2)}, {vr(YS+4*t,4)}, v{vIdx}")
            if t == 0: a.e(f"v_bitop3_b32 v2, v{P+8}, v{P+9}, s29 bitop3:{tb}")
            elif t == 1: a.e("v_or3_b32 v1, v1, v4, v2")
        a.e("v_cmp_gt_i32 vcc, 0, v1")
        a.e(f"s_cbranch_vccnz {pre}_pbad")
        ts(a, prof, 4)
        a.e("s_cmp_ge_u32 s24, 2")
        a.e(f"ds_write_b128 v{vRw}, {vr(RA,4)}")
        a.nop(1)
        a.e(f"ds_write_b128 v{vRw}, {vr(RA+4,4)} offset:1024")
        a.nop(2)
        a.e(f"ds_write_b128 v{vRw}, {vr(RA+8,4)} offset:2048")
        a.e("s_waitcnt lgkmcnt(0)")
        a.e("s_barrier")
        a.e(f"s_cbranch_scc1 {pre}_nopub")
        R = U
        for w in range(4):
            for cl in range(2):
                a.e(f"ds_read_b128 {vr(R+8*w+4*cl,4)}, v{vRr} offset:{3072*w + 512*cl}")
        def pa(x, y):
            a.e(f"v_pk_add_f32 {vr(x,2)}, {vr(x,2)}, {vr(y,2)}"); a.e(f"v_pk_add_f32 {vr(x+2,2)}, {vr(x+2,2)}, {vr(y+2,2)}")
        a.e("s_waitcnt lgkmcnt(6)"); pa(R, R+4)
        a.e("s_waitcnt lgkmcnt(4)"); pa(R+8, R+12); pa(R, R+8)
        a.e("s_waitcnt lgkmcnt(2)"); pa(R+16, R+20); pa(R, R+16)
        a.e("s_waitcnt lgkmcnt(0)"); pa(R+24, R+28); pa(R, R+24)
        a.e(f"v_cvt_pk_bf16_f32 v{R}, v{R}, v{R+1}"); a.e(f"v_cvt_pk_bf16_f32 v{R+1}, v{R+2}, v{R+3}")
        a.e(f"v_xor_b32 v{R}, s29, v{R}"); a.e(f"v_xor_b32 v{R+1}, s29, v{R+1}")
        a.e(f"v_min_u32 v{R}, -2, v{R}"); a.e(f"v_min_u32 v{R+1}, -2, v{R+1}")
        a.e(f"buffer_store_dwordx2 {vr(R,2)}, v{vPub}, s[8:11], s53 offen sc1")
        a.e(f"s_branch {pre}_pubd")
        a.label(f"{pre}_nopub")
        for i in range(mkw_sleep): a.e("s_nop 15")
        a.e("s_cmp_eq_u32 s24, 3"); a.e(f"s_cbranch_scc1 {pre}_nomk")
        a.e("s_add_u32 s30, s28, 1"); a.e("v_mov_b32 v2, s30"); a.e("v_mov_b32 v3, 0"); a.e("s_mov_b64 exec, 1")
        a.e(f"buffer_store_dword v2, v3, s[8:11], s35 offen {LST}")
        a.e(f"s_branch {pre}_mkd")
        a.label(f"{pre}_nomk")
        a.e("v_mov_b32 v2, s28"); a.e("v_mov_b32 v3, 0"); a.e("s_mov_b64 exec, 1")
        a.e(f"buffer_store_dword v2, v3, s[8:11], s34 offen sc1")
        a.label(f"{pre}_mkd")
        a.e("s_mov_b64 exec, -1")
        a.label(f"{pre}_pubd")
        ts(a, prof, 7)
        for q in range(4): a.e(f"v_mov_b32 v{U+32+q}, -1")
        for q in range(10): a.e(f"v_mov_b32 v{U+36+q}, v{YC+q}")
        a.e("s_mov_b32 s36, s31"); a.e("s_mov_b32 s88, s54"); a.e(f"s_add_u32 s54, s54, {32*10240}")
        a.e("s_xor_b32 s37, s37, 163840")
        a.e("s_add_u32 s31, s28, 1"); a.e("s_and_b32 s30, s31, 7"); a.e("s_cmp_lg_u32 s30, 0")
        a.e(f"s_cbranch_scc1 {pre}_nouf")
        uflag_wait(f"{pre}_uf", "s31")
        a.label(f"{pre}_nouf")
        idle_prep()
        retry = h2_stage(a, pre, PR, None, None, vSB, vStW, vH2, vMk, 1, mk_sleep, prof)
        ts(a, prof, 6)
        prof_dump(a, prof, pre)
        a.e("s_add_u32 s28, s28, 1"); a.e("s_xor_b32 s29, s29, 0x80008000")
        a.e(f"s_branch {pre}_loop")
        retry()
        a.label(f"{pre}_ybad")
        if prof: a.e("s_add_u32 s83, s83, 0x10000")
        yload()
        a.e("s_sub_u32 s82, s82, 1"); a.e("s_cbranch_scc1 L_abort")
        a.e("s_waitcnt vmcnt(0)")
        ycheck()
        a.e(f"s_cbranch_vccnz {pre}_ybad")
        a.e(f"s_branch {pre}_mf")
        a.label(f"{pre}_pbad")
        pload(P0)
        if prof: a.e("s_add_u32 s83, s83, 0x1000000")
        a.e("s_sub_u32 s82, s82, 1"); a.e("s_cbranch_scc1 L_abort")
        a.nop(4)
        for q in range(12): a.e(f"v_mov_b32 v{RA+q}, 0")
        a.e(f"s_branch {pre}_mf")
        a.label(f"{pre}_last")
        ystores("s54", "sc1")
        a.e("s_waitcnt vmcnt(0)")
        a.e("s_barrier")
        a.e(f"v_mov_b32 v2, {nsteps}"); a.e("v_mov_b32 v3, 0"); a.e("s_mov_b64 exec, 1")
        a.e(f"buffer_store_dword v2, v3, s[8:11], s34 offen sc1")
        a.e("s_waitcnt vmcnt(0)")
        a.e("s_mov_b64 exec, -1")
        a.e(f"s_branch {pre0}_end")
    pre0 = pre
    if cw:
        a.e("s_cmp_lt_u32 s81, 32"); a.e(f"s_cbranch_scc1 {pre}S_loop")
        emit_loop(pre, "", prof)
        emit_loop(pre + "S", "sc1", 0)
    else:
        emit_loop(pre, LST, prof)
    a.label(f"{pre}_end")
```

```python
import sys
sys.path.insert(0, "work")
from asmlib import *
from layout import *
import chain

def kernel(prof=20, flip=0, slow=False, psel=0, absol=0, mks=128, **kw):
    chain.MKS[0] = mks
    chain.PSEL[0] = psel
    a = Asm()
    a.e("""
s_load_dwordx2 s[8:9], s[0:1], 96
s_load_dwordx2 s[4:5], s[0:1], 88
s_load_dwordx2 s[56:57], s[0:1], 80
s_getreg_b32 s3, hwreg(HW_REG_XCC_ID)
s_and_b32 s3, s3, 15
v_lshrrev_b32 v1, 6, v0
s_nop 0
v_readfirstlane_b32 s24, v1
s_waitcnt lgkmcnt(0)
s_mov_b32 s10, 0x10000000
s_mov_b32 s11, 0x20000
s_mov_b32 s6, 256
s_mov_b32 s7, 0x20000
s_mov_b32 s58, 65536
s_mov_b32 s59, 0x20000
s_cmp_ge_u32 s3, 2
s_cbranch_scc1 L_end
s_cmp_lg_u32 s24, 0
s_cbranch_scc1 L_skipatom
s_lshl_b32 s25, s3, 7
v_mov_b32 v3, 1
v_mov_b32 v4, s25
s_mov_b64 exec, 1
buffer_atomic_add v3, v4, s[4:7], 0 offen sc0 sc1
s_waitcnt vmcnt(0)
v_mov_b32 v4, 0
ds_write_b32 v4, v3
s_waitcnt lgkmcnt(0)
s_mov_b64 exec, -1
L_skipatom:
s_barrier
v_mov_b32 v4, 0
ds_read_b32 v3, v4
s_waitcnt lgkmcnt(0)
v_readfirstlane_b32 s26, v3
s_barrier
s_cmp_ge_u32 s26, 32
s_cbranch_scc1 L_end
s_mov_b32 s25, s3
s_lshl_b32 s39, s25, 5
s_add_u32 s39, s39, s26
s_lshl_b32 s39, s39, 2
s_add_u32 s39, s39, s24
s_lshl_b32 s39, s39, 6
s_memtime s[76:77]
""")
    a.e(f"s_mov_b32 s47, {flip*8192}")
    a.e("s_mov_b32 s82, 200000"); a.e("s_mov_b32 s83, 0")
    a.e("s_cmp_ge_u32 s26, 16")
    a.e("s_cbranch_scc1 L_vo")
    a.e("s_lshl_b32 s27, s25, 4"); a.e("s_add_u32 s27, s27, s26")
    qk = {k[3:]: v for k, v in kw.items() if k.startswith("qk_")}
    vo = {k[3:]: v for k, v in kw.items() if k.startswith("vo_")}
    chain.qk_role(a, prof=prof, slow=slow, **qk)
    a.e("s_branch L_fin")
    a.label("L_vo")
    a.e("s_sub_u32 s26, s26, 16")
    a.e("s_lshl_b32 s27, s25, 4"); a.e("s_add_u32 s27, s27, s26")
    chain.vo_role(a, prof=prof, slow=slow, **vo)
    a.label("L_abort")
    a.label("L_fin")
    a.e("""
s_memtime s[80:81]
s_waitcnt lgkmcnt(0)
s_sub_u32 s80, s80, s78
s_sub_u32 s78, s78, s76
s_mov_b64 exec, 1
v_mov_b32 v2, s39
v_mov_b32 v4, s78
v_mov_b32 v5, s80
v_mov_b32 v6, s83
v_mov_b32 v7, s82
buffer_store_dwordx4 v[4:7], v2, s[56:59], 0 offen offset:32
s_waitcnt vmcnt(0)
L_end:
""")
    return a.text().replace("LOOPSTART", "s_memtime s[78:79]\n  s_waitcnt lgkmcnt(0)")

def ref_chain(inp):
    import torch
    dev = "cuda"
    x = inp['A_x'][0].to(dev); mem = inp['A_mem0'][0].to(dev)
    Wq, Wk, Wv, Wo = (inp[k].to(dev) for k in ('A_Wq', 'A_Wk', 'A_Wv', 'A_Wo'))
    bf = lambda t: t.to(torch.bfloat16)
    K = bf(x.float() @ Wk.float().reshape(640, -1)).reshape(64, 32, 32, 192)
    V = bf(x.float() @ Wv.float().reshape(640, -1)).reshape(64, 32, 32, 192)
    U = bf(torch.einsum('sthe,hec->shtc', V.float(), Wo.float()))
    kms, ys, mems = [], [], [mem]
    global DBG; DBG = []
    for s in range(64):
        q = bf(torch.einsum('id,dhe->hie', mem.float(), Wq.float()))
        k = bf(torch.einsum('id,dhe->hie', mem.float(), Wk.float()))
        v = bf(torch.einsum('id,dhe->hie', mem.float(), Wv.float()))
        y = bf(torch.einsum('hie,hec->hic', v.float(), Wo.float()))
        kms.append(k); ys.append(y)
        kk = torch.cat([k, K[s].permute(1, 0, 2)], 1).float()
        sc = torch.einsum('hie,hje->hij', q.float(), kk) * 192**-0.5
        p = bf(torch.softmax(sc, -1))
        z = torch.cat([y, U[s]], 1).float()
        part = torch.einsum('hij,hjc->hic', p.float(), z)
        DBG.append((p.float().cpu().numpy(), torch.einsum('hij,hjc->hic', p.float()[:,:,:8], z[:,:8]).cpu().numpy(), torch.einsum('hij,hjc->hic', p.float()[:,:,8:], z[:,8:]).cpu().numpy()))
        mem = bf(bf(part[:16].sum(0)).float() + bf(part[16:].sum(0)).float())
        mems.append(mem)
    return K, U, torch.stack(kms), torch.stack(ys), torch.stack(mems)

def u16(t):
    import torch
    return t.contiguous().view(torch.int16).cpu().numpy().view('uint16')
def k_layout(K):
    return K.reshape(64, 32, 32, 6, 2, 2, 2, 4).permute(0, 2, 3, 4, 6, 1, 5, 7)
def u_layout(U):
    return U.reshape(64, 32, 2, 2, 2, 4, 20, 32).permute(0, 1, 6, 2, 7, 4, 3, 5)

if __name__ == "__main__":
    import harness as H, numpy as np
    cl = H.cl
    cfgs = eval(sys.argv[2]) if len(sys.argv) > 2 else [dict()]
    NREP = int(sys.argv[3]) if len(sys.argv) > 3 else 3
    if sys.argv[1] == "check":
        for c in cfgs:
            asm = H.wrap("c_kernel", kernel(**c))
            co = H.build(asm, "c_kernel", 13, "chain_t")
            print(cl.address_register_problem(co, "c_kernel"), len(asm))
        sys.exit(0)
    import torch, importlib
    m = importlib.import_module("concat_heads__memory_aug_recurrent_mem_tr__sliding_block__prompt_np")
    np.random.seed(0); torch.manual_seed(0)
    inp = m.setup_inputs()
    K, U, KM, Y, MEM = ref_chain(inp)
    names = ['A_x','A_mem0','A_Wq','A_Wk','A_Wv','A_Wo','A_seg_len','B_x','B_wqkv','B_wo']
    bufs = [cl.DeviceBuffer.from_numpy(u16(inp[n]) if n != 'A_seg_len' else np.array([32], np.int32)) for n in names]
    dout = cl.DeviceBuffer(1 << 20); ddbg = cl.DeviceBuffer(4096); ws = cl.DeviceBuffer(WS_SIZE)
    import ctypes
    def up(off, arr):
        arr = np.ascontiguousarray(arr)
        cl.hip_check(cl._hip.hipMemcpy(ctypes.c_void_p(ws.ptr + off), arr.ctypes.data_as(ctypes.c_void_p), arr.nbytes, 1))
    up(WS_K, u16(k_layout(K))); up(WS_U, u16(u_layout(U)))
    f32 = lambda u: (u.astype(np.uint32) << 16).view(np.float32)
    for c in cfgs:
        asm = H.wrap("c_kernel", kernel(**c))
        co = H.build(asm, "c_kernel", 13, "chain_t")
        k = cl.AsmKernel(co, "c_kernel")
        for rep in range(c.get('reps', NREP)):
            cl.hip_check(cl._hip.hipMemset(ctypes.c_void_p(ws.ptr), 0xff, 6*MB))
            cl.hip_check(cl._hip.hipMemset(ctypes.c_void_p(ws.ptr + WS_YA), 0, 26*MB))
            for X in range(2): up(WS_LOC + X*LOC_STRIDE + LOC_MK, np.zeros(1024, np.uint32))
            fl = np.zeros(FLAGS_BYTES//4, np.uint32); fl[:1024] = 1
            up(WS_FLAGS, fl)
            H.memset(ddbg, 0); H.memset(dout, 0); H.sync()
            k.launch((256,1,1),(256,1,1), cl.pack_ptr_kernargs([b.ptr for b in bufs] + [dout.ptr, ddbg.ptr, ws.ptr]), 160*1024)
            H.sync()
            fl2 = H.download(ws, np.uint32, 2048, WS_FLAGS+F_KM)[::32]
            if fl2[:32].min() < c.get('qk_nsteps', 64):
                d = H.download(dout, np.uint32, 64*4*16).reshape(64, 4, 16).astype(np.int64)
                print("FAIL rep", rep, "flags", fl2)
                idx = np.argwhere((d[:,:,10]&0xffff) > 1000); print(" n spinning", len(idx))
                st = int(fl2[:32].min())
                for m in (st, st+1, st+2):
                    h2 = H.download(ws, np.uint32, 16384, h2base(m) + c.get('flip',0)*8192).reshape(4, 4, 256, 4)
                    bad = [(ch, X, int((h2[ch, X][: (256 if ch < 2 else 128)] == 0xffffffff).any(axis=1).sum())) for ch in range(3) for X in range(2)]
                    print(" slot", m, "sentinel cols (chunk,X,count):", bad)
                for X in range(2): print(" markers", H.download(ws, np.uint32, 32, WS_LOC + X*LOC_STRIDE + LOC_MK))
        d = H.download(dout, np.uint32, 64*4*16).reshape(64, 4, 16).astype(np.int64)
        km = f32(H.download(ws, np.uint16, 64*32*1536, WS_KM)).reshape(64, 32, 6, 2, 2, 8, 2, 4).transpose(0,1,5,2,3,6,4,7).reshape(64,32,8,192)
        ya = f32(H.download(ws, np.uint16, 64*32*5120, WS_YA)).reshape(64, 32, 640, 8).transpose(0,1,3,2)
        KMr = KM.float().cpu().numpy(); Yr = Y.float().cpu().numpy()
        print(c)
        if c.get('qk_nsteps', 64) == 2:
            P = f32(H.download(ws, np.uint16, 320, WS_LOC))
            px = P[:256].reshape(2, 2, 8, 2, 2, 2)
            got = px.transpose(2, 0, 4, 3, 1, 5).reshape(8, 32)
            print("P x err", np.abs(got - DBG[0][0][0][:, 8:]).max(), got[0][:8], DBG[0][0][0][0, 8:16])
            pm = P[256:].reshape(2, 8, 2, 2).transpose(1, 2, 0, 3).reshape(8, 8)
            print("P m err", np.abs(pm - DBG[0][0][0][:, :8]).max())
            h2 = f32(H.download(ws, np.uint16, 32768, h2base(1))).reshape(4, 4, 256, 8)
            for X in range(2):
                g = np.concatenate([h2[0, X], h2[1, X], h2[2, X][:128]]).T
                em = DBG[0][1][16*X:16*X+16].sum(0); ex = DBG[0][2][16*X:16*X+16].sum(0)
                print("X", X, "err full", np.abs(g - em - ex).max(), "err vs m only", np.abs(g - em).max(), "ex max", np.abs(ex).max())
                r = (g - em)
                print(" resid[0,:8]", r[0, :8], "ex", ex[0, :8])
        print(" relerr kmem", max(np.abs(km[s]-KMr[s]).max()/np.abs(KMr[s]).max() for s in range(64)), " Y", max(np.abs(ya[s]-Yr[s]).max()/np.abs(Yr[s]).max() for s in range(64)))
        print(f" prologue cyc mean {d[:,:,8].mean():.0f} max {d[:,:,8].max()}; loop cyc mean {d[:,:,9].mean():.0f} -> per step {d[:,:,9].mean()/63.4:.0f}  h2/y/p retries/step {(d[:,:,10]&0xffff).mean()/63:.2f} {((d[:,:,10]>>16)&0xff).mean()*2/63:.2f} {(d[:,:,10]>>24).mean()*2/63:.2f} polls/step {(200000-d[:,:,11].mean())/63:.1f}")
        isqk = (np.arange(64) % 32) < 16
        for nm, sel in (("QK", isqk), ("VO", ~isqk)):
            t = d[sel][:, :, :8]
            rel = (t - t[:, :, :1]) & 0xffffffff
            rel[rel > 100000] = 0
            for w in (0, 3):
                print(f"  {nm} w{w} mean:", " ".join(f"{v:5d}" for v in np.round(rel[:, w, :].mean(0)).astype(int)), "| min", " ".join(f"{v:5d}" for v in rel[:, w, :].min(0)), "| max", " ".join(f"{v:5d}" for v in rel[:, w, :].max(0)))
        if c.get('absol'):
            for X in range(2):
                t0 = d[32*X:32*X+32, :, 0].min()
                for cu in list(range(32*X, 32*X+32, 3)):
                    print(f"   cu{cu:2d} w0:", " ".join(f"{(v - t0) & 0xffffffff:6d}" if ((v - t0) & 0xffffffff) < 100000 else "     -" for v in d[cu, 0, :8]), " w2:", " ".join(f"{(v - t0) & 0xffffffff:6d}" if ((v - t0) & 0xffffffff) < 100000 else "     -" for v in d[cu, 2, :8]))
        k.unload()
```

```python
MB = 1 << 20
WS_H2 = 0
WS_LOC = 4*MB
LOC_P = 0; LOC_MK = 16384; LOC_Y = 65536; LOC_STRIDE = 1024*1024
WS_FLAGS = 6*MB
F_K = 0
F_U = 1024
F_Q = 3072
F_KM = 32768
F_YR = 36864
F_PT = 4096
F_BQ = 16384
F_BA = 17408
F_QUEUE = 20480
FLAGS_BYTES = 65536
LOC_DUMMY = 32768
WS_K = 8*MB
WS_Q = 32*MB
WS_U = 56*MB
WS_YA = 136*MB
WS_KM = 156*MB
WS_PT = 162*MB
WS_XFA = 168*MB
WS_XFB = 171*MB
WS_BQKV = 174*MB
WS_BO = 182*MB
WS_SIZE = 256*MB
def h2base(m): return m*65536 + ((m >> 5) & 1)*8192
```

```python
import math, struct
from asmlib import *
from layout import *
def fbits(x): return struct.unpack("<I", struct.pack("<f", x))[0]

ACC = 64
MF = "v_mfma_f32_32x32x16_bf16"
GUARD = 'a.e("s_sub_u32 s82, s82, 1"); a.e("s_cbranch_scc1 L_abort")'
def guard(a): a.e("s_sub_u32 s82, s82, 1"); a.e("s_cbranch_scc1 L_abort")

def wait_flags(a, lab, soff, nwords, stride_sh, thresh, sleep=4, imm=0):
    a.e(f"v_min_u32 v3, {nwords-1}, v1")
    a.e(f"v_lshlrev_b32 v3, {stride_sh}, v3")
    a.label(lab)
    a.e(f"buffer_load_dword v2, v3, s[8:11], {soff} offen offset:{imm} sc1")
    guard(a)
    a.e("s_waitcnt vmcnt(0)")
    a.e(f"v_cmp_gt_u32 vcc, {thresh}, v2")
    a.e(f"s_cbranch_vccz {lab}_ok")
    a.e(f"s_sleep {sleep}")
    a.e(f"s_branch {lab}")
    a.label(f"{lab}_ok")

def set_flag(a, soff, val="1", add=False):
    lab = a.newlabel("W_fl")
    a.e("s_waitcnt vmcnt(0)")
    a.e("s_barrier")
    a.e("s_cmp_lg_u32 s24, 0"); a.e(f"s_cbranch_scc1 {lab}")
    a.e(f"v_mov_b32 v2, {val}"); a.e("v_mov_b32 v3, 0"); a.e("s_mov_b64 exec, 1")
    if add: a.e(f"buffer_atomic_add v2, v3, s[8:11], {soff} offen sc1")
    else: a.e(f"buffer_store_dword v2, v3, s[8:11], {soff} offen sc1")
    a.e("s_mov_b64 exec, -1")
    a.label(lab)

NS = 4; SLOT = 24576
FW = [0, 24]; XS = [64, 96]; VOP = 128
def w_voffsets(a, NT, dst, ld):
    UPR = NT*4; NW = NT
    for i in range(NW):
        a.e(f"s_mul_i32 s25, s24, {NW*64}")
        a.e(f"s_add_u32 s25, s25, {i*64}")
        a.e("v_add_u32 v4, s25, v1")
        a.e(f"v_mul_u32_u24 v5, {(65536+UPR-1)//UPR}, v4")
        a.e("v_lshrrev_b32 v5, 16, v5")
        a.e(f"v_mul_u32_u24 v6, {UPR}, v5")
        a.e("v_sub_u32 v6, v4, v6")
        if NT == 6:
            a.e("v_lshlrev_b32 v7, 1, v5"); a.e("v_and_b32 v7, 4, v7"); a.e("v_xor_b32 v6, v6, v7")
        if isinstance(ld, int): a.e(f"v_mul_u32_u24 v5, {ld}, v5")
        else: a.e(f"v_mul_lo_u32 v5, v5, {ld}")
        a.e(f"v_lshl_add_u32 v{dst+i}, v6, 4, v5")
def tr_bases(a, NT, dst, khmul):
    RB = NT*64
    a.e("v_lshrrev_b32 v4, 5, v1"); a.e("v_bfe_u32 v5, v1, 2, 2")
    a.e(f"v_mul_u32_u24 v4, {khmul}, v4"); a.e("v_add_u32 v4, v4, v5")
    a.e(f"v_mul_u32_u24 v4, {RB}, v4")
    a.e("v_bfe_u32 v6, v1, 4, 1"); a.e("v_lshl_add_u32 v4, v6, 5, v4")
    a.e("v_and_b32 v6, 3, v1"); a.e("v_lshl_add_u32 v4, v6, 3, v4")
    if NT == 6:
        a.e("v_bfe_u32 v5, v1, 3, 1"); a.e("v_lshlrev_b32 v5, 6, v5")
        a.e(f"v_add_u32 v{dst}, v4, v5"); a.e(f"v_sub_u32 v{dst+1}, v4, v5")
    else:
        a.e(f"v_mov_b32 v{dst}, v4")
        if dst == 16: a.e(f"v_mov_b32 v{dst+1}, v4")

def dmas(NW, vbase, srd, sreg, sinc):
    it = []
    for i in range(NW):
        pre = [f"s_add_u32 m0, s29, s{32 if NW == NWMAIN[0] else 34}"] if i == 0 else ["s_add_u32 m0, m0, 1024"]
        pre.append("s_nop 0")
        it.append(pre + [f"buffer_load_dwordx4 v{vbase+i}, {srd}, {sreg} offen lds"])
    it[-1] += [f"s_add_u32 {sreg}, {sreg}, {sinc}", f"s_add_u32 s29, s29, {SLOT}", f"s_cmp_eq_u32 s29, {NS*SLOT}", "s_cselect_b32 s29, 0, s29"]
    return it
NWMAIN = [6]

def gemm_main(a, NT, nextw=None, dma_start=16, xper=2):
    NWMAIN[0] = NT
    RB = NT*64; NW = NT; nst = 10
    a.e("v_lshlrev_b32 v2, 4, v1"); a.e("s_mul_i32 s25, s24, 81920"); a.e("v_add_u32 v2, s25, v2"); a.e("v_add_u32 v3, 40960, v2")
    w_voffsets(a, NT, 8, "s33")
    tr_bases(a, NT, 16, 32)
    a.e("s_lshl_b32 s28, s33, 6")
    a.e(f"s_mul_i32 s32, s24, {NW*1024}")
    a.e("s_mov_b32 s29, 0")
    def wd(): return dmas(NW, 8, "s[12:15]", "s27", "s28")
    def xloads(st):
        it = []
        for ks in range(4):
            for tb in range(2):
                it.append([f"buffer_load_dwordx4 {ar(XS[st] + (ks*2+tb)*4,4)}, v{2+tb}, s[8:11], s26 offen offset:{1024*ks}"])
        it[-1].append("s_add_u32 s26, s26, 4096")
        return it
    def wreads(f, ks):
        return [[f"ds_read_b64_tr_b16 {ar(FW[f]+4*t+2*h,2)}, v{18+(t&1)} offset:{(8*ks+4*h)*RB + t*64}" for h in range(2)] for t in range(NT)]
    def mfmas(f, st, ks, first):
        m = []
        for t in range(NT):
            for tb in range(2):
                d = ACC + (tb*NT+t)*16
                m.append(f"{MF} {vr(d,16)}, {ar(FW[f]+4*t,4)}, {ar(XS[st]+(ks*2+tb)*4,4)}, {'0' if first else vr(d,16)}")
        return m
    for it in wd(): a.e("\n".join(it))
    for it in xloads(0): a.e("\n".join(it))
    for it in wd(): a.e("\n".join(it))
    a.e(f"s_waitcnt vmcnt({NW})")
    a.e("s_barrier")
    a.e("v_mov_b32 v18, v16"); a.e("v_mov_b32 v19, v17")
    a.e("s_mov_b32 s30, 0")
    for it in wreads(0, 0): a.e("\n".join(it))
    NM = 2*NT
    xw = NW
    for s in range(nst):
        st = s & 1; last = s == nst-1
        ext = [[] for _ in range(4*NM)]
        xs = xloads(st ^ 1) if s+1 < nst else []
        ws = wd() if s+2 < nst else (nextw() if nextw else [])
        pos = 0
        for it in xs: ext[pos] += it; pos += xper
        pos = max(pos, dma_start)
        wpos = []
        step = max(1, (4*NM - pos)//max(1, len(ws)))
        for it in ws: ext[pos] += it; wpos.append(pos); pos += step
        n1 = sum(1 for p in wpos if p < 3*NM)
        for ks in range(4):
            f = ks & 1
            if ks == 0: a.e(f"s_waitcnt vmcnt({xw}) lgkmcnt(0)")
            elif ks < 3 or last: a.e("s_waitcnt lgkmcnt(0)")
            else:
                a.e(f"s_waitcnt vmcnt({len(xs) + n1}) lgkmcnt(0)")
                a.e("s_barrier")
                a.e(f"s_add_u32 s30, s30, {SLOT}"); a.e(f"s_cmp_eq_u32 s30, {NS*SLOT}"); a.e("s_cselect_b32 s30, 0, s30")
                a.e("v_add_u32 v18, s30, v16"); a.e("v_add_u32 v19, s30, v17")
            rd = wreads(f ^ 1, ks+1) if ks < 3 else ([] if last else wreads(0, 0))
            fl = merge(spread(rd, NM, 0, per=1), ext[ks*NM:(ks+1)*NM])
            for ins in interleave(mfmas(f, st, ks, s == 0 and ks == 0), fl): a.e(ins)
        xw = len(ws)

def epi_chunks(a, segstride):
    a.e("v_lshlrev_b32 v4, 4, v1")
    a.nop(8)
    k = 0
    for tb in range(2):
        for t in range(6):
            d = ACC + (tb*6+t)*16
            for j in range(2):
                r = 20 + (k % 8)*4; k += 1
                for q in range(4): a.e(f"v_cvt_pk_bf16_f32 v{r+q}, v{d+8*j+2*q}, v{d+8*j+2*q+1}")
                off = t*2048 + j*1024
                if off % 4096 == 0:
                    if tb == 0: a.e(f"s_add_u32 s25, s31, {off}")
                    else: a.e(f"s_add_u32 s25, {segstride}, s31"); a.e(f"s_add_u32 s25, s25, {off}")
                a.e(f"buffer_store_dwordx4 {vr(r,4)}, v4, s[8:11], s25 offen offset:{off % 4096} sc1")

def task_kq(a):
    a.e("s_lshl_b32 s25, s24, 1"); a.e("s_mul_i32 s25, s25, s35"); a.e("s_add_u32 s31, s31, s25")
    gemm_main(a, 6)
    epi_chunks(a, "s35")
    set_flag(a, "s36")

def task_vu(a):
    RB = 320
    a.e(f"s_mul_i32 s25, s24, {2*32*40960}"); a.e("s_add_u32 s31, s31, s25")
    w_voffsets(a, 5, 20, 1280)
    tr_bases(a, 5, 25, 4)
    a.e("s_mul_i32 s34, s24, 5120")
    a.e("s_mov_b32 s40, 0")
    def wd2():
        it = dmas(5, 20, "s[16:19]", "s37", 81920)
        it[-1] += ["s_add_u32 s40, s40, 1", "s_cmp_eq_u32 s40, 3", "s_cselect_b32 s40, 0, s40", f"s_cselect_b32 s25, {(320 - 3*81920) & 0xffffffff}, 0", "s_add_u32 s37, s37, s25"]
        return it
    gemm_main(a, 6, nextw=wd2)
    NWMAIN[0] = 6
    a.nop(8)
    k = 0
    for tb in range(2):
        for T in range(6):
            d = ACC + (tb*6+T)*16
            for q in range(8):
                r = 28 + (k % 8); k += 1
                a.e(f"v_cvt_pk_bf16_f32 v{r}, v{d+2*q}, v{d+2*q+1}")
                a.e(f"v_accvgpr_write_b32 a{VOP + (tb*6+T)*8 + q}, v{r}")
    a.e("v_lshlrev_b32 v4, 1, v1"); a.e("v_and_b32 v4, 62, v4"); a.e("v_lshrrev_b32 v5, 5, v1"); a.e("v_add_u32 v4, v4, v5"); a.e("v_lshlrev_b32 v4, 4, v4")
    a.e("s_waitcnt vmcnt(5)")
    a.e("s_barrier")
    a.e(f"s_add_u32 s30, s30, {SLOT}"); a.e(f"s_cmp_eq_u32 s30, {NS*SLOT}"); a.e("s_cselect_b32 s30, 0, s30")
    a.e("v_add_u32 v18, s30, v25")
    def wreads(f, ks):
        return [[f"ds_read_b64_tr_b16 {ar(FW[f]+4*t+2*h,2)}, v18 offset:{(16*ks+8*h)*RB + t*64}" for h in range(2)] for t in range(5)]
    for it in wreads(0, 0): a.e("\n".join(it))
    STG = list(range(28, 64, 8)) + list(range(224, 256, 8))
    STG = [28, 36, 44, 52, 224, 232, 240, 248]
    def cvts(i, r):
        d = ACC + i*16
        return [f"v_cvt_pk_bf16_f32 v{r+q}, v{d+2*q}, v{d+2*q+1}" for q in range(8)]
    def stores(i, r, base):
        tb, t = divmod(i, 5)
        off = t*2048
        s1 = [f"s_add_u32 s25, {base}, {tb*32*40960 + (off & ~4095)}"]
        return [s1 + [f"buffer_store_dwordx4 {vr(r,4)}, v4, s[8:11], s25 offen offset:{off % 4096} sc1"],
                [f"buffer_store_dwordx4 {vr(r+4,4)}, v4, s[8:11], s25 offen offset:{off % 4096 + 1024} sc1"]]
    def mfmas(f, sg, ks, first):
        m = []
        T = 2*sg + (ks >> 1); j = ks & 1
        for tb in range(2):
            for t in range(5):
                d = ACC + (tb*5+t)*16
                m.append(f"{MF} {vr(d,16)}, {ar(VOP + ((tb*6+T)*2+j)*4,4)}, {ar(FW[f]+4*t,4)}, {'0' if first else vr(d,16)}")
        return m
    def pass_body(pending):
        NM = 10
        st_items = []
        if pending:
            for n, i in enumerate(range(2, 10)): st_items += stores(i, STG[n], "s41")
        for sg in range(3):
            ext = [[] for _ in range(4*NM)]
            ws = wd2()
            mine = st_items[:6] if sg < 2 else st_items
            st_items = st_items[len(mine):]
            order = []
            pos = 1
            for it in mine: ext[pos] += it; order.append(("S", pos)); pos += 3
            pos = max(pos, 18)
            lab = a.newlabel("W_nd")
            wpos = []
            for n, it in enumerate(ws):
                ext[pos] += ["s_cmp_eq_u32 s42, 0", f"s_cbranch_scc1 {lab}_{n}"] + it + ([ "s_sub_u32 s42, s42, 1"] if n == 4 else []) + [f"{lab}_{n}:"]
                wpos.append(pos); pos += 2
            for ks in range(4):
                f = ks & 1
                if ks < 3: a.e("s_waitcnt lgkmcnt(0)")
                else:
                    l2 = a.newlabel("W_wv")
                    a.e(f"s_cmp_eq_u32 s43, 0"); a.e(f"s_cbranch_scc1 {l2}a")
                    a.e(f"s_waitcnt vmcnt({len(mine)+5}) lgkmcnt(0)"); a.e(f"s_branch {l2}b")
                    a.label(f"{l2}a"); a.e(f"s_waitcnt vmcnt({len(mine)}) lgkmcnt(0)"); a.label(f"{l2}b")
                    a.e("s_mov_b32 s43, s42")
                    a.e("s_barrier")
                    a.e(f"s_add_u32 s30, s30, {SLOT}"); a.e(f"s_cmp_eq_u32 s30, {NS*SLOT}"); a.e("s_cselect_b32 s30, 0, s30")
                    a.e("v_add_u32 v18, s30, v25")
                rd = wreads(f ^ 1, ks+1) if ks < 3 else wreads(0, 0)
                fl = merge(spread(rd, NM, 0, per=1), ext[ks*NM:(ks+1)*NM])
                for ins in interleave(mfmas(f, sg, ks, sg == 0 and ks == 0), fl): a.e(ins)
        a.nop(4)
        for i in range(2):
            r = 8
            for ins in cvts(i, r): a.e(ins)
            for it in stores(i, r, "s31"): a.e("\n".join(it))
            a.nop(2)
        for n, i in enumerate(range(2, 10)):
            for ins in cvts(i, STG[n]): a.e(ins)
        a.e("s_mov_b32 s41, s31"); a.e(f"s_add_u32 s31, s31, {5*2048}")
    a.e("s_mul_i32 s42, s38, 3"); a.e("s_sub_u32 s42, s42, 2"); a.e("s_mov_b32 s43, s42")
    pass_body(False)
    lp = a.newlabel("W_pass")
    a.e("s_sub_u32 s38, s38, 1"); a.e("s_cmp_eq_u32 s38, 0"); a.e(f"s_cbranch_scc1 {lp}_end")
    a.label(lp)
    pass_body(True)
    a.e("s_sub_u32 s38, s38, 1"); a.e("s_cmp_lg_u32 s38, 0"); a.e(f"s_cbranch_scc1 {lp}")
    a.label(f"{lp}_end")
    for n, i in enumerate(range(2, 10)):
        for it in stores(i, STG[n], "s41"): a.e("\n".join(it))
    a.e("s_waitcnt lgkmcnt(0)")
    lab = a.newlabel("W_fl")
    a.e("s_waitcnt vmcnt(0)"); a.e("s_barrier")
    a.e("s_cmp_lg_u32 s24, 0"); a.e(f"s_cbranch_scc1 {lab}")
    a.e("v_mov_b32 v2, 1"); a.e("v_lshlrev_b32 v3, 2, v1"); a.e("s_mov_b32 exec_hi, 0"); a.e("s_mov_b32 exec_lo, s39")
    a.e("buffer_store_dword v2, v3, s[8:11], s36 offen sc1")
    a.e("s_mov_b64 exec, -1")
    a.label(lab)

def task_bout(a):
    gemm_main(a, 5)
    a.e("v_and_b32 v4, 31, v1"); a.e("s_lshl_b32 s25, s24, 6"); a.e("v_add_u32 v4, s25, v4"); a.e("v_mul_u32_u24 v4, 2560, v4")
    a.e("v_lshrrev_b32 v5, 5, v1"); a.e("v_lshl_add_u32 v4, v5, 4, v4"); a.e(f"v_add_u32 v5, {32*2560}, v4")
    a.nop(4)
    k = 0
    for tb in range(2):
        for t in range(5):
            d = ACC + (tb*5+t)*16
            for j in range(2):
                r = 20 + (k % 8)*4; k += 1
                for q in range(4): a.e(f"v_cvt_pk_bf16_f32 v{r+q}, v{d+8*j+2*q}, v{d+8*j+2*q+1}")
                a.nop(2)
                a.e(f"v_permlane32_swap_b32 v{r}, v{r+2}"); a.e(f"v_permlane32_swap_b32 v{r+1}, v{r+3}")
                a.e(f"buffer_store_dwordx4 {vr(r,4)}, v{4+tb}, s[20:23], s31 offen offset:{t*64 + j*32}")
    a.e("s_barrier")

NEGINF = 0xff800000
def task_tp(a):
    C = 192**-0.5 * math.log2(math.e)
    KR = 64; QR = 112; MR = 160; S = 16; SM = 32
    a.e("s_lshl_b32 s46, s45, 2"); a.e("s_add_u32 s46, s46, s24")
    a.e("s_lshl_b32 s47, s44, 5"); a.e("s_add_u32 s47, s47, s46")
    a.e("s_lshr_b32 s25, s44, 3"); a.e("s_lshl_b32 s25, s25, 5"); a.e("s_add_u32 s25, s25, s46"); a.e("s_lshl_b32 s25, s25, 2"); a.e(f"s_add_u32 s25, s25, {WS_FLAGS}")
    wait_flags(a, a.newlabel("W_k"), "s25", 1, 2, 1, imm=F_K)
    wait_flags(a, a.newlabel("W_q"), "s25", 1, 2, 1, imm=F_Q)
    a.e("v_lshlrev_b32 v4, 4, v1")
    a.e("s_mul_i32 s26, s47, 12288"); a.e(f"s_add_u32 s27, s26, {WS_Q}"); a.e(f"s_add_u32 s26, s26, {WS_K}")
    for i in range(12):
        if i and i % 4 == 0: a.e("s_add_u32 s26, s26, 4096"); a.e("s_add_u32 s27, s27, 4096")
        a.e(f"buffer_load_dwordx4 {vr(KR+4*i,4)}, v4, s[8:11], s26 offen offset:{1024*(i%4)}")
        a.e(f"buffer_load_dwordx4 {vr(QR+4*i,4)}, v4, s[8:11], s27 offen offset:{1024*(i%4)}")
    a.e("v_and_b32 v5, 31, v1"); a.e("v_lshrrev_b32 v6, 5, v1"); a.e("v_lshlrev_b32 v7, 2, v6"); a.e("v_sub_u32 v8, v5, v7")
    a.e("v_and_b32 v7, 7, v1"); a.e("v_lshlrev_b32 v7, 4, v7"); a.e("v_lshl_add_u32 v7, v6, 7, v7"); a.e("s_mul_i32 s25, s24, 3072"); a.e("v_add_u32 v9, s25, v7")
    a.e("v_lshlrev_b32 v10, 4, v5"); a.e("v_lshl_add_u32 v10, v6, 3, v10")
    a.e(f"v_mov_b32 v11, {NEGINF}")
    for i in range(12):
        a.e(f"s_waitcnt vmcnt({22-2*i})")
        a.e(f"{MF} {vr(S,16)}, {vr(KR+4*i,4)}, {vr(QR+4*i,4)}, {'0' if i == 0 else vr(S,16)}")
    a.e("s_lshl_b32 s25, s46, 7"); a.e(f"s_add_u32 s25, s25, {WS_FLAGS+F_KM}"); a.e("s_add_u32 s28, s44, 1")
    a.nop(8)
    for r in range(16):
        kr = (r & 3) + 8*(r >> 2)
        a.e(f"v_cmp_le_i32 vcc, {kr}, v8")
        a.nop(2)
        a.e(f"v_cndmask_b32 v{S+r}, v11, v{S+r}, vcc")
    a.e(f"v_max3_f32 v12, v{S}, v{S+1}, v{S+2}")
    for r in range(3, 15, 2): a.e(f"v_max3_f32 v12, v{S+r}, v{S+r+1}, v12")
    a.e(f"v_max_f32 v12, v{S+15}, v12")
    wait_flags(a, a.newlabel("W_km"), "s25", 1, 2, "s28", sleep=2)
    a.e("s_mul_i32 s26, s47, 3072"); a.e(f"s_add_u32 s26, s26, {WS_KM}"); a.e("s_mul_i32 s25, s24, 3072")
    for i in range(3):
        a.e(f"s_add_u32 m0, s25, {1024*i}"); a.e("s_nop 0")
        a.e(f"buffer_load_dwordx4 v4, s[8:11], s26 offen sc1 lds")
        a.e("s_add_u32 s26, s26, 1024")
    a.e("s_waitcnt vmcnt(0)")
    for i in range(12): a.e(f"ds_read_b128 {vr(MR+4*i,4)}, v9 offset:{256*i}")
    for i in range(12):
        a.e(f"s_waitcnt lgkmcnt({11-i})")
        a.e(f"{MF} {vr(SM,16)}, {vr(MR+4*i,4)}, {vr(QR+4*i,4)}, {'0' if i == 0 else vr(SM,16)}")
    a.e("s_mul_i32 s26, s47, 2560"); a.e(f"s_add_u32 s26, s26, {WS_PT}")
    a.e("s_lshl_b32 s27, s44, 7"); a.e(f"s_add_u32 s27, s27, {WS_FLAGS+F_PT}")
    a.e(f"s_mov_b32 s28, {fbits(C)}")
    a.nop(12)
    a.e(f"v_max3_f32 v12, v{SM}, v{SM+1}, v12"); a.e(f"v_max3_f32 v12, v{SM+2}, v{SM+3}, v12")
    a.e("v_mov_b32 v13, v12"); a.nop(2); a.e("v_permlane32_swap_b32 v12, v13"); a.nop(1); a.e("v_max_f32 v12, v12, v13")
    a.e("v_mul_f32 v12, s28, v12")
    vals = list(range(S, S+16)) + list(range(SM, SM+4))
    for v in vals: a.e(f"v_fma_f32 v{v}, v{v}, s28, -v12")
    for v in vals: a.e(f"v_exp_f32 v{v}, v{v}")
    a.e(f"v_add_f32 v13, v{S}, v{S+1}")
    for v in vals[2:]: a.e(f"v_add_f32 v13, v13, v{v}")
    a.e("v_mov_b32 v14, v13"); a.nop(2); a.e("v_permlane32_swap_b32 v13, v14"); a.nop(1); a.e("v_add_f32 v13, v13, v14")
    a.e("v_rcp_f32 v13, v13"); a.nop(1)
    for v in vals: a.e(f"v_mul_f32 v{v}, v{v}, v13")
    for q in range(8): a.e(f"v_cvt_pk_bf16_f32 v{48+q}, v{S+2*q}, v{S+2*q+1}")
    for q in range(2): a.e(f"v_cvt_pk_bf16_f32 v{56+q}, v{SM+2*q}, v{SM+2*q+1}")
    a.e("buffer_store_dwordx4 v[48:51], v4, s[8:11], s26 offen sc1")
    a.e("buffer_store_dwordx4 v[52:55], v4, s[8:11], s26 offen offset:1024 sc1")
    a.e("buffer_store_dwordx2 v[56:57], v10, s[8:11], s26 offen offset:2048 sc1")
    a.e("v_mov_b32 v2, 1"); a.e("v_mov_b32 v3, 0")
    a.e("s_waitcnt vmcnt(0)")
    a.e("s_mov_b64 exec, 1")
    a.e("buffer_atomic_add v2, v3, s[8:11], s27 offen sc1")
    a.e("s_mov_b64 exec, -1")
    a.e("s_barrier")

def task_pz(a):
    a.e("s_lshr_b32 s25, s44, 3"); a.e("s_lshl_b32 s25, s25, 8"); a.e(f"s_add_u32 s25, s25, {WS_FLAGS+F_U}")
    wait_flags(a, a.newlabel("W_u"), "s25", 64, 2, 1)
    a.e("s_lshl_b32 s46, s44, 5"); a.e("s_lshl_b32 s25, s24, 3"); a.e("s_add_u32 s46, s46, s25")
    a.e("v_and_b32 v5, 31, v1"); a.e("v_lshrrev_b32 v6, 5, v1")
    a.e("v_lshlrev_b32 v4, 5, v5"); a.e("v_lshl_add_u32 v4, v6, 4, v4")
    a.e("v_lshlrev_b32 v7, 4, v1")
    a.e("v_mul_u32_u24 v8, 2560, v6"); a.e("v_lshl_add_u32 v8, v5, 4, v8")
    a.e("v_mul_u32_u24 v9, 10240, v6"); a.e("v_lshl_add_u32 v9, v5, 4, v9")
    a.e("s_mul_i32 s26, s46, 40960"); a.e("s_lshl_b32 s25, s45, 12"); a.e("s_add_u32 s26, s26, s25"); a.e(f"s_add_u32 s26, s26, {WS_U}")
    for h in range(8):
        for i in range(4): a.e(f"buffer_load_dwordx4 {ar(16*h+4*i,4)}, v4, s[8:11], s26 offen offset:{1024*i}")
        a.e("s_add_u32 s26, s26, 40960")
    a.e("s_lshl_b32 s25, s24, 13"); a.e("v_add_u32 v10, s25, v7")
    a.e("v_and_b32 v11, 7, v0"); a.e("v_lshrrev_b32 v12, 3, v0")
    a.e("v_lshlrev_b32 v13, 10, v11"); a.e("v_lshl_add_u32 v13, v12, 4, v13")
    a.e("v_mul_u32_u24 v14, 2560, v12"); a.e("v_lshl_add_u32 v14, v11, 4, v14")
    a.e("s_lshl_b32 s27, s44, 7"); a.e(f"s_add_u32 s27, s27, {WS_FLAGS+F_PT}")
    a.e("s_add_u32 s28, s44, 1"); a.e(f"s_mov_b32 s25, {WS_FLAGS+F_YR}")
    wait_flags(a, a.newlabel("W_y"), "s25", 32, 7, "s28", sleep=2)
    a.e("s_mul_i32 s29, s46, 10240"); a.e("s_lshl_b32 s25, s45, 10"); a.e("s_add_u32 s29, s29, s25"); a.e(f"s_add_u32 s29, s29, {WS_YA}")
    for p in range(4):
        for t in range(2): a.e(f"buffer_load_dwordx4 {vr(144+8*p+4*t,4)}, v9, s[8:11], s29 offen offset:{512*t} sc1")
        a.e("s_add_u32 s29, s29, 20480")
    wait_flags(a, a.newlabel("W_p"), "s27", 1, 2, 32, sleep=2)
    a.e("s_mul_i32 s26, s46, 2560"); a.e(f"s_add_u32 s26, s26, {WS_PT}")
    for p in range(4):
        a.e("s_add_u32 s25, s26, 2560")
        for j in range(2): a.e(f"buffer_load_dwordx4 {vr(64+16*p+4*j,4)}, v7, s[8:11], s26 offen offset:{1024*j} sc1")
        for j in range(2): a.e(f"buffer_load_dwordx4 {vr(64+16*p+8+4*j,4)}, v7, s[8:11], s25 offen offset:{1024*j} sc1")
        a.e(f"buffer_load_dwordx4 {vr(128+4*p,4)}, v8, s[8:11], s26 offen offset:2048 sc1")
        a.e("s_add_u32 s26, s26, 5120")
    first = True
    for p in range(4):
        for k in range(5):
            a.e(f"s_waitcnt vmcnt({19-5*p-k})")
            for t in range(2):
                d = 16+16*t
                if k < 4:
                    h = 2*p + (k >> 1); j = k & 1
                    A = ar(16*h + 8*t + 4*j, 4); B = vr(64+16*p+4*k, 4)
                else:
                    A = vr(144+8*p+4*t, 4); B = vr(128+4*p, 4)
                a.e(f"{MF} {vr(d,16)}, {A}, {B}, {'0' if first else vr(d,16)}")
            first = False
    a.e("s_mul_i32 s26, s44, 81920"); a.e("s_lshl_b32 s25, s45, 7"); a.e("s_add_u32 s26, s26, s25")
    a.nop(10)
    for t in range(2):
        if t: a.nop(4)
        for q in range(4): a.e(f"ds_write_b128 v10, {vr(16+16*t+4*q,4)} offset:{(t*4+q)*1024}")
    a.e("s_waitcnt lgkmcnt(0)")
    a.e("s_barrier")
    for w in range(4):
        for hf in range(2): a.e(f"ds_read_b128 {vr(64+8*w+4*hf,4)}, v13 offset:{8192*w + 512*hf}")
    a.e("s_waitcnt lgkmcnt(0)")
    for q in range(0, 8, 2):
        a.e(f"v_pk_add_f32 {vr(64+q,2)}, {vr(64+q,2)}, {vr(72+q,2)}"); a.e(f"v_pk_add_f32 {vr(80+q,2)}, {vr(80+q,2)}, {vr(88+q,2)}")
    for q in range(0, 8, 2): a.e(f"v_pk_add_f32 {vr(64+q,2)}, {vr(64+q,2)}, {vr(80+q,2)}")
    for q in range(4): a.e(f"v_cvt_pk_bf16_f32 v{48+q}, v{64+2*q}, v{64+2*q+1}")
    a.e("buffer_store_dwordx4 v[48:51], v14, s[20:23], s26 offen")
    a.e("s_barrier")

def piece_off(a, dst, c4reg):
    a.e(f"s_lshr_b32 s25, {c4reg}, 4"); a.e(f"s_lshl_b32 {dst}, s25, 10")
    a.e(f"s_bfe_u32 s25, {c4reg}, 0x10002"); a.e("s_lshl_b32 s25, s25, 9"); a.e(f"s_add_u32 {dst}, {dst}, s25")
    a.e(f"s_and_b32 s25, {c4reg}, 8"); a.e(f"s_add_u32 {dst}, {dst}, s25")
def bo_off(a, dst, c4reg):
    a.e(f"s_lshr_b32 s25, {c4reg}, 6"); a.e(f"s_lshl_b32 {dst}, s25, 12")
    a.e(f"s_bfe_u32 s25, {c4reg}, 0x20003"); a.e("s_lshl_b32 s25, s25, 10"); a.e(f"s_add_u32 {dst}, {dst}, s25")
    a.e(f"s_bfe_u32 s25, {c4reg}, 0x10005"); a.e("s_lshl_b32 s25, s25, 9"); a.e(f"s_add_u32 {dst}, {dst}, s25")
    a.e(f"s_bfe_u32 s25, {c4reg}, 0x10002"); a.e("s_lshl_b32 s25, s25, 3"); a.e(f"s_add_u32 {dst}, {dst}, s25")

def task_batt(a):
    C = 20**-0.5 * math.log2(math.e)
    SEG = 122880; VL = 18432
    S = 64; Q0 = 16; Q1 = 20; KA = 24; DAT = 208; O = 40
    a.e("s_lshr_b32 s26, s44, 1"); a.e("s_max_u32 s27, s26, 1"); a.e("s_sub_u32 s27, s27, 1")
    a.e("s_lshl_b32 s26, s26, 6"); a.e("s_lshl_b32 s27, s27, 6"); a.e(f"s_add_u32 s26, s26, {WS_FLAGS+F_BQ}"); a.e(f"s_add_u32 s27, s27, {WS_FLAGS+F_BQ}")
    wait_flags(a, a.newlabel("W_b1"), "s26", 10, 2, 1)
    wait_flags(a, a.newlabel("W_b2"), "s27", 10, 2, 1)
    a.e("s_mul_i32 s28, s45, 20")
    for part in range(3):
        for c in range(5):
            a.e(f"s_add_u32 s29, s28, {640*part + 4*c}")
            piece_off(a, f"s{48 + 5*part + c}", "s29")
    a.e("v_and_b32 v5, 31, v1"); a.e("v_lshrrev_b32 v6, 5, v1")
    a.e(f"v_mul_u32_u24 v4, {SEG}, v6"); a.e("v_lshl_add_u32 v4, v5, 4, v4")
    a.e("v_mul_u32_u24 v7, 48, v1")
    for i in range(3):
        a.e("s_mul_i32 s29, s24, 3"); a.e(f"s_add_u32 s29, s29, {i}")
        a.e("s_cmp_ge_u32 s29, 6"); a.e("s_cselect_b32 s30, 6, 0"); a.e("s_cselect_b32 s33, 1, 0"); a.e("s_sub_u32 s29, s29, s30")
        a.e("s_lshl_b32 s30, s44, 1"); a.e("s_add_u32 s30, s30, s29"); a.e("s_max_u32 s30, s30, 4"); a.e("s_sub_u32 s30, s30, 4")
        a.e(f"s_mul_i32 s30, s30, {2*SEG}"); a.e(f"s_add_u32 s30, s30, {WS_BQKV}")
        a.e("s_mul_i32 s29, s29, 3072"); a.e(f"s_mul_i32 s34, s33, {VL}"); a.e("s_add_u32 s29, s29, s34")
        a.e(f"v_add_u32 v{8+i}, s29, v7")
        a.e("s_cmp_eq_u32 s33, 1")
        for c in range(5):
            a.e(f"s_cselect_b32 s31, s{58+c}, s{53+c}"); a.e(f"s_mov_b32 s{35+c}, s31")
        for c in range(5):
            a.e(f"s_add_u32 s31, s{35+c}, s30")
            a.e(f"buffer_load_dwordx2 {vr(DAT+10*i+2*c,2)}, v4, s[8:11], s31 offen")
    a.e("s_lshl_b32 s30, s44, 2"); a.e("s_add_u32 s30, s30, s24"); a.e(f"s_mul_i32 s30, s30, {SEG}"); a.e(f"s_add_u32 s30, s30, {WS_BQKV}")
    a.e("v_cmp_eq_u32 vcc, 0, v6"); a.e("v_lshlrev_b32 v11, 4, v5")
    for k in range(2):
        a.e(f"v_mov_b32 v12, s{50+k}"); a.e(f"v_mov_b32 v13, s{48+k}"); a.e("v_cndmask_b32 v12, v12, v13, vcc"); a.e("v_add_u32 v12, v12, v11")
        a.e(f"buffer_load_dwordx2 {vr(Q0+2*k,2)}, v12, s[8:11], s30 offen")
    a.e("s_add_u32 s30, s30, s52")
    a.e(f"buffer_load_dwordx2 {vr(Q1,2)}, v11, s[8:11], s30 offen")
    a.e("v_mov_b32 v14, 0x3f80"); a.e("v_mov_b32 v15, 0"); a.e("v_mul_u32_u24 v12, 48, v0"); a.e("v_and_b32 v13, 127, v0"); a.e("v_mul_u32_u24 v13, 48, v13")
    a.e(f"ds_write_b64 v12, v[14:15] offset:{VL+40}"); a.e(f"ds_write_b64 v13, v[14:15] offset:{VL+40+256*48}")
    for i in range(3):
        for c in range(5):
            a.e(f"s_waitcnt vmcnt({17-5*i-c})")
            a.e(f"ds_write_b64 v{8+i}, {vr(DAT+10*i+2*c,2)} offset:{8*c}")
    a.e("s_mul_i32 s29, s24, 1536")
    a.e("v_mul_u32_u24 v8, 48, v5"); a.e("v_add_u32 v8, s29, v8"); a.e("v_lshl_add_u32 v9, v6, 4, v8")
    a.e("v_bfe_u32 v10, v1, 2, 2"); a.e("v_lshl_add_u32 v10, v6, 2, v10"); a.e("v_mul_u32_u24 v10, 48, v10")
    a.e("v_bfe_u32 v12, v1, 4, 1"); a.e("v_and_b32 v13, 3, v1"); a.e("v_lshl_add_u32 v12, v12, 2, v13"); a.e("v_min_u32 v12, 5, v12"); a.e("v_lshl_add_u32 v10, v12, 3, v10")
    a.e(f"s_add_u32 s29, s29, {VL}"); a.e("v_add_u32 v10, s29, v10")
    a.e("v_lshlrev_b32 v12, 2, v6"); a.e("v_sub_u32 v12, v5, v12")
    a.e(f"v_mov_b32 v13, {NEGINF}")
    a.e("s_waitcnt vmcnt(0)")
    a.e(f"v_cndmask_b32 v{Q1}, 0, v{Q1}, vcc"); a.e(f"v_cndmask_b32 v{Q1+1}, 0, v{Q1+1}, vcc")
    a.e("s_lshl_b32 s33, s44, 2"); a.e("s_add_u32 s33, s33, s24")
    a.e("s_waitcnt lgkmcnt(0)")
    a.e("s_barrier")
    def kread(i):
        r = KA + 6*(i % 3)
        a.e(f"ds_read_b128 {vr(r,4)}, v9 offset:{1536*i}"); a.e(f"ds_read_b64 {vr(r+4,2)}, v8 offset:{1536*i+32}")
    def m8(i):
        a.e(f"v_mfma_f32_32x32x8_bf16 {vr(S+16*i,16)}, {vr(KA+6*(i%3)+4,2)}, {vr(Q1,2)}, {vr(S+16*i,16)}")
    kread(0)
    for i in range(9):
        if i < 8: kread(i+1)
        a.e(f"s_waitcnt lgkmcnt({2 if i < 8 else 0})")
        a.e(f"{MF} {vr(S+16*i,16)}, {vr(KA+6*(i%3),4)}, {vr(Q0,4)}, 0")
        if i == 1: a.nop(4)
        if i > 0: m8(i-1)
    a.nop(4)
    m8(8)
    a.nop(16)
    lab = a.newlabel("W_neg")
    for i in range(8):
        a.e(f"s_cmp_ge_u32 s33, {8-i}"); a.e(f"s_cbranch_scc1 {lab}")
        for r in range(16): a.e(f"v_mov_b32 v{S+16*i+r}, v13")
    a.label(lab)
    for r in range(16):
        kr = (r & 3) + 8*(r >> 2)
        a.e(f"v_cmp_le_i32 vcc, {kr}, v12")
        a.nop(2)
        a.e(f"v_cndmask_b32 v{S+128+r}, v13, v{S+128+r}, vcc")
        a.e(f"v_cndmask_b32 v{S+r}, v{S+r}, v13, vcc")
    a.e(f"v_max3_f32 v14, v{S}, v{S+1}, v{S+2}"); a.e(f"v_max3_f32 v15, v{S+3}, v{S+4}, v{S+5}")
    for r in range(6, 142, 4):
        a.e(f"v_max3_f32 v14, v{S+r}, v{S+r+1}, v14"); a.e(f"v_max3_f32 v15, v{S+r+2}, v{S+r+3}, v15")
    a.e(f"v_max3_f32 v14, v{S+142}, v{S+143}, v14"); a.e("v_max_f32 v14, v14, v15")
    a.e("v_mov_b32 v15, v14"); a.e(f"s_mov_b32 s28, {fbits(C)}"); a.nop(1); a.e("v_permlane32_swap_b32 v14, v15"); a.nop(1); a.e("v_max_f32 v14, v14, v15")
    a.e("v_mul_f32 v14, s28, v14")
    def vread(i):
        for jj in range(2):
            for h in range(2):
                a.e(f"ds_read_b64_tr_b16 {vr(KA+8*(i&1)+4*jj+2*h,2)}, v10 offset:{(32*i+16*jj+8*h)*48}")
    vread(0)
    for i in range(9):
        d = S+16*i
        for r in range(16): a.e(f"v_fma_f32 v{d+r}, v{d+r}, s28, -v14")
        for r in range(16): a.e(f"v_exp_f32 v{d+r}, v{d+r}")
        for q in range(8): a.e(f"v_cvt_pk_bf16_f32 v{d+q}, v{d+2*q}, v{d+2*q+1}")
        if i < 8: vread(i+1)
        a.e(f"s_waitcnt lgkmcnt({4 if i < 8 else 0})")
        if i == 8: a.nop(1)
        for jj in range(2):
            a.e(f"{MF} {vr(O,16)}, {vr(KA+8*(i&1)+4*jj,4)}, {vr(d+4*jj,4)}, {'0' if i == 0 and jj == 0 else vr(O,16)}")
    a.e("s_mul_i32 s28, s45, 20")
    for c in range(5):
        a.e(f"s_add_u32 s29, s28, {4*c}"); bo_off(a, f"s{48+c}", "s29")
    a.e(f"s_mul_i32 s30, s33, 40960"); a.e(f"s_add_u32 s30, s30, {WS_BO}")
    a.e("v_cmp_eq_u32 vcc, 0, v6")
    for k in range(2):
        a.e(f"v_mov_b32 v8, s{48+2*k+1}"); a.e(f"v_mov_b32 v9, s{48+2*k}"); a.e("v_cndmask_b32 v8, v8, v9, vcc"); a.e(f"v_add_u32 v{16+k}, v8, v11")
    a.e(f"v_mov_b32 v8, v{O+8}"); a.e(f"v_mov_b32 v9, v{O+8}"); a.nop(1); a.e("v_permlane32_swap_b32 v8, v9")
    a.nop(1); a.e("v_rcp_f32 v9, v9"); a.nop(1)
    for r in range(12): a.e(f"v_mul_f32 v{O+r}, v{O+r}, v9")
    for q in range(6): a.e(f"v_cvt_pk_bf16_f32 v{24+q}, v{O+2*q}, v{O+2*q+1}")
    a.e("buffer_store_dwordx2 v[24:25], v16, s[8:11], s30 offen sc1")
    a.e("buffer_store_dwordx2 v[26:27], v17, s[8:11], s30 offen sc1")
    a.e("s_add_u32 s30, s30, s52"); a.e("s_mov_b32 exec_hi, 0")
    a.e("buffer_store_dwordx2 v[28:29], v11, s[8:11], s30 offen sc1")
    a.e("s_mov_b64 exec, -1")
    a.e("s_lshr_b32 s26, s44, 1"); a.e("s_lshl_b32 s26, s26, 7"); a.e(f"s_add_u32 s26, s26, {WS_FLAGS+F_BA}")
    set_flag(a, "s26", add=True)

T_END, T_K, T_Q, T_VU, T_BQ, T_BA, T_BO, T_P, T_PZ = range(9)
def enc(t, x, y, z=0): return t | (x << 8) | (y << 16) | (z << 24)

def worker(a, table_label, maxlen):
    a.e("s_load_dwordx8 s[64:71], s[0:1], 16")
    a.e("s_load_dwordx4 s[72:75], s[0:1], 64")
    a.e("s_load_dwordx2 s[20:21], s[0:1], 80")
    a.e("s_getpc_b64 s[76:77]")
    a.label("W_pc")
    a.e(f"s_add_u32 s76, s76, {table_label}-W_pc"); a.e("s_addc_u32 s77, s77, 0")
    a.e(f"s_mul_i32 s79, s79, {4*maxlen}")
    a.e("s_waitcnt lgkmcnt(0)")
    a.e("s_mov_b32 s22, 5242880"); a.e("s_mov_b32 s23, 0x20000")
    a.e("s_mov_b32 s16, s70"); a.e("s_mov_b32 s17, s71"); a.e("s_mov_b32 s18, 7864320"); a.e("s_mov_b32 s19, 0x20000")
    a.e("s_mov_b32 s12, s64"); a.e("s_mov_b32 s13, s65"); a.e("s_mov_b32 s14, 7864320"); a.e("s_mov_b32 s15, 0x20000")
    a.e("v_and_b32 v1, 63, v0")
    a.label("W_next")
    a.e("s_load_dword s78, s[76:77], s79")
    a.e("s_add_u32 s79, s79, 4")
    a.e("s_waitcnt lgkmcnt(0)")
    a.e("PROFTASK")
    a.e("s_and_b32 s25, s78, 255"); a.e("s_bfe_u32 s44, s78, 0x80008"); a.e("s_bfe_u32 s45, s78, 0x80010"); a.e("s_lshr_b32 s46, s78, 24")
    for t, l in ((T_P, "W_tp"), (T_PZ, "W_pz"), (T_BA, "W_ba"), (T_VU, "W_vu"), (T_K, "W_k"), (T_Q, "W_q"), (T_BQ, "W_bq"), (T_BO, "W_bo")):
        a.e(f"s_cmp_eq_u32 s25, {t}"); a.e(f"s_cbranch_scc1 {l}")
    a.e("s_branch W_done")
    def acommon(p):
        a.e(f"s_mov_b32 s12, s{p}"); a.e(f"s_mov_b32 s13, s{p+1}"); a.e("s_mov_b32 s14, 7864320")
        a.e("s_mul_i32 s26, s44, 327680"); a.e(f"s_add_u32 s26, s26, {WS_XFA}")
        a.e("s_mul_i32 s27, s45, 384"); a.e("s_mov_b32 s33, 12288")
        a.e("s_lshl_b32 s36, s44, 5"); a.e("s_add_u32 s36, s36, s45")
        a.e("s_lshl_b32 s31, s44, 8"); a.e("s_add_u32 s31, s31, s45")
    a.label("W_k"); acommon(66)
    a.e("s_lshl_b32 s36, s36, 2"); a.e(f"s_add_u32 s36, s36, {WS_FLAGS+F_K}")
    a.e("s_mul_i32 s31, s31, 12288"); a.e(f"s_add_u32 s31, s31, {WS_K}"); a.e("s_mov_b32 s35, 393216"); a.e("s_branch W_kq")
    a.label("W_q"); acommon(64)
    a.e("s_lshl_b32 s36, s36, 2"); a.e(f"s_add_u32 s36, s36, {WS_FLAGS+F_Q}")
    a.e("s_mul_i32 s31, s31, 12288"); a.e(f"s_add_u32 s31, s31, {WS_Q}"); a.e("s_mov_b32 s35, 393216"); a.e("s_branch W_kq")
    a.label("W_bq")
    a.e("s_mov_b32 s12, s72"); a.e("s_mov_b32 s13, s73"); a.e("s_mov_b32 s14, 2457600")
    a.e("s_mul_i32 s26, s44, 327680"); a.e(f"s_add_u32 s26, s26, {WS_XFB}")
    a.e("s_mul_i32 s27, s45, 384"); a.e("s_mov_b32 s33, 3840")
    a.e("s_lshl_b32 s36, s44, 4"); a.e("s_add_u32 s36, s36, s45"); a.e("s_lshl_b32 s36, s36, 2"); a.e(f"s_add_u32 s36, s36, {WS_FLAGS+F_BQ}")
    a.e("s_mul_i32 s31, s44, 80"); a.e("s_add_u32 s31, s31, s45"); a.e("s_mul_i32 s31, s31, 12288"); a.e(f"s_add_u32 s31, s31, {WS_BQKV}"); a.e("s_mov_b32 s35, 122880")
    a.label("W_kq"); task_kq(a); a.e("s_branch W_next")
    a.label("W_vu"); acommon(68)
    a.e("s_lshl_b32 s36, s36, 3"); a.e(f"s_add_u32 s36, s36, {WS_FLAGS+F_U}")
    a.e("s_mul_i32 s31, s31, 40960"); a.e(f"s_add_u32 s31, s31, {WS_U}")
    a.e("s_mul_i32 s37, s45, 245760")
    a.e("s_cmp_eq_u32 s46, 0"); a.e("s_cselect_b32 s38, 4, 2"); a.e("s_cselect_b32 s39, 3, s46")
    a.e("s_cmp_eq_u32 s46, 2"); a.e("s_cselect_b32 s25, 640, 0"); a.e("s_add_u32 s37, s37, s25")
    a.e("s_cmp_eq_u32 s46, 2"); a.e("s_cselect_b32 s25, 20480, 0"); a.e("s_add_u32 s31, s31, s25")
    task_vu(a); a.e("s_branch W_next")
    a.label("W_bo")
    a.e("s_lshl_b32 s26, s44, 7"); a.e(f"s_add_u32 s26, s26, {WS_FLAGS+F_BA}")
    wait_flags(a, "W_bow", "s26", 1, 2, 64)
    a.e("s_mov_b32 s12, s74"); a.e("s_mov_b32 s13, s75"); a.e("s_mov_b32 s14, 819200")
    a.e("s_mul_i32 s26, s44, 327680"); a.e(f"s_add_u32 s26, s26, {WS_BO}")
    a.e("s_mul_i32 s27, s45, 320"); a.e("s_mov_b32 s33, 1280")
    a.e(f"s_mul_i32 s31, s44, {256*2560}"); a.e("s_add_u32 s31, s31, s27"); a.e("s_add_u32 s31, s31, 1280")
    task_bout(a); a.e("s_branch W_next")
    a.label("W_tp"); task_tp(a); a.e("s_branch W_next")
    a.label("W_pz"); task_pz(a); a.e("s_branch W_next")
    a.label("W_ba"); task_batt(a); a.e("s_branch W_next")
    a.label("W_done")
```

```python
import math
from asmlib import *
from layout import *

SM64 = "v_smfmac_f32_16x16x64_bf16"
SM32 = "v_smfmac_f32_16x16x32_bf16"
CEXP = 192**-0.5 * math.log2(math.e)
import struct
def fbits(x): return struct.unpack("<I", struct.pack("<f", x))[0]


def load_weights(a, chunks, tmp):
    n = len(chunks)
    issued = 0
    cnt_after = []
    def can_issue(k, nxt):
        c = chunks[nxt]
        for q in range(k, nxt):
            d = chunks[q]
            if c['off'] < d['off'] + d['size'] and d['off'] < c['off'] + c['size']: return False
        for q in range(0, k):
            d = chunks[q]
            if d['res'] and c['off'] < d['off'] + d['size'] and d['off'] < c['off'] + c['size']: raise Exception("overlap resident")
        out = sum(len(chunks[q]['dma']) for q in range(k, nxt+1))
        return out <= WMAX[0]
    def issue_some(k):
        nonlocal issued
        while issued < n and can_issue(k, issued):
            for it in chunks[issued]['dma']: a.e("\n".join(it))
            issued += 1
    issue_some(0)
    for k in range(n):
        c = chunks[k]
        after = sum(len(chunks[q]['dma']) for q in range(k+1, issued))
        a.e(f"s_waitcnt vmcnt({after})")
        a.e("s_barrier")
        if k == 0 and ARRIVE[0] and tmp:
            lab = a.newlabel("C_ar")
            a.e("s_cmp_eq_u32 s81, 0"); a.e(f"s_cbranch_scc1 {lab}x")
            ARRIVE[0](a, lab)
            a.label(lab + "x")
        issue_some(k)
        if tmp and k == n - 3: smem_census(a)
        for ins in c['pre']: a.e(ins)
        for i, ins in enumerate(c['tr']):
            a.e(ins)
            if i % 12 == 11: a.e("s_waitcnt lgkmcnt(4)")
        a.e("s_waitcnt lgkmcnt(0)")
        if c['res']:
            a.e("s_barrier")
            for ins in c['res']: a.e(ins)
            a.e("s_waitcnt lgkmcnt(0)")
    a.e("s_barrier")

def smem_census(a):
    lab = a.newlabel("C_cw")
    a.label(lab)
    a.e("s_load_dwordx16 s[60:75], s[4:5], 0 glc"); a.e("s_load_dwordx8 s[84:91], s[4:5], 128 glc"); a.e("s_load_dword s92, s[4:5], 64 glc")
    a.e("s_sub_u32 s82, s82, 1"); a.e("s_cbranch_scc1 L_abort")
    a.e("s_waitcnt lgkmcnt(0)")
    a.e("s_cmp_lg_u32 s68, 256"); a.e(f"s_cbranch_scc1 {lab}")
    a.e("s_min_u32 s81, s60, s85")
    if CAL[0]:
        a.e("s_and_b32 s30, s60, s62")
        for r in (64, 66, 85, 87, 89, 91): a.e(f"s_and_b32 s30, s30, s{r}")
        a.e("s_cmp_lg_u32 s30, 32"); a.e(f"s_cbranch_scc1 {lab}d")
        a.e("s_cmp_eq_u32 s92, 0"); a.e(f"s_cbranch_scc1 {lab}")
        a.e("s_and_b32 s47, s92, 0x2000")
        a.label(lab + "d")

def common_consts(a, vIdx, vSB, vStW, vH2, vMk, MEMIMG):
    a.e("v_and_b32 v2, 8, v1")
    a.e("v_cmp_eq_u32 vcc, 0, v2")
    a.e("v_mov_b32 v3, 0xeeee")
    a.e("v_mov_b32 v4, 0x4444")
    a.e(f"v_cndmask_b32 v{vIdx}, v3, v4, vcc")
    a.e("v_and_b32 v2, 1, v1")
    a.e("v_cmp_eq_u32 vcc, 0, v2")
    a.e("s_nop 1")
    a.e("v_cndmask_b32 v2, v3, v4, vcc")
    a.e(f"v_lshl_or_b32 v{vIdx}, v2, 16, v{vIdx}")
    a.e("v_lshrrev_b32 v2, 5, v1")
    a.e("v_bfe_u32 v3, v1, 3, 1")
    a.e("v_cmp_eq_u32 s[30:31], v2, v3")
    a.e("v_and_b32 v2, 1, v1")
    a.e("v_lshlrev_b32 v2, 4, v2")
    a.e("v_mov_b32 v3, 0x3f80")
    a.e("v_lshlrev_b32 v3, v2, v3")
    a.e("v_bfe_u32 v4, v1, 1, 2")
    for q in range(4):
        a.e(f"v_cmp_eq_u32 vcc, {q}, v4")
        a.e("s_and_b64 vcc, vcc, s[30:31]")
        a.e(f"v_cndmask_b32 v{vSB+q}, 0, v3, vcc")
    a.e("v_lshrrev_b32 v2, 4, v1")
    a.e("s_mul_i32 s30, s24, 20")
    a.e("v_add_u32 v2, s30, v2")
    a.e("v_lshlrev_b32 v2, 7, v2")
    a.e("v_and_b32 v3, 7, v1")
    a.e("v_lshl_add_u32 v2, v3, 4, v2")
    a.e("v_bfe_u32 v3, v1, 3, 1")
    a.e("v_lshl_add_u32 v2, v3, 3, v2")
    a.e(f"v_add_u32 v{vStW}, {MEMIMG}, v2")
    a.e("v_bfe_u32 v2, v1, 4, 1")
    a.e("v_lshlrev_b32 v2, 12, v2")
    a.e("v_bfe_u32 v3, v1, 2, 2")
    a.e("v_lshl_add_u32 v2, v3, 7, v2")
    a.e("v_lshrrev_b32 v3, 5, v1")
    a.e("v_lshl_add_u32 v2, v3, 6, v2")
    a.e("v_and_b32 v3, 3, v1")
    a.e(f"v_lshl_add_u32 v{vH2}, v3, 4, v2")
    a.e("v_and_b32 v2, 15, v1")
    a.e(f"v_mul_u32_u24 v{vMk}, {MKS[0]}, v2")
    if MKE[0]:
        a.e("v_and_b32 v2, 3, v1"); a.e("v_lshrrev_b32 v3, 2, v1"); a.e(f"v_mul_u32_u24 v3, {MKS[0]}, v3"); a.e(f"v_lshl_add_u32 v{vMk}, v2, 2, v3")
    for k in range(5):
        a.e(f"s_mul_i32 s30, s24, 5")
        a.e(f"s_add_u32 s30, s30, {k}")
        a.e(f"s_lshr_b32 s31, s30, 3")
        a.e(f"s_lshl_b32 s31, s31, 14")
        a.e(f"s_and_b32 s30, s30, 7")
        a.e(f"s_lshl_b32 s30, s30, 9")
        a.e(f"s_add_u32 s{40+k}, s30, s31")
    a.e(f"s_mul_i32 s46, s25, {LOC_STRIDE}")
    a.e(f"s_add_u32 s46, s46, {WS_LOC}")
    a.e(f"s_add_u32 s45, s46, {LOC_MK}")

def h2_base(a, dst, stepreg_plus):
    a.e(f"s_add_u32 s30, s28, 1")
    a.e(f"s_lshl_b32 {dst}, s30, 16")
    a.e(f"s_lshl_b32 s30, s30, 8")
    a.e(f"s_and_b32 s30, s30, 0x2000")
    a.e(f"s_xor_b32 s30, s30, s47")
    a.e(f"s_add_u32 {dst}, {dst}, s30")

def stage_mem0(a, MEMIMG, tmp, part):
    if part == 0:
        for i in range(3):
            a.e(f"v_add_u32 v2, {256*i}, v0")
            a.e("v_min_u32 v2, 639, v2")
            a.e("v_and_b32 v3, 7, v2")
            a.e("v_mul_u32_u24 v3, 1280, v3")
            a.e("v_lshrrev_b32 v4, 3, v2")
            a.e("v_lshl_add_u32 v3, v4, 4, v3")
            a.e(f"buffer_load_dwordx4 {vr(tmp+4*i,4)}, v3, s[20:23], 0 offen")
            a.e(f"v_lshlrev_b32 v{tmp+12+i}, 4, v2")
        return
    a.e("s_waitcnt vmcnt(0)")
    for i in range(3):
        a.e(f"v_add_u32 v{tmp+12+i}, {MEMIMG}, v{tmp+12+i}")
        a.e(f"ds_write_b128 v{tmp+12+i}, {vr(tmp+4*i,4)}")
    a.e("s_waitcnt lgkmcnt(0)")

PSEL = [0]
ARRIVE = [None]
WPOL = ['']
WMAX = [36]
CAL = [1]
HINT = [0]
MKPOST = [0]
MKE = [0]
MK1 = [1]
MKA = [0]
TSR = [0]
MKGAP = [24]
STEPLOG = [0]
MKS = [128]
def ts(a, prof, idx, sel=0):
    if prof and (sel == PSEL[0] or idx in (0, 5, 6)): a.e(f"{'s_memrealtime' if TSR[0] else 's_memtime'} s[{60+2*idx}:{61+2*idx}]")

def h2_stage(a, lab, PD, D0, D1, vSB, vStW, vH2, vMk, tmpv, presleep, prof, after=None, nafter=0, nobar=False, pollw=2, after2=None, nafter2=0):
    h2_base(a, "s53", None)
    for k in range(5): a.e(f"s_add_u32 s{48+k}, s53, s{40+k}")
    a.e("s_add_u32 s30, s28, 1")
    if MKA[0]: a.e("s_lshl_b32 s30, s30, 4")
    if MK1[0]:
        a.e(f"s_cmp_lg_u32 s24, {pollw}"); a.e(f"s_cbranch_scc1 {lab}_mkb")
    for i in range(presleep): a.e("s_sleep 1")
    if not MKE[0]: a.e(f"s_mov_b64 exec, {1 if MKA[0] else 0xffff}")
    mk = (lambda r: f"buffer_load_dword v{r}, off, s[8:11], s45 sc1") if MKA[0] else (lambda r: f"buffer_load_dword v{r}, v{vMk}, s[8:11], s45 offen sc1")
    a.e(mk(tmpv))
    a.nop(MKGAP[0])
    a.label(f"{lab}_mk")
    a.e(mk(tmpv+1))
    a.e("s_waitcnt vmcnt(1)")
    a.e(f"v_cmp_gt_u32 vcc, s30, v{tmpv}")
    a.e(f"s_cbranch_vccz {lab}_mkok")
    a.e(mk(tmpv))
    a.e("s_sub_u32 s82, s82, 1"); a.e("s_cbranch_scc1 L_abort")
    a.e("s_waitcnt vmcnt(1)")
    a.e(f"v_cmp_gt_u32 vcc, s30, v{tmpv+1}")
    a.e(f"s_cbranch_vccnz {lab}_mk")
    a.label(f"{lab}_mkok")
    a.e("s_mov_b64 exec, -1")
    a.nop(MKPOST[0])
    if MK1[0] and not after2:
        a.label(f"{lab}_mkb")
        a.e("s_barrier")
    tmpv = tmpv + 2
    ts(a, prof, 5)
    def body(extra, aft, again):
        for k in range(5):
            a.e(f"buffer_load_dwordx4 {vr(PD+4*k,4)}, v{vH2}, s[8:11], s{48+k} offen sc1")
        if aft: aft()
        for k in range(5):
            a.e(f"s_waitcnt vmcnt({4-k+extra})")
            if again.endswith("r") and aft is after: ts(a, prof, [1,2,3,4,7][k], 1)
            r = PD+4*k
            if k == 0: a.e(f"v_max3_u32 v{tmpv}, v{r}, v{r+1}, v{r+2}"); a.e(f"v_max_u32 v{tmpv}, v{tmpv}, v{r+3}")
            else: a.e(f"v_max3_u32 v{tmpv}, v{r}, v{r+1}, v{tmpv}"); a.e(f"v_max3_u32 v{tmpv}, v{r+2}, v{r+3}, v{tmpv}")
            a.e(f"v_mfma_f32_16x16x32_bf16 {vr(r,4)}, {vr(r,4)}, {vr(vSB,4)}, 0")
            if k >= 3:
                q = PD+4*(k-3)
                a.e(f"v_cvt_pk_bf16_f32 v{q}, v{q}, v{q+1}")
                a.e(f"v_cvt_pk_bf16_f32 v{q+1}, v{q+2}, v{q+3}")
                a.e(f"ds_write_b64 v{vStW}, {vr(q,2)} offset:{512*(k-3)}")
        a.e(f"v_cmp_eq_u32 vcc, -1, v{tmpv}")
        for k in (2, 3, 4):
            q = PD+4*k
            if k == 4: a.nop(1)
            a.e(f"v_cvt_pk_bf16_f32 v{q}, v{q}, v{q+1}")
            a.e(f"v_cvt_pk_bf16_f32 v{q+1}, v{q+2}, v{q+3}")
            a.e(f"ds_write_b64 v{vStW}, {vr(q,2)} offset:{512*k}")
        a.e(again)
    if after2:
        a.e("s_barrier")
        body(nafter2, after2, f"s_cbranch_vccnz {lab}_h2r")
        a.e(f"s_branch {lab}_h2done")
        a.label(f"{lab}_mkb")
        a.e("s_barrier")
        ts(a, prof, 5)
    body(nafter, after, f"s_cbranch_vccnz {lab}_h2r")
    a.label(f"{lab}_h2done")
    if not nobar:
        a.e("s_waitcnt lgkmcnt(0)")
        a.e("s_barrier")
    def retry():
        a.label(f"{lab}_h2r")
        if prof: a.e("s_add_u32 s83, s83, 1")
        body(0, lambda: (a.e("s_sub_u32 s82, s82, 1"), a.e("s_cbranch_scc1 L_abort")), f"s_cbranch_vccnz {lab}_h2r")
        a.e(f"s_branch {lab}_h2done")
    return retry

def prof_dump(a, prof, lab):
    if not prof: return
    a.e(f"s_cmp_lg_u32 s28, {prof}")
    a.e(f"s_cbranch_scc1 {lab}_nodump")
    a.e("s_waitcnt lgkmcnt(0)")
    a.e("s_mov_b64 exec, 1")
    a.e("v_mov_b32 v2, s39")
    for i in range(8):
        a.e(f"v_mov_b32 v3, s{60+2*i}")
        a.e(f"buffer_store_dword v3, v2, s[56:59], 0 offen offset:{4*i}")
        a.e("s_nop 1")
    a.e("s_mov_b64 exec, -1")
    a.label(f"{lab}_nodump")

def qk_role(a, slow=False, cw=None, pre="QK", prof=0, mk_sleep=10, nsteps=64, upf=0, pfpol='', pfpos=(1,7), x_yc=1, x_km=1, x_kx=1, hk_sleep=0, BARP=3, qh_nop=24):
    LST = "sc1" if slow else ""
    MEMIMG = 98304; SCR = 108544
    vIdx, vMask, vI, vSB = 8, 9, 10, 12
    vArd, vStW, vH2, vMk, vKx32, vKx16, vScW0, vScW1, vScWm, vScR, vScRm, vPx, vPm, vKmA, vKmB, vL16 = range(16, 32)
    RING = 32; TMP = 48; ACC = 60; KX = 72; BST = 84
    WV = 132
    TMP = 48; ACC = 56; KX = 68; BST = 80; WV = 128
    def wreg(o): return ar(8*o, 8) if o < 32 else vr(WV + 8*(o-32), 8)
    def wsub(o, k): return ar(8*o+k, 2) if o < 32 else vr(WV + 8*(o-32)+k, 2)
    a.e("v_and_b32 v1, 63, v0")
    a.e("s_load_dwordx4 s[32:35], s[0:1], 16")
    a.e("s_load_dwordx2 s[20:21], s[0:1], 8")
    a.e("s_waitcnt lgkmcnt(0)")
    a.e("s_cmp_lt_u32 s24, 2")
    a.e("s_cselect_b32 s12, s32, s34")
    a.e("s_cselect_b32 s13, s33, s35")
    a.e("s_mov_b32 s14, 7864320")
    a.e("s_mov_b32 s15, 0x20000")
    a.e("s_mov_b32 s22, 10240")
    a.e("s_mov_b32 s23, 0x20000")
    DV = 40
    for i in range(6):
        a.e("s_and_b32 s30, s24, 1")
        a.e("s_mul_i32 s30, s30, 384")
        a.e(f"s_add_u32 s30, s30, {64*i}")
        a.e("v_add_u32 v2, s30, v1")
        a.e("v_mul_u32_u24 v3, 2731, v2")
        a.e("v_lshrrev_b32 v3, 16, v3")
        a.e("v_mul_u32_u24 v4, 24, v3")
        a.e("v_sub_u32 v4, v2, v4")
        a.e("v_mul_u32_u24 v3, 12288, v3")
        a.e(f"v_lshl_add_u32 v{DV+i}, v4, 4, v3")
    a.e("v_bfe_u32 v2, v1, 3, 1")
    a.e("v_mul_u32_u24 v2, 12288, v2")
    a.e("v_lshrrev_b32 v3, 4, v1")
    a.e("v_lshlrev_b32 v3, 2, v3")
    a.e("v_bfe_u32 v4, v1, 2, 1")
    a.e("v_add_u32 v3, v3, v4")
    a.e("v_mul_u32_u24 v3, 384, v3")
    a.e("v_add_u32 v2, v2, v3")
    a.e("s_mul_i32 s30, s24, 48")
    a.e("s_and_b32 s31, s24, 1")
    a.e("s_lshl_b32 s32, s31, 4")
    a.e("s_add_u32 s32, s32, s30")
    a.e("s_xor_b32 s31, s31, 1")
    a.e("s_lshl_b32 s33, s31, 5")
    a.e("s_add_u32 s33, s33, s30")
    a.e("v_bfe_u32 v3, v1, 1, 1")
    a.e("v_and_b32 v4, 1, v1")
    a.e("v_lshlrev_b32 v3, 4, v3")
    a.e("v_lshl_add_u32 v3, v4, 2, v3")
    a.e("v_add_u32 v3, s32, v3")
    a.e(f"v_lshl_add_u32 v{DV+6}, v3, 1, v2")
    a.e(f"v_add_u32 v{DV+7}, 16, v{DV+6}")
    a.e("v_and_b32 v3, 3, v1")
    a.e("v_lshlrev_b32 v3, 2, v3")
    a.e("v_add_u32 v3, s33, v3")
    a.e(f"v_lshl_add_u32 v{DV+8}, v3, 1, v2")
    a.e(f"v_lshlrev_b32 v{vL16}, 4, v1")
    a.e("s_mul_i32 s34, s27, 384")
    a.e("s_mul_i32 s35, s24, 6144")
    a.e(f"v_add_u32 v{DV+12}, s35, v{vL16}")
    chunks = []
    korder = [k for k in range(20) if k % 5 != 4] + [4, 9, 14, 19]
    def opi(k, t): return 3*(k - k//5) + t
    for ci, k in enumerate(korder):
        off = ((ci+2) % 6)*24576
        dma = []
        for i in range(6):
            p = []
            if i == 0:
                p += [f"s_add_u32 m0, s35, {off}", f"s_add_u32 s36, s34, {k*32*12288}"]
            else:
                p += ["s_add_u32 m0, m0, 1024", "s_nop 0"]
            dma.append(p + [f"buffer_load_dwordx4 v{DV+i}, s[12:15], s36 offen {WPOL[0]} lds"])
        prel = [f"v_add_u32 v{DV+9+t}, {off}, v{DV+6+t}" for t in range(3)]
        tr = []
        for t in range(3):
            for H in range(2):
                for p in range(2):
                    dst = wsub(opi(k, t), 4*H+2*p) if ci < 16 else vr(BST + 8*t + 4*H + 2*p, 2)
                    tr.append(f"ds_read_b64_tr_b16 {dst}, v{DV+9+t} offset:{(16*H+2*p)*384}")
        res = None
        if ci >= 16:
            res = [f"v_add_u32 v2, {off}, v{DV+12}"] + [f"ds_write_b128 v2, {vr(BST+4*q,4)} offset:{1024*q}" for q in range(6)]
        chunks.append(dict(off=off, size=24576, dma=dma, pre=prel, tr=tr, res=res))
    load_weights(a, chunks, cw)
    a.e("WLOADED")
    stage_mem0(a, MEMIMG, RING, 0)
    common_consts(a, vIdx, vSB, vStW, vH2, vMk, MEMIMG)
    a.e("v_lshrrev_b32 v2, 4, v1")
    a.e("v_bfe_u32 v3, v1, 2, 2")
    a.e("v_cmp_eq_u32 s[30:31], v2, v3")
    a.e("v_and_b32 v2, 1, v1")
    a.e("v_lshlrev_b32 v2, 4, v2")
    a.e("v_mov_b32 v3, 0x3f80")
    a.e("v_lshlrev_b32 v3, v2, v3")
    a.e("v_bfe_u32 v4, v1, 1, 1")
    for q in range(2):
        a.e(f"v_cmp_eq_u32 vcc, {q}, v4")
        a.e("s_and_b64 vcc, vcc, s[30:31]")
        a.e(f"v_cndmask_b32 v{vI+q}, 0, v3, vcc")
    a.e(f"v_mov_b32 v{vMask}, 0x7fff7fff")
    a.e("v_lshrrev_b32 v2, 4, v1")
    a.e("v_and_b32 v3, 7, v1")
    a.e("v_lshlrev_b32 v2, 7, v2")
    a.e("v_lshl_add_u32 v2, v3, 4, v2")
    a.e(f"v_add_u32 v{vArd}, {MEMIMG}, v2")
    a.e("v_bfe_u32 v2, v1, 2, 1"); a.e("v_lshlrev_b32 v2, 2, v2")
    a.e("v_bfe_u32 v3, v1, 3, 1"); a.e("v_lshl_add_u32 v2, v3, 1, v2")
    a.e("v_and_b32 v3, 1, v1"); a.e("v_add_u32 v2, v2, v3")
    a.e("v_bfe_u32 v3, v1, 1, 1"); a.e("v_lshl_add_u32 v2, v3, 3, v2")
    a.e("v_bfe_u32 v3, v1, 4, 1"); a.e("v_lshl_add_u32 v2, v3, 5, v2")
    a.e("v_lshlrev_b32 v2, 4, v2")
    a.e("v_lshrrev_b32 v3, 5, v1")
    a.e("s_lshl_b32 s30, s32, 6")
    a.e("s_lshl_b32 s31, s33, 6")
    a.e("v_lshl_add_u32 v4, v3, 10, v2"); a.e(f"v_add_u32 v{vKx32}, s30, v4")
    a.e("v_lshl_add_u32 v4, v3, 3, v2"); a.e(f"v_add_u32 v{vKx16}, s31, v4")
    a.e("v_and_b32 v2, 7, v1"); a.e("v_lshlrev_b32 v2, 4, v2")
    a.e("v_lshrrev_b32 v3, 4, v1"); a.e("v_lshl_add_u32 v4, v3, 7, v2")
    a.e("s_lshl_b32 s30, s32, 4"); a.e(f"v_add_u32 v{vKmA}, s30, v4")
    a.e("v_bfe_u32 v3, v1, 4, 1"); a.e("v_lshl_add_u32 v4, v3, 7, v2")
    a.e("v_lshrrev_b32 v3, 5, v1"); a.e("v_lshl_add_u32 v4, v3, 3, v4")
    a.e("s_lshl_b32 s30, s33, 4"); a.e(f"v_add_u32 v{vKmB}, s30, v4")
    a.e("s_mul_i32 s30, s24, 1536"); a.e(f"s_add_u32 s30, s30, {SCR}")
    a.e("v_and_b32 v2, 7, v1"); a.e("v_lshrrev_b32 v3, 4, v1")
    a.e("v_xor_b32 v4, v3, v2"); a.e("v_lshl_add_u32 v4, v2, 3, v4"); a.e("v_lshlrev_b32 v4, 4, v4")
    a.e(f"v_add_u32 v{vScW0}, s30, v4"); a.e(f"v_xor_b32 v4, 64, v4"); a.e(f"v_add_u32 v{vScW1}, s30, v4")
    a.e("v_bfe_u32 v3, v1, 4, 1"); a.e("v_lshl_add_u32 v4, v2, 1, v3")
    a.e("v_lshrrev_b32 v3, 5, v1"); a.e("v_xor_b32 v3, 1, v3"); a.e("v_lshl_add_u32 v4, v3, 4, v4")
    a.e("v_lshlrev_b32 v4, 4, v4"); a.e("v_add_u32 v4, 1024, v4"); a.e(f"v_add_u32 v{vScWm}, s30, v4")
    a.e("v_lshrrev_b32 v2, 4, v1"); a.e("v_bfe_u32 v3, v1, 2, 1"); a.e("v_lshl_add_u32 v2, v2, 1, v3")
    a.e("v_bfe_u32 v5, v1, 3, 1"); a.e("v_and_b32 v3, 3, v1"); a.e("v_lshl_add_u32 v3, v5, 2, v3"); a.e("v_xor_b32 v3, v3, v2"); a.e("v_lshl_add_u32 v3, v2, 3, v3")
    a.e("v_lshlrev_b32 v3, 4, v3"); a.e(f"v_add_u32 v{vScR}, {SCR}, v3")
    a.e("v_bfe_u32 v4, v1, 1, 1"); a.e("v_and_b32 v3, 1, v1"); a.e("v_lshl_add_u32 v3, v5, 1, v3"); a.e("v_lshl_add_u32 v3, v4, 2, v3"); a.e("v_lshl_add_u32 v3, v2, 3, v3")
    a.e("v_lshlrev_b32 v3, 2, v3"); a.e(f"v_add_u32 v{vScRm}, {SCR+1024}, v3")
    a.e(f"v_lshlrev_b32 v{vPx}, 3, v1")
    a.e("v_lshl_add_u32 v3, v5, 1, v4"); a.e("v_lshl_add_u32 v3, v2, 2, v3"); a.e("v_lshlrev_b32 v3, 2, v3"); a.e(f"v_add_u32 v{vPm}, 512, v3")
    a.e("s_mul_i32 s37, s26, 640"); a.e("s_add_u32 s37, s37, s46")
    a.e(f"s_mul_i32 s38, s27, 12288"); a.e(f"s_add_u32 s38, s38, {WS_K}")
    a.e(f"s_mul_i32 s54, s27, 3072"); a.e(f"s_add_u32 s54, s54, {WS_KM}")
    a.e(f"s_lshl_b32 s55, s27, 4"); a.e(f"s_add_u32 s55, s55, {WS_FLAGS+F_K}")
    a.e(f"s_lshl_b32 s34, s27, 7"); a.e(f"s_add_u32 s34, s34, {WS_FLAGS+F_KM}")
    a.e("s_lshl_b32 s84, s26, 7"); a.e("s_add_u32 s84, s84, s45"); a.e("s_add_u32 s84, s84, 2048")
    a.e("s_mov_b32 s28, 0"); a.e("s_mov_b32 s29, 0")
    a.e(f"s_mov_b32 s36, {fbits(CEXP)}")
    def kflag_wait(lab, stepexpr_reg):
        a.e(f"s_lshr_b32 s30, {stepexpr_reg}, 3")
        a.e("s_lshl_b32 s30, s30, 9"); a.e("s_add_u32 s30, s30, s55")
        a.e(f"v_and_b32 v3, 4, v{vPm}")
        a.label(lab)
        a.e(f"buffer_load_dword v2, v3, s[8:11], s30 offen sc1")
        a.e("s_sub_u32 s82, s82, 1"); a.e("s_cbranch_scc1 L_abort")
        a.e("s_waitcnt vmcnt(0)")
        a.e("v_cmp_eq_u32 vcc, 0, v2")
        a.e(f"s_cbranch_vccnz {lab}")
    def kx_loads():
        for t in range(2):
            a.e(f"buffer_load_dwordx4 {vr(KX+4*t,4)}, v{vKx32}, s[8:11], s38 offen offset:{256*t} sc1")
        for t in range(2):
            a.e(f"buffer_load_dwordx2 {vr(KX+8+2*t,2)}, v{vKx16}, s[8:11], s38 offen offset:{256*t} sc1")
        if x_kx: a.e(f"s_add_u32 s38, s38, {32*12288}")
    LR = [6, 7, TMP+6, TMP+7]
    for q in range(4):
        a.e(f"s_add_u32 s30, s24, {q}"); a.e("s_and_b32 s30, s30, 3"); a.e("s_mul_i32 s30, s30, 24576"); a.e("s_add_u32 s30, s30, s35")
        a.e(f"v_add_u32 v{LR[q]}, s30, v{vL16}")
    def lrd(q, st):
        return [f"ds_read_b128 {vr(BST+24*st+4*i,4)}, v{LR[q]} offset:{1024*i}" for i in range(6)]
    def idle_prep():
        for ins in lrd(0, 0) + lrd(1, 1): a.e(ins)
        for q in range(12): a.e(f"v_mov_b32 v{ACC+q}, 0")
    kflag_wait(f"{pre}_kf0", "s28")
    stage_mem0(a, MEMIMG, RING, 1)
    kx_loads()
    if upf:
        a.e(f"s_mul_i32 s85, s27, 40960"); a.e(f"s_add_u32 s85, s85, {WS_U + 32*40960}"); a.e("s_mul_i32 s30, s24, 10240"); a.e("s_add_u32 s85, s85, s30")
        if upf == 1:
            a.e(f"v_lshlrev_b32 v{vL16}, 7, v1"); a.e("v_lshrrev_b32 v4, 2, v1"); a.e("v_lshlrev_b32 v4, 7, v4"); a.e("v_add_u32 v4, 8192, v4")
        else:
            a.e("v_lshrrev_b32 v4, 2, v1"); a.e(f"v_lshlrev_b32 v{vL16}, 7, v4"); a.e("s_add_u32 s86, s85, 4096"); a.e("s_add_u32 s87, s85, 8192")
    a.e("v_mov_b32 v0, 1")
    idle_prep()
    a.e("s_waitcnt lgkmcnt(0)")
    a.e("s_barrier")
    a.e("LOOPSTART")
    def emit_loop(pre, LST, prof):
        X = TMP; T = BST+24; XO = BST; S = BST+8
        def cv(d, s0): return f"v_cvt_pk_bf16_f32 v{d}, v{s0}, v{s0+1}"
        a.label(f"{pre}_loop")
        for w in range(3):
            a.e(f"s_cmp_eq_u32 s24, {w}"); a.e(f"s_cbranch_scc1 {pre}_s1w{w}")
        for w in (3, 0, 1, 2):
            a.label(f"{pre}_s1w{w}")
            ts(a, prof, 0)
            order = [(5*w + p) % 20 for p in range(20)]
            def aread(p): return f"ds_read_b128 {vr(RING+4*(p%4),4)}, v{vArd} offset:{512*order[p]}"
            def bop(p, t):
                k = order[p]
                return wreg(opi(k, t)) if k % 5 != 4 else vr(BST + 24*((p//5) & 1) + 8*t, 8)
            for p in range(3): a.e(aread(p))
            lq = [("A", 0), ("A", 1), ("A", 2)]
            nextA = 3
            extra_q = []
            seq = [(p, t) for p in range(17) for t in range(3)] + [(p, t) for t in range(3) for p in (17, 18, 19)]
            done = set()
            for n, (p, t) in enumerate(seq):
                need = [("A", p)] + ([("L", p//5)] if p in (14, 19) else [])
                idx = [i for i, tg in enumerate(lq) if tg in need]
                if idx:
                    a.e(f"s_waitcnt lgkmcnt({len(lq)-1-max(idx)})"); lq = lq[max(idx)+1:]
                if (p, t) == (5, 0): extra_q = [(ins, ("L", 2)) for ins in lrd(2, 0)]
                if (p, t) == (10, 0): extra_q = [(ins, ("L", 3)) for ins in lrd(3, 1)]
                if (p, t) == (BARP, 0): a.e("s_barrier")
                a.e(f"{SM64} {vr(ACC+4*t,4)}, {vr(RING+4*(p%4),4)}, {bop(p, t)}, v{vIdx}")
                if n < 51:
                    if nextA < 20 and nextA - 4 < p and (nextA < 5 or p >= BARP) and (t == 0 or nextA - p <= 3):
                        a.e(aread(nextA)); lq.append(("A", nextA)); nextA += 1
                    elif extra_q:
                        ins, tag = extra_q.pop(0); a.e(ins); lq.append(tag)
                if upf and n in pfpos:
                    i = pfpos.index(n)
                    if upf == 1:
                        a.e(f"buffer_load_dword v5, v{vL16 if i == 0 else 4}, s[8:11], s85 offen {pfpol}")
                    else:
                        a.e(f"buffer_load_dword v5, v{vL16}, s[8:11], s{85 + i//2} offen offset:{2048*(i&1)} {pfpol}")
                if n == 55:
                    a.e(cv(X, ACC)); a.e(cv(X+1, ACC+2))
                if n == 56:
                    a.e(f"v_mfma_f32_16x16x16_bf16 {vr(T,4)}, {vr(X,2)}, {vr(vI,2)}, 0")
                if n == 58:
                    a.e(cv(X+2, ACC+4)); a.e(cv(X+3, ACC+6))
            assert nextA == 20 and not extra_q
            if w != 2: a.e(f"s_branch {pre}_post")
        a.label(f"{pre}_post")
        ts(a, prof, 1)
        a.e(f"v_mfma_f32_16x16x16_bf16 {vr(T+4,4)}, {vr(X+2,2)}, {vr(vI,2)}, 0")
        a.e(cv(XO, T)); a.e(cv(XO+1, T+2))
        a.e(f"s_waitcnt vmcnt({len(pfpos) if upf else 0})")
        a.nop(1)
        a.e(cv(X+4, ACC+8)); a.e(cv(X+5, ACC+10))
        a.nop(2)
        a.e(f"v_mfma_f32_16x16x16_bf16 {vr(T+8,4)}, {vr(X+4,2)}, {vr(vI,2)}, 0")
        a.e(cv(XO+2, T+4)); a.e(cv(XO+3, T+6))
        a.nop(2)
        a.e(f"v_mfma_f32_16x16x32_bf16 {vr(S,4)}, {vr(KX,4)}, {vr(XO,4)}, 0")
        a.e(f"v_mfma_f32_16x16x32_bf16 {vr(S+4,4)}, {vr(KX+4,4)}, {vr(XO,4)}, 0")
        a.e(cv(XO+4, T+8)); a.e(cv(XO+5, T+10))
        a.e(f"v_mfma_f32_16x16x32_bf16 {vr(S+8,4)}, {vr(XO,4)}, {vr(XO,4)}, 0")
        a.e(f"v_mfma_f32_16x16x16_bf16 {vr(S,4)}, {vr(KX+8,2)}, {vr(XO+4,2)}, {vr(S,4)}")
        a.e(f"v_mfma_f32_16x16x16_bf16 {vr(S+4,4)}, {vr(KX+10,2)}, {vr(XO+4,2)}, {vr(S+4,4)}")
        a.e(f"v_mfma_f32_16x16x16_bf16 {vr(S+8,4)}, {vr(XO+4,2)}, {vr(XO+4,2)}, {vr(S+8,4)}")
        a.e("s_mov_b32 exec_lo, 0x00ff00ff"); a.e("s_mov_b32 exec_hi, 0x00ff00ff")
        a.e(f"ds_write_b128 v{vScW0}, {vr(S,4)}")
        a.nop(1)
        a.e(f"ds_write_b128 v{vScW1}, {vr(S+4,4)}")
        a.nop(3)
        a.e(f"ds_write_b128 v{vScWm}, {vr(S+8,4)}")
        a.e("s_mov_b64 exec, -1")
        a.e(f"s_cmp_eq_u32 s28, {nsteps-1}")
        a.e(f"s_cbranch_scc1 {pre}_last")
        a.e("s_cmp_lg_u32 s24, 0")
        a.e("s_waitcnt lgkmcnt(0)")
        a.e("s_barrier")
        a.e(f"s_cbranch_scc1 {pre}_nosm")
        ts(a, prof, 2)
        R = BST+24; M = BST+40; W = RING
        for w in range(4):
            a.e(f"ds_read_b128 {vr(R+4*w,4)}, v{vScR} offset:{1536*w}")
            a.e(f"ds_read_b32 v{M+w}, v{vScRm} offset:{1536*w}")
        a.e("s_waitcnt lgkmcnt(4)")
        a.e(f"v_pk_add_f32 {vr(R,2)}, {vr(R,2)}, {vr(R+4,2)}"); a.e(f"v_pk_add_f32 {vr(R+2,2)}, {vr(R+2,2)}, {vr(R+6,2)}")
        a.e(f"v_add_f32 v{M}, v{M}, v{M+1}")
        a.e("s_waitcnt lgkmcnt(0)")
        a.e(f"v_pk_add_f32 {vr(R+8,2)}, {vr(R+8,2)}, {vr(R+12,2)}"); a.e(f"v_pk_add_f32 {vr(R+10,2)}, {vr(R+10,2)}, {vr(R+14,2)}")
        a.e(f"v_add_f32 v{M+2}, v{M+2}, v{M+3}")
        a.e(f"v_pk_add_f32 {vr(R,2)}, {vr(R,2)}, {vr(R+8,2)}"); a.e(f"v_pk_add_f32 {vr(R+2,2)}, {vr(R+2,2)}, {vr(R+10,2)}")
        a.e(f"v_add_f32 v{M}, v{M}, v{M+2}")
        a.e(f"v_max3_f32 v{W}, v{R}, v{R+1}, v{R+2}")
        a.e(f"v_max3_f32 v{W}, v{W}, v{R+3}, v{M}")
        for d in ("quad_perm:[1,0,3,2]", "quad_perm:[2,3,0,1]", "row_ror:8"):
            a.nop(2)
            a.e(f"v_max_f32_dpp v{W}, v{W}, v{W} {d} row_mask:0xf bank_mask:0xf")
        a.e(f"v_mul_f32 v{W}, s36, v{W}")
        vals = [R, R+1, R+2, R+3, M]
        for v in (M, R, R+1, R+2, R+3): a.e(f"v_fma_f32 v{v}, v{v}, s36, -v{W}")
        for v in vals: a.e(f"v_exp_f32 v{v}, v{v}")
        a.e(f"v_add_f32 v{W}, v{R}, v{R+1}")
        a.e(f"v_add_f32 v{W+1}, v{R+2}, v{R+3}")
        a.e(f"v_add_f32 v{W}, v{W}, v{M}")
        a.e(f"v_add_f32 v{W}, v{W}, v{W+1}")
        for d in ("quad_perm:[1,0,3,2]", "quad_perm:[2,3,0,1]", "row_ror:8"):
            a.nop(2)
            a.e(f"v_add_f32_dpp v{W}, v{W}, v{W} {d} row_mask:0xf bank_mask:0xf")
        a.e(f"v_rcp_f32 v{W}, v{W}")
        a.nop(1)
        a.e(f"v_mul_f32 v{M}, v{M}, v{W}")
        for v in vals[:4]: a.e(f"v_mul_f32 v{v}, v{v}, v{W}")
        a.e(f"v_mov_b32_dpp v{W+2}, v{M} quad_perm:[0,0,2,2] row_mask:0xf bank_mask:0xf")
        a.e(f"v_mov_b32_dpp v{W+3}, v{M} quad_perm:[1,1,3,3] row_mask:0xf bank_mask:0xf")
        a.e(f"v_cvt_pk_bf16_f32 v{W+4}, v{R}, v{R+1}")
        a.e(f"v_cvt_pk_bf16_f32 v{W+5}, v{R+2}, v{R+3}")
        a.e(f"v_cvt_pk_bf16_f32 v{W+6}, v{W+2}, v{W+3}")
        for q in (4, 5): a.e(f"v_bfi_b32 v{W+q}, v{vMask}, v{W+q}, s29")
        a.e(f"buffer_store_dwordx2 {vr(W+4,2)}, v{vPx}, s[8:11], s37 offen {LST}")
        a.e(f"v_bfi_b32 v{W+6}, v{vMask}, v{W+6}, s29")
        a.e(f"buffer_store_dword v{W+6}, v{vPm}, s[8:11], s37 offen {LST}")
        ts(a, prof, 3)
        if HINT[0]:
            a.e(f"s_branch {pre}_b2")
            a.label(f"{pre}_nosm")
            a.e("s_cmp_lg_u32 s24, 1"); a.e(f"s_cbranch_scc1 {pre}_b2")
            a.e("s_add_u32 s30, s28, 1"); a.e("v_mov_b32 v2, s30"); a.e("s_mov_b64 exec, 1")
            a.nop(qh_nop)
            a.e(f"buffer_store_dword v2, off, s[8:11], s84 {LST}")
            a.e("s_mov_b64 exec, -1")
            a.label(f"{pre}_b2")
        else:
            a.label(f"{pre}_nosm")
        a.e("s_barrier")
        for i in range(hk_sleep): a.e("s_sleep 1")
        def km_export():
            a.e("s_mov_b32 exec_lo, 0xff00ff00"); a.e("s_mov_b32 exec_hi, 0xff00ff00")
            if x_km:
                a.e(f"buffer_store_dwordx4 {vr(XO,4)}, v{vKmA}, s[8:11], s54 offen sc1")
                a.e(f"buffer_store_dwordx2 {vr(XO+4,2)}, v{vKmB}, s[8:11], s54 offen sc1")
            a.e("s_mov_b64 exec, -1")
            a.e(f"s_add_u32 s54, s54, {32*3072}")
        a.e("v_cmp_eq_u32 vcc, 0, v0"); a.e("s_add_u32 s31, s28, 1")
        a.e(f"s_cbranch_vccz {pre}_nokf")
        kflag_wait(f"{pre}_kf", "s31")
        a.label(f"{pre}_nokf")
        kx_loads()
        if upf:
            for r in ((85,) if upf == 1 else (85, 86, 87)): a.e(f"s_add_u32 s{r}, s{r}, {32*40960}")
        a.e("s_add_u32 s30, s28, 2"); a.e("s_min_u32 s30, s30, 63"); a.e("s_lshr_b32 s30, s30, 3"); a.e("s_lshl_b32 s30, s30, 9"); a.e("s_add_u32 s30, s30, s55")
        a.e(f"v_and_b32 v3, 4, v{vPm}")
        a.e(f"buffer_load_dword v0, v3, s[8:11], s30 offen sc1")
        km_export()
        a.e("s_cmp_lg_u32 s24, 3"); a.e(f"s_cbranch_scc1 {pre}_nofl")
        a.e("v_mov_b32 v2, s28"); a.e("s_mov_b64 exec, 1")
        a.e(f"buffer_store_dword v2, off, s[8:11], s34 sc1")
        if STEPLOG[0]:
            a.e("s_memrealtime s[100:101]"); a.e("s_lshl_b32 s30, s28, 2"); a.e("s_lshl_b32 s31, s27, 8"); a.e("s_add_u32 s30, s30, s31"); a.e(f"s_add_u32 s30, s30, {STEPLOG[0]}")
            a.e("s_waitcnt lgkmcnt(0)"); a.e("v_mov_b32 v3, s100")
            a.e("buffer_store_dword v3, off, s[8:11], s30")
        a.e("s_mov_b64 exec, -1")
        a.label(f"{pre}_nofl")
        ts(a, prof, 4)
        retry = h2_stage(a, pre, RING, None, None, vSB, vStW, vH2, vMk, 1, mk_sleep, prof, after=idle_prep, nobar=True, pollw=1)
        ts(a, prof, 6)
        prof_dump(a, prof, pre)
        a.e("s_add_u32 s28, s28, 1"); a.e("s_xor_b32 s29, s29, 0x80008000")
        a.e(f"s_branch {pre}_loop")
        retry()
        a.label(f"{pre}_last")
        km_export()
        a.e("s_waitcnt vmcnt(0)")
        a.e("s_barrier")
        a.e(f"v_mov_b32 v2, {nsteps}"); a.e("v_mov_b32 v3, 0"); a.e("s_mov_b64 exec, 1")
        a.e(f"buffer_store_dword v2, v3, s[8:11], s34 offen sc1")
        a.e("s_waitcnt vmcnt(0)")
        a.e("s_mov_b64 exec, -1")
        a.e(f"s_branch {pre0}_end")
    pre0 = pre
    if cw:
        a.e("s_cmp_lt_u32 s81, 32"); a.e(f"s_cbranch_scc1 {pre}S_loop")
        emit_loop(pre, "", prof)
        emit_loop(pre + "S", "sc1", 0)
    else:
        emit_loop(pre, LST, prof)
    a.label(f"{pre}_end")

def vo_role(a, slow=False, cw=None, pre="VO", prof=0, mk_sleep=0, p_sleep=0, y_sleep=5, nsteps=64, uload=1, upol="", upre=2, vsp=3, mkw_sleep=0, rs_sleep=2, uwait=0, ustep=1, novm=0, mkearly=None, yfirst=0, late=1, apos=1, af='sc1', h_nop=0, ulate=0):
    mkearly = MKE[0]
    LST = "sc1" if slow else ""
    WOL = 49152; MEMIMG = 131072; VBUF = 141312; RSC = 144384
    vIdx, vSB = 8, 10
    vAst, vStW, vH2, vMk, vVw0, vVw1, vVr, vYst, vYs0, vYs2, vU0, vU1, vU2, vPx, vPm, vRw, vRr, vPub = range(14, 32)
    vL16 = 9
    PR = 32; ACC = 52; U = 72; BST = 120; WV = 160; VA = BST+24; vYs4 = 9
    def wreg(o): return ar(8*o, 8) if o < 32 else vr(WV + 8*(o-32), 8)
    def wsub(o, k): return ar(8*o+k, 2) if o < 32 else vr(WV + 8*(o-32)+k, 2)
    a.e("v_and_b32 v1, 63, v0")
    a.e("s_load_dwordx4 s[32:35], s[0:1], 32")
    a.e("s_load_dwordx2 s[20:21], s[0:1], 8")
    a.e("s_waitcnt lgkmcnt(0)")
    a.e("s_mov_b32 s12, s32"); a.e("s_mov_b32 s13, s33"); a.e("s_mov_b32 s14, 7864320"); a.e("s_mov_b32 s15, 0x20000")
    a.e("s_mov_b32 s16, s34"); a.e("s_mov_b32 s17, s35"); a.e("s_mov_b32 s18, 7864320"); a.e("s_mov_b32 s19, 0x20000")
    a.e("s_mov_b32 s22, 10240"); a.e("s_mov_b32 s23, 0x20000")
    DV = 72
    a.e("s_lshr_b32 s31, s24, 1"); a.e(f"s_mul_i32 s31, s31, {320*12288}")
    for i in range(6):
        a.e("s_and_b32 s30, s24, 1")
        a.e("s_mul_i32 s30, s30, 384")
        a.e(f"s_add_u32 s30, s30, {64*i}")
        a.e("v_add_u32 v2, s30, v1")
        a.e("v_mul_u32_u24 v3, 2731, v2")
        a.e("v_lshrrev_b32 v3, 16, v3")
        a.e("v_mul_u32_u24 v4, 24, v3")
        a.e("v_sub_u32 v4, v2, v4")
        a.e("v_mul_u32_u24 v3, 12288, v3")
        a.e(f"v_lshl_add_u32 v3, v4, 4, v3")
        a.e(f"v_add_u32 v{DV+i}, s31, v3")
    a.e(f"v_lshlrev_b32 v{vL16}, 4, v1")
    a.e("v_lshrrev_b32 v3, 4, v1"); a.e("v_lshlrev_b32 v3, 2, v3"); a.e("v_bfe_u32 v4, v1, 2, 1"); a.e("v_add_u32 v5, v3, v4")
    a.e("v_bfe_u32 v2, v1, 3, 1")
    a.e("v_mul_u32_u24 v3, 12288, v2"); a.e("v_mul_u32_u24 v4, 384, v5"); a.e("v_add_u32 v3, v3, v4")
    a.e("v_and_b32 v4, 3, v1"); a.e("v_lshl_add_u32 v3, v4, 3, v3")
    a.e("s_mul_i32 s30, s24, 96"); a.e(f"v_add_u32 v{DV+6}, s30, v3")
    a.e("v_mul_u32_u24 v3, 1280, v5"); a.e("v_lshl_add_u32 v3, v2, 5, v3"); a.e("v_lshl_add_u32 v3, v4, 3, v3")
    a.e("s_mul_i32 s30, s24, 320"); a.e(f"v_add_u32 v{DV+7}, s30, v3")
    a.e("s_mul_i32 s34, s27, 384")
    a.e("s_mul_i32 s35, s24, 6144")
    a.e("s_mul_i32 s37, s24, 5120")
    a.e("s_mul_i32 s38, s27, 245760")
    a.e(f"v_add_u32 v6, s35, v{vL16}")
    a.e(f"v_add_u32 v{DV+9}, s37, v{vL16}")
    a.e(f"v_add_u32 v7, {WOL}, v{DV+9}")
    chunks = []
    ring = [0]
    def nextslot():
        o = (ring[0] % 6)*24576; ring[0] += 1; return o
    def wv_chunk(io, off, res):
        dma = []
        for i in range(6):
            p = [f"s_add_u32 m0, s35, {off}", f"s_add_u32 s36, s34, {io*32*12288}"] if i == 0 else ["s_add_u32 m0, m0, 1024", "s_nop 0"]
            dma.append(p + [f"buffer_load_dwordx4 v{DV+i}, s[12:15], s36 offen {WPOL[0]} lds"])
        tr = []
        for s_ in range(3):
            for H in range(2):
                for p in range(2):
                    dst = vr(BST+8*s_+4*H+2*p, 2) if res else wsub(io*3+s_, 4*H+2*p)
                    tr.append(f"ds_read_b64_tr_b16 {dst}, v{DV+8} offset:{(16*H+2*p)*384 + 32*s_}")
        r = [f"ds_write_b128 v6, {vr(BST+4*q,4)} offset:{off+1024*q}" for q in range(6)] if res else None
        return dict(off=off, size=24576, dma=dma, pre=[f"v_add_u32 v{DV+8}, {off}, v{DV+6}"], tr=tr, res=r)
    def wo_chunk(ep, H, off, res):
        dma = []
        for i in range(5):
            p = [f"s_add_u32 m0, s37, {off}", f"s_add_u32 s36, s38, {(2*ep+H)*20480}"] if i == 0 else ["s_add_u32 m0, m0, 1024", "s_add_u32 s36, s36, 1024"]
            dma.append(p + [f"buffer_load_dwordx4 v{DV+9}, s[16:19], s36 offen {WPOL[0]} lds"])
        tr = []
        for t in range(5):
            for p in range(2):
                dst = vr(BST+4*t+2*p, 2) if res else wsub(24+ep*5+t, 4*H+2*p)
                tr.append(f"ds_read_b64_tr_b16 {dst}, v{DV+8} offset:{2*p*1280 + 64*t}")
        r = [f"v_add_u32 v2, {off}, v{DV+9}"] + [f"ds_write_b128 v2, {vr(BST+4*t,4)} offset:{1024*t}" for t in range(5)] if res else None
        return dict(off=off, size=20480, dma=dma, pre=[f"v_add_u32 v{DV+8}, {off}, v{DV+7}"], tr=tr, res=r)
    ring[0] = 2
    for io in range(8): chunks.append(wv_chunk(io, nextslot(), False))
    for ep in range(4):
        for H in range(2): chunks.append(wo_chunk(ep, H, nextslot(), False))
    chunks.append(wv_chunk(8, 0, True)); chunks.append(wv_chunk(9, 24576, True))
    for ep in (4, 5):
        for H in range(2): chunks.append(wo_chunk(ep, H, WOL + (ep-4)*40960 + H*20480, True))
    load_weights(a, chunks, cw)
    a.e("WLOADED")
    stage_mem0(a, MEMIMG, PR, 0)
    common_consts(a, vIdx, vSB, vStW, vH2, vMk, MEMIMG)
    a.e("v_lshrrev_b32 v2, 4, v1"); a.e("v_bfe_u32 v3, v1, 3, 1"); a.e("v_mul_u32_u24 v3, 40, v3"); a.e("v_add_u32 v2, v2, v3")
    a.e("v_lshlrev_b32 v2, 7, v2"); a.e("v_and_b32 v3, 7, v1"); a.e("v_lshl_add_u32 v2, v3, 4, v2")
    a.e(f"v_add_u32 v{vAst}, {MEMIMG}, v2")
    a.e("v_and_b32 v2, 15, v1"); a.e("v_lshlrev_b32 v2, 4, v2"); a.e("v_bfe_u32 v3, v1, 4, 1"); a.e("v_lshl_add_u32 v2, v3, 3, v2")
    a.e("s_mul_i32 s30, s24, 768"); a.e(f"s_add_u32 s30, s30, {VBUF}")
    a.e("v_add_u32 v2, s30, v2"); a.e(f"v_add_u32 v{vVw1}, 512, v2")
    a.e("v_lshrrev_b32 v3, 5, v1"); a.e(f"v_mul_u32_u24 v3, 4096, v3"); a.e(f"v_add_u32 v{vVw1}, v3, v{vVw1}")
    a.e("v_lshrrev_b32 v3, 5, v1"); a.e(f"v_lshl_add_u32 v{vVw0}, v3, 8, v2")
    a.e("v_lshrrev_b32 v2, 4, v1"); a.e("v_bfe_u32 v3, v1, 2, 2"); a.e("v_lshl_add_u32 v2, v2, 3, v3"); a.e("v_lshlrev_b32 v2, 4, v2")
    a.e("v_and_b32 v3, 1, v1"); a.e("v_lshl_add_u32 v2, v3, 3, v2"); a.e(f"v_add_u32 v{vVr}, {VBUF}, v2")
    a.e("v_and_b32 v2, 15, v1"); a.e("v_lshrrev_b32 v3, 5, v1"); a.e("v_lshl_add_u32 v2, v3, 4, v2"); a.e("v_lshlrev_b32 v2, 4, v2")
    a.e("v_bfe_u32 v3, v1, 4, 1"); a.e("v_lshl_add_u32 v2, v3, 3, v2")
    a.e("s_mul_i32 s30, s24, 2560"); a.e(f"v_add_u32 v{vYst}, s30, v2")
    a.e("v_lshrrev_b32 v2, 4, v1"); a.e("s_lshl_b32 s30, s24, 2"); a.e("v_add_u32 v2, s30, v2"); a.e("v_mul_u32_u24 v2, 10240, v2")
    a.e("s_mul_i32 s30, s26, 640"); a.e("v_add_u32 v2, s30, v2")
    a.e("v_and_b32 v3, 15, v1"); a.e(f"v_lshl_add_u32 v{vYs0}, v3, 4, v2")
    a.e("v_and_b32 v3, 7, v1"); a.e("v_add_u32 v3, 32, v3"); a.e(f"v_lshl_add_u32 v{vYs2}, v3, 4, v2")
    a.e("v_lshrrev_b32 v4, 4, v1"); a.e("v_lshlrev_b32 v4, 9, v4")
    a.e("s_mul_i32 s30, s26, 40")
    for t in range(3):
        a.e(f"v_and_b32 v2, {15 if t < 2 else 7}, v1"); a.e(f"v_add_u32 v2, {16*t}, v2"); a.e("v_add_u32 v2, s30, v2")
        a.e("v_lshrrev_b32 v3, 5, v2"); a.e("v_lshl_add_u32 v3, v3, 11, v4")
        a.e("v_and_b32 v2, 31, v2"); a.e(f"v_lshl_add_u32 v{vU0+t}, v2, 4, v3")
    a.e("s_mul_i32 s30, s24, 2560")
    a.e("v_lshrrev_b32 v2, 5, v1"); a.e("v_mul_u32_u24 v2, 640, v2"); a.e("v_bfe_u32 v3, v1, 2, 2"); a.e("v_lshl_add_u32 v2, v3, 7, v2")
    a.e("v_bfe_u32 v4, v1, 4, 1"); a.e("v_lshl_add_u32 v2, v4, 6, v2"); a.e("v_and_b32 v4, 3, v1"); a.e("v_lshl_add_u32 v2, v4, 4, v2")
    a.e(f"v_add_u32 v{vPx}, s30, v2")
    a.e("v_lshrrev_b32 v2, 4, v1"); a.e("v_mul_u32_u24 v2, 640, v2"); a.e("v_and_b32 v3, 15, v1"); a.e("v_lshl_add_u32 v2, v3, 3, v2")
    a.e("v_add_u32 v2, 512, v2"); a.e(f"v_add_u32 v{vPm}, s30, v2")
    a.e("s_mul_i32 s30, s24, 1536"); a.e(f"s_add_u32 s30, s30, {RSC}")
    a.e("v_and_b32 v2, 15, v1"); a.e("v_lshlrev_b32 v2, 5, v2"); a.e("v_lshrrev_b32 v3, 5, v1"); a.e("v_bfe_u32 v4, v1, 2, 1"); a.e("v_xor_b32 v3, v3, v4")
    a.e("v_lshl_add_u32 v2, v3, 4, v2"); a.e("v_bfe_u32 v3, v1, 4, 1"); a.e("v_lshl_add_u32 v2, v3, 3, v2"); a.e(f"v_add_u32 v{vRw}, s30, v2")
    a.e("v_min_u32 v2, 39, v1"); a.e("v_lshrrev_b32 v3, 1, v2"); a.e("s_and_b32 s30, s24, 1"); a.e("s_mul_i32 s30, s30, 20"); a.e("v_add_u32 v3, s30, v3")
    a.e("v_and_b32 v2, 1, v2")
    a.e("v_bfe_u32 v4, v3, 2, 1"); a.e("v_xor_b32 v4, v4, v2"); a.e("v_lshlrev_b32 v4, 4, v4"); a.e("v_lshl_add_u32 v4, v3, 5, v4")
    a.e(f"v_add_u32 v{vRr}, {RSC}, v4")
    a.e("s_mul_i32 s30, s26, 40"); a.e("v_add_u32 v3, s30, v3")
    a.e("v_lshrrev_b32 v4, 8, v3"); a.e("v_lshlrev_b32 v4, 14, v4"); a.e("v_and_b32 v3, 255, v3"); a.e("v_lshl_add_u32 v4, v3, 4, v4"); a.e("v_lshl_add_u32 v4, v2, 3, v4")
    a.e("s_lshl_b32 s30, s25, 12"); a.e(f"v_add_u32 v{vPub}, s30, v4")
    a.e(f"s_add_u32 s32, s46, {LOC_Y}")
    a.e("s_mul_i32 s33, s26, 10240"); a.e("s_add_u32 s33, s33, s32")
    a.e("s_lshl_b32 s30, s25, 4"); a.e("s_lshl_b32 s31, s24, 2"); a.e("s_add_u32 s30, s30, s31")
    a.e("s_mul_i32 s38, s30, 40960"); a.e(f"s_add_u32 s38, s38, {WS_U}")
    a.e("s_mul_i32 s54, s27, 10240"); a.e(f"s_add_u32 s54, s54, {WS_YA}")
    a.e(f"s_add_u32 s88, s46, {LOC_DUMMY}")
    a.e("s_lshl_b32 s84, s26, 7"); a.e("s_add_u32 s84, s84, s45"); a.e("s_add_u32 s84, s84, 4096")

    a.e(f"s_lshl_b32 s34, s27, 7"); a.e(f"s_add_u32 s34, s34, {WS_FLAGS+F_YR}")

    a.e(f"s_lshl_b32 s55, s25, 8"); a.e(f"s_add_u32 s55, s55, {WS_FLAGS+F_U}")
    a.e(f"s_mul_i32 s35, s26, {MKS[0]}"); a.e("s_add_u32 s35, s35, s45")
    if mkearly:
        a.e("s_lshl_b32 s30, s24, 2"); a.e("s_add_u32 s35, s35, s30"); a.e("s_mov_b64 s[96:97], 1")
        a.e("v_and_b32 v2, 3, v1"); a.e("v_lshrrev_b32 v3, 2, v1"); a.e(f"v_mul_u32_u24 v3, {MKS[0]}, v3"); a.e(f"v_lshl_add_u32 v{vMk}, v2, 2, v3")
    a.e("s_mov_b32 s28, 0"); a.e("s_mov_b32 s29, 0"); a.e("s_mov_b32 s37, 0")
    def uflag_wait(lab, reg):
        a.e(f"s_lshr_b32 s30, {reg}, 3"); a.e("s_lshl_b32 s30, s30, 9"); a.e("s_add_u32 s30, s30, s55")
        a.e("v_mbcnt_lo_u32_b32 v3, -1, 0"); a.e("v_mbcnt_hi_u32_b32 v3, -1, v3"); a.e("v_lshlrev_b32 v3, 2, v3")
        a.label(lab)
        a.e(f"buffer_load_dword v2, v3, s[8:11], s30 offen sc1")
        a.e("s_sub_u32 s82, s82, 1"); a.e("s_cbranch_scc1 L_abort")
        a.e("s_waitcnt vmcnt(0)")
        a.e("v_cmp_eq_u32 vcc, 0, v2")
        a.e(f"s_cbranch_vccnz {lab}")
    def u_loads():
        it = []
        for hh in range(4):
            for t in range(3):
                r = U + (t*2 + (hh >> 1))*8 + (hh & 1)*4
                p = []
                if t == 0: p = [f"s_add_u32 s31, s38, {hh*40960}"]
                it.append(p + [f"buffer_load_dwordx4 {vr(r,4)}, v{vU0+t}, s[8:11], s31 offen {upol}"])
        it[-1].append(f"s_add_u32 s38, s38, {32*40960}")
        return it
    def lv(L): return [f"ds_read_b128 {vr(BST+4*q,4)}, v6 offset:{L*24576 + 1024*q}" for q in range(6)]
    def lo(L): return [f"ds_read_b128 {vr(BST+8*t+4*H,4)}, v{5 if L else 7} offset:{H*20480 + 1024*t}" for t in range(5) for H in range(2)]
    def usoff():
        for hh in range(4): a.e(f"s_add_u32 s{92+hh}, s38, {hh*40960}")
        a.e(f"s_add_u32 s38, s38, {32*40960*ustep}")
    def idle_prep(nxt=2):
        for ins in lv(0): a.e(ins)
        for q in range(12): a.e(f"v_mov_b32 v{VA+q}, 0")
        for q in range(20): a.e(f"v_mov_b32 v{ACC+q}, 0")
        a.e("v_add_u32 v5, 40960, v7")
        if not ulate or nxt == 1: usoff()
        a.e(f"s_add_u32 s89, s28, {nxt}"); a.e("s_min_u32 s89, s89, 63"); a.e("s_lshr_b32 s89, s89, 3"); a.e("s_lshl_b32 s89, s89, 9"); a.e("s_add_u32 s89, s89, s55")
    a.e("v_and_b32 v2, 15, v1"); a.e("v_bfe_u32 v3, v1, 4, 1"); a.e("v_lshl_add_u32 v2, v3, 5, v2"); a.e("v_lshrrev_b32 v3, 5, v1"); a.e("v_lshl_add_u32 v2, v3, 4, v2")
    a.e("v_lshlrev_b32 v2, 4, v2"); a.e("s_mul_i32 s30, s24, 2560"); a.e(f"v_add_u32 v{vYs4}, s30, v2")
    uflag_wait(f"{pre}_uf0", "s28")
    stage_mem0(a, MEMIMG, PR, 1)
    idle_prep(1)
    if ulate:
        for hh in range(4):
            for t in range(2): a.e(f"buffer_load_dwordx4 {vr(U + (t*2 + (hh >> 1))*8 + (hh & 1)*4,4)}, v{vU0+t}, s[8:11], s{92+hh} offen {upol}")
    a.e("s_waitcnt lgkmcnt(0)")
    a.e("s_barrier")
    a.e("LOOPSTART")
    def emit_loop(pre, LST, prof):
        a.label(f"{pre}_loop")
        ts(a, prof, 0)
        order = [0, 8, 1, 2, 3, 4, 5, 9, 6, 7]
        def aread(p): return f"ds_read_b128 {vr(PR+4*(p%4),4)}, v{vAst} offset:{512*order[p]}"
        for p in range(3): a.e(aread(p))
        lq = [("A", 0), ("A", 1), ("A", 2)]
        ex = []
        def uld(hh, t): return [f"buffer_load_dwordx4 {vr(U + (t*2 + (hh >> 1))*8 + (hh & 1)*4,4)}, v{vU0+t}, s[8:11], s{92+hh} offen {upol}"]
        arch = [f"buffer_store_dwordx4 {vr(U+36,4)}, v{vYs4}, s[8:11], s88 offen {af}", f"buffer_store_dwordx4 {vr(U+40,4)}, v{vYs4}, s[8:11], s88 offen offset:1024 {af}",
                f"buffer_store_dwordx2 {vr(U+44,2)}, v{vYst}, s[8:11], s88 offen offset:2048 {af}"]
        rst = [f"buffer_store_dwordx4 {vr(U+32,4)}, v{vYs0}, s[8:11], s90 offen {LST}", f"buffer_store_dwordx4 {vr(U+32,4)}, v{vYs0}, s[8:11], s90 offen offset:256 {LST}",
               f"buffer_store_dwordx4 {vr(U+32,4)}, v{vYs2}, s[8:11], s90 offen {LST}"]
        vm = [uld(hh, t) for hh in range(4) for t in range(3)]
        if apos == 1: vm = [[x] for x in arch] + vm
        if ulate: vm = [[x] for x in arch] + [uld(hh, 2) for hh in range(4)]
        if apos == 2: vm = [uld(hh, t) for hh in range(4) for t in range(2)] + [[x] for x in arch] + [uld(hh, 2) for hh in range(4)]
        vm += [["v_mbcnt_lo_u32_b32 v4, -1, 0", "v_mbcnt_hi_u32_b32 v4, -1, v4", "v_lshlrev_b32 v4, 2, v4", "buffer_load_dword v0, v4, s[8:11], s89 offen sc1"] + (["v_and_b32 v4, 127, v4", "v_lshlrev_b32 v3, 5, v4", "s_add_u32 s30, s28, 1", "v_mov_b32 v2, s30"] if HINT[0] else [])]
        if novm == 1: vm = []
        if novm == 2: vm = [x for x in vm if "sc1" not in x[0]]
        if novm == 3: vm = [x for x in vm if "store" not in x[0]]
        if novm == 4: vm = [x for x in vm if "store" in x[0]]
        def vmpop():
            if vm: a.e("\n".join(vm.pop(0)))
        for i in range(upre): vmpop()
        zz = []
        def lop(i):
            return [f"ds_read_b128 {vr(BST+8*(i%5)+4*H,4)}, v{5 if i >= 5 else 7} offset:{H*20480 + 1024*(i%5)}" for H in range(2)]
        cnt = 0
        for p in range(10):
            io = order[p]
            need = [("A", p)] + ([("L", 1)] if io == 9 else [])
            last = max(i for i, t in enumerate(lq) if t in need)
            a.e(f"s_waitcnt lgkmcnt({len(lq)-1-last})")
            lq = lq[last+1:]
            if p == 2: ex = lv(1)
            if p == 8: ex = lop(0) + lop(1) + lop(2)
            for t in range(3):
                B = wreg(io*3+t) if io < 8 else vr(BST+8*t, 8)
                a.e(f"{SM64} {vr(VA+4*t,4)}, {vr(PR+4*(p%4),4)}, {B}, v{vIdx}")
                cnt += 1
                if t == 0 and p+3 < 10:
                    a.e(aread(p+3)); lq.append(("A", p+3))
                    if zz: a.e(zz.pop())
                elif p >= 8:
                    if ex: a.e(ex.pop(0)); lq.append(("O", 0))
                    if zz: a.e(zz.pop())
                elif t == 1 and ex:
                    a.e(ex.pop(0)); a.e(ex.pop(0)); lq += [("L", 1)]*2
                elif t < 2 or cnt % vsp:
                    for q in range(2):
                        if zz: a.e(zz.pop())
                if cnt % vsp == 0: vmpop()
        assert not zz and not ex
        ts(a, prof, 1); ts(a, prof, 1, 2)
        a.nop(4)
        F = PR
        for q in range(4): a.e(f"v_permlane32_swap_b32 v{VA+q}, v{VA+4+q}")
        for q in range(4): a.e(f"v_permlane32_swap_b32 v{VA+8+q}, v{F+4+q}")
        a.e(f"v_pk_add_f32 {vr(F,2)}, {vr(VA,2)}, {vr(VA+4,2)}"); a.e(f"v_pk_add_f32 {vr(F+2,2)}, {vr(VA+2,2)}, {vr(VA+6,2)}")
        a.e(f"v_cvt_pk_bf16_f32 v{F}, v{F}, v{F+1}"); a.e(f"v_cvt_pk_bf16_f32 v{F+1}, v{F+2}, v{F+3}")
        a.e(f"v_pk_add_f32 {vr(F+4,2)}, {vr(VA+8,2)}, {vr(F+4,2)}"); a.e(f"v_pk_add_f32 {vr(F+6,2)}, {vr(VA+10,2)}, {vr(F+6,2)}")
        a.e(f"ds_write_b64 v{vVw0}, {vr(F,2)}")
        a.e(f"v_cvt_pk_bf16_f32 v{F+4}, v{F+4}, v{F+5}"); a.e(f"v_cvt_pk_bf16_f32 v{F+5}, v{F+6}, v{F+7}")
        a.e(f"ds_write_b64 v{vVw1}, {vr(F+4,2)}")
        ts(a, prof, 2, 2)
        vmpop()
        a.e("s_waitcnt lgkmcnt(0)")
        a.e("s_barrier")
        ts(a, prof, 3, 2)
        def areg(e): return PR+12 if e == 4 else PR+16 if e == 5 else PR+4*(e % 3)
        def vread(e): return [f"ds_read_b64_tr_b16 {vr(areg(e)+2*h,2)}, v{vVr} offset:{512*e + 64*h}" for h in range(2)]
        lq = []
        for e in (0, 4, 1):
            for ins in vread(e): a.e(ins); lq.append(("A", e))
        vmpop(); vmpop()
        seq = []; r = [(e, t) for e in range(4) for t in range(5)]; l = [(4+i//5, i%5) for i in range(10)]
        for pos in range(30): seq.append(l.pop(0) if pos % 3 == 2 else r.pop(0))
        pend = [(0, ("O", 3), lop(3)), (0, ("A", 2), vread(2)), (0, ("O", 4), lop(4)), (3, ("O", 5), lop(5)), (3, ("A", 5), vread(5)), (6, ("O", 6), lop(6)),
                (7, ("A", 3), vread(3)), (9, ("O", 7), lop(7)), (12, ("O", 8), lop(8)), (15, ("O", 9), lop(9))]
        flat = [(p0, tag, ins) for p0, tag, inss in pend for ins in inss]
        for pos, (e, t) in enumerate(seq):
            need = [("A", e)] + ([("O", (e-4)*5+t)] if e >= 4 else [])
            idxs = [i for i, tg in enumerate(lq) if tg in need]
            assert not any(tag in need for _, tag, _ in flat), (pos, need)
            if idxs:
                last = max(idxs)
                a.e(f"s_waitcnt lgkmcnt({len(lq)-1-last})")
                lq = lq[last+1:]
            B = wreg(24+e*5+t) if e < 4 else vr(BST+8*t, 8)
            a.e(f"{SM64} {vr(ACC+4*t,4)}, {vr(areg(e),4)}, {B}, v{vIdx}")
            if pos == 0: ts(a, prof, 4, 2)
            if flat and flat[0][0] <= pos:
                _, tag, ins = flat.pop(0); a.e(ins); lq.append(tag)
            if pos % 4 == 3 or pos == 29: vmpop()
        assert not vm and not flat
        ts(a, prof, 2); ts(a, prof, 7, 2)
        YC = PR
        def ycvt(t):
            a.e(f"v_cvt_pk_bf16_f32 v{YC+2*t}, v{ACC+4*t}, v{ACC+4*t+1}")
            a.e(f"v_cvt_pk_bf16_f32 v{YC+2*t+1}, v{ACC+4*t+2}, v{ACC+4*t+3}")
        def ymin(t):
            a.e(f"v_min_u32 v{YC+2*t}, -2, v{YC+2*t}"); a.e(f"v_min_u32 v{YC+2*t+1}, -2, v{YC+2*t+1}")
        def ystores(so, fl):
            ycvt(0); ycvt(1); ymin(0); ymin(1); ycvt(2)
            a.e(f"v_permlane16_swap_b32 v{YC}, v{YC+2}"); a.e(f"v_permlane16_swap_b32 v{YC+1}, v{YC+3}")
            ycvt(3)
            a.e(f"buffer_store_dwordx4 {vr(YC,4)}, v{vYs4}, s[8:11], {so} offen {fl}")
            ymin(2); ymin(3); ycvt(4)
            a.e(f"v_permlane16_swap_b32 v{YC+4}, v{YC+6}"); a.e(f"v_permlane16_swap_b32 v{YC+5}, v{YC+7}")
            ymin(4)
            a.e(f"buffer_store_dwordx4 {vr(YC+4,4)}, v{vYs4}, s[8:11], {so} offen offset:1024 {fl}")
            a.e(f"buffer_store_dwordx2 {vr(YC+8,2)}, v{vYst}, s[8:11], {so} offen offset:2048 {fl}")
        if uwait == 1:
            a.e("s_waitcnt vmcnt(0)"); ts(a, prof, 1)
        a.e(f"s_cmp_eq_u32 s28, {nsteps-1}")
        a.e(f"s_cbranch_scc1 {pre}_last")
        a.e("s_add_u32 s31, s33, s37")
        if HINT[0]:
            a.e("s_cmp_lg_u32 s24, 0"); a.e(f"s_cbranch_scc1 {pre}_noh")
            a.e("s_mov_b64 exec, 1")
            a.e(f"buffer_store_dword v2, off, s[8:11], s84 {LST}")
            a.e("s_mov_b64 exec, -1")
            a.label(f"{pre}_noh")
        ystores("s31", LST)
        if HINT[0]:
            a.e(f"buffer_load_dword v1, v3, s[8:11], s45 offen offset:2048 sc1")
        if uwait == 2:
            ts(a, prof, 1); a.e("s_waitcnt vmcnt(0)"); ts(a, prof, 2)
        YS = BST; P0 = BST+12; RA = BST+24
        for q in range(12): a.e(f"v_mov_b32 v{RA+q}, 0")
        a.e("s_add_u32 s30, s28, 1"); a.e(f"v_mov_b32 v{PR+10}, s30")
        a.e("s_add_u32 s90, s32, s37")
        h2_base(a, "s53", None)
        if HINT[0]:
            a.e("s_add_u32 s30, s28, 1")
            a.e("s_waitcnt vmcnt(0)")
            a.e("v_cmp_gt_u32 vcc, s30, v1")
            a.e(f"s_cbranch_vccz {pre}_hok")
            a.label(f"{pre}_hp")
            a.e(f"buffer_load_dword v1, v3, s[8:11], s45 offen offset:2048 sc1")
            if prof: a.e("s_add_u32 s83, s83, 0x1000000")
            a.e("s_sub_u32 s82, s82, 1"); a.e("s_cbranch_scc1 L_abort")
            a.e("s_waitcnt vmcnt(0)")
            a.e("v_cmp_gt_u32 vcc, s30, v1")
            a.e(f"s_cbranch_vccnz {pre}_hp")
            a.label(f"{pre}_hok")
            a.nop(h_nop)
        else:
            for i in range(y_sleep): a.e("s_sleep 1")
        def yload():
            a.e(f"buffer_load_dwordx4 {vr(YS,4)}, v{vYs0}, s[8:11], s90 offen sc1")
            a.e(f"buffer_load_dwordx4 {vr(YS+4,4)}, v{vYs0}, s[8:11], s90 offen offset:256 sc1")
            a.e(f"buffer_load_dwordx4 {vr(YS+8,4)}, v{vYs2}, s[8:11], s90 offen sc1")
        def ycheck():
            a.e(f"v_max3_u32 v1, v{YS}, v{YS+1}, v{YS+2}")
            for q in (3, 5, 7, 9): a.e(f"v_max3_u32 v1, v{YS+q}, v{YS+q+1}, v1")
            a.e(f"v_max_u32 v1, v{YS+11}, v1")
            a.e("v_cmp_eq_u32 vcc, -1, v1")
        def pload(P):
            a.e(f"buffer_load_dwordx4 {vr(P,4)}, v{vPx}, s[8:11], s46 offen sc1")
            a.e(f"buffer_load_dwordx4 {vr(P+4,4)}, v{vPx}, s[8:11], s46 offen offset:1280 sc1")
            a.e(f"buffer_load_dwordx2 {vr(P+8,2)}, v{vPm}, s[8:11], s46 offen sc1")
        tb = 0
        for i in range(8):
            A_, B_, C_ = (i >> 2) & 1, (i >> 1) & 1, i & 1
            if (A_ ^ C_) | (B_ ^ C_): tb |= 1 << i
        a.label(f"{pre}_py")
        P = P0
        if yfirst:
            yload()
            for i in range(p_sleep): a.e("s_sleep 1")
            pload(P0)
            P = P0
            a.e("s_waitcnt vmcnt(3)")
            a.e(f"v_max3_u32 v4, v{YS}, v{YS+1}, v{YS+2}")
            for q in (3, 5, 7, 9): a.e(f"v_max3_u32 v4, v{YS+q}, v{YS+q+1}, v4")
            a.e(f"v_max_u32 v4, v{YS+11}, v4")
            a.e("v_cmp_eq_u32 s[30:31], -1, v4")
            a.e("s_waitcnt vmcnt(2)")
            ts(a, prof, 3)
            for t in range(3):
                a.e(f"{SM64} {vr(RA+4*t,4)}, {vr(P,4)}, {vr(U+16*t,8)}, v{vIdx} abid:1")
                if t < 2: a.e(f"v_bitop3_b32 v{1+t}, v{P+2*t}, v{P+2*t+1}, s29 bitop3:{tb}")
            a.e("s_waitcnt vmcnt(1)")
            for t in range(3):
                a.e(f"{SM64} {vr(RA+4*t,4)}, {vr(P+4,4)}, {vr(U+16*t+8,8)}, v{vIdx} abid:1")
                if t < 2: a.e(f"v_bitop3_b32 v{3+t}, v{P+4+2*t}, v{P+4+2*t+1}, s29 bitop3:{tb}")
                else: a.e("v_or3_b32 v1, v1, v2, v3")
            a.e("s_waitcnt vmcnt(0)")
            for t in range(3):
                a.e(f"{SM32} {vr(RA+4*t,4)}, {vr(P+8,2)}, {vr(YS+4*t,4)}, v{vIdx} abid:2")
                if t == 0: a.e(f"v_bitop3_b32 v2, v{P+8}, v{P+9}, s29 bitop3:{tb}")
                elif t == 1: a.e("v_or3_b32 v1, v1, v4, v2")
        else:
            pload(P0)
            for i in range(p_sleep): a.e("s_sleep 1")
            yload()
            a.e("s_waitcnt vmcnt(5)")
            ts(a, prof, 3)
            for t in range(3):
                a.e(f"{SM64} {vr(RA+4*t,4)}, {vr(P,4)}, {vr(U+16*t,8)}, v{vIdx} abid:1")
                if t < 2: a.e(f"v_bitop3_b32 v{1+t}, v{P+2*t}, v{P+2*t+1}, s29 bitop3:{tb}")
            a.e("s_waitcnt vmcnt(4)")
            for t in range(3):
                a.e(f"{SM64} {vr(RA+4*t,4)}, {vr(P+4,4)}, {vr(U+16*t+8,8)}, v{vIdx} abid:1")
                if t < 2: a.e(f"v_bitop3_b32 v{3+t}, v{P+4+2*t}, v{P+4+2*t+1}, s29 bitop3:{tb}")
                else: a.e("v_or3_b32 v1, v1, v2, v3")
            for t in range(3):
                a.e(f"s_waitcnt vmcnt({2-t})")
                a.e(f"{SM32} {vr(RA+4*t,4)}, {vr(P+8,2)}, {vr(YS+4*t,4)}, v{vIdx} abid:2")
                if t == 0:
                    a.e(f"v_bitop3_b32 v2, v{P+8}, v{P+9}, s29 bitop3:{tb}")
                    a.e("v_or3_b32 v1, v1, v4, v2")
                    a.e(f"v_max3_u32 v2, v{YS}, v{YS+1}, v{YS+2}"); a.e(f"v_max_u32 v2, v2, v{YS+3}")
                else:
                    a.e(f"v_max3_u32 v2, v{YS+4*t}, v{YS+4*t+1}, v2"); a.e(f"v_max3_u32 v2, v{YS+4*t+2}, v{YS+4*t+3}, v2")
            a.e("v_cmp_eq_u32 s[30:31], -1, v2")
        a.e("v_cmp_gt_i32 vcc, 0, v1")
        a.e("s_or_b64 vcc, vcc, s[30:31]")
        a.e(f"s_cbranch_vccnz {pre}_pbad")
        ts(a, prof, 4)
        if mkearly:
            a.e("s_mov_b64 exec, s[96:97]")
            a.e(f"buffer_store_dword v{PR+10}, off, s[8:11], s35 {LST}")
            a.e("s_mov_b64 exec, -1")
        a.e("s_cmp_ge_u32 s24, 2")
        for t in range(3):
            a.e(f"v_add_f32 v{RA+4*t}, v{RA+4*t}, v{RA+4*t+1}"); a.e(f"v_add_f32 v{RA+4*t+1}, v{RA+4*t+2}, v{RA+4*t+3}")
            a.e(f"ds_write_b64 v{vRw}, {vr(RA+4*t,2)} offset:{512*t}")
        a.e("s_waitcnt lgkmcnt(0)")
        a.e("s_barrier")
        a.e(f"s_cbranch_scc1 {pre}_nopub")
        R = U
        for w in range(4): a.e(f"ds_read_b128 {vr(R+4*w,4)}, v{vRr} offset:{1536*w}")
        def pa(x, y):
            a.e(f"v_pk_add_f32 {vr(x,2)}, {vr(x,2)}, {vr(y,2)}"); a.e(f"v_pk_add_f32 {vr(x+2,2)}, {vr(x+2,2)}, {vr(y+2,2)}")
        a.e("s_waitcnt lgkmcnt(2)"); pa(R, R+4)
        a.e("s_waitcnt lgkmcnt(0)"); pa(R+8, R+12); pa(R, R+8)
        a.e(f"v_cvt_pk_bf16_f32 v{R}, v{R}, v{R+1}"); a.e(f"v_cvt_pk_bf16_f32 v{R+1}, v{R+2}, v{R+3}")
        a.e(f"v_xor_b32 v{R}, s29, v{R}"); a.e(f"v_xor_b32 v{R+1}, s29, v{R+1}")
        a.e(f"v_min_u32 v{R}, -2, v{R}"); a.e(f"v_min_u32 v{R+1}, -2, v{R+1}")
        a.e(f"buffer_store_dwordx2 {vr(R,2)}, v{vPub}, s[8:11], s53 offen sc1")
        a.e(f"s_branch {pre}_pubd")
        a.label(f"{pre}_nopub")
        for i in range(mkw_sleep): a.e("s_nop 15")
        a.e("s_cmp_eq_u32 s24, 3"); a.e(f"s_cbranch_scc1 {pre}_nomk")
        if MKA[0]:
            a.e("v_mov_b32 v2, 1"); a.e("s_mov_b64 exec, 1")
            a.e(f"buffer_atomic_add v2, off, s[8:11], s45 {LST}")
        elif not mkearly:
            a.e("s_mov_b64 exec, 1")
            a.e(f"buffer_store_dword v{PR+10}, off, s[8:11], s35 {LST}")
        a.e(f"s_branch {pre}_mkd")
        a.label(f"{pre}_nomk")
        a.e("v_mov_b32 v2, s28"); a.e("v_mov_b32 v3, 0"); a.e("s_mov_b64 exec, 1")
        a.e(f"buffer_store_dword v2, v3, s[8:11], s34 offen sc1")
        a.label(f"{pre}_mkd")
        a.e("s_mov_b64 exec, -1")
        a.label(f"{pre}_pubd")
        ts(a, prof, 7)
        for q in range(4): a.e(f"v_mov_b32 v{U+32+q}, -1")
        for q in range(10): a.e(f"v_mov_b32 v{U+36+q}, v{YC+q}")
        a.e("s_mov_b32 s88, s54"); a.e(f"s_add_u32 s54, s54, {32*10240}")
        if late == 0:
            for ins in rst: a.e(ins)
        if apos == 3:
            for ins in arch: a.e(ins)
        a.e("s_xor_b32 s37, s37, 163840")
        a.e("v_cmp_eq_u32 vcc, 0, v0"); a.e("s_add_u32 s31, s28, 1")
        a.e(f"s_cbranch_vccz {pre}_nouf")
        uflag_wait(f"{pre}_uf", "s31")
        a.label(f"{pre}_nouf")
        if ulate:
            usoff()
            a.e("s_cmp_eq_u32 s24, 2"); a.e(f"s_cbranch_scc1 {pre}_nou")
            for hh in range(4):
                for t in range(2): a.e(uld(hh, t)[0])
            a.label(f"{pre}_nou")
        def aft():
            for ins in (arch if apos == 0 else []) + (rst if late else []): a.e(ins)
            idle_prep()
        def aft2():
            aft()
            for hh in range(4):
                for t in range(2): a.e(uld(hh, t)[0])
        na = (3 if late else 0) + (3 if apos == 0 else 0)
        retry = h2_stage(a, pre, PR, None, None, vSB, vStW, vH2, vMk, 1, mk_sleep, prof, after=aft, nafter=na, after2=aft2 if ulate else None, nafter2=na+8)
        ts(a, prof, 6)
        prof_dump(a, prof, pre)
        a.e("s_add_u32 s28, s28, 1"); a.e("s_xor_b32 s29, s29, 0x80008000")
        a.e(f"s_branch {pre}_loop")
        retry()
        a.label(f"{pre}_pbad")
        if prof: a.e("s_add_u32 s83, s83, 0x10000")
        a.e("s_sub_u32 s82, s82, 1"); a.e("s_cbranch_scc1 L_abort")
        a.nop(4)
        for q in range(12): a.e(f"v_mov_b32 v{RA+q}, 0")
        a.e(f"s_branch {pre}_py")
        a.label(f"{pre}_last")
        ystores("s54", "sc1")
        a.e("s_waitcnt vmcnt(0)")
        a.e("s_barrier")
        a.e(f"v_mov_b32 v2, {nsteps}"); a.e("v_mov_b32 v3, 0"); a.e("s_mov_b64 exec, 1")
        a.e(f"buffer_store_dword v2, v3, s[8:11], s34 offen sc1")
        a.e("s_waitcnt vmcnt(0)")
        a.e("s_mov_b64 exec, -1")
        a.e(f"s_branch {pre0}_end")
    pre0 = pre
    if cw:
        a.e("s_cmp_lt_u32 s81, 32"); a.e(f"s_cbranch_scc1 {pre}S_loop")
        emit_loop(pre, "", prof)
        emit_loop(pre + "S", "sc1", 0)
    else:
        emit_loop(pre, LST, prof)
    a.label(f"{pre}_end")
```

```python
MB = 1 << 20
WS_H2 = 192*MB
WS_LOC = 4*MB
LOC_P = 0; LOC_MK = 16384; LOC_Y = 65536; LOC_STRIDE = 1024*1024
WS_FLAGS = 6*MB
F_K = 45056
F_U = 49152
F_Q = 53248
F_KM = 32768
F_YR = 36864
F_PT = 65536
F_BQ = 16384
F_BA = 17408
F_QUEUE = 20480
FLAGS_BYTES = 131072
LOC_DUMMY = 32768
WS_K = 8*MB
WS_Q = 32*MB
WS_U = 56*MB
WS_YA = 136*MB
WS_KM = 156*MB
WS_PT = 162*MB
WS_XFA = 168*MB
WS_XFB = 171*MB
WS_BQKV = 174*MB
WS_BO = 182*MB
WS_SIZE = 256*MB
def h2base(m): return WS_H2 + m*131072 + ((m >> 4) & 1)*8192
F_CAL = 40960
WS_CAL = 7*MB
```

```python
import math, struct
from asmlib import *
from layout import *
def fbits(x): return struct.unpack("<I", struct.pack("<f", x))[0]

ACC = 64
GP = dict(dma_start=16, xper=2, st='sc1', slp1=16, slp2=48, slpf=4)
MF = "v_mfma_f32_32x32x16_bf16"
GUARD = 'a.e("s_sub_u32 s82, s82, 1"); a.e("s_cbranch_scc1 L_abort")'
def guard(a): a.e("s_sub_u32 s82, s82, 1"); a.e("s_cbranch_scc1 L_abort")

def wait_flags(a, lab, soff, nwords, stride_sh, thresh, sleep=16, imm=0):
    a.e(f"v_min_u32 v3, {nwords-1}, v1")
    a.e(f"v_lshlrev_b32 v3, {stride_sh}, v3")
    a.label(lab)
    a.e(f"buffer_load_dword v2, v3, s[8:11], {soff} offen offset:{imm} sc1")
    guard(a)
    a.e("s_waitcnt vmcnt(0)")
    a.e(f"v_cmp_gt_u32 vcc, {thresh}, v2")
    a.e(f"s_cbranch_vccz {lab}_ok")
    a.e(f"s_sleep {sleep}")
    a.e(f"s_branch {lab}")
    a.label(f"{lab}_ok")

def wait_progress(a, lab, soff, thresh):
    a.e("s_mov_b64 exec, 1")
    a.label(lab)
    a.e(f"buffer_load_dword v2, off, s[8:11], {soff} sc1")
    guard(a)
    a.e("s_waitcnt vmcnt(0)")
    a.e("v_readfirstlane_b32 s30, v2")
    a.e("s_add_u32 s30, s30, 1")
    a.e(f"s_cmp_ge_u32 s30, {thresh}"); a.e(f"s_cbranch_scc1 {lab}_ok")
    a.e("s_add_u32 s30, s30, 1")
    a.e(f"s_sleep {GP['slp1']}")
    a.e(f"s_cmp_ge_u32 s30, {thresh}"); a.e(f"s_cbranch_scc1 {lab}")
    a.e(f"s_sleep {GP['slp2']}")
    a.e(f"s_branch {lab}")
    a.label(f"{lab}_ok")
    a.e("s_mov_b64 exec, -1")

def set_flag(a, soff, val="1", add=False):
    lab = a.newlabel("W_fl")
    a.e("s_waitcnt vmcnt(0)")
    a.e("s_barrier")
    a.e("s_cmp_lg_u32 s24, 0"); a.e(f"s_cbranch_scc1 {lab}")
    a.e(f"v_mov_b32 v2, {val}"); a.e("v_mov_b32 v3, 0"); a.e("s_mov_b64 exec, 1")
    if add: a.e(f"buffer_atomic_add v2, v3, s[8:11], {soff} offen sc1")
    else: a.e(f"buffer_store_dword v2, v3, s[8:11], {soff} offen sc1")
    a.e("s_mov_b64 exec, -1")
    a.label(lab)

CW = [None]
def spec_check(a):
    lab = a.newlabel("W_sp")
    a.e("s_cmp_eq_u32 s81, 0"); a.e(f"s_cbranch_scc1 {lab}")
    CW[0](a, lab + "c")
    a.e("s_mov_b32 s81, 0")
    a.e("s_and_b32 s25, s84, s85")
    for i in range(86, 92): a.e(f"s_and_b32 s25, s25, s{i}")
    a.e("s_cmp_eq_u32 s25, 32"); a.e(f"s_cbranch_scc1 {lab}r")
    a.e("s_waitcnt vmcnt(0) lgkmcnt(0)"); a.e("s_barrier"); a.e("s_branch M_worker")
    a.label(f"{lab}r")
    a.e("s_load_dwordx2 s[84:85], s[0:1], 0"); a.e("s_load_dwordx2 s[86:87], s[0:1], 56"); a.e("s_waitcnt lgkmcnt(0)")
    a.label(lab)
NS = 4; SLOT = 24576
FW = [0, 24]; XF = [48, 56]; VOP = 128
XB = 98304
WPROF = [0]
def wts(a, i):
    if WPROF[0]: a.e(f"s_memtime s[{88+2*i}:{89+2*i}]")
vW = 8; vTB = 14; vTC = 16; vW2 = 18; vT2 = 23; vXD = 24; vXR = 32; vST = 36
STG = [40, 48, 56, 224, 232, 240, 248]
def w_voffsets(a, NT, dst, ld):
    UPR = NT*4; NW = NT
    for i in range(NW):
        a.e(f"s_mul_i32 s25, s24, {NW*64}")
        a.e(f"s_add_u32 s25, s25, {i*64}")
        a.e("v_add_u32 v4, s25, v1")
        a.e(f"v_mul_u32_u24 v5, {(65536+UPR-1)//UPR}, v4")
        a.e("v_lshrrev_b32 v5, 16, v5")
        a.e(f"v_mul_u32_u24 v6, {UPR}, v5")
        a.e("v_sub_u32 v6, v4, v6")
        if NT == 6:
            a.e("v_lshlrev_b32 v7, 1, v5"); a.e("v_and_b32 v7, 4, v7"); a.e("v_xor_b32 v6, v6, v7")
        if isinstance(ld, int): a.e(f"v_mul_u32_u24 v5, {ld}, v5")
        else: a.e(f"v_mul_lo_u32 v5, v5, {ld}")
        a.e(f"v_lshl_add_u32 v{dst+i}, v6, 4, v5")
def tr_bases(a, NT, dst, khmul, two):
    RB = NT*64
    a.e("v_lshrrev_b32 v4, 5, v1"); a.e("v_bfe_u32 v5, v1, 2, 2")
    a.e(f"v_mul_u32_u24 v4, {khmul}, v4"); a.e("v_add_u32 v4, v4, v5")
    a.e(f"v_mul_u32_u24 v4, {RB}, v4")
    a.e("v_bfe_u32 v6, v1, 4, 1"); a.e("v_lshl_add_u32 v4, v6, 5, v4")
    a.e("v_and_b32 v6, 3, v1"); a.e("v_lshl_add_u32 v4, v6, 3, v4")
    if NT == 6:
        a.e("v_bfe_u32 v5, v1, 3, 1"); a.e("v_lshlrev_b32 v5, 6, v5")
        a.e(f"v_add_u32 v{dst}, v4, v5"); a.e(f"v_sub_u32 v{dst+1}, v4, v5")
    else:
        a.e(f"v_mov_b32 v{dst}, v4")
        if two: a.e(f"v_mov_b32 v{dst+1}, v4")
ADV = [f"s_add_u32 s29, s29, {SLOT}", f"s_cmp_eq_u32 s29, {NS*SLOT}", "s_cselect_b32 s29, 0, s29"]
def dmas(NW, vbase, srd, sreg, sinc, woff):
    it = []
    for i in range(NW):
        pre = [f"s_add_u32 m0, s29, {woff}"] if i == 0 else ["s_add_u32 m0, m0, 1024"]
        it.append(pre + ["s_nop 0", f"buffer_load_dwordx4 v{vbase+i}, {srd}, {sreg} offen lds"])
    it[-1] += [f"s_add_u32 {sreg}, {sreg}, {sinc}"] + ADV
    return it
def xdmas(MB, st, xsrd, sreg):
    SET = 16384*MB
    it = [[f"s_add_u32 m0, s52, {st*SET + i*1024}", "s_nop 0", f"buffer_load_dwordx4 v{vXD+i}, {xsrd}, {sreg} offen lds"] for i in range(4*MB)]
    it[-1].append(f"s_add_u32 {sreg}, {sreg}, 128")
    return it
def adv_read(a, base, two):
    a.e(f"s_add_u32 s30, s30, {SLOT}"); a.e(f"s_cmp_eq_u32 s30, {NS*SLOT}"); a.e("s_cselect_b32 s30, 0, s30")
    a.e(f"v_add_u32 v{vTC}, s30, v{base}")
    if two: a.e(f"v_add_u32 v{vTC+1}, s30, v{base+1}")
def cond(a, items, sreg):
    out = []
    for it in items:
        lab = a.newlabel("W_c")
        out.append([f"s_cmp_eq_u32 {sreg}, 0", f"s_cbranch_scc1 {lab}"] + it + [f"{lab}:"])
    return out
def main_reads(NT, MB, f, ks, st):
    RB = NT*64
    r = [[f"ds_read_b64_tr_b16 {ar(FW[f]+4*t+2*h,2)}, v{vTC+(t&1)} offset:{(8*ks+4*h)*RB + t*64}" for h in range(2)] for t in range(NT)]
    x = [[f"ds_read_b128 {ar(XF[f]+4*tb,4)}, v{vXR+ks} offset:{st*16384*MB + tb*4096}" for tb in range(MB)]]
    return x + r

def gemm_setup(a, NT, MB, withU):
    a.e("v_lshrrev_b32 v4, 3, v1"); a.e(f"s_mul_i32 s25, s24, {32*MB}"); a.e("v_add_u32 v4, s25, v4"); a.e("v_mul_u32_u24 v4, 1280, v4")
    a.e("v_lshrrev_b32 v5, 4, v1"); a.e("v_and_b32 v6, 7, v1"); a.e("v_xor_b32 v5, v5, v6")
    a.e(f"v_lshl_add_u32 v{vXD}, v5, 4, v4"); a.e("v_xor_b32 v5, 4, v5"); a.e(f"v_lshl_add_u32 v{vXD+1}, v5, 4, v4"); a.e(f"v_add_u32 v{vXD+1}, 10240, v{vXD+1}")
    for i in range(2, 4*MB): a.e(f"v_add_u32 v{vXD+i}, 20480, v{vXD+i-2}")
    a.e(f"s_mul_i32 s52, s24, {4096*MB}"); a.e(f"s_add_u32 s52, s52, {XB}")
    w_voffsets(a, NT, vW, "s33")
    a.e("s_lshl_b32 s28, s33, 6")
    a.e(f"s_mul_i32 s32, s24, {NT*1024}")
    a.e("s_mov_b32 s29, 0")
def gemm_setup2(a, NT, MB, withU):
    a.e(f"s_mul_i32 s25, s24, {32*MB}")
    a.e("v_and_b32 v4, 31, v1"); a.e("v_bfe_u32 v5, v1, 1, 3"); a.e("v_lshrrev_b32 v6, 5, v1"); a.e("v_lshlrev_b32 v6, 2, v6"); a.e("v_xor_b32 v5, v5, v6")
    a.e("v_add_u32 v4, s25, v4"); a.e("v_lshlrev_b32 v4, 7, v4"); a.e(f"v_add_u32 v4, {XB}, v4")
    for ks in range(4):
        a.e(f"v_xor_b32 v6, {ks}, v5"); a.e(f"v_lshl_add_u32 v{vXR+ks}, v6, 4, v4")
    tr_bases(a, NT, vTB, 32, True)
    a.e(f"v_lshlrev_b32 v{vST}, 4, v1")
    if withU:
        w_voffsets(a, 5, vW2, 1280)
        tr_bases(a, 5, vT2, 4, False)
        a.e("s_mul_i32 s34, s24, 5120")

def gemm_cold(a, NT, MB, xsrd, withU):
    PD = 2 if MB == 2 else 3
    gemm_setup(a, NT, MB, withU)
    for p in range(PD):
        for it in dmas(NT, vW, "s[12:15]", "s27", "s28", "s32"): a.e("\n".join(it))
        if p < PD-1:
            for it in xdmas(MB, p, xsrd, "s26"): a.e("\n".join(it))
    gemm_setup2(a, NT, MB, withU)
    a.e("s_mov_b32 s54, 0")
    a.e(f"s_waitcnt vmcnt({(PD-1)*NT + (PD-2)*4*MB})")
    a.e("s_barrier")
    wts(a, 1)
    a.e(f"v_mov_b32 v{vTC}, v{vTB}"); a.e(f"v_mov_b32 v{vTC+1}, v{vTB+1}")
    a.e("s_mov_b32 s30, 0")
    for it in main_reads(NT, MB, 0, 0, 0): a.e("\n".join(it))

def pend_flag(a):
    lab = a.newlabel("W_pf")
    a.e("s_cmp_eq_u32 s54, 0"); a.e(f"s_cbranch_scc1 {lab}")
    a.e("v_mov_b32 v2, 1"); a.e("v_lshlrev_b32 v3, 2, v1"); a.e("s_mov_b32 exec_hi, 0"); a.e("s_mov_b32 exec_lo, s54")
    a.e("buffer_store_dword v2, v3, s[8:11], s53 offen sc1")
    a.e("s_mov_b64 exec, -1"); a.e("s_mov_b32 s54, 0")
    a.label(lab)

def next_items(a):
    A = cond(a, dmas(6, vW, "s[56:59]", "s61", "s28", "s32"), "s62")
    B = cond(a, xdmas(2, 0, "s[48:51]", "s60") + dmas(6, vW, "s[56:59]", "s61", "s28", "s32"), "s62")
    return [A, B]

def gemm_loop(a, NT, MB, xsrd, tail):
    PD = 2 if MB == 2 else 3
    NX = PD
    nst = 10; NM = MB*NT
    dma_start, xper = (GP['dma_start'], GP['xper']) if MB == 2 else (0, 2)
    def mfmas(f, first):
        m = []
        for t in range(NT):
            for tb in range(MB):
                d = ACC + (tb*NT+t)*16
                m.append(f"{MF} {vr(d,16)}, {ar(FW[f]+4*t,4)}, {ar(XF[f]+4*tb,4)}, {'0' if first else vr(d,16)}")
        return m
    q = []
    for p in range(1, PD):
        q += [("W", p)]*NT
        if p < PD-1: q += [("X", p)]*(4*MB)
    for s in range(nst):
        last = s == nst-1
        ext = [[] for _ in range(4*NM)]
        tg = [[] for _ in range(4*NM)]
        xs = xdmas(MB, (s+PD-1) % NX, xsrd, "s26") if s+PD-1 < nst else []
        certain = True
        if s+PD < nst: ws = dmas(NT, vW, "s[12:15]", "s27", "s28", "s32")
        else:
            k = s+PD-nst
            ws = tail[1][k] if tail and k < len(tail[1]) else []
            certain = tail[0] if tail else True
        pos = 0
        for it in xs: ext[pos] += it; tg[pos].append(("X", s+PD-1)); pos += xper
        pos = max(pos, dma_start if xs else 0)
        if not certain and not last: pos = 3*NM
        step = max(1, ((4*NM if certain or not last else 4*NM - 6) - pos)//max(1, len(ws)))
        for it in ws:
            ext[pos] += it
            if certain: tg[pos].append(("W", s+PD))
            pos += step
        for ks in range(4):
            f = ks & 1
            if ks < 3 or last: a.e("s_waitcnt lgkmcnt(0)")
            else:
                idx = [i for i, t in enumerate(q) if t in (("W", s+1), ("X", s+1))]
                n = len(q) - 1 - max(idx) if idx else len(q)
                if idx: q = q[max(idx)+1:]
                a.e(f"s_waitcnt vmcnt({n}) lgkmcnt(0)")
                a.e("s_barrier")
                adv_read(a, vTB, True)
                if s == 0 and MB == 2 and NT == 6:
                    pend_flag(a)
                    a.e("s_add_u32 s25, s79, 4"); a.e("s_load_dword s55, s[76:77], s25")
            rd = main_reads(NT, MB, f ^ 1, ks+1, s % NX) if ks < 3 else ([] if last else main_reads(NT, MB, 0, 0, (s+1) % NX))
            per = 1 if NM >= len(rd) else 2
            fl = merge(spread(rd, NM, 0, per=per), ext[ks*NM:(ks+1)*NM])
            for ins in interleave(mfmas(f, s == 0 and ks == 0), fl): a.e(ins)
            for g in range(ks*NM, (ks+1)*NM): q += tg[g]
    wts(a, 2)

def warm_handoff(a, nyoung):
    lab = a.newlabel("W_wh")
    a.e("s_cmp_eq_u32 s62, 0"); a.e(f"s_cbranch_scc1 {lab}")
    a.e(f"s_waitcnt vmcnt({nyoung})")
    a.e("s_barrier")
    adv_read(a, vTB, True)
    for it in main_reads(6, 2, 0, 0, 0): a.e("\n".join(it))
    a.label(lab)

def finish(a, maskreg):
    lab = a.newlabel("W_fin")
    spec_check(a)
    a.e("s_cmp_eq_u32 s62, 0"); a.e(f"s_cbranch_scc1 {lab}")
    a.e("s_mov_b32 s53, s36"); a.e("s_cmp_eq_u32 s24, 0"); a.e(f"s_cselect_b32 s54, {maskreg}, 0")
    a.e("s_branch W_warm")
    a.label(lab)
    a.e("s_waitcnt vmcnt(0)"); a.e("s_barrier")
    a.e("s_mov_b32 s53, s36"); a.e("s_cmp_eq_u32 s24, 0"); a.e(f"s_cselect_b32 s54, {maskreg}, 0")
    pend_flag(a)
    a.e("s_branch W_next")

def epi_chunks(a, MB, segstride):
    a.nop(8)
    k = 0
    for tb in range(MB):
        for t in range(6):
            d = ACC + (tb*6+t)*16
            for j in range(2):
                r = 40 + (k % 6)*4; k += 1
                for q in range(4): a.e(f"v_cvt_pk_bf16_f32 v{r+q}, v{d+8*j+2*q}, v{d+8*j+2*q+1}")
                off = t*2048 + j*1024
                if off % 4096 == 0:
                    if tb == 0: a.e(f"s_add_u32 s25, s31, {off}")
                    else: a.e(f"s_add_u32 s25, {segstride}, s31"); a.e(f"s_add_u32 s25, s25, {off}")
                a.e(f"buffer_store_dwordx4 {vr(r,4)}, v{vST}, s[8:11], s25 offen offset:{off % 4096} {GP['st']}")

def task_kq(a, MB):
    if MB == 2:
        gemm_cold(a, 6, 2, "s[48:51]", True)
        a.label("W_kq_warm")
        gemm_loop(a, 6, 2, "s[48:51]", (False, next_items(a)))
        warm_handoff(a, 6)
    else:
        gemm_cold(a, 6, 1, "s[48:51]", False)
        gemm_loop(a, 6, 1, "s[48:51]", None)
    epi_chunks(a, MB, "s35")
    wts(a, 3); wts(a, 4)
    finish(a, "s39")

def task_vu(a, MB):
    RB = 320; NTL = 5*MB
    def wd2():
        it = dmas(5, vW2, "s[16:19]", "s37", 81920, "s34")
        it[-1] += ["s_add_u32 s40, s40, 1", "s_cmp_eq_u32 s40, 3", "s_cselect_b32 s40, 0, s40", f"s_cselect_b32 s42, {(320 - 3*81920) & 0xffffffff}, 0", "s_add_u32 s37, s37, s42"]
        return it
    PD = 2 if MB == 2 else 3
    gemm_cold(a, 6, MB, "s[48:51]", True)
    if MB == 2: a.label("W_vu_warm")
    a.e("s_mov_b32 s40, 0")
    gemm_loop(a, 6, MB, "s[48:51]", (True, [wd2() for _ in range(PD)]))
    a.e(f"s_waitcnt vmcnt({5*(PD-1)})")
    a.e("s_barrier")
    adv_read(a, vT2, False)
    def wreads(f, ks):
        return [[f"ds_read_b64_tr_b16 {ar(FW[f]+4*t+2*h,2)}, v{vTC} offset:{(16*ks+8*h)*RB + t*64}" for h in range(2)] for t in range(5)]
    for it in wreads(0, 0): a.e("\n".join(it))
    k = 0
    for tb in range(MB):
        for T in range(6):
            d = ACC + (tb*6+T)*16
            for q in range(8):
                r = 40 + (k % 8); k += 1
                a.e(f"v_cvt_pk_bf16_f32 v{r}, v{d+2*q}, v{d+2*q+1}")
                a.e(f"v_accvgpr_write_b32 a{VOP + (tb*6+T)*8 + q}, v{r}")
    wts(a, 3)
    ND = max(0, NTL - len(STG))
    def grp(i): return STG[0] if i < ND else STG[i-ND]
    def cvts(i):
        d = ACC + i*16; r = grp(i)
        return [f"v_cvt_pk_bf16_f32 v{r+q}, v{d+2*q}, v{d+2*q+1}" for q in range(8)]
    def stores(i):
        tb, t = divmod(i, 5); off = t*2048; r = grp(i)
        return [[f"s_add_u32 s25, s31, {tb*32*40960 + (off & ~4095)}", f"buffer_store_dwordx4 {vr(r,4)}, v{vST}, s[8:11], s25 offen offset:{off % 4096} {GP['st']}"],
                [f"buffer_store_dwordx4 {vr(r+4,4)}, v{vST}, s[8:11], s25 offen offset:{off % 4096 + 1024} {GP['st']}"]]
    def mf(f, sg, ks, i):
        tb, t = divmod(i, 5); T = 2*sg + (ks >> 1); j = ks & 1; d = ACC + i*16
        return f"{MF} {vr(d,16)}, {ar(VOP + ((tb*6+T)*2+j)*4,4)}, {ar(FW[f]+4*t,4)}, {'0' if sg == 0 and ks == 0 else vr(d,16)}"
    def pass_body(pending, final):
        NM = NTL
        st_items = []
        if pending:
            for i in range(ND, NTL): st_items += stores(i)
        nx = next_items(a) if (final and MB == 2) else [[], []]
        prev_w = 5*(PD-1)
        for sg in range(3):
            ext = [[] for _ in range(4*NM)]
            nU = (not final) or sg + PD < 3
            ws = wd2() if nU else (nx[sg - (3-2)] if sg >= 1 else [])
            nmine = (len(st_items) + (2-sg))//(3-sg) if sg < 2 else len(st_items)
            mine = st_items[:nmine]; st_items = st_items[nmine:]
            p0 = NM if (sg == 0 and pending) else 0
            if nU:
                seq = []
                wi = list(ws); si = list(mine)
                while wi or si:
                    if wi: seq.append(wi.pop(0))
                    if si: seq.append(si.pop(0))
                for n, it in enumerate(seq): ext[p0 + (n*(3*NM - p0))//len(seq)] += it
            elif sg < 2:
                for n, it in enumerate(mine): ext[p0 + (n*(3*NM - p0))//len(mine)] += it
                for n, it in enumerate(ws): ext[3*NM + (n*NM)//len(ws)] += it
            else:
                seq = list(mine) + list(ws)
                for n, it in enumerate(seq): ext[(n*(4*NM - 4))//len(seq)] += it
            if sg == 2 and pending: ext[4*NM-1] += [f"s_add_u32 s31, s31, {5*2048}"]
            for ks in range(4):
                f = ks & 1
                lastst = final and sg == 2
                if ks < 3 or lastst: a.e("s_waitcnt lgkmcnt(0)")
                else:
                    thisn = len(mine) + (5 if nU else 0)
                    older = 5*(PD-2) if (PD > 2 and ((not final) or sg + PD - 1 < 3)) else 0
                    a.e(f"s_waitcnt vmcnt({thisn + older}) lgkmcnt(0)")
                    a.e("s_barrier")
                    adv_read(a, vT2, False)
                rd = wreads(f ^ 1, ks+1) if ks < 3 else ([] if lastst else wreads(0, 0))
                fl = merge(spread(rd, NM, 0, per=1), ext[ks*NM:(ks+1)*NM])
                for i in range(NM):
                    if pending and sg == 0 and ks == 0:
                        for ins in cvts(i): a.e(ins)
                        if i < ND:
                            for it in stores(i): a.e("\n".join(it))
                    a.e(mf(f, sg, ks, i))
                    for ins in fl[i]: a.e(ins)
    lp = a.newlabel("W_pass")
    pass_body(False, False)
    a.e("s_cmp_eq_u32 s38, 2"); a.e(f"s_cbranch_scc1 {lp}_fin")
    if MB == 2:
        a.label(lp)
        pass_body(True, False)
        a.e("s_sub_u32 s38, s38, 1"); a.e("s_cmp_lg_u32 s38, 2"); a.e(f"s_cbranch_scc1 {lp}")
    a.label(f"{lp}_fin")
    pass_body(True, True)
    wts(a, 4)
    if MB == 2: warm_handoff(a, 6)
    a.nop(8)
    for i in range(NTL):
        r = 40 + 8*(i % 3)
        d = ACC + i*16; tb, t = divmod(i, 5); off = t*2048
        for q in range(8): a.e(f"v_cvt_pk_bf16_f32 v{r+q}, v{d+2*q}, v{d+2*q+1}")
        a.e(f"s_add_u32 s25, s31, {tb*32*40960 + (off & ~4095)}")
        a.e(f"buffer_store_dwordx4 {vr(r,4)}, v{vST}, s[8:11], s25 offen offset:{off % 4096} {GP['st']}")
        a.e(f"buffer_store_dwordx4 {vr(r+4,4)}, v{vST}, s[8:11], s25 offen offset:{off % 4096 + 1024} {GP['st']}")
    finish(a, "s39")

def task_bout(a):
    gemm_cold(a, 5, 2, "s[8:11]", False)
    gemm_loop(a, 5, 2, "s[8:11]", None)
    a.e("v_and_b32 v4, 31, v1"); a.e("s_lshl_b32 s25, s24, 6"); a.e("v_add_u32 v4, s25, v4"); a.e("v_mul_u32_u24 v4, 2560, v4")
    a.e("v_lshrrev_b32 v5, 5, v1"); a.e("v_lshl_add_u32 v4, v5, 4, v4"); a.e(f"v_add_u32 v5, {32*2560}, v4")
    a.nop(4)
    k = 0
    for tb in range(2):
        for t in range(5):
            d = ACC + (tb*5+t)*16
            for j in range(2):
                r = 40 + (k % 6)*4; k += 1
                for q in range(4): a.e(f"v_cvt_pk_bf16_f32 v{r+q}, v{d+8*j+2*q}, v{d+8*j+2*q+1}")
                a.nop(2)
                a.e(f"v_permlane32_swap_b32 v{r}, v{r+2}"); a.e(f"v_permlane32_swap_b32 v{r+1}, v{r+3}")
                a.e(f"buffer_store_dwordx4 {vr(r,4)}, v{4+tb}, s[20:23], s31 offen offset:{t*64 + j*32}")
    a.e("s_barrier")

NEGINF = 0xff800000
def task_tp(a):
    C = 192**-0.5 * math.log2(math.e)
    KR = 64; QR = 112; MR = 160; S = 16; SM = 32
    a.e("s_lshl_b32 s46, s45, 2"); a.e("s_add_u32 s46, s46, s24")
    a.e("s_lshl_b32 s47, s44, 5"); a.e("s_add_u32 s47, s47, s46")
    a.e("s_lshr_b32 s25, s44, 3"); a.e("s_lshl_b32 s25, s25, 5"); a.e("s_add_u32 s25, s25, s46"); a.e("s_lshl_b32 s25, s25, 4"); a.e(f"s_add_u32 s26, s25, {WS_FLAGS+F_Q}"); a.e(f"s_add_u32 s25, s25, {WS_FLAGS+F_K}")
    wait_flags(a, a.newlabel("W_k"), "s25", 2, 2, 1)
    wait_flags(a, a.newlabel("W_q"), "s26", 2, 2, 1)
    a.e("v_lshlrev_b32 v4, 4, v1")
    a.e("s_mul_i32 s26, s47, 12288"); a.e(f"s_add_u32 s27, s26, {WS_Q}"); a.e(f"s_add_u32 s26, s26, {WS_K}")
    for i in range(12):
        if i and i % 4 == 0: a.e("s_add_u32 s26, s26, 4096"); a.e("s_add_u32 s27, s27, 4096")
        a.e(f"buffer_load_dwordx4 {vr(KR+4*i,4)}, v4, s[8:11], s26 offen offset:{1024*(i%4)}")
        a.e(f"buffer_load_dwordx4 {vr(QR+4*i,4)}, v4, s[8:11], s27 offen offset:{1024*(i%4)}")
    a.e("v_and_b32 v5, 31, v1"); a.e("v_lshrrev_b32 v6, 5, v1"); a.e("v_lshlrev_b32 v7, 2, v6"); a.e("v_sub_u32 v8, v5, v7")
    a.e("v_and_b32 v7, 7, v1"); a.e("v_lshlrev_b32 v7, 4, v7"); a.e("v_lshl_add_u32 v7, v6, 7, v7"); a.e("s_mul_i32 s25, s24, 3072"); a.e("v_add_u32 v9, s25, v7")
    a.e("v_lshlrev_b32 v10, 4, v5"); a.e("v_lshl_add_u32 v10, v6, 3, v10")
    a.e(f"v_mov_b32 v11, {NEGINF}")
    for i in range(12):
        a.e(f"s_waitcnt vmcnt({22-2*i})")
        a.e(f"{MF} {vr(S,16)}, {vr(KR+4*i,4)}, {vr(QR+4*i,4)}, {'0' if i == 0 else vr(S,16)}")
    a.e("s_lshl_b32 s25, s46, 7"); a.e(f"s_add_u32 s25, s25, {WS_FLAGS+F_KM}"); a.e("s_add_u32 s28, s44, 1")
    a.nop(8)
    for r in range(16):
        kr = (r & 3) + 8*(r >> 2)
        a.e(f"v_cmp_le_i32 vcc, {kr}, v8")
        a.nop(2)
        a.e(f"v_cndmask_b32 v{S+r}, v11, v{S+r}, vcc")
    a.e(f"v_max3_f32 v12, v{S}, v{S+1}, v{S+2}")
    for r in range(3, 15, 2): a.e(f"v_max3_f32 v12, v{S+r}, v{S+r+1}, v12")
    a.e(f"v_max_f32 v12, v{S+15}, v12")
    wait_progress(a, a.newlabel("W_kp"), "s25", "s28")
    wait_flags(a, a.newlabel("W_km"), "s25", 1, 2, "s28", sleep=GP['slpf'])
    a.e("s_mul_i32 s26, s47, 3072"); a.e(f"s_add_u32 s26, s26, {WS_KM}"); a.e("s_mul_i32 s25, s24, 3072")
    for i in range(3):
        a.e(f"s_add_u32 m0, s25, {1024*i}"); a.e("s_nop 0")
        a.e(f"buffer_load_dwordx4 v4, s[8:11], s26 offen sc1 lds")
        a.e("s_add_u32 s26, s26, 1024")
    a.e("s_waitcnt vmcnt(0)")
    for i in range(12): a.e(f"ds_read_b128 {vr(MR+4*i,4)}, v9 offset:{256*i}")
    for i in range(12):
        a.e(f"s_waitcnt lgkmcnt({11-i})")
        a.e(f"{MF} {vr(SM,16)}, {vr(MR+4*i,4)}, {vr(QR+4*i,4)}, {'0' if i == 0 else vr(SM,16)}")
    a.e("s_mul_i32 s26, s47, 2560"); a.e(f"s_add_u32 s26, s26, {WS_PT}")
    a.e("s_lshl_b32 s27, s44, 7"); a.e(f"s_add_u32 s27, s27, {WS_FLAGS+F_PT}")
    a.e(f"s_mov_b32 s28, {fbits(C)}")
    a.nop(12)
    a.e(f"v_max3_f32 v12, v{SM}, v{SM+1}, v12"); a.e(f"v_max3_f32 v12, v{SM+2}, v{SM+3}, v12")
    a.e("v_mov_b32 v13, v12"); a.nop(2); a.e("v_permlane32_swap_b32 v12, v13"); a.nop(1); a.e("v_max_f32 v12, v12, v13")
    a.e("v_mul_f32 v12, s28, v12")
    vals = list(range(S, S+16)) + list(range(SM, SM+4))
    for v in vals: a.e(f"v_fma_f32 v{v}, v{v}, s28, -v12")
    for v in vals: a.e(f"v_exp_f32 v{v}, v{v}")
    a.e(f"v_add_f32 v13, v{S}, v{S+1}")
    for v in vals[2:]: a.e(f"v_add_f32 v13, v13, v{v}")
    a.e("v_mov_b32 v14, v13"); a.nop(2); a.e("v_permlane32_swap_b32 v13, v14"); a.nop(1); a.e("v_add_f32 v13, v13, v14")
    a.e("v_rcp_f32 v13, v13"); a.nop(1)
    for v in vals: a.e(f"v_mul_f32 v{v}, v{v}, v13")
    for q in range(8): a.e(f"v_cvt_pk_bf16_f32 v{48+q}, v{S+2*q}, v{S+2*q+1}")
    for q in range(2): a.e(f"v_cvt_pk_bf16_f32 v{56+q}, v{SM+2*q}, v{SM+2*q+1}")
    a.e("buffer_store_dwordx4 v[48:51], v4, s[8:11], s26 offen sc1")
    a.e("buffer_store_dwordx4 v[52:55], v4, s[8:11], s26 offen offset:1024 sc1")
    a.e("buffer_store_dwordx2 v[56:57], v10, s[8:11], s26 offen offset:2048 sc1")
    a.e("v_mov_b32 v2, 1"); a.e("v_mov_b32 v3, 0")
    a.e("s_waitcnt vmcnt(0)")
    a.e("s_mov_b64 exec, 1")
    a.e("buffer_atomic_add v2, v3, s[8:11], s27 offen sc1")
    a.e("s_mov_b64 exec, -1")
    a.e("s_barrier")

def task_pz(a):
    a.e("s_lshr_b32 s25, s44, 3"); a.e("s_lshl_b32 s25, s25, 9"); a.e("s_lshl_b32 s26, s24, 7"); a.e("s_add_u32 s25, s25, s26"); a.e(f"s_add_u32 s25, s25, {WS_FLAGS+F_U}")
    wait_flags(a, a.newlabel("W_u"), "s25", 32, 2, 1)
    a.e("s_lshl_b32 s46, s44, 5"); a.e("s_lshl_b32 s25, s24, 3"); a.e("s_add_u32 s46, s46, s25")
    a.e("v_and_b32 v5, 31, v1"); a.e("v_lshrrev_b32 v6, 5, v1")
    a.e("v_lshlrev_b32 v4, 4, v1")
    a.e("v_lshlrev_b32 v7, 4, v1")
    a.e("v_mul_u32_u24 v8, 2560, v6"); a.e("v_lshl_add_u32 v8, v5, 4, v8")
    a.e("v_mul_u32_u24 v9, 10240, v6"); a.e("v_lshl_add_u32 v9, v5, 4, v9")
    a.e("s_mul_i32 s26, s46, 40960"); a.e("s_lshl_b32 s25, s45, 12"); a.e("s_add_u32 s26, s26, s25"); a.e(f"s_add_u32 s26, s26, {WS_U}")
    for h in range(8):
        for i in range(4): a.e(f"buffer_load_dwordx4 {ar(16*h+4*i,4)}, v4, s[8:11], s26 offen offset:{1024*i}")
        a.e("s_add_u32 s26, s26, 40960")
    a.e("s_lshl_b32 s25, s24, 13"); a.e("v_add_u32 v10, s25, v7")
    a.e("v_and_b32 v11, 7, v0"); a.e("v_lshrrev_b32 v12, 3, v0")
    a.e("v_lshlrev_b32 v13, 10, v11"); a.e("v_lshl_add_u32 v13, v12, 4, v13")
    a.e("v_mul_u32_u24 v14, 2560, v12"); a.e("v_lshl_add_u32 v14, v11, 4, v14")
    a.e("s_lshl_b32 s27, s44, 7"); a.e(f"s_add_u32 s27, s27, {WS_FLAGS+F_PT}")
    a.e("s_add_u32 s28, s44, 1"); a.e("s_lshl_b32 s25, s24, 10"); a.e(f"s_add_u32 s25, s25, {WS_FLAGS+F_YR}")
    wait_progress(a, a.newlabel("W_yp"), "s25", "s28")
    wait_flags(a, a.newlabel("W_y"), "s25", 8, 7, "s28", sleep=GP['slpf'])
    a.e("s_mul_i32 s29, s46, 10240"); a.e("s_lshl_b32 s25, s45, 10"); a.e("s_add_u32 s29, s29, s25"); a.e(f"s_add_u32 s29, s29, {WS_YA}")
    for p in range(4):
        for t in range(2): a.e(f"buffer_load_dwordx4 {vr(144+8*p+4*t,4)}, v9, s[8:11], s29 offen offset:{512*t} sc1")
        a.e("s_add_u32 s29, s29, 20480")
    wait_flags(a, a.newlabel("W_p"), "s27", 1, 2, 32, sleep=GP['slpf'])
    a.e("s_mul_i32 s26, s46, 2560"); a.e(f"s_add_u32 s26, s26, {WS_PT}")
    for p in range(4):
        a.e("s_add_u32 s25, s26, 2560")
        for j in range(2): a.e(f"buffer_load_dwordx4 {vr(64+16*p+4*j,4)}, v7, s[8:11], s26 offen offset:{1024*j} sc1")
        for j in range(2): a.e(f"buffer_load_dwordx4 {vr(64+16*p+8+4*j,4)}, v7, s[8:11], s25 offen offset:{1024*j} sc1")
        a.e(f"buffer_load_dwordx4 {vr(128+4*p,4)}, v8, s[8:11], s26 offen offset:2048 sc1")
        a.e("s_add_u32 s26, s26, 5120")
    first = True
    for p in range(4):
        for k in range(5):
            a.e(f"s_waitcnt vmcnt({19-5*p-k})")
            for t in range(2):
                d = 16+16*t
                if k < 4:
                    h = 2*p + (k >> 1); j = k & 1
                    A = ar(16*h + 8*t + 4*j, 4); B = vr(64+16*p+4*k, 4)
                else:
                    A = vr(144+8*p+4*t, 4); B = vr(128+4*p, 4)
                a.e(f"{MF} {vr(d,16)}, {A}, {B}, {'0' if first else vr(d,16)}")
            first = False
    a.e("s_mul_i32 s26, s44, 81920"); a.e("s_lshl_b32 s25, s45, 7"); a.e("s_add_u32 s26, s26, s25")
    a.nop(10)
    for t in range(2):
        if t: a.nop(4)
        for q in range(4): a.e(f"ds_write_b128 v10, {vr(16+16*t+4*q,4)} offset:{(t*4+q)*1024}")
    a.e("s_waitcnt lgkmcnt(0)")
    a.e("s_barrier")
    for w in range(4):
        for hf in range(2): a.e(f"ds_read_b128 {vr(64+8*w+4*hf,4)}, v13 offset:{8192*w + 512*hf}")
    a.e("s_waitcnt lgkmcnt(0)")
    for q in range(0, 8, 2):
        a.e(f"v_pk_add_f32 {vr(64+q,2)}, {vr(64+q,2)}, {vr(72+q,2)}"); a.e(f"v_pk_add_f32 {vr(80+q,2)}, {vr(80+q,2)}, {vr(88+q,2)}")
    for q in range(0, 8, 2): a.e(f"v_pk_add_f32 {vr(64+q,2)}, {vr(64+q,2)}, {vr(80+q,2)}")
    for q in range(4): a.e(f"v_cvt_pk_bf16_f32 v{48+q}, v{64+2*q}, v{64+2*q+1}")
    a.e("buffer_store_dwordx4 v[48:51], v14, s[20:23], s26 offen")
    a.e("s_barrier")

def piece_off(a, dst, c4reg):
    a.e(f"s_lshr_b32 s25, {c4reg}, 4"); a.e(f"s_lshl_b32 {dst}, s25, 10")
    a.e(f"s_bfe_u32 s25, {c4reg}, 0x10002"); a.e("s_lshl_b32 s25, s25, 9"); a.e(f"s_add_u32 {dst}, {dst}, s25")
    a.e(f"s_and_b32 s25, {c4reg}, 8"); a.e(f"s_add_u32 {dst}, {dst}, s25")
def task_batt(a):
    C = 20**-0.5 * math.log2(math.e)
    SEG = 122880; VL = 18432
    S = 64; Q0 = 16; Q1 = 20; KA = 24; DAT = 208; O = 40
    a.e("s_lshr_b32 s26, s44, 1"); a.e("s_max_u32 s27, s26, 1"); a.e("s_sub_u32 s27, s27, 1")
    a.e("s_lshl_b32 s26, s26, 6"); a.e("s_lshl_b32 s27, s27, 6"); a.e(f"s_add_u32 s26, s26, {WS_FLAGS+F_BQ}"); a.e(f"s_add_u32 s27, s27, {WS_FLAGS+F_BQ}")
    wait_flags(a, a.newlabel("W_b1"), "s26", 10, 2, 1)
    wait_flags(a, a.newlabel("W_b2"), "s27", 10, 2, 1)
    a.e("s_mul_i32 s28, s45, 20")
    for part in range(3):
        for c in range(5):
            a.e(f"s_add_u32 s29, s28, {640*part + 4*c}")
            piece_off(a, f"s{48 + 5*part + c}", "s29")
    a.e("v_and_b32 v5, 31, v1"); a.e("v_lshrrev_b32 v6, 5, v1")
    a.e(f"v_mul_u32_u24 v4, {SEG}, v6"); a.e("v_lshl_add_u32 v4, v5, 4, v4")
    a.e("v_mul_u32_u24 v7, 48, v1")
    for i in range(3):
        a.e("s_mul_i32 s29, s24, 3"); a.e(f"s_add_u32 s29, s29, {i}")
        a.e("s_cmp_ge_u32 s29, 6"); a.e("s_cselect_b32 s30, 6, 0"); a.e("s_cselect_b32 s33, 1, 0"); a.e("s_sub_u32 s29, s29, s30")
        a.e("s_lshl_b32 s30, s44, 1"); a.e("s_add_u32 s30, s30, s29"); a.e("s_max_u32 s30, s30, 4"); a.e("s_sub_u32 s30, s30, 4")
        a.e(f"s_mul_i32 s30, s30, {2*SEG}"); a.e(f"s_add_u32 s30, s30, {WS_BQKV}")
        a.e("s_mul_i32 s29, s29, 3072"); a.e(f"s_mul_i32 s34, s33, {VL}"); a.e("s_add_u32 s29, s29, s34")
        a.e(f"v_add_u32 v{8+i}, s29, v7")
        a.e("s_cmp_eq_u32 s33, 1")
        for c in range(5):
            a.e(f"s_cselect_b32 s31, s{58+c}, s{53+c}"); a.e(f"s_mov_b32 s{35+c}, s31")
        for c in range(5):
            a.e(f"s_add_u32 s31, s{35+c}, s30")
            a.e(f"buffer_load_dwordx2 {vr(DAT+10*i+2*c,2)}, v4, s[8:11], s31 offen")
    a.e("s_lshl_b32 s30, s44, 2"); a.e("s_add_u32 s30, s30, s24"); a.e(f"s_mul_i32 s30, s30, {SEG}"); a.e(f"s_add_u32 s30, s30, {WS_BQKV}")
    a.e("v_cmp_eq_u32 vcc, 0, v6"); a.e("v_lshlrev_b32 v11, 4, v5")
    for k in range(2):
        a.e(f"v_mov_b32 v12, s{50+k}"); a.e(f"v_mov_b32 v13, s{48+k}"); a.e("v_cndmask_b32 v12, v12, v13, vcc"); a.e("v_add_u32 v12, v12, v11")
        a.e(f"buffer_load_dwordx2 {vr(Q0+2*k,2)}, v12, s[8:11], s30 offen")
    a.e("s_add_u32 s30, s30, s52")
    a.e(f"buffer_load_dwordx2 {vr(Q1,2)}, v11, s[8:11], s30 offen")
    a.e("v_mov_b32 v14, 0x3f80"); a.e("v_mov_b32 v15, 0"); a.e("v_mul_u32_u24 v12, 48, v0"); a.e("v_and_b32 v13, 127, v0"); a.e("v_mul_u32_u24 v13, 48, v13")
    a.e(f"ds_write_b64 v12, v[14:15] offset:{VL+40}"); a.e(f"ds_write_b64 v13, v[14:15] offset:{VL+40+256*48}")
    for i in range(3):
        for c in range(5):
            a.e(f"s_waitcnt vmcnt({17-5*i-c})")
            a.e(f"ds_write_b64 v{8+i}, {vr(DAT+10*i+2*c,2)} offset:{8*c}")
    a.e("s_mul_i32 s29, s24, 1536")
    a.e("v_mul_u32_u24 v8, 48, v5"); a.e("v_add_u32 v8, s29, v8"); a.e("v_lshl_add_u32 v9, v6, 4, v8")
    a.e("v_bfe_u32 v10, v1, 2, 2"); a.e("v_lshl_add_u32 v10, v6, 2, v10"); a.e("v_mul_u32_u24 v10, 48, v10")
    a.e("v_bfe_u32 v12, v1, 4, 1"); a.e("v_and_b32 v13, 3, v1"); a.e("v_lshl_add_u32 v12, v12, 2, v13"); a.e("v_min_u32 v12, 5, v12"); a.e("v_lshl_add_u32 v10, v12, 3, v10")
    a.e(f"s_add_u32 s29, s29, {VL}"); a.e("v_add_u32 v10, s29, v10")
    a.e("v_lshlrev_b32 v12, 2, v6"); a.e("v_sub_u32 v12, v5, v12")
    a.e(f"v_mov_b32 v13, {NEGINF}")
    a.e("s_waitcnt vmcnt(0)")
    a.e(f"v_cndmask_b32 v{Q1}, 0, v{Q1}, vcc"); a.e(f"v_cndmask_b32 v{Q1+1}, 0, v{Q1+1}, vcc")
    a.e("s_lshl_b32 s33, s44, 2"); a.e("s_add_u32 s33, s33, s24")
    a.e("s_waitcnt lgkmcnt(0)")
    a.e("s_barrier")
    def kread(i):
        r = KA + 6*(i % 3)
        a.e(f"ds_read_b128 {vr(r,4)}, v9 offset:{1536*i}"); a.e(f"ds_read_b64 {vr(r+4,2)}, v8 offset:{1536*i+32}")
    def m8(i):
        a.e(f"v_mfma_f32_32x32x8_bf16 {vr(S+16*i,16)}, {vr(KA+6*(i%3)+4,2)}, {vr(Q1,2)}, {vr(S+16*i,16)}")
    kread(0)
    for i in range(9):
        if i < 8: kread(i+1)
        a.e(f"s_waitcnt lgkmcnt({2 if i < 8 else 0})")
        a.e(f"{MF} {vr(S+16*i,16)}, {vr(KA+6*(i%3),4)}, {vr(Q0,4)}, 0")
        if i == 1: a.nop(4)
        if i > 0: m8(i-1)
    a.nop(4)
    m8(8)
    a.nop(16)
    lab = a.newlabel("W_neg")
    for i in range(8):
        a.e(f"s_cmp_ge_u32 s33, {8-i}"); a.e(f"s_cbranch_scc1 {lab}")
        for r in range(16): a.e(f"v_mov_b32 v{S+16*i+r}, v13")
    a.label(lab)
    for r in range(16):
        kr = (r & 3) + 8*(r >> 2)
        a.e(f"v_cmp_le_i32 vcc, {kr}, v12")
        a.nop(2)
        a.e(f"v_cndmask_b32 v{S+128+r}, v13, v{S+128+r}, vcc")
        a.e(f"v_cndmask_b32 v{S+r}, v{S+r}, v13, vcc")
    a.e(f"v_max3_f32 v14, v{S}, v{S+1}, v{S+2}"); a.e(f"v_max3_f32 v15, v{S+3}, v{S+4}, v{S+5}")
    for r in range(6, 142, 4):
        a.e(f"v_max3_f32 v14, v{S+r}, v{S+r+1}, v14"); a.e(f"v_max3_f32 v15, v{S+r+2}, v{S+r+3}, v15")
    a.e(f"v_max3_f32 v14, v{S+142}, v{S+143}, v14"); a.e("v_max_f32 v14, v14, v15")
    a.e("v_mov_b32 v15, v14"); a.e(f"s_mov_b32 s28, {fbits(C)}"); a.nop(1); a.e("v_permlane32_swap_b32 v14, v15"); a.nop(1); a.e("v_max_f32 v14, v14, v15")
    a.e("v_mul_f32 v14, s28, v14")
    def vread(i):
        for jj in range(2):
            for h in range(2):
                a.e(f"ds_read_b64_tr_b16 {vr(KA+8*(i&1)+4*jj+2*h,2)}, v10 offset:{(32*i+16*jj+8*h)*48}")
    vread(0)
    for i in range(9):
        d = S+16*i
        for r in range(16): a.e(f"v_fma_f32 v{d+r}, v{d+r}, s28, -v14")
        for r in range(16): a.e(f"v_exp_f32 v{d+r}, v{d+r}")
        for q in range(8): a.e(f"v_cvt_pk_bf16_f32 v{d+q}, v{d+2*q}, v{d+2*q+1}")
        if i < 8: vread(i+1)
        a.e(f"s_waitcnt lgkmcnt({4 if i < 8 else 0})")
        if i == 8: a.nop(1)
        for jj in range(2):
            a.e(f"{MF} {vr(O,16)}, {vr(KA+8*(i&1)+4*jj,4)}, {vr(d+4*jj,4)}, {'0' if i == 0 and jj == 0 else vr(O,16)}")
    a.e(f"s_mul_i32 s30, s33, 40960"); a.e(f"s_add_u32 s30, s30, {WS_BO}"); a.e("s_mul_i32 s28, s45, 40"); a.e("s_add_u32 s30, s30, s28")
    a.e("v_mul_u32_u24 v16, 1280, v5"); a.e("v_lshl_add_u32 v16, v6, 3, v16")
    a.nop(12)
    a.e(f"v_mov_b32 v8, v{O+8}"); a.e(f"v_mov_b32 v9, v{O+8}"); a.nop(1); a.e("v_permlane32_swap_b32 v8, v9")
    a.nop(1); a.e("v_rcp_f32 v9, v9"); a.nop(1)
    for r in range(12): a.e(f"v_mul_f32 v{O+r}, v{O+r}, v9")
    for q in range(6): a.e(f"v_cvt_pk_bf16_f32 v{24+q}, v{O+2*q}, v{O+2*q+1}")
    a.e("buffer_store_dwordx2 v[24:25], v16, s[8:11], s30 offen sc1")
    a.e("buffer_store_dwordx2 v[26:27], v16, s[8:11], s30 offen offset:16 sc1")
    a.e("s_mov_b32 exec_hi, 0")
    a.e("buffer_store_dwordx2 v[28:29], v16, s[8:11], s30 offen offset:32 sc1")
    a.e("s_mov_b64 exec, -1")
    a.e("s_lshr_b32 s26, s44, 1"); a.e("s_lshl_b32 s26, s26, 7"); a.e(f"s_add_u32 s26, s26, {WS_FLAGS+F_BA}")
    set_flag(a, "s26", add=True)

T_END, T_K, T_Q, T_VU, T_BQ, T_BA, T_BO, T_P, T_PZ = range(9)
def enc(t, x, y, z=0): return t | (x << 8) | (y << 16) | (z << 24)

def worker(a, table_label, maxlen, cw):
    CW[0] = cw
    a.e("s_load_dwordx8 s[64:71], s[0:1], 16")
    a.e("s_load_dwordx4 s[72:75], s[0:1], 64")
    a.e("s_load_dwordx2 s[20:21], s[0:1], 80")
    a.e("s_load_dwordx2 s[84:85], s[0:1], 0"); a.e("s_load_dwordx2 s[86:87], s[0:1], 56")
    a.e("s_getpc_b64 s[76:77]")
    a.label("W_pc")
    a.e(f"s_add_u32 s76, s76, {table_label}-W_pc"); a.e("s_addc_u32 s77, s77, 0")
    a.e(f"s_mul_i32 s79, s79, {4*maxlen}")
    a.e("s_waitcnt lgkmcnt(0)")
    a.e("s_mov_b32 s22, 5242880"); a.e("s_mov_b32 s23, 0x20000")
    a.e("s_mov_b32 s16, s70"); a.e("s_mov_b32 s17, s71"); a.e("s_mov_b32 s18, 7864320"); a.e("s_mov_b32 s19, 0x20000")
    a.e("s_mov_b32 s12, s64"); a.e("s_mov_b32 s13, s65"); a.e("s_mov_b32 s14, 7864320"); a.e("s_mov_b32 s15, 0x20000")
    a.e("v_and_b32 v1, 63, v0")
    def fetch(warm=False):
        if warm:
            a.e("s_mov_b32 s78, s63"); a.e("s_mov_b32 s63, s55"); a.e("s_add_u32 s79, s79, 4")
        else:
            a.e("s_load_dword s78, s[76:77], s79")
            a.e("s_add_u32 s79, s79, 4")
            a.e("s_load_dword s63, s[76:77], s79")
            a.e("s_waitcnt lgkmcnt(0)")
        a.e("PROFTASK")
        a.e("s_and_b32 s47, s78, 255"); a.e("s_bfe_u32 s44, s78, 0x80008"); a.e("s_bfe_u32 s45, s78, 0x80010"); a.e("s_lshr_b32 s46, s78, 24")
    def nextparams():
        a.e("s_and_b32 s25, s63, 255"); a.e("s_cmp_eq_u32 s25, 1")
        a.e("s_cselect_b32 s56, s66, s64"); a.e("s_cselect_b32 s57, s67, s65")
        a.e("s_cmp_eq_u32 s25, 3"); a.e("s_cselect_b32 s56, s68, s56"); a.e("s_cselect_b32 s57, s69, s57")
        a.e("s_mov_b32 s58, 7864320"); a.e("s_mov_b32 s59, 0x20000")
        a.e("s_sub_u32 s25, s25, 1"); a.e("s_cmp_lt_u32 s25, 3"); a.e("s_cselect_b32 s62, 1, 0")
        a.e("s_bitcmp1_b32 s63, 26"); a.e("s_cselect_b32 s62, 0, s62")
        a.e("s_bfe_u32 s60, s63, 0x80008"); a.e("s_mul_i32 s60, s60, 327680")
        a.e("s_bfe_u32 s61, s63, 0x80010"); a.e("s_mul_i32 s61, s61, 384")
    def aout():
        a.e("s_lshl_b32 s36, s44, 5"); a.e("s_add_u32 s36, s36, s45"); a.e("s_lshl_b32 s36, s36, 4")
        a.e("s_lshl_b32 s31, s44, 3")
        a.e("s_bitcmp1_b32 s46, 2"); a.e("s_cselect_b32 s25, 0, 1"); a.e("s_lshl_b32 s25, s24, s25"); a.e("s_add_u32 s31, s31, s25")
        a.e("s_bfe_u32 s25, s46, 0x10003"); a.e("s_lshl_b32 s25, s25, 2"); a.e("s_add_u32 s31, s31, s25")
        a.e("s_lshl_b32 s31, s31, 5"); a.e("s_add_u32 s31, s31, s45")
        a.e("s_cmp_eq_u32 s47, 3"); a.e("s_cbranch_scc1 W_ao_v" + str(a.uid))
        a.e("s_mul_i32 s31, s31, 12288"); a.e("s_mov_b32 s35, 393216")
        a.e("s_cmp_eq_u32 s47, 1"); a.e(f"s_cselect_b32 s25, 0, {WS_Q-WS_K}"); a.e("s_add_u32 s31, s31, s25"); a.e(f"s_add_u32 s31, s31, {WS_K}")
        a.e("s_cmp_eq_u32 s47, 1"); a.e(f"s_cselect_b32 s25, 0, {F_Q-F_K}"); a.e("s_add_u32 s36, s36, s25"); a.e(f"s_add_u32 s36, s36, {WS_FLAGS+F_K}")
        a.e("s_bfe_u32 s25, s46, 0x10003"); a.e("s_lshl_b32 s39, 1, s25"); a.e("s_bitcmp1_b32 s46, 2"); a.e("s_cselect_b32 s39, s39, 3")
        a.e("s_branch W_ao_d" + str(a.uid))
        a.label("W_ao_v" + str(a.uid))
        a.e("s_mul_i32 s31, s31, 40960"); a.e(f"s_add_u32 s31, s31, {WS_U}"); a.e(f"s_add_u32 s36, s36, {WS_FLAGS+F_U}")
        a.e("s_mul_i32 s37, s45, 245760")
        a.e("s_and_b32 s25, s46, 3"); a.e("s_cmp_eq_u32 s25, 0"); a.e("s_cselect_b32 s38, 4, 2"); a.e("s_cselect_b32 s39, 3, s25")
        a.e("s_cmp_eq_u32 s25, 2"); a.e("s_cselect_b32 s25, 640, 0"); a.e("s_add_u32 s37, s37, s25"); a.e("s_lshl_b32 s25, s25, 5"); a.e("s_add_u32 s31, s31, s25")
        a.e("s_bfe_u32 s25, s46, 0x10003"); a.e("s_lshl_b32 s25, s25, 1"); a.e("s_lshl_b32 s25, s39, s25"); a.e("s_mul_i32 s39, s39, 5")
        a.e("s_bitcmp1_b32 s46, 2"); a.e("s_cselect_b32 s39, s25, s39")
        a.label("W_ao_d" + str(a.uid)); a.uid += 1
    a.e("s_branch W_next")
    a.label("W_warm")
    fetch(True)
    a.e("s_mov_b32 s12, s56"); a.e("s_mov_b32 s13, s57"); a.e("s_mov_b32 s26, s60"); a.e("s_mov_b32 s27, s61")
    nextparams(); aout()
    wts(a, 1)
    a.e("s_cmp_eq_u32 s47, 3"); a.e("s_cbranch_scc1 W_vu_warm"); a.e("s_branch W_kq_warm")
    a.label("W_next")
    fetch()
    for t, l in ((T_P, "W_tp"), (T_PZ, "W_pz"), (T_BA, "W_ba"), (T_BQ, "W_bq"), (T_BO, "W_bo"), (T_END, "W_done")):
        a.e(f"s_cmp_eq_u32 s47, {t}"); a.e(f"s_cbranch_scc1 {l}")
    a.e("s_cmp_eq_u32 s47, 1"); a.e("s_cselect_b32 s12, s66, s64"); a.e("s_cselect_b32 s13, s67, s65")
    a.e("s_cmp_eq_u32 s47, 3"); a.e("s_cselect_b32 s12, s68, s12"); a.e("s_cselect_b32 s13, s69, s13"); a.e("s_mov_b32 s14, 7864320")
    a.e("s_mul_i32 s26, s44, 327680"); a.e("s_bfe_u32 s25, s46, 0x10003"); a.e("s_mul_i32 s25, s25, 163840"); a.e("s_add_u32 s26, s26, s25")
    a.e("s_mov_b32 s48, s84"); a.e("s_mov_b32 s49, s85"); a.e("s_mov_b32 s50, 2621440"); a.e("s_mov_b32 s51, 0x20000")
    a.e("s_mul_i32 s27, s45, 384"); a.e("s_mov_b32 s33, 12288")
    nextparams(); aout()
    a.e("s_bitcmp1_b32 s46, 2"); a.e("s_cbranch_scc1 W_mb1")
    a.e("s_cmp_eq_u32 s47, 3"); a.e("s_cbranch_scc1 W_vu"); a.e("s_branch W_kq")
    a.label("W_mb1"); a.e("s_mov_b32 s62, 0")
    a.e("s_cmp_eq_u32 s47, 3"); a.e("s_cbranch_scc1 W_vu1")
    task_kq(a, 1)
    a.label("W_vu1"); task_vu(a, 1)
    a.label("W_bq")
    a.e("s_mov_b32 s12, s72"); a.e("s_mov_b32 s13, s73"); a.e("s_mov_b32 s14, 2457600")
    a.e("s_mul_i32 s26, s44, 327680"); a.e("s_mov_b32 s48, s86"); a.e("s_mov_b32 s49, s87"); a.e("s_mov_b32 s50, 2621440"); a.e("s_mov_b32 s51, 0x20000")
    a.e("s_mul_i32 s27, s45, 384"); a.e("s_mov_b32 s33, 3840")
    a.e("s_lshl_b32 s36, s44, 4"); a.e("s_add_u32 s36, s36, s45"); a.e("s_lshl_b32 s36, s36, 2"); a.e(f"s_add_u32 s36, s36, {WS_FLAGS+F_BQ}")
    a.e("s_lshl_b32 s31, s44, 3"); a.e("s_lshl_b32 s25, s24, 1"); a.e("s_add_u32 s31, s31, s25"); a.e("s_mul_i32 s31, s31, 10"); a.e("s_add_u32 s31, s31, s45")
    a.e("s_mul_i32 s31, s31, 12288"); a.e(f"s_add_u32 s31, s31, {WS_BQKV}"); a.e("s_mov_b32 s35, 122880")
    a.e("s_mov_b32 s39, 1"); a.e("s_mov_b32 s62, 0")
    a.e("s_mov_b32 s56, s64"); a.e("s_mov_b32 s57, s65"); a.e("s_mov_b32 s58, 7864320"); a.e("s_mov_b32 s59, 0x20000")
    a.label("W_kq"); task_kq(a, 2)
    a.label("W_vu"); task_vu(a, 2)
    a.label("W_bo")
    a.e("s_lshl_b32 s26, s44, 7"); a.e(f"s_add_u32 s26, s26, {WS_FLAGS+F_BA}")
    wait_flags(a, "W_bow", "s26", 1, 2, 64)
    a.e("s_mov_b32 s12, s74"); a.e("s_mov_b32 s13, s75"); a.e("s_mov_b32 s14, 819200")
    a.e("s_mul_i32 s26, s44, 327680"); a.e(f"s_add_u32 s26, s26, {WS_BO}")
    a.e("s_mul_i32 s27, s45, 320"); a.e("s_mov_b32 s33, 1280")
    a.e(f"s_mul_i32 s31, s44, {256*2560}"); a.e("s_add_u32 s31, s31, s27"); a.e("s_add_u32 s31, s31, 1280")
    task_bout(a); a.e("s_branch W_next")
    a.label("W_tp"); task_tp(a); a.e("s_branch W_next")
    a.label("W_pz"); task_pz(a); a.e("s_branch W_next")
    a.label("W_ba"); task_batt(a); a.e("s_branch W_next")
    a.label("W_done")
```

```python
import sys
sys.path.insert(0, "work")
from asmlib import *
from layout import *
import chain
from worker import *

NAME = "concat_heads__memory_aug_recurrent_mem_tr__sliding_block__prompt_kernel"

SP = dict(b1=1, t0=19.0, dt=2.1, t0F=24.0, dtF=2.7, slack=3.0, lead=20.0, K=12.5, VU=25.0, VU2=23.0, VU1=15.0, K1=10.5, BQ=16.0, BA=5.8, BO=15.0, P=3.5, PZ=5.0, cold=1.4, groups=((2,3,4),(5,6,7)), qlag=0.0, bstart=0.0)
def schedule(**kw):
    import heapq
    S = dict(SP); S.update(kw)
    heads3 = [list(range(0,6)), list(range(6,12)), list(range(12,17)), list(range(17,22)), list(range(22,27)), list(range(27,32))]
    headsq = [list(range(0,4)), list(range(4,8)), list(range(8,14)), list(range(14,20)), list(range(20,26)), list(range(26,32))]
    t0, dt = S['t0'], S['dt']
    AQ = []
    for x in range(6):
        H = heads3[x]; q = []
        r0 = []
        for h in range(32):
            r0 += [(-3, enc(T_VU, 0, h, 4 + 8*hm + z), S['VU1'], ('U', 0)) for hm in (0, 1) for z in (1, 2)]
            r0 += [(-2, enc(T_K, 0, h, 4 + 8*hm), S['K1'], ('K', 0)) for hm in (0, 1)]
        q += r0[32*x:32*x+32]
        if S['b1'] == 1:
            q += [(-1, enc(T_VU, 1, h, 4 + 8*hm + z), S['VU1'], ('U', 1)) for h in H for hm in (0, 1) for z in (1, 2)] + [(0, enc(T_K, 1, h), S['K'], ('K', 1)) for h in H]
        else:
            q += [(-1, enc(T_VU, 1, h, z), S['VU2'], ('U', 1)) for h in H for z in (1, 2)] + [(0, enc(T_K, 1, h), S['K'], ('K', 1)) for h in H]
        for g in S['groups']:
            dl = t0 + 8*g[0]*dt - S['lead']
            q += [(dl - S['VU'], enc(T_VU, m, h), S['VU'], ('U', m)) for h in H for m in g]
            q += [(dl - S['K'], enc(T_K, m, h), S['K'], ('K', m)) for h in H for m in g]
        for g in [(0, 1), (2, 3), (4, 5), (6, 7)]:
            dl = t0 + (8*g[0] + 2)*dt + S['qlag'] - (S['lead'] if g[0] == 6 else 0)
            q += [(dl - S['K'], enc(T_Q, m, h), S['K'], ('Q', m)) for h in headsq[x] for m in g]
        q.sort(key=lambda e: e[0])
        AQ.append(q)
    done = {}
    remain = {}
    for q in AQ:
        for e in q: remain[e[3]] = remain.get(e[3], 0) + 1
    BQs = [(enc(T_BQ, m, n), ('BQ', m)) for m in range(8) for n in range(10)]
    BAs = [(enc(T_BA, b, h), ('BA', b >> 1)) for b in range(16) for h in range(32)]
    BOs = [(enc(T_BO, m, n), ('BO', m)) for m in range(8) for n in range(4)]
    for w, k in BQs + BAs: remain[k] = remain.get(k, 0) + 1
    Fs = []
    for s in range(64):
        Fs += [(enc(T_P, s, hg), ('P', s)) for hg in range(8)] + [(enc(T_PZ, s, cg), ('PZ', s)) for cg in range(10)]
        remain[('P', s)] = 8
    fin = {}
    def ready(keys):
        t = 0
        for k in keys:
            if remain.get(k, 0) > 0: return None
            t = max(t, fin.get(k, 0))
        return t
    def chain_t(s): return S['t0F'] + S['dtF']*(s + 1.6)
    lists = [[] for _ in range(192)]
    last = [0]*192
    heap = [(1.5, i) for i in range(192)]
    heapq.heapify(heap)
    end = 0
    while heap:
        t, i = heapq.heappop(heap)
        x = i >> 5
        pick = None
        def fready():
            w, k = Fs[0]; s = k[1]
            r = ready([('K', s >> 3), ('Q', s >> 3)]) if k[0] == 'P' else ready([('U', s >> 3), ('P', s)])
            if r is None: return None
            return max(r + S['slack'], chain_t(s) + (0 if k[0] == 'P' else dt))
        def take_a():
            e = AQ[x].pop(0); d = e[2] + (0 if (last[i] in (1, 2, 3) and not (lists[i][-1] >> 26) & 1) else S['cold'])
            return e[1], e[3], t + d
        def take_b():
            if BOs:
                r = ready([('BA', BOs[0][1][1])])
                if r is not None and r + S['slack'] <= t: w, k = BOs.pop(0); return w, k, t + S['BO']
            if BAs:
                m = BAs[0][1][1]; r = ready([('BQ', m), ('BQ', max(m-1, 0))])
                if r is not None and r + S['slack'] <= t: w, k = BAs.pop(0); return w, k, t + S['BA']
            if BQs and t >= S['bstart']: w, k = BQs.pop(0); return w, k, t + S['BQ']
            return None
        if AQ[x] and AQ[x][0][0] <= t: pick = take_a()
        if not pick and Fs:
            r = fready()
            if r is not None and r <= t:
                w, k = Fs.pop(0); pick = (w, k, max(t + S[k[0]], r + (1.0 if k[0] == 'P' else 1.8)))
        if not pick: pick = take_b()
        if not pick and AQ[x]: pick = take_a()
        if not pick and not any(AQ) and not BQs:
            cand = []
            if BAs:
                m = BAs[0][1][1]; r = ready([('BQ', m), ('BQ', max(m-1, 0))]); cand.append((r, 'BA'))
            elif BOs:
                r = ready([('BA', BOs[0][1][1])]); cand.append((r, 'BO'))
            if Fs:
                r = fready()
                if r is not None: cand.append((r, 'F'))
            if cand:
                r, c = min(cand)
                if c == 'F': w, k = Fs.pop(0); pick = (w, k, max(t + S[k[0]], r + (1.0 if k[0] == 'P' else 1.8)))
                elif c == 'BA': w, k = BAs.pop(0); pick = (w, k, max(t, r) + S['BA'])
                else: w, k = BOs.pop(0); pick = (w, k, max(t, r) + S['BO'])
        if not pick:
            if any(AQ) or BQs or BAs or BOs or Fs: heapq.heappush(heap, (t + 0.5, i))
            continue
        w, k, tf = pick
        lists[i].append(w); last[i] = w & 255
        remain[k] = remain.get(k, 1) - 1; fin[k] = max(fin.get(k, 0), tf); end = max(end, tf)
        heapq.heappush(heap, (tf, i))
    return lists, fin

def init_work(a):
    a.e("v_and_b32 v1, 63, v0"); a.e("v_lshlrev_b32 v4, 4, v1")
    for q in range(4): a.e(f"v_mov_b32 v{28+q}, -1"); a.e(f"v_mov_b32 v{32+q}, 0")
    a.e("s_lshr_b32 s28, s2, 2"); a.e("s_lshl_b32 s29, s28, 16");
    a.e("s_and_b32 s28, s2, 3"); a.e("s_lshl_b32 s28, s28, 14"); a.e("s_add_u32 s29, s29, s28"); a.e("s_lshl_b32 s28, s24, 12"); a.e("s_add_u32 s29, s29, s28")
    for i in range(4): a.e(f"buffer_store_dwordx4 v[28:31], v4, s[8:11], s29 offen offset:{1024*i} sc1")
    a.e("s_cmp_eq_u32 s24, 3"); a.e("s_cbranch_scc1 I_w3")
    a.e("s_mul_i32 s28, s2, 3"); a.e("s_add_u32 s28, s28, s24"); a.e("s_cmp_ge_u32 s28, 384"); a.e("s_cselect_b32 s29, 384, 0"); a.e(f"s_cselect_b32 s30, {LOC_STRIDE}, 0"); a.e(f"s_add_u32 s30, s30, {WS_LOC}")
    a.e("s_sub_u32 s28, s28, s29"); a.e("s_lshl_b32 s29, s28, 10"); a.e("s_add_u32 s29, s29, s30"); a.e("s_lshr_b32 s28, s28, 3"); a.e("s_cmp_eq_u32 s28, 2"); a.e("s_cbranch_scc1 I_z")
    a.e("buffer_store_dwordx4 v[28:31], v4, s[8:11], s29 offen sc1"); a.e("s_branch I_d")
    a.label("I_w3")
    a.e("s_cmp_ge_u32 s2, 64"); a.e("s_cbranch_scc1 I_d")
    a.e("s_lshl_b32 s29, s2, 10"); a.e(f"s_add_u32 s29, s29, {WS_FLAGS}")
    a.label("I_z")
    a.e("buffer_store_dwordx4 v[32:35], v4, s[8:11], s29 offen sc1")
    a.label("I_d")

def census_wait(a, lab):
    a.e("v_mbcnt_lo_u32_b32 v3, -1, 0"); a.e("v_and_b32 v3, 15, v3"); a.e("v_min_u32 v3, 8, v3")
    a.e("v_and_b32 v4, 1, v3"); a.e("v_lshlrev_b32 v3, 2, v3"); a.e("v_lshl_add_u32 v3, v4, 7, v3")
    a.label(lab)
    a.e("buffer_load_dword v2, v3, s[4:7], 0 offen sc1")
    guard(a)
    a.e("s_waitcnt vmcnt(0)")
    for i in range(9): a.e(f"v_readlane_b32 s{84+i}, v2, {i}")
    a.e("s_cmp_eq_u32 s92, 256"); a.e(f"s_cbranch_scc1 {lab}_ok"); a.e("s_sleep 8"); a.e(f"s_branch {lab}")
    a.label(f"{lab}_ok")

def arrive(a, lab):
    a.e("s_cmp_lg_u32 s24, 1"); a.e(f"s_cbranch_scc1 {lab}")
    a.e("v_mov_b32 v5, 1"); a.e("s_mov_b64 exec, 1")
    a.e("buffer_atomic_add v5, off, s[4:7], 0 offset:32 sc1"); a.e("s_mov_b64 exec, -1")
    a.label(lab)

def atomic_rank(a, lab, voff_expr, dst):
    a.e("s_cmp_lg_u32 s24, 0"); a.e(f"s_cbranch_scc1 {lab}")
    a.e("v_mov_b32 v3, 1"); a.e("v_mov_b32 v4, s25"); a.e("s_mov_b64 exec, 1")
    a.e("buffer_atomic_add v3, v4, s[4:7], 0 offen sc0 sc1")
    a.e("s_waitcnt vmcnt(0)")
    a.e("v_mov_b32 v4, 0"); a.e("ds_write_b32 v4, v3"); a.e("s_waitcnt lgkmcnt(0)"); a.e("s_mov_b64 exec, -1")
    a.label(lab)
    a.e("s_waitcnt vmcnt(0)")
    a.e("s_barrier")
    a.e("v_mov_b32 v4, 0"); a.e("ds_read_b32 v8, v4")
    a.e("s_cmp_lg_u32 s24, 1"); a.e(f"s_cbranch_scc1 {lab}b")
    a.e("v_mov_b32 v5, 1"); a.e("v_mov_b32 v6, 32"); a.e("s_mov_b64 exec, 1")
    a.e("buffer_atomic_add v5, v6, s[4:7], 0 offen sc1"); a.e("s_mov_b64 exec, -1")
    a.label(f"{lab}b")
    a.e("s_waitcnt lgkmcnt(0)")
    a.e(f"v_readfirstlane_b32 {dst}, v8")
    a.e("s_barrier")

def build(wpol='', wmax=36, hint=0, sp={}, gp={}, steplog=0, psel=0, profstart=False, prof=0, only=None, lists=None, nochain=False, budget=1 << 22, force_slow=False, qk={}, vo={}, proftask=False, flip=None):
    chain.WPOL[0] = wpol; chain.WMAX[0] = wmax; chain.HINT[0] = hint; chain.PSEL[0] = psel; chain.CAL[0] = flip is None
    chain.STEPLOG[0] = (WS_PROF + 524288) if steplog else 0
    import worker as WK
    WK.WPROF[0] = proftask == 2
    WK.GP.update(gp)
    a = Asm()
    if lists is None: lists, _ = schedule(**sp)
    if only is not None: lists = [[w for w in l if (w & 255) in only] for l in lists]
    maxlen = max(len(l) for l in lists) + 3
    a.e("s_cmp_ge_u32 s2, 256"); a.e("s_cbranch_scc1 L_end")
    a.e("""
s_load_dwordx2 s[8:9], s[0:1], 96
s_load_dwordx2 s[4:5], s[0:1], 88
s_getreg_b32 s3, hwreg(HW_REG_XCC_ID)
s_and_b32 s3, s3, 7
v_lshrrev_b32 v1, 6, v0
s_nop 0
v_readfirstlane_b32 s24, v1
s_waitcnt lgkmcnt(0)
s_mov_b32 s10, 0x10000000
s_mov_b32 s11, 0x20000
s_mov_b32 s6, 256
s_mov_b32 s7, 0x20000
""")
    a.e(f"s_mov_b32 s82, {budget}")
    if prof or proftask:
        a.e("s_mov_b32 s56, s8"); a.e("s_mov_b32 s57, s9"); a.e("s_mov_b32 s58, 0x10000000"); a.e("s_mov_b32 s59, 0x20000"); a.e("s_mov_b32 s83, 0")
        a.e("s_memrealtime s[96:97]")
    if profstart: a.e("s_memrealtime s[60:61]")
    if profstart: a.e("s_memrealtime s[62:63]")
    if profstart: a.e("s_memrealtime s[64:65]")
    if force_slow: a.e("s_lshr_b32 s3, s2, 5"); a.e("s_mul_i32 s3, s3, 3"); a.e("s_and_b32 s3, s3, 7"); a.e("s_max_u32 s3, s3, 1")
    a.e("s_and_b32 s25, s3, 1"); a.e("s_lshl_b32 s25, s25, 7"); a.e("s_lshl_b32 s26, s3, 2"); a.e("s_add_u32 s95, s25, s26")
    a.e("s_cmp_ge_u32 s3, 2"); a.e("s_cbranch_scc1 M_late")
    a.e("s_cmp_lg_u32 s24, 0"); a.e("s_cbranch_scc1 M_e1")
    a.e("v_mov_b32 v3, 1"); a.e("v_mov_b32 v8, s95"); a.e("s_mov_b64 exec, 1")
    a.e("buffer_atomic_add v3, v8, s[4:7], 0 offen sc0 sc1")
    a.e("s_mov_b64 exec, -1")
    a.L += [l.replace("I_", "K_") for l in _sub(init_work)]
    a.e("s_waitcnt vmcnt(5)")
    a.e("v_mov_b32 v4, 0"); a.e("s_mov_b64 exec, 1"); a.e("ds_write_b32 v4, v3"); a.e("s_mov_b64 exec, -1"); a.e("s_waitcnt lgkmcnt(0)")
    a.e("s_branch M_e2")
    a.label("M_e1")
    a.L += [l.replace("I_", "J_") for l in _sub(init_work)]
    a.label("M_e2")
    a.e("s_barrier")
    a.e("v_mov_b32 v4, 0"); a.e("ds_read_b32 v8, v4"); a.e("s_waitcnt lgkmcnt(0)")
    a.e("v_readfirstlane_b32 s80, v8")
    a.e("s_barrier")
    a.e("s_cmp_lt_u32 s80, 32"); a.e("s_cbranch_scc0 M_e3")
    a.e("s_mov_b32 s25, s3"); a.e("s_mov_b32 s26, s80"); a.e("s_mov_b32 s81, 1"); a.e("s_branch M_chain")
    a.label("M_e3")
    a.e("s_waitcnt vmcnt(0)"); a.e("s_barrier")
    arrive(a, "M_e4")
    a.e("s_branch M_worker")
    a.label("M_late")
    init_work(a)
    a.e("s_mov_b32 s25, s95")
    atomic_rank(a, "M_a1", None, "s80")
    if profstart: a.e("s_memrealtime s[62:63]")
    if profstart:
        a.e("s_memrealtime s[66:67]"); a.e("s_waitcnt lgkmcnt(0)"); a.e("s_lshl_b32 s25, s2, 5"); a.e(f"s_add_u32 s25, s25, {WS_PROF+262144}")
        a.e("v_mov_b32 v4, s60"); a.e("v_mov_b32 v5, s62"); a.e("v_mov_b32 v6, s64"); a.e("v_mov_b32 v7, s66"); a.e("v_mov_b32 v2, 0"); a.e("v_mov_b32 v8, s3")
        a.e("s_mov_b64 exec, 1"); a.e("buffer_store_dwordx4 v[4:7], v2, s[8:11], s25 offen"); a.e("buffer_store_dword v8, v2, s[8:11], s25 offen offset:16"); a.e("s_mov_b64 exec, -1")
    a.e("s_cmp_ge_u32 s80, 32"); a.e("s_cbranch_scc1 M_worker")
    a.e("s_sub_u32 s79, s3, 2"); a.e("s_lshl_b32 s79, s79, 5"); a.e("s_add_u32 s79, s79, s80")
    a.e("s_mov_b32 s81, 1")
    if flip is None:
        a.e("s_cmp_lg_u32 s79, 31"); a.e("s_cbranch_scc1 C_skip"); a.e("s_cmp_lg_u32 s24, 0"); a.e("s_cbranch_scc1 C_skip")
        a.e(f"s_mov_b32 s25, {WS_CAL}")
        a.e("s_load_dword s27, s[8:9], s25 glc"); a.e("s_waitcnt lgkmcnt(0)")
        a.e("s_mov_b32 s32, -1"); a.e("s_mov_b32 s33, -1")
        for i in range(1, 9):
            a.e(f"s_add_u32 s25, s25, 8192")
            a.e("s_memtime s[28:29]"); a.e("s_waitcnt lgkmcnt(0)")
            a.e("s_load_dword s27, s[8:9], s25 glc"); a.e("s_waitcnt lgkmcnt(0)")
            a.e("s_memtime s[30:31]"); a.e("s_waitcnt lgkmcnt(0)")
            a.e("s_sub_u32 s30, s30, s28"); a.e(f"s_min_u32 s{32 + (i & 1)}, s{32 + (i & 1)}, s30")
        a.e("s_cmp_le_u32 s33, s32"); a.e("s_cselect_b32 s27, 1, 0x2001")
        a.e("v_mov_b32 v2, s27"); a.e("buffer_store_dword v2, off, s[4:7], 0 offset:64 sc1")
        a.label("C_skip")
    a.e("s_branch M_go")
    a.label("M_worker")
    census_wait(a, "M_cw")
    a.e("s_mov_b32 s79, s80")
    a.e("s_cmp_lt_u32 s3, 2"); a.e("s_cselect_b32 s25, 32, 0"); a.e("s_sub_u32 s79, s79, s25")
    for x in range(7):
        if x < 2: a.e(f"s_max_u32 s25, s{84+x}, 32"); a.e("s_sub_u32 s25, s25, 32")
        else: a.e(f"s_mov_b32 s25, s{84+x}")
        a.e(f"s_cmp_gt_u32 s3, {x}"); a.e("s_cselect_b32 s25, s25, 0"); a.e("s_add_u32 s79, s79, s25")
    a.e("s_min_u32 s25, s84, 32"); a.e("s_sub_u32 s27, 32, s25"); a.e("s_min_u32 s26, s85, 32"); a.e("s_sub_u32 s28, 32, s26")
    a.e("s_cmp_lt_u32 s79, s27"); a.e("s_cbranch_scc0 M_n0")
    a.e("s_add_u32 s26, s25, s79"); a.e("s_mov_b32 s25, 0"); a.e("s_mov_b32 s81, 0"); a.e("s_branch M_chain")
    a.label("M_n0"); a.e("s_sub_u32 s79, s79, s27")
    a.e("s_cmp_lt_u32 s79, s28"); a.e("s_cbranch_scc0 M_n1")
    a.e("s_add_u32 s26, s26, s79"); a.e("s_mov_b32 s25, 1"); a.e("s_mov_b32 s81, 0"); a.e("s_branch M_chain")
    a.label("M_n1"); a.e("s_sub_u32 s79, s79, s28")
    a.e("s_mov_b32 s81, 0")
    a.label("M_go")
    if proftask: a.e(f"s_lshl_b32 s98, s79, {9 if proftask != 2 else 10}"); a.e(f"s_add_u32 s98, s98, {WS_PROF+65536}")
    worker(a, "W_table", maxlen, census_wait)
    a.e("s_branch L_fin")
    a.label("M_chain")
    a.e(f"s_mov_b32 s47, {(flip or 0)*8192}")
    if prof or proftask:
        a.e("s_mov_b32 s56, s8"); a.e("s_mov_b32 s57, s9"); a.e("s_mov_b32 s58, 0x10000000"); a.e("s_mov_b32 s59, 0x20000")
    if nochain: a.e("s_branch L_fin")
    if prof or proftask:
        a.e("s_lshl_b32 s39, s25, 5"); a.e("s_add_u32 s39, s39, s26"); a.e("s_lshl_b32 s39, s39, 2"); a.e("s_add_u32 s39, s39, s24"); a.e("s_lshl_b32 s39, s39, 6"); a.e(f"s_add_u32 s39, s39, {WS_PROF}")
    a.e("s_cmp_ge_u32 s26, 16"); a.e("s_cbranch_scc1 M_vo")
    a.e("s_lshl_b32 s27, s25, 4"); a.e("s_add_u32 s27, s27, s26")
    chain.ARRIVE[0] = arrive
    chain.qk_role(a, prof=prof, cw=census_wait, **qk)
    a.e("s_branch L_cfin")
    a.label("M_vo")
    a.e("s_sub_u32 s26, s26, 16"); a.e("s_lshl_b32 s27, s25, 4"); a.e("s_add_u32 s27, s27, s26")
    chain.vo_role(a, prof=prof, cw=census_wait, **vo)
    a.label("L_cfin")
    if prof or proftask:
        a.e("""
s_memrealtime s[80:81]
s_waitcnt lgkmcnt(0)
s_mov_b64 exec, 1
v_mov_b32 v2, s39
v_mov_b32 v4, s96
v_mov_b32 v5, s98
v_mov_b32 v6, s80
v_mov_b32 v7, s83
buffer_store_dwordx4 v[4:7], v2, s[56:59], 0 offen offset:32
s_waitcnt vmcnt(0)
""")
    a.label("L_abort")
    a.label("L_fin")
    a.label("L_end")
    a.e("s_endpgm")
    a.e(".p2align 2")
    a.label("W_table")
    for l in lists:
        a.e(".long " + ",".join(str(w) for w in l + [0]*(maxlen-len(l))))
    txt = a.text()
    if proftask == 2:
        pt = "s_memtime s[100:101]\n  s_waitcnt lgkmcnt(0)\n  v_mov_b32 v2, s78\n  v_mov_b32 v3, s100\n  v_mov_b32 v4, s90\n v_mov_b32 v5, s92\n v_mov_b32 v6, s94\n v_mov_b32 v7, s96\n v_mov_b32 v8, s98\n  s_mov_b64 exec, 1\n  buffer_store_dwordx4 v[2:5], v8, s[8:11], 0 offen\n buffer_store_dwordx2 v[6:7], v8, s[8:11], 0 offen offset:16\n  s_mov_b64 exec, -1\n  s_add_u32 s98, s98, 32"
        txt = txt.replace("PROFTASK", pt)
    pt = "s_memrealtime s[100:101]\n  s_waitcnt lgkmcnt(0)\n  v_mov_b32 v2, s78\n  v_mov_b32 v3, s100\n  v_mov_b32 v4, s98\n  s_mov_b64 exec, 1\n  buffer_store_dwordx2 v[2:3], v4, s[8:11], 0 offen\n  s_mov_b64 exec, -1\n  s_add_u32 s98, s98, 8" if proftask else "s_nop 0"
    txt = txt.replace("PROFTASK", pt)
    txt = txt.replace("WLOADED", "s_memrealtime s[100:101]\n  s_waitcnt lgkmcnt(0)\n v_mov_b32 v2, s100\n v_mov_b32 v3, s39\n s_mov_b64 exec, 1\n buffer_store_dword v2, v3, s[56:59], 0 offen offset:48\n s_mov_b64 exec, -1" if (prof or proftask) else "s_nop 0")
    txt = txt.replace("LOOPSTART", "s_memrealtime s[98:99]\n  s_waitcnt lgkmcnt(0)" if (prof or proftask) else "s_nop 0")
    return txt
WS_PROF = 200*MB
def _sub(f):
    b = Asm(); f(b); return b.L

HEADER = open("concat_heads__memory_aug_recurrent_mem_tr__sliding_block__prompt.s.ref").read().split("; Override")[0] if __name__ == "__main__" else ""
def full(body, name=NAME, header=""):
    return f"""{header}; @launch grid=(256,1,1) block=(256,1,1) lds=163840
.amdgcn_target "amdgcn-amd-amdhsa--gfx950"
.text
.globl {name}
.p2align 8
.type {name},@function
{name}:
{body}
.section .rodata,"a"
.p2align 6
.amdhsa_kernel {name}
  .amdhsa_next_free_vgpr 512
  .amdhsa_next_free_sgpr 102
  .amdhsa_accum_offset 256
  .amdhsa_group_segment_fixed_size 0
  .amdhsa_kernarg_size 104
  .amdhsa_user_sgpr_count 2
  .amdhsa_user_sgpr_kernarg_segment_ptr 1
  .amdhsa_system_sgpr_workgroup_id_x 1
  .amdhsa_float_denorm_mode_32 3
.end_amdhsa_kernel
"""
if __name__ == "__main__":
    txt = full(build(), header=HEADER)
    open("concat_heads__memory_aug_recurrent_mem_tr__sliding_block__prompt.s", "w").write(txt)
    print(len(txt))
```

```python
import math
from asmlib import *
from layout import *

SM64 = "v_smfmac_f32_16x16x64_bf16"
SM32 = "v_smfmac_f32_16x16x32_bf16"
CEXP = 192**-0.5 * math.log2(math.e)
import struct
def fbits(x): return struct.unpack("<I", struct.pack("<f", x))[0]


def load_weights(a, chunks, tmp):
    n = len(chunks)
    issued = 0
    cnt_after = []
    def can_issue(k, nxt):
        c = chunks[nxt]
        for q in range(k, nxt):
            d = chunks[q]
            if c['off'] < d['off'] + d['size'] and d['off'] < c['off'] + c['size']: return False
        for q in range(0, k):
            d = chunks[q]
            if d['res'] and c['off'] < d['off'] + d['size'] and d['off'] < c['off'] + c['size']: raise Exception("overlap resident")
        out = sum(len(chunks[q]['dma']) for q in range(k, nxt+1))
        return out <= WMAX[0]
    def issue_some(k):
        nonlocal issued
        while issued < n and can_issue(k, issued):
            for it in chunks[issued]['dma']: a.e("\n".join(it))
            issued += 1
    issue_some(0)
    first = issued
    extra = 0
    if tmp and ARRIVE[0]:
        lab = a.newlabel("C_in")
        a.e("s_cmp_eq_u32 s81, 0"); a.e(f"s_cbranch_scc1 {lab}x")
        INIT[0](a, lab)
        a.label(lab + "x")
    for k in range(n):
        c = chunks[k]
        after = sum(len(chunks[q]['dma']) for q in range(k+1, issued))
        if tmp and ARRIVE[0] and k < first:
            lab = a.newlabel("C_w")
            a.e("s_cmp_eq_u32 s81, 0"); a.e(f"s_cbranch_scc1 {lab}a")
            a.e(f"s_waitcnt vmcnt({after + 4})"); a.e(f"s_branch {lab}b")
            a.label(lab + "a"); a.e(f"s_waitcnt vmcnt({after})"); a.label(lab + "b")
        else:
            a.e(f"s_waitcnt vmcnt({after})")
        a.e("s_barrier")
        if k in (0, 6, 13): a.e(f"WSTAMP{(0, 6, 13).index(k)}")
        if k == first and ARRIVE[0] and tmp:
            lab = a.newlabel("C_ar")
            a.e("s_cmp_eq_u32 s81, 0"); a.e(f"s_cbranch_scc1 {lab}x")
            ARRIVE[0](a, lab)
            a.label(lab + "x")
        issue_some(k)
        if tmp and k == n - 6 and TLBW[0]:
            a.e(f"v_lshlrev_b32 v56, {TLBW[0]}, v1"); a.e(f"s_lshl_b32 s30, s24, {TLBW[0]+6}")
            a.e("buffer_load_dword v57, v56, s[8:11], s30 offen")
        if tmp and k == n - 2:
            a.e("v_min_u32 v59, 9, v1"); a.e("v_and_b32 v58, 1, v59"); a.e("v_lshlrev_b32 v58, 7, v58"); a.e("v_lshl_add_u32 v58, v59, 2, v58")
            a.e("v_cmp_eq_u32 vcc, 9, v59"); a.e("v_mov_b32 v57, 64"); a.e("s_nop 0"); a.e("v_cndmask_b32 v59, v58, v57, vcc")
            a.e("buffer_load_dword v58, v59, s[4:7], 0 offen sc1")
        for ins in c['pre']: a.e(ins)
        for i, ins in enumerate(c['tr']):
            a.e(ins)
            if i % 12 == 11: a.e("s_waitcnt lgkmcnt(4)")
        a.e("s_waitcnt lgkmcnt(0)")
        if c['res']:
            a.e("s_barrier")
            for ins in c['res']: a.e(ins)
            a.e("s_waitcnt lgkmcnt(0)")
    a.e("s_barrier")

def census_check(a):
    lab = a.newlabel("C_cw")
    a.e(f"s_branch {lab}c")
    a.label(lab)
    a.e("s_sleep 4")
    a.e("buffer_load_dword v58, v59, s[4:7], 0 offen sc1")
    a.e("s_sub_u32 s82, s82, 1"); a.e("s_cbranch_scc1 L_abort")
    a.label(lab + "c")
    a.e("s_waitcnt vmcnt(0)")
    for i in range(10): a.e(f"v_readlane_b32 s{84+i}, v58, {i}")
    a.e("s_cmp_lg_u32 s92, 256"); a.e(f"s_cbranch_scc1 {lab}")
    a.e("s_min_u32 s81, s84, s85")
    if CAL[0]:
        a.e("s_and_b32 s30, s84, s85")
        for r in range(86, 92): a.e(f"s_and_b32 s30, s30, s{r}")
        a.e("s_cmp_lg_u32 s30, 32"); a.e(f"s_cbranch_scc1 {lab}d")
        a.e("s_cmp_eq_u32 s93, 0"); a.e(f"s_cbranch_scc1 {lab}")
        a.e("s_and_b32 s47, s93, 0x2000")
        a.label(lab + "d")

def common_consts(a, vIdx, vSB, vStW, vH2, vMk, MEMIMG):
    a.e("v_and_b32 v2, 8, v1")
    a.e("v_cmp_eq_u32 vcc, 0, v2")
    a.e("v_mov_b32 v3, 0xeeee")
    a.e("v_mov_b32 v4, 0x4444")
    a.e(f"v_cndmask_b32 v{vIdx}, v3, v4, vcc")
    a.e("v_and_b32 v2, 1, v1")
    a.e("v_cmp_eq_u32 vcc, 0, v2")
    a.e("s_nop 1")
    a.e("v_cndmask_b32 v2, v3, v4, vcc")
    a.e(f"v_lshl_or_b32 v{vIdx}, v2, 16, v{vIdx}")
    a.e("v_lshrrev_b32 v2, 5, v1")
    a.e("v_bfe_u32 v3, v1, 3, 1")
    a.e("v_cmp_eq_u32 s[30:31], v2, v3")
    a.e("v_and_b32 v2, 1, v1")
    a.e("v_lshlrev_b32 v2, 4, v2")
    a.e("v_mov_b32 v3, 0x3f80")
    a.e("v_lshlrev_b32 v3, v2, v3")
    a.e("v_bfe_u32 v4, v1, 1, 2")
    for q in range(4):
        a.e(f"v_cmp_eq_u32 vcc, {q}, v4")
        a.e("s_and_b64 vcc, vcc, s[30:31]")
        a.e(f"v_cndmask_b32 v{vSB+q}, 0, v3, vcc")
    a.e("v_lshrrev_b32 v2, 4, v1")
    a.e("s_mul_i32 s30, s24, 20")
    a.e("v_add_u32 v2, s30, v2")
    a.e("v_lshlrev_b32 v2, 7, v2")
    a.e("v_and_b32 v3, 7, v1")
    a.e("v_lshl_add_u32 v2, v3, 4, v2")
    a.e("v_bfe_u32 v3, v1, 3, 1")
    a.e("v_lshl_add_u32 v2, v3, 3, v2")
    a.e(f"v_add_u32 v{vStW}, {MEMIMG}, v2")
    a.e("v_bfe_u32 v2, v1, 4, 1")
    a.e("v_lshlrev_b32 v2, 12, v2")
    a.e("v_bfe_u32 v3, v1, 2, 2")
    a.e("v_lshl_add_u32 v2, v3, 7, v2")
    a.e("v_lshrrev_b32 v3, 5, v1")
    a.e("v_lshl_add_u32 v2, v3, 6, v2")
    a.e("v_and_b32 v3, 3, v1")
    a.e(f"v_lshl_add_u32 v{vH2}, v3, 4, v2")
    a.e("v_and_b32 v2, 15, v1")
    a.e(f"v_mul_u32_u24 v{vMk}, {MKS[0]}, v2")
    if MKE[0] and not MKG[0]:
        a.e("v_and_b32 v2, 3, v1"); a.e("v_lshrrev_b32 v3, 2, v1"); a.e(f"v_mul_u32_u24 v3, {MKS[0]}, v3"); a.e(f"v_lshl_add_u32 v{vMk}, v2, 2, v3")
    for k in range(5):
        a.e(f"s_mul_i32 s30, s24, 5")
        a.e(f"s_add_u32 s30, s30, {k}")
        a.e(f"s_lshr_b32 s31, s30, 3")
        a.e(f"s_lshl_b32 s31, s31, 14")
        a.e(f"s_and_b32 s30, s30, 7")
        a.e(f"s_lshl_b32 s30, s30, 9")
        a.e(f"s_add_u32 s{40+k}, s30, s31")
    a.e(f"s_mul_i32 s46, s25, {LOC_STRIDE}")
    a.e(f"s_add_u32 s46, s46, {WS_LOC}")
    a.e(f"s_add_u32 s45, s46, {LOC_MK}")
    if MKG[0]:
        a.e("s_mov_b32 s45, s47")
        if MKE[0]: a.e("v_lshrrev_b32 v2, 1, v1"); a.e("v_and_b32 v3, 1, v1"); a.e("v_lshlrev_b32 v3, 6, v3"); a.e(f"v_lshl_add_u32 v{vMk}, v2, 7, v3")
        else: a.e("v_and_b32 v2, 31, v1"); a.e(f"v_lshlrev_b32 v{vMk}, 7, v2")

def h2_base(a, dst, stepreg_plus):
    a.e(f"s_add_u32 s30, s28, 1")
    a.e(f"s_lshl_b32 {dst}, s30, 16")
    a.e(f"s_lshl_b32 s30, s30, 8")
    a.e(f"s_and_b32 s30, s30, 0x2000")
    a.e(f"s_xor_b32 s30, s30, s47")
    a.e(f"s_add_u32 {dst}, {dst}, s30")

def stage_mem0(a, MEMIMG, tmp, part):
    if part == 0:
        for i in range(3):
            a.e(f"v_add_u32 v2, {256*i}, v0")
            a.e("v_min_u32 v2, 639, v2")
            a.e("v_and_b32 v3, 7, v2")
            a.e("v_mul_u32_u24 v3, 1280, v3")
            a.e("v_lshrrev_b32 v4, 3, v2")
            a.e("v_lshl_add_u32 v3, v4, 4, v3")
            a.e(f"buffer_load_dwordx4 {vr(tmp+4*i,4)}, v3, s[20:23], 0 offen")
            a.e(f"v_lshlrev_b32 v{tmp+12+i}, 4, v2")
        return
    a.e("s_waitcnt vmcnt(0)")
    for i in range(3):
        a.e(f"v_add_u32 v{tmp+12+i}, {MEMIMG}, v{tmp+12+i}")
        a.e(f"ds_write_b128 v{tmp+12+i}, {vr(tmp+4*i,4)}")
    a.e("s_waitcnt lgkmcnt(0)")

PSEL = [0]
TLBW = [0]
MKG = [0]
QARCH = [1]
ARRIVE = [None]
INIT = [None]
WPOL = ['']
WMAX = [36]
CAL = [1]
HINT = [0]
MKPOST = [0]
MKE = [0]
MK1 = [1]
MKA = [0]
TSR = [0]
MKGAP = [24]
STEPLOG = [0]
MKS = [128]
def ts(a, prof, idx, sel=0):
    if prof and (sel == PSEL[0] or idx in (0, 5, 6)): a.e(f"{'s_memrealtime' if TSR[0] else 's_memtime'} s[{60+2*idx}:{61+2*idx}]")

def h2_stage(a, lab, PD, D0, D1, vSB, vStW, vH2, vMk, tmpv, presleep, prof, after=None, nafter=0, nobar=False, pollw=2, after2=None, nafter2=0, fused=None):
    h2_base(a, "s53", None)
    for k in range(5): a.e(f"s_add_u32 s{48+k}, s53, s{40+k}")
    a.e("s_add_u32 s30, s28, 1")
    if MKA[0]: a.e("s_lshl_b32 s30, s30, 4")
    if MK1[0]:
        a.e(f"s_cmp_lg_u32 s24, {pollw}"); a.e(f"s_cbranch_scc1 {lab}_mkb")
    for i in range(presleep): a.e("s_sleep 1")
    if not MKE[0]: a.e(f"s_mov_b64 exec, {1 if MKA[0] else 0xffff}" if not MKG[0] else "s_mov_b32 exec_hi, 0")
    mk = (lambda r: f"buffer_load_dword v{r}, off, s[8:11], s45 sc1") if MKA[0] else (lambda r: f"buffer_load_dword v{r}, v{vMk}, s[8:11], s45 offen sc1")
    a.e(mk(tmpv))
    a.nop(MKGAP[0])
    a.label(f"{lab}_mk")
    a.e(mk(tmpv+1))
    a.e("s_waitcnt vmcnt(1)")
    a.e(f"v_cmp_gt_i32 vcc, s30, v{tmpv}")
    a.e(f"s_cbranch_vccz {lab}_mkok")
    a.e(mk(tmpv))
    a.e("s_sub_u32 s82, s82, 1"); a.e("s_cbranch_scc1 L_abort")
    a.e("s_waitcnt vmcnt(1)")
    a.e(f"v_cmp_gt_i32 vcc, s30, v{tmpv+1}")
    a.e(f"s_cbranch_vccnz {lab}_mk")
    a.label(f"{lab}_mkok")
    a.e("s_mov_b64 exec, -1")
    a.nop(MKPOST[0])
    if MK1[0] and not after2:
        a.label(f"{lab}_mkb")
        a.e("s_barrier")
    tmpv = tmpv + 2
    ts(a, prof, 5)
    def body(extra, aft, again):
        for k in range(5):
            a.e(f"buffer_load_dwordx4 {vr(PD+4*k,4)}, v{vH2}, s[8:11], s{48+k} offen sc1")
        if aft: aft()
        for k in range(5):
            a.e(f"s_waitcnt vmcnt({4-k+extra})")
            if again.endswith("r") and aft is after: ts(a, prof, [1,2,3,4,7][k], 1)
            r = PD+4*k
            if k == 0: a.e(f"v_max3_u32 v{tmpv}, v{r}, v{r+1}, v{r+2}"); a.e(f"v_max_u32 v{tmpv}, v{tmpv}, v{r+3}")
            else: a.e(f"v_max3_u32 v{tmpv}, v{r}, v{r+1}, v{tmpv}"); a.e(f"v_max3_u32 v{tmpv}, v{r+2}, v{r+3}, v{tmpv}")
            a.e(f"v_mfma_f32_16x16x32_bf16 {vr(r,4)}, {vr(r,4)}, {vr(vSB,4)}, 0")
            if k >= 3:
                q = PD+4*(k-3)
                a.e(f"v_cvt_pk_bf16_f32 v{q}, v{q}, v{q+1}")
                a.e(f"v_cvt_pk_bf16_f32 v{q+1}, v{q+2}, v{q+3}")
                a.e(f"ds_write_b64 v{vStW}, {vr(q,2)} offset:{512*(k-3)}")
        a.e(f"v_cmp_eq_u32 vcc, -1, v{tmpv}")
        for k in (2, 3, 4):
            q = PD+4*k
            if k == 4: a.nop(1)
            a.e(f"v_cvt_pk_bf16_f32 v{q}, v{q}, v{q+1}")
            a.e(f"v_cvt_pk_bf16_f32 v{q+1}, v{q+2}, v{q+3}")
            a.e(f"ds_write_b64 v{vStW}, {vr(q,2)} offset:{512*k}")
        a.e(again)
    if fused:
        def issue(aft):
            for k in range(5):
                a.e(f"buffer_load_dwordx4 {vr(PD+4*k,4)}, v{vH2}, s[8:11], s{48+k} offen sc1")
            aft()
        if after2:
            a.e("s_barrier")
            issue(after2)
            a.e(f"s_branch {lab}_fz{pollw}")
            a.label(f"{lab}_mkb")
            a.e("s_barrier")
            ts(a, prof, 5)
        issue(after)
        def retry():
            a.label(f"{lab}_h2r0")
            fused()
            a.label(f"{lab}_h2r")
            if prof: a.e("s_add_u32 s83, s83, 1")
            body(0, lambda: (a.e("s_sub_u32 s82, s82, 1"), a.e("s_cbranch_scc1 L_abort")), f"s_cbranch_vccnz {lab}_h2r")
            a.e(f"s_branch {lab}_loop")
        return retry
    if after2:
        a.e("s_barrier")
        body(nafter2, after2, f"s_cbranch_vccnz {lab}_h2r")
        a.e(f"s_branch {lab}_h2done")
        a.label(f"{lab}_mkb")
        a.e("s_barrier")
        ts(a, prof, 5)
    body(nafter, after, f"s_cbranch_vccnz {lab}_h2r")
    a.label(f"{lab}_h2done")
    if not nobar:
        a.e("s_waitcnt lgkmcnt(0)")
        a.e("s_barrier")
    def retry():
        a.label(f"{lab}_h2r")
        if prof: a.e("s_add_u32 s83, s83, 1")
        body(0, lambda: (a.e("s_sub_u32 s82, s82, 1"), a.e("s_cbranch_scc1 L_abort")), f"s_cbranch_vccnz {lab}_h2r")
        a.e(f"s_branch {lab}_h2done")
    return retry

def prof_dump(a, prof, lab):
    if not prof: return
    a.e(f"s_cmp_lg_u32 s28, {prof}")
    a.e(f"s_cbranch_scc1 {lab}_nodump")
    a.e("s_waitcnt lgkmcnt(0)")
    a.e("s_mov_b64 exec, 1")
    a.e("v_mov_b32 v2, s39")
    for i in range(8):
        a.e(f"v_mov_b32 v3, s{60+2*i}")
        a.e(f"buffer_store_dword v3, v2, s[56:59], 0 offen offset:{4*i}")
        a.e("s_nop 1")
    a.e("s_mov_b64 exec, -1")
    a.label(f"{lab}_nodump")

def qk_role(a, slow=False, cw=None, pre="QK", prof=0, mk_sleep=10, nsteps=64, upf=0, pfpol='', pfpos=(1,7), x_yc=1, x_km=1, x_kx=1, hk_sleep=6, BARP=3, qh_nop=24, fuse=1, qa=(22, 46)):
    LST = "sc1" if slow else ""
    MEMIMG = 98304; SCR = 108544
    vIdx, vMask, vI, vSB = 8, 9, 10, 12
    vArd, vStW, vH2, vMk, vKx32, vKx16, vScW0, vScW1, vScWm, vScR, vScRm, vPx, vPm, vKmA, vKmB, vL16 = range(16, 32)
    RING = 32; TMP = 48; ACC = 60; KX = 72; BST = 84
    WV = 132
    TMP = 48; ACC = 56; KX = 68; BST = 80; WV = 128
    def wreg(o): return ar(8*o, 8) if o < 32 else vr(WV + 8*(o-32), 8)
    def wsub(o, k): return ar(8*o+k, 2) if o < 32 else vr(WV + 8*(o-32)+k, 2)
    a.e("v_and_b32 v1, 63, v0")
    a.e("s_load_dwordx4 s[32:35], s[0:1], 16")
    a.e("s_load_dwordx2 s[20:21], s[0:1], 8")
    a.e("s_waitcnt lgkmcnt(0)")
    a.e("s_cmp_lt_u32 s24, 2")
    a.e("s_cselect_b32 s12, s32, s34")
    a.e("s_cselect_b32 s13, s33, s35")
    a.e("s_mov_b32 s14, 7864320")
    a.e("s_mov_b32 s15, 0x20000")
    a.e("s_mov_b32 s22, 10240")
    a.e("s_mov_b32 s23, 0x20000")
    DV = 40
    for i in range(6):
        a.e("s_and_b32 s30, s24, 1")
        a.e("s_mul_i32 s30, s30, 384")
        a.e(f"s_add_u32 s30, s30, {64*i}")
        a.e("v_add_u32 v2, s30, v1")
        a.e("v_mul_u32_u24 v3, 2731, v2")
        a.e("v_lshrrev_b32 v3, 16, v3")
        a.e("v_mul_u32_u24 v4, 24, v3")
        a.e("v_sub_u32 v4, v2, v4")
        a.e("v_mul_u32_u24 v3, 12288, v3")
        a.e(f"v_lshl_add_u32 v{DV+i}, v4, 4, v3")
    a.e("v_bfe_u32 v2, v1, 3, 1")
    a.e("v_mul_u32_u24 v2, 12288, v2")
    a.e("v_lshrrev_b32 v3, 4, v1")
    a.e("v_lshlrev_b32 v3, 2, v3")
    a.e("v_bfe_u32 v4, v1, 2, 1")
    a.e("v_add_u32 v3, v3, v4")
    a.e("v_mul_u32_u24 v3, 384, v3")
    a.e("v_add_u32 v2, v2, v3")
    a.e("s_mul_i32 s30, s24, 48")
    a.e("s_and_b32 s31, s24, 1")
    a.e("s_lshl_b32 s32, s31, 4")
    a.e("s_add_u32 s32, s32, s30")
    a.e("s_xor_b32 s31, s31, 1")
    a.e("s_lshl_b32 s33, s31, 5")
    a.e("s_add_u32 s33, s33, s30")
    a.e("v_bfe_u32 v3, v1, 1, 1")
    a.e("v_and_b32 v4, 1, v1")
    a.e("v_lshlrev_b32 v3, 4, v3")
    a.e("v_lshl_add_u32 v3, v4, 2, v3")
    a.e("v_add_u32 v3, s32, v3")
    a.e(f"v_lshl_add_u32 v{DV+6}, v3, 1, v2")
    a.e(f"v_add_u32 v{DV+7}, 16, v{DV+6}")
    a.e("v_and_b32 v3, 3, v1")
    a.e("v_lshlrev_b32 v3, 2, v3")
    a.e("v_add_u32 v3, s33, v3")
    a.e(f"v_lshl_add_u32 v{DV+8}, v3, 1, v2")
    a.e(f"v_lshlrev_b32 v{vL16}, 4, v1")
    a.e("s_mul_i32 s34, s27, 384")
    a.e("s_mul_i32 s35, s24, 6144")
    a.e(f"v_add_u32 v{DV+12}, s35, v{vL16}")
    chunks = []
    korder = [k for k in range(20) if k % 5 != 4] + [4, 9, 14, 19]
    def opi(k, t): return 3*(k - k//5) + t
    for ci, k in enumerate(korder):
        off = ((ci+2) % 6)*24576
        dma = []
        for i in range(6):
            p = []
            if i == 0:
                p += [f"s_add_u32 m0, s35, {off}", f"s_add_u32 s36, s34, {k*32*12288}"]
            else:
                p += ["s_add_u32 m0, m0, 1024", "s_nop 0"]
            dma.append(p + [f"buffer_load_dwordx4 v{DV+i}, s[12:15], s36 offen {WPOL[0]} lds"])
        prel = [f"v_add_u32 v{DV+9+t}, {off}, v{DV+6+t}" for t in range(3)]
        tr = []
        for t in range(3):
            for H in range(2):
                for p in range(2):
                    dst = wsub(opi(k, t), 4*H+2*p) if ci < 16 else vr(BST + 8*t + 4*H + 2*p, 2)
                    tr.append(f"ds_read_b64_tr_b16 {dst}, v{DV+9+t} offset:{(16*H+2*p)*384}")
        res = None
        if ci >= 16:
            res = [f"v_add_u32 v2, {off}, v{DV+12}"] + [f"ds_write_b128 v2, {vr(BST+4*q,4)} offset:{1024*q}" for q in range(6)]
        chunks.append(dict(off=off, size=24576, dma=dma, pre=prel, tr=tr, res=res))
    load_weights(a, chunks, cw)
    a.e("WLOADED")
    if cw: census_check(a)
    stage_mem0(a, MEMIMG, RING, 0)
    common_consts(a, vIdx, vSB, vStW, vH2, vMk, MEMIMG)
    a.e("v_lshrrev_b32 v2, 4, v1")
    a.e("v_bfe_u32 v3, v1, 2, 2")
    a.e("v_cmp_eq_u32 s[30:31], v2, v3")
    a.e("v_and_b32 v2, 1, v1")
    a.e("v_lshlrev_b32 v2, 4, v2")
    a.e("v_mov_b32 v3, 0x3f80")
    a.e("v_lshlrev_b32 v3, v2, v3")
    a.e("v_bfe_u32 v4, v1, 1, 1")
    for q in range(2):
        a.e(f"v_cmp_eq_u32 vcc, {q}, v4")
        a.e("s_and_b64 vcc, vcc, s[30:31]")
        a.e(f"v_cndmask_b32 v{vI+q}, 0, v3, vcc")
    a.e(f"v_mov_b32 v{vMask}, 0x7fff7fff")
    a.e("v_lshrrev_b32 v2, 4, v1")
    a.e("v_and_b32 v3, 7, v1")
    a.e("v_lshlrev_b32 v2, 7, v2")
    a.e("v_lshl_add_u32 v2, v3, 4, v2")
    a.e(f"v_add_u32 v{vArd}, {MEMIMG}, v2")
    a.e("v_bfe_u32 v2, v1, 2, 1"); a.e("v_lshlrev_b32 v2, 2, v2")
    a.e("v_bfe_u32 v3, v1, 3, 1"); a.e("v_lshl_add_u32 v2, v3, 1, v2")
    a.e("v_and_b32 v3, 1, v1"); a.e("v_add_u32 v2, v2, v3")
    a.e("v_bfe_u32 v3, v1, 1, 1"); a.e("v_lshl_add_u32 v2, v3, 3, v2")
    a.e("v_bfe_u32 v3, v1, 4, 1"); a.e("v_lshl_add_u32 v2, v3, 5, v2")
    a.e("v_lshlrev_b32 v2, 4, v2")
    a.e("v_lshrrev_b32 v3, 5, v1")
    a.e("s_lshl_b32 s30, s32, 6")
    a.e("s_lshl_b32 s31, s33, 6")
    a.e("v_lshl_add_u32 v4, v3, 10, v2"); a.e(f"v_add_u32 v{vKx32}, s30, v4")
    a.e("v_lshl_add_u32 v4, v3, 3, v2"); a.e(f"v_add_u32 v{vKx16}, s31, v4")
    a.e("v_and_b32 v2, 7, v1"); a.e("v_lshlrev_b32 v2, 4, v2")
    a.e("v_lshrrev_b32 v3, 4, v1"); a.e("v_lshl_add_u32 v4, v3, 7, v2")
    a.e("s_lshl_b32 s30, s32, 4"); a.e(f"v_add_u32 v{vKmA}, s30, v4")
    a.e("v_bfe_u32 v3, v1, 4, 1"); a.e("v_lshl_add_u32 v4, v3, 7, v2")
    a.e("v_lshrrev_b32 v3, 5, v1"); a.e("v_lshl_add_u32 v4, v3, 3, v4")
    a.e("s_lshl_b32 s30, s33, 4"); a.e(f"v_add_u32 v{vKmB}, s30, v4")
    a.e("s_mul_i32 s30, s24, 1536"); a.e(f"s_add_u32 s30, s30, {SCR}")
    a.e("v_and_b32 v2, 7, v1"); a.e("v_lshrrev_b32 v3, 4, v1")
    a.e("v_xor_b32 v4, v3, v2"); a.e("v_lshl_add_u32 v4, v2, 3, v4"); a.e("v_lshlrev_b32 v4, 4, v4")
    a.e(f"v_add_u32 v{vScW0}, s30, v4"); a.e(f"v_xor_b32 v4, 64, v4"); a.e(f"v_add_u32 v{vScW1}, s30, v4")
    a.e("v_bfe_u32 v3, v1, 4, 1"); a.e("v_lshl_add_u32 v4, v2, 1, v3")
    a.e("v_lshrrev_b32 v3, 5, v1"); a.e("v_xor_b32 v3, 1, v3"); a.e("v_lshl_add_u32 v4, v3, 4, v4")
    a.e("v_lshlrev_b32 v4, 4, v4"); a.e("v_add_u32 v4, 1024, v4"); a.e(f"v_add_u32 v{vScWm}, s30, v4")
    a.e("v_lshrrev_b32 v2, 4, v1"); a.e("v_bfe_u32 v3, v1, 2, 1"); a.e("v_lshl_add_u32 v2, v2, 1, v3")
    a.e("v_bfe_u32 v5, v1, 3, 1"); a.e("v_and_b32 v3, 3, v1"); a.e("v_lshl_add_u32 v3, v5, 2, v3"); a.e("v_xor_b32 v3, v3, v2"); a.e("v_lshl_add_u32 v3, v2, 3, v3")
    a.e("v_lshlrev_b32 v3, 4, v3"); a.e(f"v_add_u32 v{vScR}, {SCR}, v3")
    a.e("v_bfe_u32 v4, v1, 1, 1"); a.e("v_and_b32 v3, 1, v1"); a.e("v_lshl_add_u32 v3, v5, 1, v3"); a.e("v_lshl_add_u32 v3, v4, 2, v3"); a.e("v_lshl_add_u32 v3, v2, 3, v3")
    a.e("v_lshlrev_b32 v3, 2, v3"); a.e(f"v_add_u32 v{vScRm}, {SCR+1024}, v3")
    a.e(f"v_lshlrev_b32 v{vPx}, 3, v1")
    a.e("v_lshl_add_u32 v3, v5, 1, v4"); a.e("v_lshl_add_u32 v3, v2, 2, v3"); a.e("v_lshlrev_b32 v3, 2, v3"); a.e(f"v_add_u32 v{vPm}, 512, v3")
    a.e("s_mul_i32 s37, s26, 640"); a.e("s_add_u32 s37, s37, s46")
    a.e(f"s_mul_i32 s38, s27, 12288"); a.e(f"s_add_u32 s38, s38, {WS_K}")
    a.e(f"s_mul_i32 s54, s27, 3072"); a.e(f"s_add_u32 s54, s54, {WS_KM}")
    a.e(f"s_lshl_b32 s55, s27, 4"); a.e(f"s_add_u32 s55, s55, {WS_FLAGS+F_K}")
    a.e(f"s_lshl_b32 s34, s27, 7"); a.e(f"s_add_u32 s34, s34, {WS_FLAGS+F_KM}")
    a.e("s_lshl_b32 s84, s26, 7"); a.e("s_add_u32 s84, s84, s45"); a.e("s_add_u32 s84, s84, 2048")
    a.e("s_mov_b32 s28, 0"); a.e("s_mov_b32 s29, 0")
    a.e(f"s_mov_b32 s36, {fbits(CEXP)}")
    def kflag_wait(lab, stepexpr_reg):
        a.e(f"s_lshr_b32 s30, {stepexpr_reg}, 3")
        a.e("s_lshl_b32 s30, s30, 9"); a.e("s_add_u32 s30, s30, s55")
        a.e(f"v_and_b32 v3, 4, v{vPm}")
        a.label(lab)
        a.e(f"buffer_load_dword v2, v3, s[8:11], s30 offen sc1")
        a.e("s_sub_u32 s82, s82, 1"); a.e("s_cbranch_scc1 L_abort")
        a.e("s_waitcnt vmcnt(0)")
        a.e("v_cmp_eq_u32 vcc, 0, v2")
        a.e(f"s_cbranch_vccnz {lab}")
    def kx_loads():
        for t in range(2):
            a.e(f"buffer_load_dwordx4 {vr(KX+4*t,4)}, v{vKx32}, s[8:11], s38 offen offset:{256*t} sc1")
        for t in range(2):
            a.e(f"buffer_load_dwordx2 {vr(KX+8+2*t,2)}, v{vKx16}, s[8:11], s38 offen offset:{256*t} sc1")
        if x_kx: a.e(f"s_add_u32 s38, s38, {32*12288}")
    LR = [6, 7, TMP+6, TMP+7]
    for q in range(4):
        a.e(f"s_add_u32 s30, s24, {q}"); a.e("s_and_b32 s30, s30, 3"); a.e("s_mul_i32 s30, s30, 24576"); a.e("s_add_u32 s30, s30, s35")
        a.e(f"v_add_u32 v{LR[q]}, s30, v{vL16}")
    def lrd(q, st):
        return [f"ds_read_b128 {vr(BST+24*st+4*i,4)}, v{LR[q]} offset:{1024*i}" for i in range(6)]
    def idle_prep():
        for ins in lrd(0, 0) + lrd(1, 1): a.e(ins)
        for q in range(12): a.e(f"v_mov_b32 v{ACC+q}, 0")
    kflag_wait(f"{pre}_kf0", "s28")
    stage_mem0(a, MEMIMG, RING, 1)
    kx_loads()
    if upf:
        a.e(f"s_mul_i32 s85, s27, 40960"); a.e(f"s_add_u32 s85, s85, {WS_U + 32*40960}"); a.e("s_mul_i32 s30, s24, 10240"); a.e("s_add_u32 s85, s85, s30")
        if upf == 1:
            a.e(f"v_lshlrev_b32 v{vL16}, 7, v1"); a.e("v_lshrrev_b32 v4, 2, v1"); a.e("v_lshlrev_b32 v4, 7, v4"); a.e("v_add_u32 v4, 8192, v4")
        else:
            a.e("v_lshrrev_b32 v4, 2, v1"); a.e(f"v_lshlrev_b32 v{vL16}, 7, v4"); a.e("s_add_u32 s86, s85, 4096"); a.e("s_add_u32 s87, s85, 8192")
    if QARCH[0]:
        a.e("s_mul_i32 s30, s24, 2560"); a.e("s_mul_i32 s85, s26, 10240"); a.e("s_add_u32 s85, s85, s30"); a.e("s_add_u32 s85, s85, s46"); a.e(f"s_add_u32 s85, s85, {LOC_Y + 163840}")
        a.e("s_mul_i32 s87, s27, 10240"); a.e("s_add_u32 s87, s87, s30"); a.e(f"s_add_u32 s87, s87, {WS_YA}")
        a.e("s_add_u32 s86, s46, s30"); a.e(f"s_add_u32 s86, s86, {LOC_DUMMY}")
        a.e(f"s_mov_b32 s88, {(-163840) & 0xffffffff}")
    a.e("v_mov_b32 v0, 1")
    idle_prep()
    a.e("s_waitcnt lgkmcnt(0)")
    a.e("s_barrier")
    a.e("LOOPSTART")
    def emit_loop(pre, LST, prof):
        X = TMP; T = BST+24; XO = BST; S = BST+8
        def cv(d, s0): return f"v_cvt_pk_bf16_f32 v{d}, v{s0}, v{s0+1}"
        a.label(f"{pre}_loop")
        for w in range(3):
            a.e(f"s_cmp_eq_u32 s24, {w}"); a.e(f"s_cbranch_scc1 {pre}_s1w{w}")
        def s1_ctx(w):
            order = [(5*w + p) % 20 for p in range(20)]
            def bop(p, t):
                k = order[p]
                return wreg(opi(k, t)) if k % 5 != 4 else vr(BST + 24*((p//5) & 1) + 8*t, 8)
            def aread(p, r=None): return f"ds_read_b128 {vr(r if r is not None else RING+4*(p%4),4)}, v{vArd} offset:{512*order[p]}"
            def sm(p, t, r=None): return f"{SM64} {vr(ACC+4*t,4)}, {vr(r if r is not None else RING+4*(p%4),4)}, {bop(p, t)}, v{vIdx}"
            return order, aread, sm
        def head_std(w):
            order, aread, sm = s1_ctx(w)
            for p in range(3): a.e(aread(p))
            for p in range(5):
                a.e(f"s_waitcnt lgkmcnt({(2, 2, 2, 1, 2)[p]})")
                if p == 3: a.e("s_barrier")
                for t in range(3):
                    a.e(sm(p, t))
                    if (p, t) in ((0, 0), (1, 0)): a.e(aread(p+3))
                    if (p, t) == (3, 0): a.e(aread(5))
                    if (p, t) == (3, 1): a.e(aread(6))
                    if (p, t) == (4, 0): a.e(aread(7))
        def head_fused(w):
            order, aread, sm = s1_ctx(w)
            PD = RING; tv = 3
            def chk(k):
                r = PD+4*k
                a.e(f"s_waitcnt vmcnt({4-k})")
                if k in (0, 4): ts(a, prof, 1 if k == 0 else 7, 1)
                if k == 0: a.e(f"v_max3_u32 v{tv}, v{r}, v{r+1}, v{r+2}"); a.e(f"v_max_u32 v{tv}, v{tv}, v{r+3}")
                else: a.e(f"v_max3_u32 v{tv}, v{r}, v{r+1}, v{tv}"); a.e(f"v_max3_u32 v{tv}, v{r+2}, v{r+3}, v{tv}")
                a.e(f"v_mfma_f32_16x16x32_bf16 {vr(r,4)}, {vr(r,4)}, {vr(vSB,4)}, 0")
            def put(k):
                q = PD+4*k
                a.e(cv(q, q)); a.e(cv(q+1, q+2))
                a.e(f"ds_write_b64 v{vStW}, {vr(q,2)} offset:{512*k}")
                a.e(aread(k, q))
            chk(0); chk(1); chk(2)
            put(0)
            chk(3)
            put(1)
            chk(4)
            a.e(f"v_cmp_eq_u32 vcc, -1, v{tv}")
            put(2)
            a.e("s_waitcnt lgkmcnt(4)")
            a.e(sm(0, 0)); put(3); a.e(sm(0, 1)); a.e(sm(0, 2))
            put(4)
            a.e(f"s_cbranch_vccnz {pre}_h2r0")
            ts(a, prof, 0)
            a.e("s_waitcnt lgkmcnt(6)")
            for t in range(3): a.e(sm(1, t))
            a.e("s_waitcnt lgkmcnt(1)")
            a.e("s_barrier")
            a.e(sm(2, 0)); a.e(aread(5)); a.e(sm(2, 1)); a.e(sm(2, 2))
            a.e(sm(3, 0)); a.e(aread(6)); a.e(sm(3, 1)); a.e(sm(3, 2))
            a.e("s_waitcnt lgkmcnt(2)")
            a.e(sm(4, 0, PD+16)); a.e(aread(7)); a.e(sm(4, 1, PD+16)); a.e(sm(4, 2, PD+16))
            a.e(f"s_branch {pre}_s1t{w}")
        for w in (3, 0, 1, 2):
            a.label(f"{pre}_s1w{w}")
            ts(a, prof, 0)
            head_std(w)
            a.label(f"{pre}_s1t{w}")
            order, aread, sm = s1_ctx(w)
            lq = [("A", 5), ("A", 6), ("A", 7)]
            nextA = 8
            extra_q = []
            seq = [(p, t) for p in range(17) for t in range(3)] + [(p, t) for t in range(3) for p in (17, 18, 19)]
            for n, (p, t) in enumerate(seq):
                if n < 15: continue
                need = [("A", p)] + ([("L", p//5)] if p in (14, 19) else [])
                idx = [i for i, tg in enumerate(lq) if tg in need]
                if idx:
                    a.e(f"s_waitcnt lgkmcnt({len(lq)-1-max(idx)})"); lq = lq[max(idx)+1:]
                if (p, t) == (5, 0): extra_q = [(ins, ("L", 2)) for ins in lrd(2, 0)]
                if (p, t) == (10, 0): extra_q = [(ins, ("L", 3)) for ins in lrd(3, 1)]
                a.e(sm(p, t))
                if n < 51:
                    if nextA < 20 and nextA - 4 < p and t == 0:
                        a.e(aread(nextA)); lq.append(("A", nextA)); nextA += 1
                    elif extra_q:
                        ins, tag = extra_q.pop(0); a.e(ins); lq.append(tag)
                if QARCH[0]:
                    if n == qa[0]: a.e(f"buffer_load_dwordx4 v[2:5], v{vL16}, s[8:11], s85 offen sc1")
                    if n == qa[0]+3: a.e(f"buffer_load_dwordx4 {vr(TMP,4)}, v{vL16}, s[8:11], s85 offen offset:1024 sc1")
                    if n == qa[0]+6: a.e(f"buffer_load_dwordx2 {vr(TMP+4,2)}, v{vPx}, s[8:11], s85 offen offset:2048 sc1")
                    if n == qa[1]: a.e("s_waitcnt vmcnt(2)"); a.e(f"buffer_store_dwordx4 v[2:5], v{vL16}, s[8:11], s86 offen sc1")
                    if n == qa[1]+4: a.e("s_waitcnt vmcnt(2)"); a.e(f"buffer_store_dwordx4 {vr(TMP,4)}, v{vL16}, s[8:11], s86 offen offset:1024 sc1")
                    if n == qa[1]+8: a.e("s_waitcnt vmcnt(2)"); a.e(f"buffer_store_dwordx2 {vr(TMP+4,2)}, v{vPx}, s[8:11], s86 offen offset:2048 sc1")
                if n == 55:
                    a.e(cv(X, ACC)); a.e(cv(X+1, ACC+2))
                if n == 56:
                    a.e(f"v_mfma_f32_16x16x16_bf16 {vr(T,4)}, {vr(X,2)}, {vr(vI,2)}, 0")
                if n == 58:
                    a.e(cv(X+2, ACC+4)); a.e(cv(X+3, ACC+6))
            assert nextA == 20 and not extra_q
            if w != 2: a.e(f"s_branch {pre}_post")
        a.label(f"{pre}_post")
        ts(a, prof, 1)
        a.e(f"v_mfma_f32_16x16x16_bf16 {vr(T+4,4)}, {vr(X+2,2)}, {vr(vI,2)}, 0")
        a.e(cv(XO, T)); a.e(cv(XO+1, T+2))
        a.e(f"s_waitcnt vmcnt({3 if QARCH[0] else 0})")
        a.nop(1)
        a.e(cv(X+4, ACC+8)); a.e(cv(X+5, ACC+10))
        a.nop(2)
        a.e(f"v_mfma_f32_16x16x16_bf16 {vr(T+8,4)}, {vr(X+4,2)}, {vr(vI,2)}, 0")
        a.e(cv(XO+2, T+4)); a.e(cv(XO+3, T+6))
        a.nop(2)
        a.e(f"v_mfma_f32_16x16x32_bf16 {vr(S,4)}, {vr(KX,4)}, {vr(XO,4)}, 0")
        a.e(f"v_mfma_f32_16x16x32_bf16 {vr(S+4,4)}, {vr(KX+4,4)}, {vr(XO,4)}, 0")
        a.e(cv(XO+4, T+8)); a.e(cv(XO+5, T+10))
        a.e(f"v_mfma_f32_16x16x32_bf16 {vr(S+8,4)}, {vr(XO,4)}, {vr(XO,4)}, 0")
        a.e(f"v_mfma_f32_16x16x16_bf16 {vr(S,4)}, {vr(KX+8,2)}, {vr(XO+4,2)}, {vr(S,4)}")
        a.e(f"v_mfma_f32_16x16x16_bf16 {vr(S+4,4)}, {vr(KX+10,2)}, {vr(XO+4,2)}, {vr(S+4,4)}")
        a.e(f"v_mfma_f32_16x16x16_bf16 {vr(S+8,4)}, {vr(XO+4,2)}, {vr(XO+4,2)}, {vr(S+8,4)}")
        a.e("s_mov_b32 exec_lo, 0x00ff00ff"); a.e("s_mov_b32 exec_hi, 0x00ff00ff")
        a.e(f"ds_write_b128 v{vScW0}, {vr(S,4)}")
        a.nop(1)
        a.e(f"ds_write_b128 v{vScW1}, {vr(S+4,4)}")
        a.nop(3)
        a.e(f"ds_write_b128 v{vScWm}, {vr(S+8,4)}")
        a.e("s_mov_b64 exec, -1")
        a.e(f"s_cmp_eq_u32 s28, {nsteps-1}")
        a.e(f"s_cbranch_scc1 {pre}_last")
        a.e("s_cmp_lg_u32 s24, 0")
        a.e("s_waitcnt lgkmcnt(0)")
        a.e("s_barrier")
        a.e(f"s_cbranch_scc1 {pre}_nosm")
        ts(a, prof, 2)
        R = BST+24; M = BST+40; W = RING
        for w in range(4):
            a.e(f"ds_read_b128 {vr(R+4*w,4)}, v{vScR} offset:{1536*w}")
            a.e(f"ds_read_b32 v{M+w}, v{vScRm} offset:{1536*w}")
        a.e("s_waitcnt lgkmcnt(4)")
        a.e(f"v_pk_add_f32 {vr(R,2)}, {vr(R,2)}, {vr(R+4,2)}"); a.e(f"v_pk_add_f32 {vr(R+2,2)}, {vr(R+2,2)}, {vr(R+6,2)}")
        a.e(f"v_add_f32 v{M}, v{M}, v{M+1}")
        a.e("s_waitcnt lgkmcnt(0)")
        a.e(f"v_pk_add_f32 {vr(R+8,2)}, {vr(R+8,2)}, {vr(R+12,2)}"); a.e(f"v_pk_add_f32 {vr(R+10,2)}, {vr(R+10,2)}, {vr(R+14,2)}")
        a.e(f"v_add_f32 v{M+2}, v{M+2}, v{M+3}")
        a.e(f"v_pk_add_f32 {vr(R,2)}, {vr(R,2)}, {vr(R+8,2)}"); a.e(f"v_pk_add_f32 {vr(R+2,2)}, {vr(R+2,2)}, {vr(R+10,2)}")
        a.e(f"v_add_f32 v{M}, v{M}, v{M+2}")
        a.e(f"v_max3_f32 v{W}, v{R}, v{R+1}, v{R+2}")
        a.e(f"v_max3_f32 v{W}, v{W}, v{R+3}, v{M}")
        for d in ("quad_perm:[1,0,3,2]", "quad_perm:[2,3,0,1]", "row_ror:8"):
            a.nop(2)
            a.e(f"v_max_f32_dpp v{W}, v{W}, v{W} {d} row_mask:0xf bank_mask:0xf")
        a.e(f"v_mul_f32 v{W}, s36, v{W}")
        vals = [R, R+1, R+2, R+3, M]
        for v in (M, R, R+1, R+2, R+3): a.e(f"v_fma_f32 v{v}, v{v}, s36, -v{W}")
        for v in vals: a.e(f"v_exp_f32 v{v}, v{v}")
        a.e(f"v_add_f32 v{W}, v{R}, v{R+1}")
        a.e(f"v_add_f32 v{W+1}, v{R+2}, v{R+3}")
        a.e(f"v_add_f32 v{W}, v{W}, v{M}")
        a.e(f"v_add_f32 v{W}, v{W}, v{W+1}")
        for d in ("quad_perm:[1,0,3,2]", "quad_perm:[2,3,0,1]", "row_ror:8"):
            a.nop(2)
            a.e(f"v_add_f32_dpp v{W}, v{W}, v{W} {d} row_mask:0xf bank_mask:0xf")
        a.e(f"v_rcp_f32 v{W}, v{W}")
        a.nop(1)
        a.e(f"v_mul_f32 v{M}, v{M}, v{W}")
        for v in vals[:4]: a.e(f"v_mul_f32 v{v}, v{v}, v{W}")
        a.e(f"v_mov_b32_dpp v{W+2}, v{M} quad_perm:[0,0,2,2] row_mask:0xf bank_mask:0xf")
        a.e(f"v_mov_b32_dpp v{W+3}, v{M} quad_perm:[1,1,3,3] row_mask:0xf bank_mask:0xf")
        a.e(f"v_cvt_pk_bf16_f32 v{W+4}, v{R}, v{R+1}")
        a.e(f"v_cvt_pk_bf16_f32 v{W+5}, v{R+2}, v{R+3}")
        a.e(f"v_cvt_pk_bf16_f32 v{W+6}, v{W+2}, v{W+3}")
        for q in (4, 5): a.e(f"v_bfi_b32 v{W+q}, v{vMask}, v{W+q}, s29")
        a.e(f"buffer_store_dwordx2 {vr(W+4,2)}, v{vPx}, s[8:11], s37 offen {LST}")
        a.e(f"v_bfi_b32 v{W+6}, v{vMask}, v{W+6}, s29")
        a.e(f"buffer_store_dword v{W+6}, v{vPm}, s[8:11], s37 offen {LST}")
        ts(a, prof, 3)
        if HINT[0]:
            a.e(f"s_branch {pre}_b2")
            a.label(f"{pre}_nosm")
            a.e("s_cmp_lg_u32 s24, 1"); a.e(f"s_cbranch_scc1 {pre}_b2")
            a.e("s_add_u32 s30, s28, 1"); a.e("v_mov_b32 v2, s30"); a.e("s_mov_b64 exec, 1")
            a.nop(qh_nop)
            a.e(f"buffer_store_dword v2, off, s[8:11], s84 {LST}")
            a.e("s_mov_b64 exec, -1")
            a.label(f"{pre}_b2")
        else:
            a.label(f"{pre}_nosm")
        a.e("s_barrier")
        for i in range(hk_sleep): a.e("s_sleep 1")
        def km_export():
            a.e("s_mov_b32 exec_lo, 0xff00ff00"); a.e("s_mov_b32 exec_hi, 0xff00ff00")
            if x_km:
                a.e(f"buffer_store_dwordx4 {vr(XO,4)}, v{vKmA}, s[8:11], s54 offen sc1")
                a.e(f"buffer_store_dwordx2 {vr(XO+4,2)}, v{vKmB}, s[8:11], s54 offen sc1")
            a.e("s_mov_b64 exec, -1")
            a.e(f"s_add_u32 s54, s54, {32*3072}")
        a.e("v_cmp_eq_u32 vcc, 0, v0"); a.e("s_add_u32 s31, s28, 1")
        a.e(f"s_cbranch_vccz {pre}_nokf")
        kflag_wait(f"{pre}_kf", "s31")
        a.label(f"{pre}_nokf")
        kx_loads()
        if QARCH[0]:
            a.e("s_add_u32 s85, s85, s88"); a.e("s_sub_u32 s88, 0, s88"); a.e("s_mov_b32 s86, s87"); a.e(f"s_add_u32 s87, s87, {32*10240}")
        if upf:
            for r in ((85,) if upf == 1 else (85, 86, 87)): a.e(f"s_add_u32 s{r}, s{r}, {32*40960}")
        a.e("s_add_u32 s30, s28, 2"); a.e("s_min_u32 s30, s30, 63"); a.e("s_lshr_b32 s30, s30, 3"); a.e("s_lshl_b32 s30, s30, 9"); a.e("s_add_u32 s30, s30, s55")
        a.e(f"v_and_b32 v3, 4, v{vPm}")
        a.e(f"buffer_load_dword v0, v3, s[8:11], s30 offen sc1")
        km_export()
        a.e("s_cmp_lg_u32 s24, 3"); a.e(f"s_cbranch_scc1 {pre}_nofl")
        a.e("v_mov_b32 v2, s28"); a.e("s_mov_b64 exec, 1")
        a.e(f"buffer_store_dword v2, off, s[8:11], s34 sc1")
        if QARCH[0]:
            a.e("s_max_u32 s30, s28, 1"); a.e("s_sub_u32 s30, s30, 1"); a.e("v_mov_b32 v4, s30"); a.e(f"s_add_u32 s30, s34, {F_YR-F_KM}")
            a.e(f"buffer_store_dword v4, off, s[8:11], s30 sc1")
        if STEPLOG[0]:
            a.e("s_memrealtime s[100:101]"); a.e("s_lshl_b32 s30, s28, 2"); a.e("s_lshl_b32 s31, s27, 8"); a.e("s_add_u32 s30, s30, s31"); a.e(f"s_add_u32 s30, s30, {STEPLOG[0]}")
            a.e("s_waitcnt lgkmcnt(0)"); a.e("v_mov_b32 v3, s100")
            a.e("buffer_store_dword v3, off, s[8:11], s30")
        a.e("s_mov_b64 exec, -1")
        a.label(f"{pre}_nofl")
        ts(a, prof, 4)
        if fuse:
            def aftq():
                idle_prep()
                ts(a, prof, 6)
                prof_dump(a, prof, pre)
                a.e("s_add_u32 s28, s28, 1"); a.e("s_xor_b32 s29, s29, 0x80008000")
            def zacc():
                a.e("s_waitcnt lgkmcnt(0)")
                a.nop(8)
                for q in range(12): a.e(f"v_mov_b32 v{ACC+q}, 0")
            retry = h2_stage(a, pre, RING, None, None, vSB, vStW, vH2, vMk, 1, mk_sleep, prof, after=aftq, pollw=1, fused=zacc)
            for w in range(3):
                a.e(f"s_cmp_eq_u32 s24, {w}"); a.e(f"s_cbranch_scc1 {pre}_fz{w}")
            for w in (3, 0, 1, 2):
                a.label(f"{pre}_fz{w}")
                head_fused(w)
        else:
            retry = h2_stage(a, pre, RING, None, None, vSB, vStW, vH2, vMk, 1, mk_sleep, prof, after=idle_prep, nobar=True, pollw=1)
            ts(a, prof, 6)
            prof_dump(a, prof, pre)
            a.e("s_add_u32 s28, s28, 1"); a.e("s_xor_b32 s29, s29, 0x80008000")
            a.e(f"s_branch {pre}_loop")
        retry()
        a.label(f"{pre}_last")
        km_export()
        a.e("s_waitcnt vmcnt(0)")
        a.e("s_barrier")
        a.e(f"v_mov_b32 v2, {nsteps}"); a.e("v_mov_b32 v3, 0"); a.e("s_mov_b64 exec, 1")
        a.e(f"buffer_store_dword v2, v3, s[8:11], s34 offen sc1")
        if QARCH[0]:
            a.e(f"v_mov_b32 v4, {nsteps-1}"); a.e(f"s_add_u32 s30, s34, {F_YR-F_KM}"); a.e(f"buffer_store_dword v4, off, s[8:11], s30 sc1")
        a.e("s_waitcnt vmcnt(0)")
        a.e("s_mov_b64 exec, -1")
        a.e(f"s_branch {pre0}_end")
    pre0 = pre
    if cw:
        a.e("s_cmp_lt_u32 s81, 32"); a.e(f"s_cbranch_scc1 {pre}S_loop")
        emit_loop(pre, "", prof)
        emit_loop(pre + "S", "sc1", 0)
    else:
        emit_loop(pre, LST, prof)
    a.label(f"{pre}_end")

def vo_role(a, slow=False, cw=None, pre="VO", prof=0, mk_sleep=0, p_sleep=0, y_sleep=5, nsteps=64, uload=1, upol="", upre=2, vsp=3, mkw_sleep=1, rs_sleep=0, uwait=0, ustep=1, novm=0, mkearly=None, yfirst=0, late=0, apos=4, af='sc1', h_nop=0, ulate=0, dbl=0, ytag=1, p_nop=32, y_nop=0):
    mkearly = MKE[0]
    if QARCH[0]: apos = 9
    LST = "sc1" if slow else ""
    WOL = 49152; MEMIMG = 131072; VBUF = 141312; RSC = 144384
    vIdx, vSB = 8, 10
    vAst, vStW, vH2, vMk, vVw0, vVw1, vVr, vYst, vYs0, vYs2, vU0, vU1, vU2, vPx, vPm, vRw, vRr, vPub = range(14, 32)
    vL16 = 9
    PR = 32; ACC = 52; U = 72; BST = 120; WV = 160; VA = BST+24; vYs4 = 9
    def wreg(o): return ar(8*o, 8) if o < 32 else vr(WV + 8*(o-32), 8)
    def wsub(o, k): return ar(8*o+k, 2) if o < 32 else vr(WV + 8*(o-32)+k, 2)
    a.e("v_and_b32 v1, 63, v0")
    a.e("s_load_dwordx4 s[32:35], s[0:1], 32")
    a.e("s_load_dwordx2 s[20:21], s[0:1], 8")
    a.e("s_waitcnt lgkmcnt(0)")
    a.e("s_mov_b32 s12, s32"); a.e("s_mov_b32 s13, s33"); a.e("s_mov_b32 s14, 7864320"); a.e("s_mov_b32 s15, 0x20000")
    a.e("s_mov_b32 s16, s34"); a.e("s_mov_b32 s17, s35"); a.e("s_mov_b32 s18, 7864320"); a.e("s_mov_b32 s19, 0x20000")
    a.e("s_mov_b32 s22, 10240"); a.e("s_mov_b32 s23, 0x20000")
    DV = 72
    a.e("s_lshr_b32 s31, s24, 1"); a.e(f"s_mul_i32 s31, s31, {320*12288}")
    for i in range(6):
        a.e("s_and_b32 s30, s24, 1")
        a.e("s_mul_i32 s30, s30, 384")
        a.e(f"s_add_u32 s30, s30, {64*i}")
        a.e("v_add_u32 v2, s30, v1")
        a.e("v_mul_u32_u24 v3, 2731, v2")
        a.e("v_lshrrev_b32 v3, 16, v3")
        a.e("v_mul_u32_u24 v4, 24, v3")
        a.e("v_sub_u32 v4, v2, v4")
        a.e("v_mul_u32_u24 v3, 12288, v3")
        a.e(f"v_lshl_add_u32 v3, v4, 4, v3")
        a.e(f"v_add_u32 v{DV+i}, s31, v3")
    a.e(f"v_lshlrev_b32 v{vL16}, 4, v1")
    a.e("v_lshrrev_b32 v3, 4, v1"); a.e("v_lshlrev_b32 v3, 2, v3"); a.e("v_bfe_u32 v4, v1, 2, 1"); a.e("v_add_u32 v5, v3, v4")
    a.e("v_bfe_u32 v2, v1, 3, 1")
    a.e("v_mul_u32_u24 v3, 12288, v2"); a.e("v_mul_u32_u24 v4, 384, v5"); a.e("v_add_u32 v3, v3, v4")
    a.e("v_and_b32 v4, 3, v1"); a.e("v_lshl_add_u32 v3, v4, 3, v3")
    a.e("s_mul_i32 s30, s24, 96"); a.e(f"v_add_u32 v{DV+6}, s30, v3")
    a.e("v_mul_u32_u24 v3, 1280, v5"); a.e("v_lshl_add_u32 v3, v2, 5, v3"); a.e("v_lshl_add_u32 v3, v4, 3, v3")
    a.e("s_mul_i32 s30, s24, 320"); a.e(f"v_add_u32 v{DV+7}, s30, v3")
    a.e("s_mul_i32 s34, s27, 384")
    a.e("s_mul_i32 s35, s24, 6144")
    a.e("s_mul_i32 s37, s24, 5120")
    a.e("s_mul_i32 s38, s27, 245760")
    a.e(f"v_add_u32 v6, s35, v{vL16}")
    a.e(f"v_add_u32 v{DV+9}, s37, v{vL16}")
    a.e(f"v_add_u32 v7, {WOL}, v{DV+9}")
    chunks = []
    ring = [0]
    def nextslot():
        o = (ring[0] % 6)*24576; ring[0] += 1; return o
    def wv_chunk(io, off, res):
        dma = []
        for i in range(6):
            p = [f"s_add_u32 m0, s35, {off}", f"s_add_u32 s36, s34, {io*32*12288}"] if i == 0 else ["s_add_u32 m0, m0, 1024", "s_nop 0"]
            dma.append(p + [f"buffer_load_dwordx4 v{DV+i}, s[12:15], s36 offen {WPOL[0]} lds"])
        tr = []
        for s_ in range(3):
            for H in range(2):
                for p in range(2):
                    dst = vr(BST+8*s_+4*H+2*p, 2) if res else wsub(io*3+s_, 4*H+2*p)
                    tr.append(f"ds_read_b64_tr_b16 {dst}, v{DV+8} offset:{(16*H+2*p)*384 + 32*s_}")
        r = [f"ds_write_b128 v6, {vr(BST+4*q,4)} offset:{off+1024*q}" for q in range(6)] if res else None
        return dict(off=off, size=24576, dma=dma, pre=[f"v_add_u32 v{DV+8}, {off}, v{DV+6}"], tr=tr, res=r)
    def wo_chunk(ep, H, off, res):
        dma = []
        for i in range(5):
            p = [f"s_add_u32 m0, s37, {off}", f"s_add_u32 s36, s38, {(2*ep+H)*20480}"] if i == 0 else ["s_add_u32 m0, m0, 1024", "s_add_u32 s36, s36, 1024"]
            dma.append(p + [f"buffer_load_dwordx4 v{DV+9}, s[16:19], s36 offen {WPOL[0]} lds"])
        tr = []
        for t in range(5):
            for p in range(2):
                dst = vr(BST+4*t+2*p, 2) if res else wsub(24+ep*5+t, 4*H+2*p)
                tr.append(f"ds_read_b64_tr_b16 {dst}, v{DV+8} offset:{2*p*1280 + 64*t}")
        r = [f"v_add_u32 v2, {off}, v{DV+9}"] + [f"ds_write_b128 v2, {vr(BST+4*t,4)} offset:{1024*t}" for t in range(5)] if res else None
        return dict(off=off, size=20480, dma=dma, pre=[f"v_add_u32 v{DV+8}, {off}, v{DV+7}"], tr=tr, res=r)
    ring[0] = 2
    for io in range(8): chunks.append(wv_chunk(io, nextslot(), False))
    for ep in range(4):
        for H in range(2): chunks.append(wo_chunk(ep, H, nextslot(), False))
    chunks.append(wv_chunk(8, 0, True)); chunks.append(wv_chunk(9, 24576, True))
    for ep in (4, 5):
        for H in range(2): chunks.append(wo_chunk(ep, H, WOL + (ep-4)*40960 + H*20480, True))
    load_weights(a, chunks, cw)
    a.e("WLOADED")
    if cw: census_check(a)
    stage_mem0(a, MEMIMG, PR, 0)
    common_consts(a, vIdx, vSB, vStW, vH2, vMk, MEMIMG)
    a.e("v_lshrrev_b32 v2, 4, v1"); a.e("v_bfe_u32 v3, v1, 3, 1"); a.e("v_mul_u32_u24 v3, 40, v3"); a.e("v_add_u32 v2, v2, v3")
    a.e("v_lshlrev_b32 v2, 7, v2"); a.e("v_and_b32 v3, 7, v1"); a.e("v_lshl_add_u32 v2, v3, 4, v2")
    a.e(f"v_add_u32 v{vAst}, {MEMIMG}, v2")
    a.e("v_and_b32 v2, 15, v1"); a.e("v_lshlrev_b32 v2, 4, v2"); a.e("v_bfe_u32 v3, v1, 4, 1"); a.e("v_lshl_add_u32 v2, v3, 3, v2")
    a.e("s_mul_i32 s30, s24, 768"); a.e(f"s_add_u32 s30, s30, {VBUF}")
    a.e("v_add_u32 v2, s30, v2"); a.e(f"v_add_u32 v{vVw1}, 512, v2")
    a.e("v_lshrrev_b32 v3, 5, v1"); a.e(f"v_mul_u32_u24 v3, 4096, v3"); a.e(f"v_add_u32 v{vVw1}, v3, v{vVw1}")
    a.e("v_lshrrev_b32 v3, 5, v1"); a.e(f"v_lshl_add_u32 v{vVw0}, v3, 8, v2")
    a.e("v_lshrrev_b32 v2, 4, v1"); a.e("v_bfe_u32 v3, v1, 2, 2"); a.e("v_lshl_add_u32 v2, v2, 3, v3"); a.e("v_lshlrev_b32 v2, 4, v2")
    a.e("v_and_b32 v3, 1, v1"); a.e("v_lshl_add_u32 v2, v3, 3, v2"); a.e(f"v_add_u32 v{vVr}, {VBUF}, v2")
    a.e("v_and_b32 v2, 15, v1"); a.e("v_lshrrev_b32 v3, 5, v1"); a.e("v_lshl_add_u32 v2, v3, 4, v2"); a.e("v_lshlrev_b32 v2, 4, v2")
    a.e("v_bfe_u32 v3, v1, 4, 1"); a.e("v_lshl_add_u32 v2, v3, 3, v2")
    a.e("s_mul_i32 s30, s24, 2560"); a.e(f"v_add_u32 v{vYst}, s30, v2")
    a.e("v_lshrrev_b32 v2, 4, v1"); a.e("s_lshl_b32 s30, s24, 2"); a.e("v_add_u32 v2, s30, v2"); a.e("v_mul_u32_u24 v2, 10240, v2")
    a.e("s_mul_i32 s30, s26, 640"); a.e("v_add_u32 v2, s30, v2")
    a.e("v_and_b32 v3, 15, v1"); a.e(f"v_lshl_add_u32 v{vYs0}, v3, 4, v2")
    a.e("v_and_b32 v3, 7, v1"); a.e("v_add_u32 v3, 32, v3"); a.e(f"v_lshl_add_u32 v{vYs2}, v3, 4, v2")
    a.e("v_lshrrev_b32 v4, 4, v1"); a.e("v_lshlrev_b32 v4, 9, v4")
    a.e("s_mul_i32 s30, s26, 40")
    for t in range(3):
        a.e(f"v_and_b32 v2, {15 if t < 2 else 7}, v1"); a.e(f"v_add_u32 v2, {16*t}, v2"); a.e("v_add_u32 v2, s30, v2")
        a.e("v_lshrrev_b32 v3, 5, v2"); a.e("v_lshl_add_u32 v3, v3, 11, v4")
        a.e("v_and_b32 v2, 31, v2"); a.e(f"v_lshl_add_u32 v{vU0+t}, v2, 4, v3")
    a.e("s_mul_i32 s30, s24, 2560")
    a.e("v_lshrrev_b32 v2, 5, v1"); a.e("v_mul_u32_u24 v2, 640, v2"); a.e("v_bfe_u32 v3, v1, 2, 2"); a.e("v_lshl_add_u32 v2, v3, 7, v2")
    a.e("v_bfe_u32 v4, v1, 4, 1"); a.e("v_lshl_add_u32 v2, v4, 6, v2"); a.e("v_and_b32 v4, 3, v1"); a.e("v_lshl_add_u32 v2, v4, 4, v2")
    a.e(f"v_add_u32 v{vPx}, s30, v2")
    a.e("v_lshrrev_b32 v2, 4, v1"); a.e("v_mul_u32_u24 v2, 640, v2"); a.e("v_and_b32 v3, 15, v1"); a.e("v_lshl_add_u32 v2, v3, 3, v2")
    a.e("v_add_u32 v2, 512, v2"); a.e(f"v_add_u32 v{vPm}, s30, v2")
    a.e("s_mul_i32 s30, s24, 1536"); a.e(f"s_add_u32 s30, s30, {RSC}")
    a.e("v_and_b32 v2, 15, v1"); a.e("v_lshlrev_b32 v2, 5, v2"); a.e("v_lshrrev_b32 v3, 5, v1"); a.e("v_bfe_u32 v4, v1, 2, 1"); a.e("v_xor_b32 v3, v3, v4")
    a.e("v_lshl_add_u32 v2, v3, 4, v2"); a.e("v_bfe_u32 v3, v1, 4, 1"); a.e("v_lshl_add_u32 v2, v3, 3, v2"); a.e(f"v_add_u32 v{vRw}, s30, v2")
    a.e("v_min_u32 v2, 39, v1"); a.e("v_lshrrev_b32 v3, 1, v2"); a.e("s_and_b32 s30, s24, 1"); a.e("s_mul_i32 s30, s30, 20"); a.e("v_add_u32 v3, s30, v3")
    a.e("v_and_b32 v2, 1, v2")
    a.e("v_bfe_u32 v4, v3, 2, 1"); a.e("v_xor_b32 v4, v4, v2"); a.e("v_lshlrev_b32 v4, 4, v4"); a.e("v_lshl_add_u32 v4, v3, 5, v4")
    a.e(f"v_add_u32 v{vRr}, {RSC}, v4")
    a.e("s_mul_i32 s30, s26, 40"); a.e("v_add_u32 v3, s30, v3")
    a.e("v_lshrrev_b32 v4, 8, v3"); a.e("v_lshlrev_b32 v4, 14, v4"); a.e("v_and_b32 v3, 255, v3"); a.e("v_lshl_add_u32 v4, v3, 4, v4"); a.e("v_lshl_add_u32 v4, v2, 3, v4")
    a.e("s_lshl_b32 s30, s25, 12"); a.e(f"v_add_u32 v{vPub}, s30, v4")
    a.e(f"s_add_u32 s32, s46, {LOC_Y}")
    a.e("s_mul_i32 s33, s26, 10240"); a.e("s_add_u32 s33, s33, s32")
    a.e("s_lshl_b32 s30, s25, 4"); a.e("s_lshl_b32 s31, s24, 2"); a.e("s_add_u32 s30, s30, s31")
    a.e("s_mul_i32 s38, s30, 40960"); a.e(f"s_add_u32 s38, s38, {WS_U}")
    a.e("s_mul_i32 s54, s27, 10240"); a.e(f"s_add_u32 s54, s54, {WS_YA}")
    a.e(f"s_add_u32 s88, s46, {LOC_DUMMY}")
    a.e("s_lshl_b32 s84, s26, 7"); a.e("s_add_u32 s84, s84, s45"); a.e("s_add_u32 s84, s84, 4096")

    a.e(f"s_lshl_b32 s34, s27, 7"); a.e(f"s_add_u32 s34, s34, {WS_FLAGS+F_YR}")

    a.e(f"s_lshl_b32 s55, s25, 8"); a.e(f"s_add_u32 s55, s55, {WS_FLAGS+F_U}")
    a.e(f"s_mul_i32 s35, s26, {MKS[0]}"); a.e("s_add_u32 s35, s35, s45")
    if MKG[0]:
        a.e("s_lshl_b32 s30, s25, 11"); a.e("s_add_u32 s35, s35, s30")
        if mkearly:
            a.e("s_and_b32 s30, s24, 1"); a.e("s_lshl_b32 s30, s30, 6"); a.e("s_add_u32 s35, s35, s30")
            a.e("s_cmp_lt_u32 s24, 2"); a.e("s_cselect_b32 s30, 4096, 0"); a.e("s_add_u32 s35, s35, s30")
    if mkearly and not MKG[0]:
        a.e("s_lshl_b32 s30, s24, 2"); a.e("s_add_u32 s35, s35, s30"); a.e("s_mov_b64 s[96:97], 1")
        a.e("v_and_b32 v2, 3, v1"); a.e("v_lshrrev_b32 v3, 2, v1"); a.e(f"v_mul_u32_u24 v3, {MKS[0]}, v3"); a.e(f"v_lshl_add_u32 v{vMk}, v2, 2, v3")
    a.e("s_mov_b32 s28, 0"); a.e("s_mov_b32 s29, 0"); a.e("s_mov_b32 s37, 0"); a.e("s_mov_b32 s91, 0")
    def uflag_wait(lab, reg):
        a.e(f"s_lshr_b32 s30, {reg}, 3"); a.e("s_lshl_b32 s30, s30, 9"); a.e("s_add_u32 s30, s30, s55")
        a.e("v_mbcnt_lo_u32_b32 v3, -1, 0"); a.e("v_mbcnt_hi_u32_b32 v3, -1, v3"); a.e("v_lshlrev_b32 v3, 2, v3")
        a.label(lab)
        a.e(f"buffer_load_dword v2, v3, s[8:11], s30 offen sc1")
        a.e("s_sub_u32 s82, s82, 1"); a.e("s_cbranch_scc1 L_abort")
        a.e("s_waitcnt vmcnt(0)")
        a.e("v_cmp_eq_u32 vcc, 0, v2")
        a.e(f"s_cbranch_vccnz {lab}")
    def u_loads():
        it = []
        for hh in range(4):
            for t in range(3):
                r = U + (t*2 + (hh >> 1))*8 + (hh & 1)*4
                p = []
                if t == 0: p = [f"s_add_u32 s31, s38, {hh*40960}"]
                it.append(p + [f"buffer_load_dwordx4 {vr(r,4)}, v{vU0+t}, s[8:11], s31 offen {upol}"])
        it[-1].append(f"s_add_u32 s38, s38, {32*40960}")
        return it
    def lv(L): return [f"ds_read_b128 {vr(BST+4*q,4)}, v6 offset:{L*24576 + 1024*q}" for q in range(6)]
    def lo(L): return [f"ds_read_b128 {vr(BST+8*t+4*H,4)}, v{5 if L else 7} offset:{H*20480 + 1024*t}" for t in range(5) for H in range(2)]
    def usoff():
        for hh in range(4): a.e(f"s_add_u32 s{92+hh}, s38, {hh*40960}")
        a.e(f"s_add_u32 s38, s38, {32*40960*ustep}")
    def idle_prep(nxt=2):
        for ins in lv(0): a.e(ins)
        for q in range(12): a.e(f"v_mov_b32 v{VA+q}, 0")
        for q in range(20): a.e(f"v_mov_b32 v{ACC+q}, 0")
        a.e("v_add_u32 v5, 40960, v7")
        if not ulate or nxt == 1: usoff()
        a.e(f"s_add_u32 s89, s28, {nxt}"); a.e("s_min_u32 s89, s89, 63"); a.e("s_lshr_b32 s89, s89, 3"); a.e("s_lshl_b32 s89, s89, 9"); a.e("s_add_u32 s89, s89, s55")
    a.e("v_and_b32 v2, 15, v1"); a.e("v_bfe_u32 v3, v1, 4, 1"); a.e("v_lshl_add_u32 v2, v3, 5, v2"); a.e("v_lshrrev_b32 v3, 5, v1"); a.e("v_lshl_add_u32 v2, v3, 4, v2")
    a.e("v_lshlrev_b32 v2, 4, v2"); a.e("s_mul_i32 s30, s24, 2560"); a.e(f"v_add_u32 v{vYs4}, s30, v2")
    for q in range(4): a.e(f"v_mov_b32 v{U+32+q}, -1")
    a.e(f"s_add_u32 s36, s32, 163840")
    uflag_wait(f"{pre}_uf0", "s28")
    stage_mem0(a, MEMIMG, PR, 1)
    idle_prep(1)
    if ulate:
        for hh in range(4):
            for t in range(2): a.e(f"buffer_load_dwordx4 {vr(U + (t*2 + (hh >> 1))*8 + (hh & 1)*4,4)}, v{vU0+t}, s[8:11], s{92+hh} offen {upol}")
    a.e("s_waitcnt lgkmcnt(0)")
    a.e("s_barrier")
    a.e("LOOPSTART")
    def emit_loop(pre, LST, prof):
        a.label(f"{pre}_loop")
        ts(a, prof, 0)
        order = [0, 8, 1, 2, 3, 4, 5, 9, 6, 7]
        def aread(p): return f"ds_read_b128 {vr(PR+4*(p%4),4)}, v{vAst} offset:{512*order[p]}"
        for p in range(3): a.e(aread(p))
        lq = [("A", 0), ("A", 1), ("A", 2)]
        ex = []
        def uld(hh, t): return [f"buffer_load_dwordx4 {vr(U + (t*2 + (hh >> 1))*8 + (hh & 1)*4,4)}, v{vU0+t}, s[8:11], s{92+hh} offen {upol}"]
        arch = [f"buffer_store_dwordx4 {vr(U+36,4)}, v{vYs4}, s[8:11], s88 offen {af}", f"buffer_store_dwordx4 {vr(U+40,4)}, v{vYs4}, s[8:11], s88 offen offset:1024 {af}",
                f"buffer_store_dwordx2 {vr(U+44,2)}, v{vYst}, s[8:11], s88 offen offset:2048 {af}"]
        rst = [f"buffer_store_dwordx4 {vr(U+32,4)}, v{vYs0}, s[8:11], s90 offen {LST}", f"buffer_store_dwordx4 {vr(U+32,4)}, v{vYs0}, s[8:11], s90 offen offset:256 {LST}",
               f"buffer_store_dwordx4 {vr(U+32,4)}, v{vYs2}, s[8:11], s90 offen {LST}"]
        vm = [uld(hh, t) for hh in range(4) for t in range(3)]
        if apos == 1: vm = [[x] for x in arch] + vm
        if late == 2: vm = [[x] for x in arch] + [[x.replace("s90", "s36")] for x in rst] + vm[3:]
        if late == 3: vm = [uld(hh, t) for hh in range(4) for t in range(2)][:4] + [[x] for x in arch] + [uld(hh, t) for hh in range(4) for t in range(2)][4:] + [[x.replace("s90", "s36")] for x in rst] + [uld(hh, 2) for hh in range(4)]
        if ulate: vm = [[x] for x in arch] + [uld(hh, 2) for hh in range(4)]
        if apos == 2: vm = [uld(hh, t) for hh in range(4) for t in range(2)] + [[x] for x in arch] + [uld(hh, 2) for hh in range(4)]
        vm += [["v_mbcnt_lo_u32_b32 v4, -1, 0", "v_mbcnt_hi_u32_b32 v4, -1, v4", "v_lshlrev_b32 v4, 2, v4", "buffer_load_dword v0, v4, s[8:11], s89 offen sc1"] + (["v_and_b32 v4, 127, v4", "v_lshlrev_b32 v3, 5, v4", "s_add_u32 s30, s28, 1", "v_mov_b32 v2, s30"] if HINT[0] else [])]
        if novm == 1: vm = []
        if novm == 2: vm = [x for x in vm if "sc1" not in x[0]]
        if novm == 3: vm = [x for x in vm if "store" not in x[0]]
        if novm == 4: vm = [x for x in vm if "store" in x[0]]
        def vmpop():
            if vm: a.e("\n".join(vm.pop(0)))
        for i in range(upre): vmpop()
        zz = []
        def lop(i):
            return [f"ds_read_b128 {vr(BST+8*(i%5)+4*H,4)}, v{5 if i >= 5 else 7} offset:{H*20480 + 1024*(i%5)}" for H in range(2)]
        cnt = 0
        for p in range(10):
            io = order[p]
            need = [("A", p)] + ([("L", 1)] if io == 9 else [])
            last = max(i for i, t in enumerate(lq) if t in need)
            a.e(f"s_waitcnt lgkmcnt({len(lq)-1-last})")
            lq = lq[last+1:]
            if p == 2: ex = lv(1)
            if p == 8: ex = lop(0) + lop(1) + lop(2)
            for t in range(3):
                B = wreg(io*3+t) if io < 8 else vr(BST+8*t, 8)
                a.e(f"{SM64} {vr(VA+4*t,4)}, {vr(PR+4*(p%4),4)}, {B}, v{vIdx}")
                cnt += 1
                if t == 0 and p+3 < 10:
                    a.e(aread(p+3)); lq.append(("A", p+3))
                    if zz: a.e(zz.pop())
                elif p >= 8:
                    if ex: a.e(ex.pop(0)); lq.append(("O", 0))
                    if zz: a.e(zz.pop())
                elif t == 1 and ex:
                    a.e(ex.pop(0)); a.e(ex.pop(0)); lq += [("L", 1)]*2
                elif t < 2 or cnt % vsp:
                    for q in range(2):
                        if zz: a.e(zz.pop())
                if cnt % vsp == 0: vmpop()
        assert not zz and not ex
        ts(a, prof, 1); ts(a, prof, 1, 2)
        a.nop(4)
        F = PR
        for q in range(4): a.e(f"v_permlane32_swap_b32 v{VA+q}, v{VA+4+q}")
        for q in range(4): a.e(f"v_permlane32_swap_b32 v{VA+8+q}, v{F+4+q}")
        a.e(f"v_pk_add_f32 {vr(F,2)}, {vr(VA,2)}, {vr(VA+4,2)}"); a.e(f"v_pk_add_f32 {vr(F+2,2)}, {vr(VA+2,2)}, {vr(VA+6,2)}")
        a.e(f"v_cvt_pk_bf16_f32 v{F}, v{F}, v{F+1}"); a.e(f"v_cvt_pk_bf16_f32 v{F+1}, v{F+2}, v{F+3}")
        a.e(f"v_pk_add_f32 {vr(F+4,2)}, {vr(VA+8,2)}, {vr(F+4,2)}"); a.e(f"v_pk_add_f32 {vr(F+6,2)}, {vr(VA+10,2)}, {vr(F+6,2)}")
        a.e(f"ds_write_b64 v{vVw0}, {vr(F,2)}")
        a.e(f"v_cvt_pk_bf16_f32 v{F+4}, v{F+4}, v{F+5}"); a.e(f"v_cvt_pk_bf16_f32 v{F+5}, v{F+6}, v{F+7}")
        a.e(f"ds_write_b64 v{vVw1}, {vr(F+4,2)}")
        ts(a, prof, 2, 2)
        vmpop()
        a.e("s_waitcnt lgkmcnt(0)")
        a.e("s_barrier")
        ts(a, prof, 3, 2)
        def areg(e): return PR+12 if e == 4 else PR+16 if e == 5 else PR+4*(e % 3)
        def vread(e): return [f"ds_read_b64_tr_b16 {vr(areg(e)+2*h,2)}, v{vVr} offset:{512*e + 64*h}" for h in range(2)]
        lq = []
        for e in (0, 4, 1):
            for ins in vread(e): a.e(ins); lq.append(("A", e))
        vmpop(); vmpop()
        seq = []; r = [(e, t) for e in range(4) for t in range(5)]; l = [(4+i//5, i%5) for i in range(10)]
        for pos in range(30): seq.append(l.pop(0) if pos % 3 == 2 else r.pop(0))
        pend = [(0, ("O", 3), lop(3)), (0, ("A", 2), vread(2)), (0, ("O", 4), lop(4)), (3, ("O", 5), lop(5)), (3, ("A", 5), vread(5)), (6, ("O", 6), lop(6)),
                (7, ("A", 3), vread(3)), (9, ("O", 7), lop(7)), (12, ("O", 8), lop(8)), (15, ("O", 9), lop(9))]
        flat = [(p0, tag, ins) for p0, tag, inss in pend for ins in inss]
        for pos, (e, t) in enumerate(seq):
            need = [("A", e)] + ([("O", (e-4)*5+t)] if e >= 4 else [])
            idxs = [i for i, tg in enumerate(lq) if tg in need]
            assert not any(tag in need for _, tag, _ in flat), (pos, need)
            if idxs:
                last = max(idxs)
                a.e(f"s_waitcnt lgkmcnt({len(lq)-1-last})")
                lq = lq[last+1:]
            B = wreg(24+e*5+t) if e < 4 else vr(BST+8*t, 8)
            a.e(f"{SM64} {vr(ACC+4*t,4)}, {vr(areg(e),4)}, {B}, v{vIdx}")
            if pos == 0: ts(a, prof, 4, 2)
            if flat and flat[0][0] <= pos:
                _, tag, ins = flat.pop(0); a.e(ins); lq.append(tag)
            if pos % 4 == 3 or pos == 29: vmpop()
        assert not vm and not flat
        ts(a, prof, 2); ts(a, prof, 7, 2)
        YC = PR
        def ycvt(t):
            a.e(f"v_cvt_pk_bf16_f32 v{YC+2*t}, v{ACC+4*t}, v{ACC+4*t+1}")
            a.e(f"v_cvt_pk_bf16_f32 v{YC+2*t+1}, v{ACC+4*t+2}, v{ACC+4*t+3}")
        def ymin(t):
            if ytag:
                a.e(f"v_and_or_b32 v{YC+2*t}, v{YC+2*t}, -2, s91"); a.e(f"v_and_or_b32 v{YC+2*t+1}, v{YC+2*t+1}, -2, s91")
            else:
                a.e(f"v_min_u32 v{YC+2*t}, -2, v{YC+2*t}"); a.e(f"v_min_u32 v{YC+2*t+1}, -2, v{YC+2*t+1}")
        def ystores(so, fl):
            ycvt(0); ycvt(1); ymin(0); ymin(1); ycvt(2)
            a.e(f"v_permlane16_swap_b32 v{YC}, v{YC+2}"); a.e(f"v_permlane16_swap_b32 v{YC+1}, v{YC+3}")
            ycvt(3)
            a.e(f"buffer_store_dwordx4 {vr(YC,4)}, v{vYs4}, s[8:11], {so} offen {fl}")
            ymin(2); ymin(3); ycvt(4)
            a.e(f"v_permlane16_swap_b32 v{YC+4}, v{YC+6}"); a.e(f"v_permlane16_swap_b32 v{YC+5}, v{YC+7}")
            ymin(4)
            a.e(f"buffer_store_dwordx4 {vr(YC+4,4)}, v{vYs4}, s[8:11], {so} offen offset:1024 {fl}")
            a.e(f"buffer_store_dwordx2 {vr(YC+8,2)}, v{vYst}, s[8:11], {so} offen offset:2048 {fl}")
        if uwait == 1:
            a.e("s_waitcnt vmcnt(0)"); ts(a, prof, 1)
        a.e(f"s_cmp_eq_u32 s28, {nsteps-1}")
        a.e(f"s_cbranch_scc1 {pre}_last")
        a.e("s_add_u32 s31, s33, s37")
        if HINT[0]:
            a.e("s_cmp_lg_u32 s24, 0"); a.e(f"s_cbranch_scc1 {pre}_noh")
            a.e("s_mov_b64 exec, 1")
            a.e(f"buffer_store_dword v2, off, s[8:11], s84 {LST}")
            a.e("s_mov_b64 exec, -1")
            a.label(f"{pre}_noh")
        ystores("s31", LST)
        if HINT[0]:
            a.e(f"buffer_load_dword v1, v3, s[8:11], s45 offen offset:2048 sc1")
        if uwait == 2:
            ts(a, prof, 1); a.e("s_waitcnt vmcnt(0)"); ts(a, prof, 2)
        YS = BST; P0 = BST+12; RA = BST+24
        for q in range(12): a.e(f"v_mov_b32 v{RA+q}, 0")
        a.e("s_add_u32 s30, s28, 1"); a.e(f"v_mov_b32 v{PR+10}, s30")
        a.e("s_add_u32 s90, s32, s37")
        h2_base(a, "s53", None)
        if HINT[0]:
            a.e("s_add_u32 s30, s28, 1")
            a.e("s_waitcnt vmcnt(0)")
            a.e("v_cmp_gt_u32 vcc, s30, v1")
            a.e(f"s_cbranch_vccz {pre}_hok")
            a.label(f"{pre}_hp")
            a.e(f"buffer_load_dword v1, v3, s[8:11], s45 offen offset:2048 sc1")
            if prof: a.e("s_add_u32 s83, s83, 0x1000000")
            a.e("s_sub_u32 s82, s82, 1"); a.e("s_cbranch_scc1 L_abort")
            a.e("s_waitcnt vmcnt(0)")
            a.e("v_cmp_gt_u32 vcc, s30, v1")
            a.e(f"s_cbranch_vccnz {pre}_hp")
            a.label(f"{pre}_hok")
            a.nop(h_nop)
        else:
            for i in range(y_sleep): a.e("s_sleep 1")
            a.nop(y_nop)
        def yload():
            a.e(f"buffer_load_dwordx4 {vr(YS,4)}, v{vYs0}, s[8:11], s90 offen sc1")
            a.e(f"buffer_load_dwordx4 {vr(YS+4,4)}, v{vYs0}, s[8:11], s90 offen offset:256 sc1")
            a.e(f"buffer_load_dwordx4 {vr(YS+8,4)}, v{vYs2}, s[8:11], s90 offen sc1")
        def ycheck():
            a.e(f"v_max3_u32 v1, v{YS}, v{YS+1}, v{YS+2}")
            for q in (3, 5, 7, 9): a.e(f"v_max3_u32 v1, v{YS+q}, v{YS+q+1}, v1")
            a.e(f"v_max_u32 v1, v{YS+11}, v1")
            a.e("v_cmp_eq_u32 vcc, -1, v1")
        def pload(P):
            a.e(f"buffer_load_dwordx4 {vr(P,4)}, v{vPx}, s[8:11], s46 offen sc1")
            a.e(f"buffer_load_dwordx4 {vr(P+4,4)}, v{vPx}, s[8:11], s46 offen offset:1280 sc1")
            a.e(f"buffer_load_dwordx2 {vr(P+8,2)}, v{vPm}, s[8:11], s46 offen sc1")
        tb = 0
        for i in range(8):
            A_, B_, C_ = (i >> 2) & 1, (i >> 1) & 1, i & 1
            if (A_ ^ C_) | (B_ ^ C_): tb |= 1 << i
        def yload2(Y):
            a.e(f"buffer_load_dwordx4 {vr(Y,4)}, v{vYs0}, s[8:11], s90 offen sc1")
            a.e(f"buffer_load_dwordx4 {vr(Y+4,4)}, v{vYs0}, s[8:11], s90 offen offset:256 sc1")
            a.e(f"buffer_load_dwordx4 {vr(Y+8,4)}, v{vYs2}, s[8:11], s90 offen sc1")
        def consume(Px, Pm, Y, young, bad, yf=False, first=False):
            if yf:
                a.e(f"s_waitcnt vmcnt({3+young})")
                for q in range(3): a.e(f"v_bitop3_b32 v{2+q}, v{Y+2*q}, v{Y+2*q+1}, s91 bitop3:{tb}")
                a.e("v_or3_b32 v2, v2, v3, v4")
                for q in range(2): a.e(f"v_bitop3_b32 v{3+q}, v{Y+6+2*q}, v{Y+7+2*q}, s91 bitop3:{tb}")
                a.e("v_or3_b32 v2, v2, v3, v4"); a.e(f"v_bitop3_b32 v3, v{Y+10}, v{Y+11}, s91 bitop3:{tb}"); a.e("v_or_b32 v2, v2, v3"); a.e(f"v_lshlrev_b32 v{PR+14}, 31, v2")
                a.e(f"s_waitcnt vmcnt({2+young})")
                ts(a, prof, 3)
                for t in range(3):
                    a.e(f"{SM64} {vr(RA+4*t,4)}, {vr(Px,4)}, {vr(U+16*t,8)}, v{vIdx} abid:1")
                    if t < 2: a.e(f"v_bitop3_b32 v{1+t}, v{Px+2*t}, v{Px+2*t+1}, s29 bitop3:{tb}")
                    else: a.e(f"v_or3_b32 v1, v1, v2, v{PR+14}")
                a.e(f"s_waitcnt vmcnt({1+young})")
                for t in range(3):
                    a.e(f"{SM64} {vr(RA+4*t,4)}, {vr(Px+4,4)}, {vr(U+16*t+8,8)}, v{vIdx} abid:1")
                    if t < 2: a.e(f"v_bitop3_b32 v{3+t}, v{Px+4+2*t}, v{Px+4+2*t+1}, s29 bitop3:{tb}")
                    else: a.e("v_or3_b32 v1, v1, v3, v4")
                a.e(f"s_waitcnt vmcnt({young})")
                for t in range(3):
                    a.e(f"{SM32} {vr(RA+4*t,4)}, {vr(Pm,2)}, {vr(Y+4*t,4)}, v{vIdx} abid:2")
                    if t == 0: a.e(f"v_bitop3_b32 v2, v{Pm}, v{Pm+1}, s29 bitop3:{tb}")
                    elif t == 1: a.e("v_or_b32 v1, v1, v2")
                a.e("v_cmp_gt_i32 vcc, 0, v1")
                a.e(f"s_cbranch_vccnz {bad}")
                return
            a.e(f"s_waitcnt vmcnt({5+young})")
            if young: ts(a, prof, 3)
            if mkearly == 2 and first:
                a.e("s_mov_b64 exec, 1")
                a.e(f"buffer_store_dword v{PR+10}, off, s[8:11], s35 sc1")
                a.e("s_mov_b64 exec, -1")
                young += 1
            for t in range(3):
                a.e(f"{SM64} {vr(RA+4*t,4)}, {vr(Px,4)}, {vr(U+16*t,8)}, v{vIdx} abid:1")
                if t < 2: a.e(f"v_bitop3_b32 v{1+t}, v{Px+2*t}, v{Px+2*t+1}, s29 bitop3:{tb}")
            a.e(f"s_waitcnt vmcnt({4+young})")
            for t in range(3):
                a.e(f"{SM64} {vr(RA+4*t,4)}, {vr(Px+4,4)}, {vr(U+16*t+8,8)}, v{vIdx} abid:1")
                if t < 2: a.e(f"v_bitop3_b32 v{3+t}, v{Px+4+2*t}, v{Px+4+2*t+1}, s29 bitop3:{tb}")
                else: a.e("v_or3_b32 v1, v1, v2, v3")
            for t in range(3):
                a.e(f"s_waitcnt vmcnt({2-t+young})")
                a.e(f"{SM32} {vr(RA+4*t,4)}, {vr(Pm,2)}, {vr(Y+4*t,4)}, v{vIdx} abid:2")
                if ytag:
                    if t == 0:
                        a.e(f"v_bitop3_b32 v2, v{Pm}, v{Pm+1}, s29 bitop3:{tb}")
                        a.e("v_or3_b32 v1, v1, v4, v2")
                        a.e(f"v_bitop3_b32 v2, v{Y}, v{Y+1}, s91 bitop3:{tb}"); a.e(f"v_bitop3_b32 v3, v{Y+2}, v{Y+3}, s91 bitop3:{tb}")
                    else:
                        a.e(f"v_bitop3_b32 v4, v{Y+4*t}, v{Y+4*t+1}, s91 bitop3:{tb}"); a.e("v_or3_b32 v2, v2, v3, v4"); a.e(f"v_bitop3_b32 v3, v{Y+4*t+2}, v{Y+4*t+3}, s91 bitop3:{tb}")
                elif t == 0:
                    a.e(f"v_bitop3_b32 v2, v{Pm}, v{Pm+1}, s29 bitop3:{tb}")
                    a.e("v_or3_b32 v1, v1, v4, v2")
                    a.e(f"v_max3_u32 v2, v{Y}, v{Y+1}, v{Y+2}"); a.e(f"v_max_u32 v2, v2, v{Y+3}")
                else:
                    a.e(f"v_max3_u32 v2, v{Y+4*t}, v{Y+4*t+1}, v2"); a.e(f"v_max3_u32 v2, v{Y+4*t+2}, v{Y+4*t+3}, v2")
            if ytag:
                a.e("v_or_b32 v2, v2, v3"); a.e("v_lshl_or_b32 v1, v2, 31, v1")
                a.e("v_cmp_gt_i32 vcc, 0, v1")
                a.e(f"s_cbranch_vccnz {bad}")
                return
            a.e("v_cmp_eq_u32 s[30:31], -1, v2")
            a.e("v_cmp_gt_i32 vcc, 0, v1")
            a.e("s_or_b64 vcc, vcc, s[30:31]")
            a.e(f"s_cbranch_vccnz {bad}")
        Px2 = ACC; Pm2 = PR+12; Y2 = ACC+8
        if yfirst:
            yload()
            a.nop(p_nop)
            pload(P0)
        else:
            pload(P0)
            for i in range(p_sleep): a.e("s_sleep 1")
            yload()
        if dbl:
            a.nop(dbl)
            a.e(f"buffer_load_dwordx4 {vr(Px2,4)}, v{vPx}, s[8:11], s46 offen sc1")
            a.e(f"buffer_load_dwordx4 {vr(Px2+4,4)}, v{vPx}, s[8:11], s46 offen offset:1280 sc1")
            a.e(f"buffer_load_dwordx2 {vr(Pm2,2)}, v{vPm}, s[8:11], s46 offen sc1")
            yload2(Y2)
        if apos == 5:
            a.e(f"buffer_store_dwordx4 {vr(YC,4)}, v{vYs4}, s[8:11], s54 offen {af}"); a.e(f"buffer_store_dwordx4 {vr(YC+4,4)}, v{vYs4}, s[8:11], s54 offen offset:1024 {af}")
            a.e(f"buffer_store_dwordx2 {vr(YC+8,2)}, v{vYst}, s[8:11], s54 offen offset:2048 {af}")
        consume(P0, P0+8, YS, (6 if dbl else 0) + (3 if apos == 5 else 0), f"{pre}_pbad1" if dbl else f"{pre}_pbad", yf=yfirst, first=True)
        a.label(f"{pre}_pok")
        ts(a, prof, 4)
        if mkearly == 2: pass
        elif mkearly and MKG[0]:
            a.e("s_cmp_lt_u32 s24, 2"); a.e(f"s_cbranch_scc1 {pre}_nme")
            a.e("s_mov_b64 exec, 1")
            a.e(f"buffer_store_dword v{PR+10}, off, s[8:11], s35 sc1")
            a.e("s_mov_b64 exec, -1")
            a.label(f"{pre}_nme")
        elif mkearly:
            a.e("s_mov_b64 exec, s[96:97]")
            a.e(f"buffer_store_dword v{PR+10}, off, s[8:11], s35 {LST}")
            a.e("s_mov_b64 exec, -1")
        a.e("s_cmp_ge_u32 s24, 2")
        for t in range(3):
            a.e(f"v_add_f32 v{RA+4*t}, v{RA+4*t}, v{RA+4*t+1}"); a.e(f"v_add_f32 v{RA+4*t+1}, v{RA+4*t+2}, v{RA+4*t+3}")
            a.e(f"ds_write_b64 v{vRw}, {vr(RA+4*t,2)} offset:{512*t}")
        a.e("s_waitcnt lgkmcnt(0)")
        a.e("s_barrier")
        a.e(f"s_cbranch_scc1 {pre}_nopub")
        R = U
        for w in range(4): a.e(f"ds_read_b128 {vr(R+4*w,4)}, v{vRr} offset:{1536*w}")
        def pa(x, y):
            a.e(f"v_pk_add_f32 {vr(x,2)}, {vr(x,2)}, {vr(y,2)}"); a.e(f"v_pk_add_f32 {vr(x+2,2)}, {vr(x+2,2)}, {vr(y+2,2)}")
        a.e("s_waitcnt lgkmcnt(2)"); pa(R, R+4)
        a.e("s_waitcnt lgkmcnt(0)"); pa(R+8, R+12); pa(R, R+8)
        a.e(f"v_cvt_pk_bf16_f32 v{R}, v{R}, v{R+1}"); a.e(f"v_cvt_pk_bf16_f32 v{R+1}, v{R+2}, v{R+3}")
        a.e(f"v_xor_b32 v{R}, s29, v{R}"); a.e(f"v_xor_b32 v{R+1}, s29, v{R+1}")
        a.e(f"v_min_u32 v{R}, -2, v{R}"); a.e(f"v_min_u32 v{R+1}, -2, v{R+1}")
        a.e(f"buffer_store_dwordx2 {vr(R,2)}, v{vPub}, s[8:11], s53 offen sc1")
        a.e(f"s_branch {pre}_pubd")
        a.label(f"{pre}_nopub")
        for i in range(mkw_sleep): a.e("s_nop 15")
        a.e("s_cmp_eq_u32 s24, 3"); a.e(f"s_cbranch_scc1 {pre}_nomk")
        if MKA[0]:
            a.e("v_mov_b32 v2, 1"); a.e("s_mov_b64 exec, 1")
            a.e(f"buffer_atomic_add v2, off, s[8:11], s45 {LST}")
        elif not mkearly:
            a.e("s_mov_b64 exec, 1")
            a.e(f"buffer_store_dword v{PR+10}, off, s[8:11], s35 {'sc1' if MKG[0] else LST}")
        a.e(f"s_branch {pre}_mkd")
        a.label(f"{pre}_nomk")
        if not QARCH[0]:
            a.e("v_mov_b32 v2, s28"); a.e("v_mov_b32 v3, 0"); a.e("s_mov_b64 exec, 1")
            a.e(f"buffer_store_dword v2, v3, s[8:11], s34 offen sc1")
        a.label(f"{pre}_mkd")
        a.e("s_mov_b64 exec, -1")
        a.label(f"{pre}_pubd")
        ts(a, prof, 7)
        if not ytag:
            for q in range(4): a.e(f"v_mov_b32 v{U+32+q}, -1")
        if apos not in (5, 9):
            for q in range(10): a.e(f"v_mov_b32 v{U+36+q}, v{YC+q}")
        a.e("s_mov_b32 s88, s54"); a.e(f"s_add_u32 s54, s54, {32*10240}"); a.e("s_mov_b32 s36, s90")
        if late == 0 and not ytag:
            for i in range(rs_sleep): a.e("s_sleep 1")
            for ins in rst: a.e(ins)
        if apos == 3:
            for ins in arch: a.e(ins)
        if apos == 4:
            a.e("s_cmp_eq_u32 s24, 2"); a.e(f"s_cbranch_scc1 {pre}_noa")
            for ins in arch: a.e(ins)
            a.label(f"{pre}_noa")
        if not ytag or QARCH[0]: a.e("s_xor_b32 s37, s37, 163840")
        if QARCH[0]: a.e("s_and_b32 s30, s28, 1"); a.e("s_xor_b32 s91, s91, s30")
        else: a.e("s_xor_b32 s91, s91, 1")
        a.e("v_cmp_eq_u32 vcc, 0, v0"); a.e("s_add_u32 s31, s28, 1")
        a.e(f"s_cbranch_vccz {pre}_nouf")
        uflag_wait(f"{pre}_uf", "s31")
        a.label(f"{pre}_nouf")
        if ulate:
            usoff()
            a.e("s_cmp_eq_u32 s24, 2"); a.e(f"s_cbranch_scc1 {pre}_nou")
            for hh in range(4):
                for t in range(2): a.e(uld(hh, t)[0])
            a.label(f"{pre}_nou")
        def aft():
            for ins in (arch if apos == 0 else []) + (rst if late == 1 else []): a.e(ins)
            if dbl: a.e(f"s_waitcnt vmcnt({5 + (3 if late == 1 else 0) + (3 if apos == 0 else 0)})")
            idle_prep()
        def aft2():
            if apos == 4:
                for ins in arch: a.e(ins)
            aft()
            if ulate:
                for hh in range(4):
                    for t in range(2): a.e(uld(hh, t)[0])
        na = (3 if late == 1 else 0) + (3 if apos == 0 else 0)
        retry = h2_stage(a, pre, PR, None, None, vSB, vStW, vH2, vMk, 1, mk_sleep, prof, pollw=(3 if (MKG[0] and not mkearly) else 2), after=aft, nafter=na, after2=aft2 if (ulate or apos == 4) else None, nafter2=na+(8 if ulate else 0)+(3 if apos == 4 else 0))
        ts(a, prof, 6)
        prof_dump(a, prof, pre)
        a.e("s_add_u32 s28, s28, 1"); a.e("s_xor_b32 s29, s29, 0x80008000")
        a.e(f"s_branch {pre}_loop")
        retry()
        if dbl:
            a.label(f"{pre}_pbad1")
            if prof: a.e("s_add_u32 s83, s83, 0x1000000")
            a.nop(4)
            for q in range(12): a.e(f"v_mov_b32 v{RA+q}, 0")
            consume(Px2, Pm2, Y2, 0, f"{pre}_pbad")
            a.e(f"s_branch {pre}_pok")
        a.label(f"{pre}_pbad")
        pload(P0); yload()
        if prof: a.e("s_add_u32 s83, s83, 0x10000")
        a.e("s_sub_u32 s82, s82, 1"); a.e("s_cbranch_scc1 L_abort")
        for q in range(12): a.e(f"v_mov_b32 v{RA+q}, 0")
        consume(P0, P0+8, YS, 0, f"{pre}_pbad")
        a.e(f"s_branch {pre}_pok")
        a.label(f"{pre}_last")
        ystores("s54", "sc1")
        a.e("s_waitcnt vmcnt(0)")
        a.e("s_barrier")
        a.e(f"v_mov_b32 v2, {nsteps}"); a.e("v_mov_b32 v3, 0"); a.e("s_mov_b64 exec, 1")
        a.e(f"buffer_store_dword v2, v3, s[8:11], s34 offen offset:4 sc1")
        if not QARCH[0]: a.e(f"buffer_store_dword v2, v3, s[8:11], s34 offen sc1")
        a.e("s_waitcnt vmcnt(0)")
        a.e("s_mov_b64 exec, -1")
        a.e(f"s_branch {pre0}_end")
    pre0 = pre
    if cw:
        a.e("s_cmp_lt_u32 s81, 32"); a.e(f"s_cbranch_scc1 {pre}S_loop")
        emit_loop(pre, "", prof)
        emit_loop(pre + "S", "sc1", 0)
    else:
        emit_loop(pre, LST, prof)
    a.label(f"{pre}_end")
```

```python
import math, struct
from asmlib import *
from layout import *
def fbits(x): return struct.unpack("<I", struct.pack("<f", x))[0]

ACC = 64
GP = dict(dma_start=16, xper=2, st='sc1', slp1=16, slp2=48, slpf=4)
MF = "v_mfma_f32_32x32x16_bf16"
GUARD = 'a.e("s_sub_u32 s82, s82, 1"); a.e("s_cbranch_scc1 L_abort")'
def guard(a): a.e("s_sub_u32 s82, s82, 1"); a.e("s_cbranch_scc1 W_abort")

def wait_flags(a, lab, soff, nwords, stride_sh, thresh, sleep=16, imm=0):
    a.e(f"v_min_u32 v3, {nwords-1}, v1")
    a.e(f"v_lshlrev_b32 v3, {stride_sh}, v3")
    a.label(lab)
    a.e(f"buffer_load_dword v2, v3, s[8:11], {soff} offen offset:{imm} sc1")
    guard(a)
    a.e("s_waitcnt vmcnt(0)")
    a.e(f"v_cmp_gt_u32 vcc, {thresh}, v2")
    a.e(f"s_cbranch_vccz {lab}_ok")
    a.e(f"s_sleep {sleep}")
    a.e(f"s_branch {lab}")
    a.label(f"{lab}_ok")

def wait_progress(a, lab, soff, thresh):
    a.e("s_mov_b64 exec, 1")
    a.label(lab)
    a.e(f"buffer_load_dword v2, off, s[8:11], {soff} sc1")
    guard(a)
    a.e("s_waitcnt vmcnt(0)")
    a.e("v_readfirstlane_b32 s30, v2")
    a.e("s_add_u32 s30, s30, 1")
    a.e(f"s_cmp_ge_u32 s30, {thresh}"); a.e(f"s_cbranch_scc1 {lab}_ok")
    a.e("s_add_u32 s30, s30, 1")
    a.e(f"s_sleep {GP['slp1']}")
    a.e(f"s_cmp_ge_u32 s30, {thresh}"); a.e(f"s_cbranch_scc1 {lab}")
    a.e(f"s_sleep {GP['slp2']}")
    a.e(f"s_branch {lab}")
    a.label(f"{lab}_ok")
    a.e("s_mov_b64 exec, -1")

def set_flag(a, soff, val="1", add=False):
    lab = a.newlabel("W_fl")
    a.e("s_waitcnt vmcnt(0)")
    a.e("s_barrier")
    a.e("s_cmp_lg_u32 s24, 0"); a.e(f"s_cbranch_scc1 {lab}")
    a.e(f"v_mov_b32 v2, {val}"); a.e("v_mov_b32 v3, 0"); a.e("s_mov_b64 exec, 1")
    if add: a.e(f"buffer_atomic_add v2, v3, s[8:11], {soff} offen sc1")
    else: a.e(f"buffer_store_dword v2, v3, s[8:11], {soff} offen sc1")
    a.e("s_mov_b64 exec, -1")
    a.label(lab)

CW = [None]
def spec_check(a):
    lab = a.newlabel("W_sp")
    a.e("s_cmp_eq_u32 s81, 0"); a.e(f"s_cbranch_scc1 {lab}")
    CW[0](a, lab + "c")
    a.e("s_mov_b32 s81, 0")
    a.e("s_and_b32 s25, s84, s85")
    for i in range(86, 92): a.e(f"s_and_b32 s25, s25, s{i}")
    a.e("s_cmp_eq_u32 s25, 32"); a.e(f"s_cbranch_scc1 {lab}r")
    a.e("s_waitcnt vmcnt(0) lgkmcnt(0)"); a.e("s_barrier"); a.e("s_branch M_worker")
    a.label(f"{lab}r")
    a.e("s_load_dwordx2 s[84:85], s[0:1], 0"); a.e("s_load_dwordx2 s[86:87], s[0:1], 56"); a.e("s_waitcnt lgkmcnt(0)")
    a.label(lab)
NS = 4; SLOT = 24576
FW = [0, 24]; XF = [48, 56]; VOP = 128
XB = 98304
WPROF = [0]
def wts(a, i):
    if WPROF[0]: a.e(f"s_memtime s[{88+2*i}:{89+2*i}]")
vW = 8; vTB = 14; vTC = 16; vW2 = 18; vT2 = 23; vXD = 24; vXR = 32; vST = 36
STG = [40, 48, 56, 224, 232, 240, 248]
def w_voffsets(a, NT, dst, ld):
    UPR = NT*4; NW = NT
    for i in range(NW):
        a.e(f"s_mul_i32 s25, s24, {NW*64}")
        a.e(f"s_add_u32 s25, s25, {i*64}")
        a.e("v_add_u32 v4, s25, v1")
        a.e(f"v_mul_u32_u24 v5, {(65536+UPR-1)//UPR}, v4")
        a.e("v_lshrrev_b32 v5, 16, v5")
        a.e(f"v_mul_u32_u24 v6, {UPR}, v5")
        a.e("v_sub_u32 v6, v4, v6")
        if NT == 6:
            a.e("v_lshlrev_b32 v7, 1, v5"); a.e("v_and_b32 v7, 4, v7"); a.e("v_xor_b32 v6, v6, v7")
        if isinstance(ld, int): a.e(f"v_mul_u32_u24 v5, {ld}, v5")
        else: a.e(f"v_mul_lo_u32 v5, v5, {ld}")
        a.e(f"v_lshl_add_u32 v{dst+i}, v6, 4, v5")
def tr_bases(a, NT, dst, khmul, two):
    RB = NT*64
    a.e("v_lshrrev_b32 v4, 5, v1"); a.e("v_bfe_u32 v5, v1, 2, 2")
    a.e(f"v_mul_u32_u24 v4, {khmul}, v4"); a.e("v_add_u32 v4, v4, v5")
    a.e(f"v_mul_u32_u24 v4, {RB}, v4")
    a.e("v_bfe_u32 v6, v1, 4, 1"); a.e("v_lshl_add_u32 v4, v6, 5, v4")
    a.e("v_and_b32 v6, 3, v1"); a.e("v_lshl_add_u32 v4, v6, 3, v4")
    if NT == 6:
        a.e("v_bfe_u32 v5, v1, 3, 1"); a.e("v_lshlrev_b32 v5, 6, v5")
        a.e(f"v_add_u32 v{dst}, v4, v5"); a.e(f"v_sub_u32 v{dst+1}, v4, v5")
    else:
        a.e(f"v_mov_b32 v{dst}, v4")
        if two: a.e(f"v_mov_b32 v{dst+1}, v4")
ADV = [f"s_add_u32 s29, s29, {SLOT}", f"s_cmp_eq_u32 s29, {NS*SLOT}", "s_cselect_b32 s29, 0, s29"]
def dmas(NW, vbase, srd, sreg, sinc, woff):
    it = []
    for i in range(NW):
        pre = [f"s_add_u32 m0, s29, {woff}"] if i == 0 else ["s_add_u32 m0, m0, 1024"]
        it.append(pre + ["s_nop 0", f"buffer_load_dwordx4 v{vbase+i}, {srd}, {sreg} offen lds"])
    it[-1] += [f"s_add_u32 {sreg}, {sreg}, {sinc}"] + ADV
    return it
def xdmas(MB, st, xsrd, sreg):
    SET = 16384*MB
    it = [[f"s_add_u32 m0, s52, {st*SET + i*1024}", "s_nop 0", f"buffer_load_dwordx4 v{vXD+i}, {xsrd}, {sreg} offen lds"] for i in range(4*MB)]
    it[-1].append(f"s_add_u32 {sreg}, {sreg}, 128")
    return it
def adv_read(a, base, two):
    a.e(f"s_add_u32 s30, s30, {SLOT}"); a.e(f"s_cmp_eq_u32 s30, {NS*SLOT}"); a.e("s_cselect_b32 s30, 0, s30")
    a.e(f"v_add_u32 v{vTC}, s30, v{base}")
    if two: a.e(f"v_add_u32 v{vTC+1}, s30, v{base+1}")
def cond(a, items, sreg):
    out = []
    for it in items:
        lab = a.newlabel("W_c")
        out.append([f"s_cmp_eq_u32 {sreg}, 0", f"s_cbranch_scc1 {lab}"] + it + [f"{lab}:"])
    return out
def main_reads(NT, MB, f, ks, st):
    RB = NT*64
    r = [[f"ds_read_b64_tr_b16 {ar(FW[f]+4*t+2*h,2)}, v{vTC+(t&1)} offset:{(8*ks+4*h)*RB + t*64}" for h in range(2)] for t in range(NT)]
    x = [[f"ds_read_b128 {ar(XF[f]+4*tb,4)}, v{vXR+ks} offset:{st*16384*MB + tb*4096}" for tb in range(MB)]]
    return x + r

def gemm_setup(a, NT, MB, withU):
    a.e("v_lshrrev_b32 v4, 3, v1"); a.e(f"s_mul_i32 s25, s24, {32*MB}"); a.e("v_add_u32 v4, s25, v4"); a.e("v_mul_u32_u24 v4, 1280, v4")
    a.e("v_lshrrev_b32 v5, 4, v1"); a.e("v_and_b32 v6, 7, v1"); a.e("v_xor_b32 v5, v5, v6")
    a.e(f"v_lshl_add_u32 v{vXD}, v5, 4, v4"); a.e("v_xor_b32 v5, 4, v5"); a.e(f"v_lshl_add_u32 v{vXD+1}, v5, 4, v4"); a.e(f"v_add_u32 v{vXD+1}, 10240, v{vXD+1}")
    for i in range(2, 4*MB): a.e(f"v_add_u32 v{vXD+i}, 20480, v{vXD+i-2}")
    a.e(f"s_mul_i32 s52, s24, {4096*MB}"); a.e(f"s_add_u32 s52, s52, {XB}")
    w_voffsets(a, NT, vW, "s33")
    a.e("s_lshl_b32 s28, s33, 6")
    a.e(f"s_mul_i32 s32, s24, {NT*1024}")
    a.e("s_mov_b32 s29, 0")
def gemm_setup2(a, NT, MB, withU):
    a.e(f"s_mul_i32 s25, s24, {32*MB}")
    a.e("v_and_b32 v4, 31, v1"); a.e("v_bfe_u32 v5, v1, 1, 3"); a.e("v_lshrrev_b32 v6, 5, v1"); a.e("v_lshlrev_b32 v6, 2, v6"); a.e("v_xor_b32 v5, v5, v6")
    a.e("v_add_u32 v4, s25, v4"); a.e("v_lshlrev_b32 v4, 7, v4"); a.e(f"v_add_u32 v4, {XB}, v4")
    for ks in range(4):
        a.e(f"v_xor_b32 v6, {ks}, v5"); a.e(f"v_lshl_add_u32 v{vXR+ks}, v6, 4, v4")
    tr_bases(a, NT, vTB, 32, True)
    a.e(f"v_lshlrev_b32 v{vST}, 4, v1")
    if withU:
        w_voffsets(a, 5, vW2, 1280)
        tr_bases(a, 5, vT2, 4, False)
        a.e("s_mul_i32 s34, s24, 5120")

def gemm_cold(a, NT, MB, xsrd, withU):
    PD = 2 if MB == 2 else 3
    gemm_setup(a, NT, MB, withU)
    for p in range(PD):
        for it in dmas(NT, vW, "s[12:15]", "s27", "s28", "s32"): a.e("\n".join(it))
        if p < PD-1:
            for it in xdmas(MB, p, xsrd, "s26"): a.e("\n".join(it))
    gemm_setup2(a, NT, MB, withU)
    a.e("s_mov_b32 s54, 0")
    a.e(f"s_waitcnt vmcnt({(PD-1)*NT + (PD-2)*4*MB})")
    a.e("s_barrier")
    wts(a, 1)
    a.e(f"v_mov_b32 v{vTC}, v{vTB}"); a.e(f"v_mov_b32 v{vTC+1}, v{vTB+1}")
    a.e("s_mov_b32 s30, 0")
    for it in main_reads(NT, MB, 0, 0, 0): a.e("\n".join(it))

def pend_flag(a):
    lab = a.newlabel("W_pf")
    a.e("s_cmp_eq_u32 s54, 0"); a.e(f"s_cbranch_scc1 {lab}")
    a.e("v_mov_b32 v2, 1"); a.e("v_lshlrev_b32 v3, 2, v1"); a.e("s_mov_b32 exec_hi, 0"); a.e("s_mov_b32 exec_lo, s54")
    a.e("buffer_store_dword v2, v3, s[8:11], s53 offen sc1")
    a.e("s_mov_b64 exec, -1"); a.e("s_mov_b32 s54, 0")
    a.label(lab)

def next_items(a):
    A = cond(a, dmas(6, vW, "s[56:59]", "s61", "s28", "s32"), "s62")
    B = cond(a, xdmas(2, 0, "s[48:51]", "s60") + dmas(6, vW, "s[56:59]", "s61", "s28", "s32"), "s62")
    return [A, B]

def gemm_loop(a, NT, MB, xsrd, tail):
    PD = 2 if MB == 2 else 3
    NX = PD
    nst = 10; NM = MB*NT
    dma_start, xper = (GP['dma_start'], GP['xper']) if MB == 2 else (0, 2)
    def mfmas(f, first):
        m = []
        for t in range(NT):
            for tb in range(MB):
                d = ACC + (tb*NT+t)*16
                m.append(f"{MF} {vr(d,16)}, {ar(FW[f]+4*t,4)}, {ar(XF[f]+4*tb,4)}, {'0' if first else vr(d,16)}")
        return m
    q = []
    for p in range(1, PD):
        q += [("W", p)]*NT
        if p < PD-1: q += [("X", p)]*(4*MB)
    for s in range(nst):
        last = s == nst-1
        ext = [[] for _ in range(4*NM)]
        tg = [[] for _ in range(4*NM)]
        xs = xdmas(MB, (s+PD-1) % NX, xsrd, "s26") if s+PD-1 < nst else []
        certain = True
        if s+PD < nst: ws = dmas(NT, vW, "s[12:15]", "s27", "s28", "s32")
        else:
            k = s+PD-nst
            ws = tail[1][k] if tail and k < len(tail[1]) else []
            certain = tail[0] if tail else True
        pos = 0
        for it in xs: ext[pos] += it; tg[pos].append(("X", s+PD-1)); pos += xper
        pos = max(pos, dma_start if xs else 0)
        if not certain and not last: pos = 3*NM
        step = max(1, ((4*NM if certain or not last else 4*NM - 6) - pos)//max(1, len(ws)))
        for it in ws:
            ext[pos] += it
            if certain: tg[pos].append(("W", s+PD))
            pos += step
        for ks in range(4):
            f = ks & 1
            if ks < 3 or last: a.e("s_waitcnt lgkmcnt(0)")
            else:
                idx = [i for i, t in enumerate(q) if t in (("W", s+1), ("X", s+1))]
                n = len(q) - 1 - max(idx) if idx else len(q)
                if idx: q = q[max(idx)+1:]
                a.e(f"s_waitcnt vmcnt({n}) lgkmcnt(0)")
                a.e("s_barrier")
                adv_read(a, vTB, True)
                if s == 0 and MB == 2 and NT == 6:
                    pend_flag(a)
                    a.e("s_add_u32 s25, s79, 4"); a.e("s_load_dword s55, s[76:77], s25")
            rd = main_reads(NT, MB, f ^ 1, ks+1, s % NX) if ks < 3 else ([] if last else main_reads(NT, MB, 0, 0, (s+1) % NX))
            per = 1 if NM >= len(rd) else 2
            fl = merge(spread(rd, NM, 0, per=per), ext[ks*NM:(ks+1)*NM])
            for ins in interleave(mfmas(f, s == 0 and ks == 0), fl): a.e(ins)
            for g in range(ks*NM, (ks+1)*NM): q += tg[g]
    wts(a, 2)

def warm_handoff(a, nyoung):
    lab = a.newlabel("W_wh")
    a.e("s_cmp_eq_u32 s62, 0"); a.e(f"s_cbranch_scc1 {lab}")
    a.e(f"s_waitcnt vmcnt({nyoung})")
    a.e("s_barrier")
    adv_read(a, vTB, True)
    for it in main_reads(6, 2, 0, 0, 0): a.e("\n".join(it))
    a.label(lab)

def finish(a, maskreg):
    lab = a.newlabel("W_fin")
    spec_check(a)
    a.e("s_cmp_eq_u32 s62, 0"); a.e(f"s_cbranch_scc1 {lab}")
    a.e("s_mov_b32 s53, s36"); a.e("s_cmp_eq_u32 s24, 0"); a.e(f"s_cselect_b32 s54, {maskreg}, 0")
    a.e("s_branch W_warm")
    a.label(lab)
    a.e("s_waitcnt vmcnt(0)"); a.e("s_barrier")
    a.e("s_mov_b32 s53, s36"); a.e("s_cmp_eq_u32 s24, 0"); a.e(f"s_cselect_b32 s54, {maskreg}, 0")
    pend_flag(a)
    a.e("s_branch W_next")

def epi_chunks(a, MB, segstride):
    a.nop(8)
    k = 0
    for tb in range(MB):
        for t in range(6):
            d = ACC + (tb*6+t)*16
            for j in range(2):
                r = 40 + (k % 6)*4; k += 1
                for q in range(4): a.e(f"v_cvt_pk_bf16_f32 v{r+q}, v{d+8*j+2*q}, v{d+8*j+2*q+1}")
                off = t*2048 + j*1024
                if off % 4096 == 0:
                    if tb == 0: a.e(f"s_add_u32 s25, s31, {off}")
                    else: a.e(f"s_add_u32 s25, {segstride}, s31"); a.e(f"s_add_u32 s25, s25, {off}")
                a.e(f"buffer_store_dwordx4 {vr(r,4)}, v{vST}, s[8:11], s25 offen offset:{off % 4096} {GP['st']}")

def task_kq(a, MB):
    if MB == 2:
        gemm_cold(a, 6, 2, "s[48:51]", True)
        a.label("W_kq_warm")
        gemm_loop(a, 6, 2, "s[48:51]", (False, next_items(a)))
        warm_handoff(a, 6)
    else:
        gemm_cold(a, 6, 1, "s[48:51]", False)
        gemm_loop(a, 6, 1, "s[48:51]", None)
    epi_chunks(a, MB, "s35")
    wts(a, 3); wts(a, 4)
    finish(a, "s39")

def task_vu(a, MB):
    RB = 320; NTL = 5*MB
    def wd2():
        it = dmas(5, vW2, "s[16:19]", "s37", 81920, "s34")
        it[-1] += ["s_add_u32 s40, s40, 1", "s_cmp_eq_u32 s40, 3", "s_cselect_b32 s40, 0, s40", f"s_cselect_b32 s42, {(320 - 3*81920) & 0xffffffff}, 0", "s_add_u32 s37, s37, s42"]
        return it
    PD = 2 if MB == 2 else 3
    gemm_cold(a, 6, MB, "s[48:51]", True)
    if MB == 2: a.label("W_vu_warm")
    a.e("s_mov_b32 s40, 0")
    gemm_loop(a, 6, MB, "s[48:51]", (True, [wd2() for _ in range(PD)]))
    a.e(f"s_waitcnt vmcnt({5*(PD-1)})")
    a.e("s_barrier")
    adv_read(a, vT2, False)
    def wreads(f, ks):
        return [[f"ds_read_b64_tr_b16 {ar(FW[f]+4*t+2*h,2)}, v{vTC} offset:{(16*ks+8*h)*RB + t*64}" for h in range(2)] for t in range(5)]
    for it in wreads(0, 0): a.e("\n".join(it))
    k = 0
    for tb in range(MB):
        for T in range(6):
            d = ACC + (tb*6+T)*16
            for q in range(8):
                r = 40 + (k % 8); k += 1
                a.e(f"v_cvt_pk_bf16_f32 v{r}, v{d+2*q}, v{d+2*q+1}")
                a.e(f"v_accvgpr_write_b32 a{VOP + (tb*6+T)*8 + q}, v{r}")
    wts(a, 3)
    ND = max(0, NTL - len(STG))
    def grp(i): return STG[0] if i < ND else STG[i-ND]
    def cvts(i):
        d = ACC + i*16; r = grp(i)
        return [f"v_cvt_pk_bf16_f32 v{r+q}, v{d+2*q}, v{d+2*q+1}" for q in range(8)]
    def stores(i):
        tb, t = divmod(i, 5); off = t*2048; r = grp(i)
        return [[f"s_add_u32 s25, s31, {tb*32*40960 + (off & ~4095)}", f"buffer_store_dwordx4 {vr(r,4)}, v{vST}, s[8:11], s25 offen offset:{off % 4096} {GP['st']}"],
                [f"buffer_store_dwordx4 {vr(r+4,4)}, v{vST}, s[8:11], s25 offen offset:{off % 4096 + 1024} {GP['st']}"]]
    def mf(f, sg, ks, i):
        tb, t = divmod(i, 5); T = 2*sg + (ks >> 1); j = ks & 1; d = ACC + i*16
        return f"{MF} {vr(d,16)}, {ar(VOP + ((tb*6+T)*2+j)*4,4)}, {ar(FW[f]+4*t,4)}, {'0' if sg == 0 and ks == 0 else vr(d,16)}"
    def pass_body(pending, final):
        NM = NTL
        st_items = []
        if pending:
            for i in range(ND, NTL): st_items += stores(i)
        nx = next_items(a) if (final and MB == 2) else [[], []]
        prev_w = 5*(PD-1)
        for sg in range(3):
            ext = [[] for _ in range(4*NM)]
            nU = (not final) or sg + PD < 3
            ws = wd2() if nU else (nx[sg - (3-2)] if sg >= 1 else [])
            nmine = (len(st_items) + (2-sg))//(3-sg) if sg < 2 else len(st_items)
            mine = st_items[:nmine]; st_items = st_items[nmine:]
            p0 = NM if (sg == 0 and pending) else 0
            if nU:
                seq = []
                wi = list(ws); si = list(mine)
                while wi or si:
                    if wi: seq.append(wi.pop(0))
                    if si: seq.append(si.pop(0))
                for n, it in enumerate(seq): ext[p0 + (n*(3*NM - p0))//len(seq)] += it
            elif sg < 2:
                for n, it in enumerate(mine): ext[p0 + (n*(3*NM - p0))//len(mine)] += it
                for n, it in enumerate(ws): ext[3*NM + (n*NM)//len(ws)] += it
            else:
                seq = list(mine) + list(ws)
                for n, it in enumerate(seq): ext[(n*(4*NM - 4))//len(seq)] += it
            if sg == 2 and pending: ext[4*NM-1] += [f"s_add_u32 s31, s31, {5*2048}"]
            for ks in range(4):
                f = ks & 1
                lastst = final and sg == 2
                if ks < 3 or lastst: a.e("s_waitcnt lgkmcnt(0)")
                else:
                    thisn = len(mine) + (5 if nU else 0)
                    older = 5*(PD-2) if (PD > 2 and ((not final) or sg + PD - 1 < 3)) else 0
                    a.e(f"s_waitcnt vmcnt({thisn + older}) lgkmcnt(0)")
                    a.e("s_barrier")
                    adv_read(a, vT2, False)
                rd = wreads(f ^ 1, ks+1) if ks < 3 else ([] if lastst else wreads(0, 0))
                fl = merge(spread(rd, NM, 0, per=1), ext[ks*NM:(ks+1)*NM])
                for i in range(NM):
                    if pending and sg == 0 and ks == 0:
                        for ins in cvts(i): a.e(ins)
                        if i < ND:
                            for it in stores(i): a.e("\n".join(it))
                    a.e(mf(f, sg, ks, i))
                    for ins in fl[i]: a.e(ins)
    lp = a.newlabel("W_pass")
    pass_body(False, False)
    a.e("s_cmp_eq_u32 s38, 2"); a.e(f"s_cbranch_scc1 {lp}_fin")
    if MB == 2:
        a.label(lp)
        pass_body(True, False)
        a.e("s_sub_u32 s38, s38, 1"); a.e("s_cmp_lg_u32 s38, 2"); a.e(f"s_cbranch_scc1 {lp}")
    a.label(f"{lp}_fin")
    pass_body(True, True)
    wts(a, 4)
    if MB == 2: warm_handoff(a, 6)
    a.nop(8)
    for i in range(NTL):
        r = 40 + 8*(i % 3)
        d = ACC + i*16; tb, t = divmod(i, 5); off = t*2048
        for q in range(8): a.e(f"v_cvt_pk_bf16_f32 v{r+q}, v{d+2*q}, v{d+2*q+1}")
        a.e(f"s_add_u32 s25, s31, {tb*32*40960 + (off & ~4095)}")
        a.e(f"buffer_store_dwordx4 {vr(r,4)}, v{vST}, s[8:11], s25 offen offset:{off % 4096} {GP['st']}")
        a.e(f"buffer_store_dwordx4 {vr(r+4,4)}, v{vST}, s[8:11], s25 offen offset:{off % 4096 + 1024} {GP['st']}")
    finish(a, "s39")

def task_bout(a):
    gemm_cold(a, 5, 2, "s[8:11]", False)
    gemm_loop(a, 5, 2, "s[8:11]", None)
    a.e("v_and_b32 v4, 31, v1"); a.e("s_lshl_b32 s25, s24, 6"); a.e("v_add_u32 v4, s25, v4"); a.e("v_mul_u32_u24 v4, 2560, v4")
    a.e("v_lshrrev_b32 v5, 5, v1"); a.e("v_lshl_add_u32 v4, v5, 4, v4"); a.e(f"v_add_u32 v5, {32*2560}, v4")
    a.nop(4)
    k = 0
    for tb in range(2):
        for t in range(5):
            d = ACC + (tb*5+t)*16
            for j in range(2):
                r = 40 + (k % 6)*4; k += 1
                for q in range(4): a.e(f"v_cvt_pk_bf16_f32 v{r+q}, v{d+8*j+2*q}, v{d+8*j+2*q+1}")
                a.nop(2)
                a.e(f"v_permlane32_swap_b32 v{r}, v{r+2}"); a.e(f"v_permlane32_swap_b32 v{r+1}, v{r+3}")
                a.e(f"buffer_store_dwordx4 {vr(r,4)}, v{4+tb}, s[20:23], s31 offen offset:{t*64 + j*32}")
    a.e("s_barrier")

NEGINF = 0xff800000
def task_tp(a):
    C = 192**-0.5 * math.log2(math.e)
    KR = 64; QR = 112; MR = 160; S = 16; SM = 32
    a.e("s_lshl_b32 s46, s45, 2"); a.e("s_add_u32 s46, s46, s24")
    a.e("s_lshl_b32 s47, s44, 5"); a.e("s_add_u32 s47, s47, s46")
    a.e("s_lshr_b32 s25, s44, 3"); a.e("s_lshl_b32 s25, s25, 5"); a.e("s_add_u32 s25, s25, s46"); a.e("s_lshl_b32 s25, s25, 4"); a.e(f"s_add_u32 s26, s25, {WS_FLAGS+F_Q}"); a.e(f"s_add_u32 s25, s25, {WS_FLAGS+F_K}")
    wait_flags(a, a.newlabel("W_k"), "s25", 2, 2, 1)
    wait_flags(a, a.newlabel("W_q"), "s26", 2, 2, 1)
    a.e("v_lshlrev_b32 v4, 4, v1")
    a.e("s_mul_i32 s26, s47, 12288"); a.e(f"s_add_u32 s27, s26, {WS_Q}"); a.e(f"s_add_u32 s26, s26, {WS_K}")
    for i in range(12):
        if i and i % 4 == 0: a.e("s_add_u32 s26, s26, 4096"); a.e("s_add_u32 s27, s27, 4096")
        a.e(f"buffer_load_dwordx4 {vr(KR+4*i,4)}, v4, s[8:11], s26 offen offset:{1024*(i%4)}")
        a.e(f"buffer_load_dwordx4 {vr(QR+4*i,4)}, v4, s[8:11], s27 offen offset:{1024*(i%4)}")
    a.e("v_and_b32 v5, 31, v1"); a.e("v_lshrrev_b32 v6, 5, v1"); a.e("v_lshlrev_b32 v7, 2, v6"); a.e("v_sub_u32 v8, v5, v7")
    a.e("v_and_b32 v7, 7, v1"); a.e("v_lshlrev_b32 v7, 4, v7"); a.e("v_lshl_add_u32 v7, v6, 7, v7"); a.e("s_mul_i32 s25, s24, 3072"); a.e("v_add_u32 v9, s25, v7")
    a.e("v_lshlrev_b32 v10, 4, v5"); a.e("v_lshl_add_u32 v10, v6, 3, v10")
    a.e(f"v_mov_b32 v11, {NEGINF}")
    for i in range(12):
        a.e(f"s_waitcnt vmcnt({22-2*i})")
        a.e(f"{MF} {vr(S,16)}, {vr(KR+4*i,4)}, {vr(QR+4*i,4)}, {'0' if i == 0 else vr(S,16)}")
    a.e("s_lshl_b32 s25, s46, 7"); a.e(f"s_add_u32 s25, s25, {WS_FLAGS+F_KM}"); a.e("s_add_u32 s28, s44, 1")
    a.nop(8)
    for r in range(16):
        kr = (r & 3) + 8*(r >> 2)
        a.e(f"v_cmp_le_i32 vcc, {kr}, v8")
        a.nop(2)
        a.e(f"v_cndmask_b32 v{S+r}, v11, v{S+r}, vcc")
    a.e(f"v_max3_f32 v12, v{S}, v{S+1}, v{S+2}")
    for r in range(3, 15, 2): a.e(f"v_max3_f32 v12, v{S+r}, v{S+r+1}, v12")
    a.e(f"v_max_f32 v12, v{S+15}, v12")
    wait_progress(a, a.newlabel("W_kp"), "s25", "s28")
    wait_flags(a, a.newlabel("W_km"), "s25", 1, 2, "s28", sleep=GP['slpf'])
    a.e("s_mul_i32 s26, s47, 3072"); a.e(f"s_add_u32 s26, s26, {WS_KM}"); a.e("s_mul_i32 s25, s24, 3072")
    for i in range(3):
        a.e(f"s_add_u32 m0, s25, {1024*i}"); a.e("s_nop 0")
        a.e(f"buffer_load_dwordx4 v4, s[8:11], s26 offen sc1 lds")
        a.e("s_add_u32 s26, s26, 1024")
    a.e("s_waitcnt vmcnt(0)")
    for i in range(12): a.e(f"ds_read_b128 {vr(MR+4*i,4)}, v9 offset:{256*i}")
    for i in range(12):
        a.e(f"s_waitcnt lgkmcnt({11-i})")
        a.e(f"{MF} {vr(SM,16)}, {vr(MR+4*i,4)}, {vr(QR+4*i,4)}, {'0' if i == 0 else vr(SM,16)}")
    a.e("s_mul_i32 s26, s47, 2560"); a.e(f"s_add_u32 s26, s26, {WS_PT}")
    a.e("s_lshl_b32 s27, s44, 7"); a.e(f"s_add_u32 s27, s27, {WS_FLAGS+F_PT}")
    a.e(f"s_mov_b32 s28, {fbits(C)}")
    a.nop(12)
    a.e(f"v_max3_f32 v12, v{SM}, v{SM+1}, v12"); a.e(f"v_max3_f32 v12, v{SM+2}, v{SM+3}, v12")
    a.e("v_mov_b32 v13, v12"); a.nop(2); a.e("v_permlane32_swap_b32 v12, v13"); a.nop(1); a.e("v_max_f32 v12, v12, v13")
    a.e("v_mul_f32 v12, s28, v12")
    vals = list(range(S, S+16)) + list(range(SM, SM+4))
    for v in vals: a.e(f"v_fma_f32 v{v}, v{v}, s28, -v12")
    for v in vals: a.e(f"v_exp_f32 v{v}, v{v}")
    a.e(f"v_add_f32 v13, v{S}, v{S+1}")
    for v in vals[2:]: a.e(f"v_add_f32 v13, v13, v{v}")
    a.e("v_mov_b32 v14, v13"); a.nop(2); a.e("v_permlane32_swap_b32 v13, v14"); a.nop(1); a.e("v_add_f32 v13, v13, v14")
    a.e("v_rcp_f32 v13, v13"); a.nop(1)
    for v in vals: a.e(f"v_mul_f32 v{v}, v{v}, v13")
    for q in range(8): a.e(f"v_cvt_pk_bf16_f32 v{48+q}, v{S+2*q}, v{S+2*q+1}")
    for q in range(2): a.e(f"v_cvt_pk_bf16_f32 v{56+q}, v{SM+2*q}, v{SM+2*q+1}")
    a.e("buffer_store_dwordx4 v[48:51], v4, s[8:11], s26 offen sc1")
    a.e("buffer_store_dwordx4 v[52:55], v4, s[8:11], s26 offen offset:1024 sc1")
    a.e("buffer_store_dwordx2 v[56:57], v10, s[8:11], s26 offen offset:2048 sc1")
    a.e("v_mov_b32 v2, 1"); a.e("v_mov_b32 v3, 0")
    a.e("s_waitcnt vmcnt(0)")
    a.e("s_mov_b64 exec, 1")
    a.e("buffer_atomic_add v2, v3, s[8:11], s27 offen sc1")
    a.e("s_mov_b64 exec, -1")
    a.e("s_barrier")

def task_pz(a):
    a.e("s_lshr_b32 s25, s44, 3"); a.e("s_lshl_b32 s25, s25, 9"); a.e("s_lshl_b32 s26, s24, 7"); a.e("s_add_u32 s25, s25, s26"); a.e(f"s_add_u32 s25, s25, {WS_FLAGS+F_U}")
    wait_flags(a, a.newlabel("W_u"), "s25", 32, 2, 1)
    a.e("s_lshl_b32 s46, s44, 5"); a.e("s_lshl_b32 s25, s24, 3"); a.e("s_add_u32 s46, s46, s25")
    a.e("v_and_b32 v5, 31, v1"); a.e("v_lshrrev_b32 v6, 5, v1")
    a.e("v_lshlrev_b32 v4, 4, v1")
    a.e("v_lshlrev_b32 v7, 4, v1")
    a.e("v_mul_u32_u24 v8, 2560, v6"); a.e("v_lshl_add_u32 v8, v5, 4, v8")
    a.e("v_mul_u32_u24 v9, 10240, v6"); a.e("v_lshl_add_u32 v9, v5, 4, v9")
    a.e("s_mul_i32 s26, s46, 40960"); a.e("s_lshl_b32 s25, s45, 12"); a.e("s_add_u32 s26, s26, s25"); a.e(f"s_add_u32 s26, s26, {WS_U}")
    for h in range(8):
        for i in range(4): a.e(f"buffer_load_dwordx4 {ar(16*h+4*i,4)}, v4, s[8:11], s26 offen offset:{1024*i}")
        a.e("s_add_u32 s26, s26, 40960")
    a.e("s_lshl_b32 s25, s24, 13"); a.e("v_add_u32 v10, s25, v7")
    a.e("v_and_b32 v11, 7, v0"); a.e("v_lshrrev_b32 v12, 3, v0")
    a.e("v_lshlrev_b32 v13, 10, v11"); a.e("v_lshl_add_u32 v13, v12, 4, v13")
    a.e("v_mul_u32_u24 v14, 2560, v12"); a.e("v_lshl_add_u32 v14, v11, 4, v14")
    a.e("s_lshl_b32 s27, s44, 7"); a.e(f"s_add_u32 s27, s27, {WS_FLAGS+F_PT}")
    a.e("s_add_u32 s28, s44, 1"); a.e("s_lshl_b32 s25, s24, 10"); a.e(f"s_add_u32 s25, s25, {WS_FLAGS+F_YR}")
    a.e("s_min_u32 s28, s28, 63")
    wait_progress(a, a.newlabel("W_yp"), "s25", "s28")
    wait_flags(a, a.newlabel("W_y"), "s25", 8, 7, "s28", sleep=GP['slpf'])
    a.e("s_cmp_lg_u32 s44, 63"); a.e("s_cbranch_scc1 W_pz_nf")
    wait_flags(a, a.newlabel("W_yf"), "s25", 8, 7, 1, sleep=GP['slpf'], imm=4)
    a.label("W_pz_nf")
    a.e("s_mul_i32 s29, s46, 10240"); a.e("s_lshl_b32 s25, s45, 10"); a.e("s_add_u32 s29, s29, s25"); a.e(f"s_add_u32 s29, s29, {WS_YA}")
    for p in range(4):
        for t in range(2): a.e(f"buffer_load_dwordx4 {vr(144+8*p+4*t,4)}, v9, s[8:11], s29 offen offset:{512*t} sc1")
        a.e("s_add_u32 s29, s29, 20480")
    wait_flags(a, a.newlabel("W_p"), "s27", 1, 2, 32, sleep=GP['slpf'])
    a.e("s_mul_i32 s26, s46, 2560"); a.e(f"s_add_u32 s26, s26, {WS_PT}")
    for p in range(4):
        a.e("s_add_u32 s25, s26, 2560")
        for j in range(2): a.e(f"buffer_load_dwordx4 {vr(64+16*p+4*j,4)}, v7, s[8:11], s26 offen offset:{1024*j} sc1")
        for j in range(2): a.e(f"buffer_load_dwordx4 {vr(64+16*p+8+4*j,4)}, v7, s[8:11], s25 offen offset:{1024*j} sc1")
        a.e(f"buffer_load_dwordx4 {vr(128+4*p,4)}, v8, s[8:11], s26 offen offset:2048 sc1")
        a.e("s_add_u32 s26, s26, 5120")
    first = True
    for p in range(4):
        for k in range(5):
            a.e(f"s_waitcnt vmcnt({19-5*p-k})")
            for t in range(2):
                d = 16+16*t
                if k < 4:
                    h = 2*p + (k >> 1); j = k & 1
                    A = ar(16*h + 8*t + 4*j, 4); B = vr(64+16*p+4*k, 4)
                else:
                    A = vr(144+8*p+4*t, 4); B = vr(128+4*p, 4)
                a.e(f"{MF} {vr(d,16)}, {A}, {B}, {'0' if first else vr(d,16)}")
            first = False
    a.e("s_mul_i32 s26, s44, 81920"); a.e("s_lshl_b32 s25, s45, 7"); a.e("s_add_u32 s26, s26, s25")
    a.nop(10)
    for t in range(2):
        if t: a.nop(4)
        for q in range(4): a.e(f"ds_write_b128 v10, {vr(16+16*t+4*q,4)} offset:{(t*4+q)*1024}")
    a.e("s_waitcnt lgkmcnt(0)")
    a.e("s_barrier")
    for w in range(4):
        for hf in range(2): a.e(f"ds_read_b128 {vr(64+8*w+4*hf,4)}, v13 offset:{8192*w + 512*hf}")
    a.e("s_waitcnt lgkmcnt(0)")
    for q in range(0, 8, 2):
        a.e(f"v_pk_add_f32 {vr(64+q,2)}, {vr(64+q,2)}, {vr(72+q,2)}"); a.e(f"v_pk_add_f32 {vr(80+q,2)}, {vr(80+q,2)}, {vr(88+q,2)}")
    for q in range(0, 8, 2): a.e(f"v_pk_add_f32 {vr(64+q,2)}, {vr(64+q,2)}, {vr(80+q,2)}")
    for q in range(4): a.e(f"v_cvt_pk_bf16_f32 v{48+q}, v{64+2*q}, v{64+2*q+1}")
    a.e("buffer_store_dwordx4 v[48:51], v14, s[20:23], s26 offen")
    a.e("s_barrier")

def piece_off(a, dst, c4reg):
    a.e(f"s_lshr_b32 s25, {c4reg}, 4"); a.e(f"s_lshl_b32 {dst}, s25, 10")
    a.e(f"s_bfe_u32 s25, {c4reg}, 0x10002"); a.e("s_lshl_b32 s25, s25, 9"); a.e(f"s_add_u32 {dst}, {dst}, s25")
    a.e(f"s_and_b32 s25, {c4reg}, 8"); a.e(f"s_add_u32 {dst}, {dst}, s25")
def task_batt(a):
    C = 20**-0.5 * math.log2(math.e)
    SEG = 122880; VL = 18432
    S = 64; Q0 = 16; Q1 = 20; KA = 24; DAT = 208; O = 40
    a.e("s_lshr_b32 s26, s44, 1"); a.e("s_max_u32 s27, s26, 1"); a.e("s_sub_u32 s27, s27, 1")
    a.e("s_lshl_b32 s26, s26, 6"); a.e("s_lshl_b32 s27, s27, 6"); a.e(f"s_add_u32 s26, s26, {WS_FLAGS+F_BQ}"); a.e(f"s_add_u32 s27, s27, {WS_FLAGS+F_BQ}")
    wait_flags(a, a.newlabel("W_b1"), "s26", 10, 2, 1)
    wait_flags(a, a.newlabel("W_b2"), "s27", 10, 2, 1)
    a.e("s_mul_i32 s28, s45, 20")
    for part in range(3):
        for c in range(5):
            a.e(f"s_add_u32 s29, s28, {640*part + 4*c}")
            piece_off(a, f"s{48 + 5*part + c}", "s29")
    a.e("v_and_b32 v5, 31, v1"); a.e("v_lshrrev_b32 v6, 5, v1")
    a.e(f"v_mul_u32_u24 v4, {SEG}, v6"); a.e("v_lshl_add_u32 v4, v5, 4, v4")
    a.e("v_mul_u32_u24 v7, 48, v1")
    for i in range(3):
        a.e("s_mul_i32 s29, s24, 3"); a.e(f"s_add_u32 s29, s29, {i}")
        a.e("s_cmp_ge_u32 s29, 6"); a.e("s_cselect_b32 s30, 6, 0"); a.e("s_cselect_b32 s33, 1, 0"); a.e("s_sub_u32 s29, s29, s30")
        a.e("s_lshl_b32 s30, s44, 1"); a.e("s_add_u32 s30, s30, s29"); a.e("s_max_u32 s30, s30, 4"); a.e("s_sub_u32 s30, s30, 4")
        a.e(f"s_mul_i32 s30, s30, {2*SEG}"); a.e(f"s_add_u32 s30, s30, {WS_BQKV}")
        a.e("s_mul_i32 s29, s29, 3072"); a.e(f"s_mul_i32 s34, s33, {VL}"); a.e("s_add_u32 s29, s29, s34")
        a.e(f"v_add_u32 v{8+i}, s29, v7")
        a.e("s_cmp_eq_u32 s33, 1")
        for c in range(5):
            a.e(f"s_cselect_b32 s31, s{58+c}, s{53+c}"); a.e(f"s_mov_b32 s{35+c}, s31")
        for c in range(5):
            a.e(f"s_add_u32 s31, s{35+c}, s30")
            a.e(f"buffer_load_dwordx2 {vr(DAT+10*i+2*c,2)}, v4, s[8:11], s31 offen")
    a.e("s_lshl_b32 s30, s44, 2"); a.e("s_add_u32 s30, s30, s24"); a.e(f"s_mul_i32 s30, s30, {SEG}"); a.e(f"s_add_u32 s30, s30, {WS_BQKV}")
    a.e("v_cmp_eq_u32 vcc, 0, v6"); a.e("v_lshlrev_b32 v11, 4, v5")
    for k in range(2):
        a.e(f"v_mov_b32 v12, s{50+k}"); a.e(f"v_mov_b32 v13, s{48+k}"); a.e("v_cndmask_b32 v12, v12, v13, vcc"); a.e("v_add_u32 v12, v12, v11")
        a.e(f"buffer_load_dwordx2 {vr(Q0+2*k,2)}, v12, s[8:11], s30 offen")
    a.e("s_add_u32 s30, s30, s52")
    a.e(f"buffer_load_dwordx2 {vr(Q1,2)}, v11, s[8:11], s30 offen")
    a.e("v_mov_b32 v14, 0x3f80"); a.e("v_mov_b32 v15, 0"); a.e("v_mul_u32_u24 v12, 48, v0"); a.e("v_and_b32 v13, 127, v0"); a.e("v_mul_u32_u24 v13, 48, v13")
    a.e(f"ds_write_b64 v12, v[14:15] offset:{VL+40}"); a.e(f"ds_write_b64 v13, v[14:15] offset:{VL+40+256*48}")
    for i in range(3):
        for c in range(5):
            a.e(f"s_waitcnt vmcnt({17-5*i-c})")
            a.e(f"ds_write_b64 v{8+i}, {vr(DAT+10*i+2*c,2)} offset:{8*c}")
    a.e("s_mul_i32 s29, s24, 1536")
    a.e("v_mul_u32_u24 v8, 48, v5"); a.e("v_add_u32 v8, s29, v8"); a.e("v_lshl_add_u32 v9, v6, 4, v8")
    a.e("v_bfe_u32 v10, v1, 2, 2"); a.e("v_lshl_add_u32 v10, v6, 2, v10"); a.e("v_mul_u32_u24 v10, 48, v10")
    a.e("v_bfe_u32 v12, v1, 4, 1"); a.e("v_and_b32 v13, 3, v1"); a.e("v_lshl_add_u32 v12, v12, 2, v13"); a.e("v_min_u32 v12, 5, v12"); a.e("v_lshl_add_u32 v10, v12, 3, v10")
    a.e(f"s_add_u32 s29, s29, {VL}"); a.e("v_add_u32 v10, s29, v10")
    a.e("v_lshlrev_b32 v12, 2, v6"); a.e("v_sub_u32 v12, v5, v12")
    a.e(f"v_mov_b32 v13, {NEGINF}")
    a.e("s_waitcnt vmcnt(0)")
    a.e(f"v_cndmask_b32 v{Q1}, 0, v{Q1}, vcc"); a.e(f"v_cndmask_b32 v{Q1+1}, 0, v{Q1+1}, vcc")
    a.e("s_lshl_b32 s33, s44, 2"); a.e("s_add_u32 s33, s33, s24")
    a.e("s_waitcnt lgkmcnt(0)")
    a.e("s_barrier")
    def kread(i):
        r = KA + 6*(i % 3)
        a.e(f"ds_read_b128 {vr(r,4)}, v9 offset:{1536*i}"); a.e(f"ds_read_b64 {vr(r+4,2)}, v8 offset:{1536*i+32}")
    def m8(i):
        a.e(f"v_mfma_f32_32x32x8_bf16 {vr(S+16*i,16)}, {vr(KA+6*(i%3)+4,2)}, {vr(Q1,2)}, {vr(S+16*i,16)}")
    kread(0)
    for i in range(9):
        if i < 8: kread(i+1)
        a.e(f"s_waitcnt lgkmcnt({2 if i < 8 else 0})")
        a.e(f"{MF} {vr(S+16*i,16)}, {vr(KA+6*(i%3),4)}, {vr(Q0,4)}, 0")
        if i == 1: a.nop(4)
        if i > 0: m8(i-1)
    a.nop(4)
    m8(8)
    a.nop(16)
    lab = a.newlabel("W_neg")
    for i in range(8):
        a.e(f"s_cmp_ge_u32 s33, {8-i}"); a.e(f"s_cbranch_scc1 {lab}")
        for r in range(16): a.e(f"v_mov_b32 v{S+16*i+r}, v13")
    a.label(lab)
    for r in range(16):
        kr = (r & 3) + 8*(r >> 2)
        a.e(f"v_cmp_le_i32 vcc, {kr}, v12")
        a.nop(2)
        a.e(f"v_cndmask_b32 v{S+128+r}, v13, v{S+128+r}, vcc")
        a.e(f"v_cndmask_b32 v{S+r}, v{S+r}, v13, vcc")
    a.e(f"v_max3_f32 v14, v{S}, v{S+1}, v{S+2}"); a.e(f"v_max3_f32 v15, v{S+3}, v{S+4}, v{S+5}")
    for r in range(6, 142, 4):
        a.e(f"v_max3_f32 v14, v{S+r}, v{S+r+1}, v14"); a.e(f"v_max3_f32 v15, v{S+r+2}, v{S+r+3}, v15")
    a.e(f"v_max3_f32 v14, v{S+142}, v{S+143}, v14"); a.e("v_max_f32 v14, v14, v15")
    a.e("v_mov_b32 v15, v14"); a.e(f"s_mov_b32 s28, {fbits(C)}"); a.nop(1); a.e("v_permlane32_swap_b32 v14, v15"); a.nop(1); a.e("v_max_f32 v14, v14, v15")
    a.e("v_mul_f32 v14, s28, v14")
    def vread(i):
        for jj in range(2):
            for h in range(2):
                a.e(f"ds_read_b64_tr_b16 {vr(KA+8*(i&1)+4*jj+2*h,2)}, v10 offset:{(32*i+16*jj+8*h)*48}")
    vread(0)
    for i in range(9):
        d = S+16*i
        for r in range(16): a.e(f"v_fma_f32 v{d+r}, v{d+r}, s28, -v14")
        for r in range(16): a.e(f"v_exp_f32 v{d+r}, v{d+r}")
        for q in range(8): a.e(f"v_cvt_pk_bf16_f32 v{d+q}, v{d+2*q}, v{d+2*q+1}")
        if i < 8: vread(i+1)
        a.e(f"s_waitcnt lgkmcnt({4 if i < 8 else 0})")
        if i == 8: a.nop(1)
        for jj in range(2):
            a.e(f"{MF} {vr(O,16)}, {vr(KA+8*(i&1)+4*jj,4)}, {vr(d+4*jj,4)}, {'0' if i == 0 and jj == 0 else vr(O,16)}")
    a.e(f"s_mul_i32 s30, s33, 40960"); a.e(f"s_add_u32 s30, s30, {WS_BO}"); a.e("s_mul_i32 s28, s45, 40"); a.e("s_add_u32 s30, s30, s28")
    a.e("v_mul_u32_u24 v16, 1280, v5"); a.e("v_lshl_add_u32 v16, v6, 3, v16")
    a.nop(12)
    a.e(f"v_mov_b32 v8, v{O+8}"); a.e(f"v_mov_b32 v9, v{O+8}"); a.nop(1); a.e("v_permlane32_swap_b32 v8, v9")
    a.nop(1); a.e("v_rcp_f32 v9, v9"); a.nop(1)
    for r in range(12): a.e(f"v_mul_f32 v{O+r}, v{O+r}, v9")
    for q in range(6): a.e(f"v_cvt_pk_bf16_f32 v{24+q}, v{O+2*q}, v{O+2*q+1}")
    a.e("buffer_store_dwordx2 v[24:25], v16, s[8:11], s30 offen sc1")
    a.e("buffer_store_dwordx2 v[26:27], v16, s[8:11], s30 offen offset:16 sc1")
    a.e("s_mov_b32 exec_hi, 0")
    a.e("buffer_store_dwordx2 v[28:29], v16, s[8:11], s30 offen offset:32 sc1")
    a.e("s_mov_b64 exec, -1")
    a.e("s_lshr_b32 s26, s44, 1"); a.e("s_lshl_b32 s26, s26, 7"); a.e(f"s_add_u32 s26, s26, {WS_FLAGS+F_BA}")
    set_flag(a, "s26", add=True)

T_END, T_K, T_Q, T_VU, T_BQ, T_BA, T_BO, T_P, T_PZ = range(9)
def enc(t, x, y, z=0): return t | (x << 8) | (y << 16) | (z << 24)

def worker(a, table_label, maxlen, cw):
    CW[0] = cw
    a.e("s_load_dwordx8 s[64:71], s[0:1], 16")
    a.e("s_load_dwordx4 s[72:75], s[0:1], 64")
    a.e("s_load_dwordx2 s[20:21], s[0:1], 80")
    a.e("s_load_dwordx2 s[84:85], s[0:1], 0"); a.e("s_load_dwordx2 s[86:87], s[0:1], 56")
    a.e("s_getpc_b64 s[76:77]")
    a.label("W_pc")
    a.e(f"s_add_u32 s76, s76, {table_label}-W_pc"); a.e("s_addc_u32 s77, s77, 0")
    a.e(f"s_mul_i32 s79, s79, {4*maxlen}")
    a.e("s_waitcnt lgkmcnt(0)")
    a.e("s_mov_b32 s22, 5242880"); a.e("s_mov_b32 s23, 0x20000")
    a.e("s_mov_b32 s16, s70"); a.e("s_mov_b32 s17, s71"); a.e("s_mov_b32 s18, 7864320"); a.e("s_mov_b32 s19, 0x20000")
    a.e("s_mov_b32 s12, s64"); a.e("s_mov_b32 s13, s65"); a.e("s_mov_b32 s14, 7864320"); a.e("s_mov_b32 s15, 0x20000")
    a.e("v_and_b32 v1, 63, v0")
    def fetch(warm=False):
        if warm:
            a.e("s_mov_b32 s78, s63"); a.e("s_mov_b32 s63, s55"); a.e("s_add_u32 s79, s79, 4")
        else:
            a.e("s_load_dword s78, s[76:77], s79")
            a.e("s_add_u32 s79, s79, 4")
            a.e("s_load_dword s63, s[76:77], s79")
            a.e("s_waitcnt lgkmcnt(0)")
        a.e("PROFTASK")
        a.e("s_and_b32 s47, s78, 255"); a.e("s_bfe_u32 s44, s78, 0x80008"); a.e("s_bfe_u32 s45, s78, 0x80010"); a.e("s_lshr_b32 s46, s78, 24")
    def nextparams():
        a.e("s_and_b32 s25, s63, 255"); a.e("s_cmp_eq_u32 s25, 1")
        a.e("s_cselect_b32 s56, s66, s64"); a.e("s_cselect_b32 s57, s67, s65")
        a.e("s_cmp_eq_u32 s25, 3"); a.e("s_cselect_b32 s56, s68, s56"); a.e("s_cselect_b32 s57, s69, s57")
        a.e("s_mov_b32 s58, 7864320"); a.e("s_mov_b32 s59, 0x20000")
        a.e("s_sub_u32 s25, s25, 1"); a.e("s_cmp_lt_u32 s25, 3"); a.e("s_cselect_b32 s62, 1, 0")
        a.e("s_bitcmp1_b32 s63, 26"); a.e("s_cselect_b32 s62, 0, s62")
        a.e("s_bfe_u32 s60, s63, 0x80008"); a.e("s_mul_i32 s60, s60, 327680")
        a.e("s_bfe_u32 s61, s63, 0x80010"); a.e("s_mul_i32 s61, s61, 384")
    def aout():
        a.e("s_lshl_b32 s36, s44, 5"); a.e("s_add_u32 s36, s36, s45"); a.e("s_lshl_b32 s36, s36, 4")
        a.e("s_lshl_b32 s31, s44, 3")
        a.e("s_bitcmp1_b32 s46, 2"); a.e("s_cselect_b32 s25, 0, 1"); a.e("s_lshl_b32 s25, s24, s25"); a.e("s_add_u32 s31, s31, s25")
        a.e("s_bfe_u32 s25, s46, 0x10003"); a.e("s_lshl_b32 s25, s25, 2"); a.e("s_add_u32 s31, s31, s25")
        a.e("s_lshl_b32 s31, s31, 5"); a.e("s_add_u32 s31, s31, s45")
        a.e("s_cmp_eq_u32 s47, 3"); a.e("s_cbranch_scc1 W_ao_v" + str(a.uid))
        a.e("s_mul_i32 s31, s31, 12288"); a.e("s_mov_b32 s35, 393216")
        a.e("s_cmp_eq_u32 s47, 1"); a.e(f"s_cselect_b32 s25, 0, {WS_Q-WS_K}"); a.e("s_add_u32 s31, s31, s25"); a.e(f"s_add_u32 s31, s31, {WS_K}")
        a.e("s_cmp_eq_u32 s47, 1"); a.e(f"s_cselect_b32 s25, 0, {F_Q-F_K}"); a.e("s_add_u32 s36, s36, s25"); a.e(f"s_add_u32 s36, s36, {WS_FLAGS+F_K}")
        a.e("s_bfe_u32 s25, s46, 0x10003"); a.e("s_lshl_b32 s39, 1, s25"); a.e("s_bitcmp1_b32 s46, 2"); a.e("s_cselect_b32 s39, s39, 3")
        a.e("s_branch W_ao_d" + str(a.uid))
        a.label("W_ao_v" + str(a.uid))
        a.e("s_mul_i32 s31, s31, 40960"); a.e(f"s_add_u32 s31, s31, {WS_U}"); a.e(f"s_add_u32 s36, s36, {WS_FLAGS+F_U}")
        a.e("s_mul_i32 s37, s45, 245760")
        a.e("s_and_b32 s25, s46, 3"); a.e("s_cmp_eq_u32 s25, 0"); a.e("s_cselect_b32 s38, 4, 2"); a.e("s_cselect_b32 s39, 3, s25")
        a.e("s_cmp_eq_u32 s25, 2"); a.e("s_cselect_b32 s25, 640, 0"); a.e("s_add_u32 s37, s37, s25"); a.e("s_lshl_b32 s25, s25, 5"); a.e("s_add_u32 s31, s31, s25")
        a.e("s_bfe_u32 s25, s46, 0x10003"); a.e("s_lshl_b32 s25, s25, 1"); a.e("s_lshl_b32 s25, s39, s25"); a.e("s_mul_i32 s39, s39, 5")
        a.e("s_bitcmp1_b32 s46, 2"); a.e("s_cselect_b32 s39, s25, s39")
        a.label("W_ao_d" + str(a.uid)); a.uid += 1
    a.e("s_branch W_next")
    a.label("W_abort")
    a.e("s_endpgm")
    a.label("W_warm")
    fetch(True)
    a.e("s_mov_b32 s12, s56"); a.e("s_mov_b32 s13, s57"); a.e("s_mov_b32 s26, s60"); a.e("s_mov_b32 s27, s61")
    nextparams(); aout()
    wts(a, 1)
    a.e("s_cmp_eq_u32 s47, 3"); a.e("s_cbranch_scc1 W_vu_warm"); a.e("s_branch W_kq_warm")
    a.label("W_next")
    fetch()
    for t, l in ((T_P, "W_tp"), (T_PZ, "W_pz"), (T_BA, "W_ba"), (T_BQ, "W_bq"), (T_BO, "W_bo"), (T_END, "W_done")):
        a.e(f"s_cmp_eq_u32 s47, {t}"); a.e(f"s_cbranch_scc1 {l}")
    a.e("s_cmp_eq_u32 s47, 1"); a.e("s_cselect_b32 s12, s66, s64"); a.e("s_cselect_b32 s13, s67, s65")
    a.e("s_cmp_eq_u32 s47, 3"); a.e("s_cselect_b32 s12, s68, s12"); a.e("s_cselect_b32 s13, s69, s13"); a.e("s_mov_b32 s14, 7864320")
    a.e("s_mul_i32 s26, s44, 327680"); a.e("s_bfe_u32 s25, s46, 0x10003"); a.e("s_mul_i32 s25, s25, 163840"); a.e("s_add_u32 s26, s26, s25")
    a.e("s_mov_b32 s48, s84"); a.e("s_mov_b32 s49, s85"); a.e("s_mov_b32 s50, 2621440"); a.e("s_mov_b32 s51, 0x20000")
    a.e("s_mul_i32 s27, s45, 384"); a.e("s_mov_b32 s33, 12288")
    nextparams(); aout()
    a.e("s_bitcmp1_b32 s46, 2"); a.e("s_cbranch_scc1 W_mb1")
    a.e("s_cmp_eq_u32 s47, 3"); a.e("s_cbranch_scc1 W_vu"); a.e("s_branch W_kq")
    a.label("W_mb1"); a.e("s_mov_b32 s62, 0")
    a.e("s_cmp_eq_u32 s47, 3"); a.e("s_cbranch_scc1 W_vu1")
    task_kq(a, 1)
    a.label("W_vu1"); task_vu(a, 1)
    a.label("W_bq")
    a.e("s_mov_b32 s12, s72"); a.e("s_mov_b32 s13, s73"); a.e("s_mov_b32 s14, 2457600")
    a.e("s_mul_i32 s26, s44, 327680"); a.e("s_mov_b32 s48, s86"); a.e("s_mov_b32 s49, s87"); a.e("s_mov_b32 s50, 2621440"); a.e("s_mov_b32 s51, 0x20000")
    a.e("s_mul_i32 s27, s45, 384"); a.e("s_mov_b32 s33, 3840")
    a.e("s_lshl_b32 s36, s44, 4"); a.e("s_add_u32 s36, s36, s45"); a.e("s_lshl_b32 s36, s36, 2"); a.e(f"s_add_u32 s36, s36, {WS_FLAGS+F_BQ}")
    a.e("s_lshl_b32 s31, s44, 3"); a.e("s_lshl_b32 s25, s24, 1"); a.e("s_add_u32 s31, s31, s25"); a.e("s_mul_i32 s31, s31, 10"); a.e("s_add_u32 s31, s31, s45")
    a.e("s_mul_i32 s31, s31, 12288"); a.e(f"s_add_u32 s31, s31, {WS_BQKV}"); a.e("s_mov_b32 s35, 122880")
    a.e("s_mov_b32 s39, 1"); a.e("s_mov_b32 s62, 0")
    a.e("s_mov_b32 s56, s64"); a.e("s_mov_b32 s57, s65"); a.e("s_mov_b32 s58, 7864320"); a.e("s_mov_b32 s59, 0x20000")
    a.label("W_kq"); task_kq(a, 2)
    a.label("W_vu"); task_vu(a, 2)
    a.label("W_bo")
    a.e("s_lshl_b32 s26, s44, 7"); a.e(f"s_add_u32 s26, s26, {WS_FLAGS+F_BA}")
    wait_flags(a, "W_bow", "s26", 1, 2, 64)
    a.e("s_mov_b32 s12, s74"); a.e("s_mov_b32 s13, s75"); a.e("s_mov_b32 s14, 819200")
    a.e("s_mul_i32 s26, s44, 327680"); a.e(f"s_add_u32 s26, s26, {WS_BO}")
    a.e("s_mul_i32 s27, s45, 320"); a.e("s_mov_b32 s33, 1280")
    a.e(f"s_mul_i32 s31, s44, {256*2560}"); a.e("s_add_u32 s31, s31, s27"); a.e("s_add_u32 s31, s31, 1280")
    task_bout(a); a.e("s_branch W_next")
    a.label("W_tp"); task_tp(a); a.e("s_branch W_next")
    a.label("W_pz"); task_pz(a); a.e("s_branch W_next")
    a.label("W_ba"); task_batt(a); a.e("s_branch W_next")
    a.label("W_done")
```

```python
import sys
sys.path.insert(0, "work")
from asmlib import *
from layout import *
import chain
from worker import *

NAME = "concat_heads__memory_aug_recurrent_mem_tr__sliding_block__prompt_kernel"

SP = dict(fast=(1,), split=(), t0=19.0, dt=2.1, t0F=24.0, dtF=2.7, slack=3.0, lead=20.0, K=12.5, VU=25.0, VU2=23.0, VU1=15.0, K1=10.5, BQ=16.0, BA=5.8, BO=15.0, P=3.5, PZ=5.0, cold=1.4, groups=((2,3),(4,5),(6,7)), qlag=5.0, bstart=0.0)
def schedule(**kw):
    import heapq
    S = dict(SP); S.update(kw)
    heads3 = [list(range(0,6)), list(range(6,12)), list(range(12,17)), list(range(17,22)), list(range(22,27)), list(range(27,32))]
    headsq = [list(range(0,4)), list(range(4,8)), list(range(8,14)), list(range(14,20)), list(range(20,26)), list(range(26,32))]
    t0, dt = S['t0'], S['dt']
    AQ = []
    for x in range(6):
        H = heads3[x]; q = []
        r0 = []
        for h in range(32):
            r0 += [(-3, enc(T_VU, 0, h, 4 + 8*hm + z), S['VU1'], ('U', 0)) for hm in (0, 1) for z in (1, 2)]
            r0 += [(-2, enc(T_K, 0, h, 4 + 8*hm), S['K1'], ('K', 0)) for hm in (0, 1)]
        q += r0[32*x:32*x+32]
        for bi, m in enumerate(S['fast']):
            r1 = []
            for h in range(32):
                r1 += [(-1 + 0.1*bi, enc(T_VU, m, h, 4 + 8*hm + z), S['VU1'], ('U', m)) for hm in (0, 1) for z in (1, 2)] + [(-1 + 0.1*bi + 0.05, enc(T_K, m, h), S['K'], ('K', m))]
            q += r1[(160*x)//6:(160*(x+1))//6]
        for bi, m in enumerate(S['split']):
            r1 = []
            for h in range(32):
                r1 += [(-0.5 + 0.1*bi, enc(T_VU, m, h, z), S['VU2'], ('U', m)) for z in (1, 2)] + [(-0.5 + 0.1*bi + 0.05, enc(T_K, m, h), S['K'], ('K', m))]
            q += r1[16*x:16*x+16]
        for g in S['groups']:
            dl = t0 + 8*g[0]*dt - S['lead']
            q += [(dl - S['VU'], enc(T_VU, m, h), S['VU'], ('U', m)) for h in H for m in g]
            q += [(dl - S['K'], enc(T_K, m, h), S['K'], ('K', m)) for h in H for m in g]
        for g in [(0, 1), (2, 3), (4, 5), (6, 7)]:
            dl = t0 + (8*g[0] + 2)*dt + S['qlag'] - (S['lead'] if g[0] == 6 else 0)
            q += [(dl - S['K'], enc(T_Q, m, h), S['K'], ('Q', m)) for h in headsq[x] for m in g]
        q.sort(key=lambda e: e[0])
        AQ.append(q)
    done = {}
    remain = {}
    for q in AQ:
        for e in q: remain[e[3]] = remain.get(e[3], 0) + 1
    BQs = [(enc(T_BQ, m, n), ('BQ', m)) for m in range(8) for n in range(10)]
    BAs = [(enc(T_BA, b, h), ('BA', b >> 1)) for b in range(16) for h in range(32)]
    BOs = [(enc(T_BO, m, n), ('BO', m)) for m in range(8) for n in range(4)]
    for w, k in BQs + BAs: remain[k] = remain.get(k, 0) + 1
    Fs = []
    for s in range(64):
        Fs += [(enc(T_P, s, hg), ('P', s)) for hg in range(8)] + [(enc(T_PZ, s, cg), ('PZ', s)) for cg in range(10)]
        remain[('P', s)] = 8
    fin = {}
    def ready(keys):
        t = 0
        for k in keys:
            if remain.get(k, 0) > 0: return None
            t = max(t, fin.get(k, 0))
        return t
    def chain_t(s): return S['t0F'] + S['dtF']*(s + 1.6)
    lists = [[] for _ in range(192)]
    last = [0]*192
    heap = [(1.5, i) for i in range(192)]
    heapq.heapify(heap)
    end = 0
    while heap:
        t, i = heapq.heappop(heap)
        x = i >> 5
        pick = None
        def fready():
            w, k = Fs[0]; s = k[1]
            r = ready([('K', s >> 3), ('Q', s >> 3)]) if k[0] == 'P' else ready([('U', s >> 3), ('P', s)])
            if r is None: return None
            return max(r + S['slack'], chain_t(s) + (0 if k[0] == 'P' else dt))
        def take_a():
            e = AQ[x].pop(0); d = e[2] + (0 if (last[i] in (1, 2, 3) and not (lists[i][-1] >> 26) & 1) else S['cold'])
            return e[1], e[3], t + d
        def take_b():
            if BOs:
                r = ready([('BA', BOs[0][1][1])])
                if r is not None and r + S['slack'] <= t: w, k = BOs.pop(0); return w, k, t + S['BO']
            if BAs:
                m = BAs[0][1][1]; r = ready([('BQ', m), ('BQ', max(m-1, 0))])
                if r is not None and r + S['slack'] <= t: w, k = BAs.pop(0); return w, k, t + S['BA']
            if BQs and t >= S['bstart']: w, k = BQs.pop(0); return w, k, t + S['BQ']
            return None
        if AQ[x] and AQ[x][0][0] <= t: pick = take_a()
        if not pick and Fs:
            r = fready()
            if r is not None and r <= t:
                w, k = Fs.pop(0); pick = (w, k, max(t + S[k[0]], r + (1.0 if k[0] == 'P' else 1.8)))
        if not pick: pick = take_b()
        if not pick and AQ[x]: pick = take_a()
        if not pick and not any(AQ) and not BQs:
            cand = []
            if BAs:
                m = BAs[0][1][1]; r = ready([('BQ', m), ('BQ', max(m-1, 0))]); cand.append((r, 'BA'))
            elif BOs:
                r = ready([('BA', BOs[0][1][1])]); cand.append((r, 'BO'))
            if Fs:
                r = fready()
                if r is not None: cand.append((r, 'F'))
            if cand:
                r, c = min(cand)
                if c == 'F': w, k = Fs.pop(0); pick = (w, k, max(t + S[k[0]], r + (1.0 if k[0] == 'P' else 1.8)))
                elif c == 'BA': w, k = BAs.pop(0); pick = (w, k, max(t, r) + S['BA'])
                else: w, k = BOs.pop(0); pick = (w, k, max(t, r) + S['BO'])
        if not pick:
            if any(AQ) or BQs or BAs or BOs or Fs: heapq.heappush(heap, (t + 0.5, i))
            continue
        w, k, tf = pick
        lists[i].append(w); last[i] = w & 255
        remain[k] = remain.get(k, 1) - 1; fin[k] = max(fin.get(k, 0), tf); end = max(end, tf)
        heapq.heappush(heap, (tf, i))
    return lists, fin

def init_work(a):
    a.e("v_and_b32 v1, 63, v0"); a.e("v_lshlrev_b32 v4, 4, v1")
    for q in range(4): a.e(f"v_mov_b32 v{28+q}, -1"); a.e(f"v_mov_b32 v{32+q}, 0")
    a.e("s_lshr_b32 s28, s2, 2"); a.e("s_lshl_b32 s29, s28, 16");
    a.e("s_and_b32 s28, s2, 3"); a.e("s_lshl_b32 s28, s28, 14"); a.e("s_add_u32 s29, s29, s28"); a.e("s_lshl_b32 s28, s24, 12"); a.e("s_add_u32 s29, s29, s28")
    for i in range(4): a.e(f"buffer_store_dwordx4 v[28:31], v4, s[8:11], s29 offen offset:{1024*i} sc1")
    a.e("s_cmp_eq_u32 s24, 3"); a.e("s_cbranch_scc1 I_w3")
    a.e("s_mul_i32 s28, s2, 3"); a.e("s_add_u32 s28, s28, s24"); a.e("s_cmp_ge_u32 s28, 384"); a.e("s_cselect_b32 s29, 384, 0"); a.e(f"s_cselect_b32 s30, {LOC_STRIDE}, 0"); a.e(f"s_add_u32 s30, s30, {WS_LOC}")
    a.e("s_sub_u32 s28, s28, s29"); a.e("s_lshl_b32 s29, s28, 10"); a.e("s_add_u32 s29, s29, s30"); a.e("s_lshr_b32 s28, s28, 3"); a.e("s_cmp_eq_u32 s28, 2"); a.e("s_cbranch_scc1 I_z")
    a.e("buffer_store_dwordx4 v[28:31], v4, s[8:11], s29 offen sc1"); a.e("s_branch I_d")
    a.label("I_w3")
    a.e("s_cmp_ge_u32 s2, 128"); a.e("s_cbranch_scc1 I_d")
    a.e("s_lshl_b32 s29, s2, 10"); a.e(f"s_add_u32 s29, s29, {WS_FLAGS}")
    a.label("I_z")
    a.e("buffer_store_dwordx4 v[32:35], v4, s[8:11], s29 offen sc1")
    a.label("I_d")

def census_wait(a, lab):
    a.e("v_mbcnt_lo_u32_b32 v3, -1, 0"); a.e("v_and_b32 v3, 15, v3"); a.e("v_min_u32 v3, 8, v3")
    a.e("v_and_b32 v4, 1, v3"); a.e("v_lshlrev_b32 v3, 2, v3"); a.e("v_lshl_add_u32 v3, v4, 7, v3")
    a.label(lab)
    a.e("buffer_load_dword v2, v3, s[4:7], 0 offen sc1")
    guard(a)
    a.e("s_waitcnt vmcnt(0)")
    for i in range(9): a.e(f"v_readlane_b32 s{84+i}, v2, {i}")
    a.e("s_cmp_eq_u32 s92, 256"); a.e(f"s_cbranch_scc1 {lab}_ok"); a.e("s_sleep 8"); a.e(f"s_branch {lab}")
    a.label(f"{lab}_ok")

def arrive(a, lab):
    a.e("s_cmp_lg_u32 s24, 1"); a.e(f"s_cbranch_scc1 {lab}")
    a.e("v_mov_b32 v5, 1"); a.e("s_mov_b64 exec, 1")
    a.e("buffer_atomic_add v5, off, s[4:7], 0 offset:32 sc1"); a.e("s_mov_b64 exec, -1")
    a.label(lab)

def atomic_rank(a, lab, voff_expr, dst):
    a.e("s_cmp_lg_u32 s24, 0"); a.e(f"s_cbranch_scc1 {lab}")
    a.e("v_mov_b32 v3, 1"); a.e("v_mov_b32 v4, s25"); a.e("s_mov_b64 exec, 1")
    a.e("buffer_atomic_add v3, v4, s[4:7], 0 offen sc0 sc1")
    a.e("s_waitcnt vmcnt(0)")
    a.e("v_mov_b32 v4, 0"); a.e("ds_write_b32 v4, v3"); a.e("s_waitcnt lgkmcnt(0)"); a.e("s_mov_b64 exec, -1")
    a.label(lab)
    a.e("s_waitcnt vmcnt(0)")
    a.e("s_barrier")
    a.e("v_mov_b32 v4, 0"); a.e("ds_read_b32 v8, v4")
    a.e("s_cmp_lg_u32 s24, 1"); a.e(f"s_cbranch_scc1 {lab}b")
    a.e("v_mov_b32 v5, 1"); a.e("v_mov_b32 v6, 32"); a.e("s_mov_b64 exec, 1")
    a.e("buffer_atomic_add v5, v6, s[4:7], 0 offen sc1"); a.e("s_mov_b64 exec, -1")
    a.label(f"{lab}b")
    a.e("s_waitcnt lgkmcnt(0)")
    a.e(f"v_readfirstlane_b32 {dst}, v8")
    a.e("s_barrier")

def build(mkpv=0, mkpq=0, h2rd=0, ctlb=0, mkg=0, qarch=1, rperm=0, tlbw=1, wpf=0, cpf=1, wdelay=0, wsb=0, mke=0, mkpost=0, mkgap=24, mks=128, ctime=False, wpol='', wmax=24, hint=0, sp={}, gp={}, steplog=0, psel=0, profstart=False, prof=0, only=None, lists=None, nochain=False, budget=1 << 22, force_slow=False, qk={}, vo={}, proftask=False, flip=None):
    chain.MKPV[0] = mkpv; chain.MKPQ[0] = mkpq; chain.H2RD[0] = h2rd; chain.TLBW[0] = ctlb; chain.MKG[0] = mkg; chain.QARCH[0] = qarch; chain.MKE[0] = mke; chain.MKPOST[0] = mkpost; chain.MKGAP[0] = mkgap; chain.MKS[0] = mks; chain.WPOL[0] = wpol; chain.WMAX[0] = wmax; chain.HINT[0] = hint; chain.PSEL[0] = psel; chain.CAL[0] = flip is None
    chain.STEPLOG[0] = (WS_PROF + 524288) if steplog else 0
    import worker as WK
    WK.WPROF[0] = proftask == 2
    WK.GP.update(gp)
    a = Asm()
    if lists is None: lists, _ = schedule(**sp)
    if only is not None: lists = [[w for w in l if (w & 255) in only] for l in lists]
    maxlen = max(len(l) for l in lists) + 3
    a.e("s_cmp_ge_u32 s2, 256"); a.e("s_cbranch_scc1 W_abort")
    a.e("""
s_load_dwordx2 s[8:9], s[0:1], 96
s_load_dwordx2 s[4:5], s[0:1], 88
s_getreg_b32 s3, hwreg(HW_REG_XCC_ID)
s_and_b32 s3, s3, 7
v_lshrrev_b32 v1, 6, v0
s_nop 0
v_readfirstlane_b32 s24, v1
s_waitcnt lgkmcnt(0)
WSBASE
s_mov_b32 s11, 0x20000
s_mov_b32 s6, 256
s_mov_b32 s7, 0x20000
""")
    a.e(f"s_mov_b32 s82, {budget}")
    if prof or proftask or ctime:
        a.e("s_mov_b32 s56, s8"); a.e("s_mov_b32 s57, s9"); a.e("s_mov_b32 s58, s10"); a.e("s_mov_b32 s59, 0x20000"); a.e("s_mov_b32 s83, 0")
        a.e("s_memrealtime s[96:97]")
    if profstart: a.e("s_memrealtime s[60:61]")
    if profstart: a.e("s_memrealtime s[62:63]")
    if profstart: a.e("s_memrealtime s[64:65]")
    if force_slow: a.e("s_lshr_b32 s3, s2, 5"); a.e("s_mul_i32 s3, s3, 3"); a.e("s_and_b32 s3, s3, 7"); a.e("s_max_u32 s3, s3, 1")
    a.e("s_and_b32 s25, s3, 1"); a.e("s_lshl_b32 s25, s25, 7"); a.e("s_lshl_b32 s26, s3, 2"); a.e("s_add_u32 s95, s25, s26")
    def code_pf(ranges, lab):
        a.e("s_getpc_b64 s[26:27]"); a.label(lab)
        a.e("v_and_b32 v1, 63, v0"); a.e("v_lshlrev_b32 v10, 7, v1"); a.e("s_sub_u32 s25, s24, 1"); a.e("s_lshl_b32 s25, s25, 13"); a.e("v_add_u32 v10, s25, v10")
        for (st, n) in ranges:
            a.e(f"s_add_u32 s28, s26, {st}-{lab}"); a.e("s_addc_u32 s29, s27, 0")
            for i in range(n):
                a.e(f"global_load_dword v11, v10, s[28:29]")
                if i < n-1: a.e("s_add_u32 s28, s28, 24576"); a.e("s_addc_u32 s29, s29, 0")
    def tlb_warm():
        a.e("s_load_dwordx8 s[64:71], s[0:1], 16")
        a.e("v_and_b32 v12, 7, v0"); a.e("v_lshlrev_b32 v12, 20, v12")
        a.e("s_mov_b32 s14, 7864320"); a.e("s_mov_b32 s15, 0x20000")
        a.e("s_waitcnt lgkmcnt(0)")
        for m in range(4):
            a.e(f"s_mov_b32 s12, s{64+2*m}"); a.e(f"s_mov_b32 s13, s{65+2*m}")
            a.e("buffer_load_dword v13, v12, s[12:15], 0 offen")
    if tlbw:
        a.e("s_cmp_lg_u32 s24, 1"); a.e("s_cbranch_scc1 M_tw")
        tlb_warm()
        a.label("M_tw")
    a.e("s_cmp_ge_u32 s3, 2"); a.e("s_cbranch_scc1 M_late")
    a.e("s_cmp_lg_u32 s24, 0"); a.e("s_cbranch_scc1 M_e1")
    a.e("v_mov_b32 v3, 1"); a.e("v_mov_b32 v8, s95"); a.e("s_mov_b64 exec, 1")
    a.e("buffer_atomic_add v3, v8, s[4:7], 0 offen sc0 sc1")
    a.e("s_mov_b64 exec, -1")
    a.e("s_waitcnt vmcnt(0)")
    a.e("v_mov_b32 v4, 0"); a.e("s_mov_b64 exec, 1"); a.e("ds_write_b32 v4, v3"); a.e("s_mov_b64 exec, -1"); a.e("s_waitcnt lgkmcnt(0)")
    a.e("s_branch M_e2")
    a.label("M_e1")
    if cpf & 8: code_pf([("M_chain", 1), ("M_vo-8192", 1)], "M_pf1")
    a.label("M_e2")
    a.e("s_barrier")
    a.e("v_mov_b32 v4, 0"); a.e("ds_read_b32 v8, v4"); a.e("s_waitcnt lgkmcnt(0)")
    a.e("v_readfirstlane_b32 s80, v8")
    a.e("s_barrier")
    a.e("s_cmp_lt_u32 s80, 32"); a.e("s_cbranch_scc0 M_e3")
    a.e("s_mov_b32 s25, s3"); a.e("s_mov_b32 s26, s80"); a.e("s_mov_b32 s81, 1"); a.e("s_branch M_chain")
    a.label("M_e3")
    a.L += [l.replace("I_", "J_") for l in _sub(init_work)]
    a.e("s_waitcnt vmcnt(0)"); a.e("s_barrier")
    arrive(a, "M_e4")
    a.e("s_branch M_worker")
    a.label("M_late")
    if cpf & 7:
        a.e("s_cmp_eq_u32 s24, 0"); a.e("s_cbranch_scc1 M_pf2x")
        code_pf([("W_warm", cpf & 7)], "M_pf2")
        a.label("M_pf2x")
    init_work(a)
    a.e("s_mov_b32 s25, s95")
    atomic_rank(a, "M_a1", None, "s80")
    if profstart: a.e("s_memrealtime s[62:63]")
    if profstart:
        a.e("s_memrealtime s[66:67]"); a.e("s_waitcnt lgkmcnt(0)"); a.e("s_lshl_b32 s25, s2, 5"); a.e(f"s_add_u32 s25, s25, {WS_PROF+262144}")
        a.e("v_mov_b32 v4, s60"); a.e("v_mov_b32 v5, s62"); a.e("v_mov_b32 v6, s64"); a.e("v_mov_b32 v7, s66"); a.e("v_mov_b32 v2, 0"); a.e("v_mov_b32 v8, s3")
        a.e("s_mov_b64 exec, 1"); a.e("buffer_store_dwordx4 v[4:7], v2, s[8:11], s25 offen"); a.e("buffer_store_dword v8, v2, s[8:11], s25 offen offset:16"); a.e("s_mov_b64 exec, -1")
    a.e("s_cmp_ge_u32 s80, 32"); a.e("s_cbranch_scc1 M_worker")
    a.e("s_sub_u32 s79, s3, 2"); a.e("s_lshl_b32 s79, s79, 5"); a.e("s_add_u32 s79, s79, s80")
    a.e("s_mov_b32 s81, 1")
    if flip is None:
        a.e("s_cmp_lg_u32 s79, 31"); a.e("s_cbranch_scc1 C_skip"); a.e("s_cmp_lg_u32 s24, 0"); a.e("s_cbranch_scc1 C_skip")
        a.e(f"s_mov_b32 s25, {WS_CAL}")
        a.e("s_load_dword s27, s[8:9], s25 glc"); a.e("s_waitcnt lgkmcnt(0)")
        a.e("s_mov_b32 s32, -1"); a.e("s_mov_b32 s33, -1")
        for i in range(1, 9):
            a.e(f"s_add_u32 s25, s25, 8192")
            a.e("s_memtime s[28:29]"); a.e("s_waitcnt lgkmcnt(0)")
            a.e("s_load_dword s27, s[8:9], s25 glc"); a.e("s_waitcnt lgkmcnt(0)")
            a.e("s_memtime s[30:31]"); a.e("s_waitcnt lgkmcnt(0)")
            a.e("s_sub_u32 s30, s30, s28"); a.e(f"s_min_u32 s{32 + (i & 1)}, s{32 + (i & 1)}, s30")
        a.e("s_cmp_le_u32 s33, s32"); a.e("s_cselect_b32 s27, 1, 0x2001")
        a.e("v_mov_b32 v2, s27"); a.e("buffer_store_dword v2, off, s[4:7], 0 offset:64 sc1")
        a.label("C_skip")
    if wpf:
        a.e("s_load_dwordx8 s[64:71], s[0:1], 16")
        a.e("s_mul_i32 s25, s79, 1366"); a.e("s_lshr_b32 s25, s25, 16"); a.e("s_mul_i32 s26, s25, 48"); a.e("s_sub_u32 s26, s79, s26")
        a.e("s_mul_i32 s26, s26, 163840"); a.e("s_mul_i32 s27, s24, 40960"); a.e("s_add_u32 s26, s26, s27")
        a.e("v_and_b32 v10, 63, v0"); a.e("v_lshlrev_b32 v10, 7, v10")
        a.e("s_waitcnt lgkmcnt(0)")
        a.e("s_mov_b32 s12, s64"); a.e("s_mov_b32 s13, s65")
        for m in (1, 2, 3):
            a.e(f"s_cmp_eq_u32 s25, {m}"); a.e(f"s_cselect_b32 s12, s{64+2*m}, s12"); a.e(f"s_cselect_b32 s13, s{65+2*m}, s13")
        a.e("s_mov_b32 s14, 7864320"); a.e("s_mov_b32 s15, 0x20000")
        for i in range(5):
            a.e(f"buffer_load_dword v63, v10, s[12:15], s26 offen {wpf if wpf != 1 else ''}"); a.e("s_add_u32 s26, s26, 8192")
    for i in range(wdelay): a.e("s_sleep 37")
    a.e("s_branch M_go")
    a.label("M_worker")
    census_wait(a, "M_cw")
    a.e("s_mov_b32 s79, s80")
    a.e("s_cmp_lt_u32 s3, 2"); a.e("s_cselect_b32 s25, 32, 0"); a.e("s_sub_u32 s79, s79, s25")
    for x in range(7):
        if x < 2: a.e(f"s_max_u32 s25, s{84+x}, 32"); a.e("s_sub_u32 s25, s25, 32")
        else: a.e(f"s_mov_b32 s25, s{84+x}")
        a.e(f"s_cmp_gt_u32 s3, {x}"); a.e("s_cselect_b32 s25, s25, 0"); a.e("s_add_u32 s79, s79, s25")
    a.e("s_min_u32 s25, s84, 32"); a.e("s_sub_u32 s27, 32, s25"); a.e("s_min_u32 s26, s85, 32"); a.e("s_sub_u32 s28, 32, s26")
    a.e("s_cmp_lt_u32 s79, s27"); a.e("s_cbranch_scc0 M_n0")
    a.e("s_add_u32 s26, s25, s79"); a.e("s_mov_b32 s25, 0"); a.e("s_mov_b32 s81, 0"); a.e("s_branch M_chain")
    a.label("M_n0"); a.e("s_sub_u32 s79, s79, s27")
    a.e("s_cmp_lt_u32 s79, s28"); a.e("s_cbranch_scc0 M_n1")
    a.e("s_add_u32 s26, s26, s79"); a.e("s_mov_b32 s25, 1"); a.e("s_mov_b32 s81, 0"); a.e("s_branch M_chain")
    a.label("M_n1"); a.e("s_sub_u32 s79, s79, s28")
    a.e("s_mov_b32 s81, 0")
    a.label("M_go")
    if proftask: a.e(f"s_lshl_b32 s98, s79, {9 if proftask != 2 else 10}"); a.e(f"s_add_u32 s98, s98, {WS_PROF+65536}")
    worker(a, "W_table", maxlen, census_wait)
    a.e("s_branch L_fin")
    a.label("M_chain")
    if rperm: a.e("s_and_b32 s27, s26, 1"); a.e("s_lshl_b32 s27, s27, 4"); a.e("s_lshr_b32 s26, s26, 1"); a.e("s_add_u32 s26, s26, s27")
    a.e(f"s_mov_b32 s47, {(flip or 0)*8192}")
    if prof or proftask or ctime:
        a.e("s_mov_b32 s56, s8"); a.e("s_mov_b32 s57, s9"); a.e("s_mov_b32 s58, s10"); a.e("s_mov_b32 s59, 0x20000")
    if nochain: a.e("s_branch L_fin")
    if prof or proftask or ctime:
        a.e("s_lshl_b32 s39, s25, 5"); a.e("s_add_u32 s39, s39, s26"); a.e("s_lshl_b32 s39, s39, 2"); a.e("s_add_u32 s39, s39, s24"); a.e("s_lshl_b32 s39, s39, 6"); a.e(f"s_add_u32 s39, s39, {WS_PROF}")
    a.e("s_cmp_ge_u32 s26, 16"); a.e("s_cbranch_scc1 M_vo")
    a.e("s_lshl_b32 s27, s25, 4"); a.e("s_add_u32 s27, s27, s26")
    chain.ARRIVE[0] = arrive
    def init2(a, lab):
        L = _sub(init_work)
        import re
        for l in L:
            l = l.replace("I_", lab + "_")
            l = re.sub(r"\bs28\b", "s60", l); l = re.sub(r"\bs29\b", "s61", l); l = re.sub(r"\bs30\b", "s62", l)
            l = re.sub(r"\bv4\b", "v60", l)
            for q in range(8): l = re.sub(rf"\bv{28+q}\b", f"v{62+q}", l)
            l = l.replace("v[28:31]", "v[62:65]").replace("v[32:35]", "v[66:69]")
            a.L.append(l)
    chain.INIT[0] = init2
    chain.qk_role(a, prof=prof, cw=census_wait, **qk)
    a.e("s_branch L_cfin")
    a.label("M_vo")
    a.e("s_sub_u32 s26, s26, 16"); a.e("s_lshl_b32 s27, s25, 4"); a.e("s_add_u32 s27, s27, s26")
    chain.vo_role(a, prof=prof, cw=census_wait, **vo)
    a.label("L_cfin")
    if prof or proftask or ctime:
        a.e("""
s_memrealtime s[80:81]
s_memtime s[78:79]
s_waitcnt lgkmcnt(0)
s_sub_u32 s78, s78, s76
v_mov_b32 v8, s78
v_mov_b32 v9, s39
buffer_store_dword v8, v9, s[56:59], 0 offen offset:60
s_mov_b64 exec, 1
v_mov_b32 v2, s39
v_mov_b32 v4, s96
v_mov_b32 v5, s98
v_mov_b32 v6, s80
v_mov_b32 v7, s83
buffer_store_dwordx4 v[4:7], v2, s[56:59], 0 offen offset:32
s_waitcnt vmcnt(0)
""")
    a.label("L_abort")
    a.label("L_fin")
    a.label("L_end")
    a.e("s_endpgm")
    a.e(".p2align 2")
    a.label("W_table")
    for l in lists:
        a.e(".long " + ",".join(str(w) for w in l + [0]*(maxlen-len(l))))
    txt = a.text()
    if proftask == 2:
        pt = "s_memtime s[100:101]\n  s_waitcnt lgkmcnt(0)\n  v_mov_b32 v2, s78\n  v_mov_b32 v3, s100\n  v_mov_b32 v4, s90\n v_mov_b32 v5, s92\n v_mov_b32 v6, s94\n v_mov_b32 v7, s96\n v_mov_b32 v8, s98\n  s_mov_b64 exec, 1\n  buffer_store_dwordx4 v[2:5], v8, s[8:11], 0 offen\n buffer_store_dwordx2 v[6:7], v8, s[8:11], 0 offen offset:16\n  s_mov_b64 exec, -1\n  s_add_u32 s98, s98, 32"
        txt = txt.replace("PROFTASK", pt)
    pt = "s_memrealtime s[100:101]\n  s_waitcnt lgkmcnt(0)\n  v_mov_b32 v2, s78\n  v_mov_b32 v3, s100\n  v_mov_b32 v4, s98\n  s_mov_b64 exec, 1\n  buffer_store_dwordx2 v[2:3], v4, s[8:11], 0 offen\n  s_mov_b64 exec, -1\n  s_add_u32 s98, s98, 8" if proftask else "s_nop 0"
    txt = txt.replace("PROFTASK", pt)
    txt = txt.replace("WSBASE", f"s_add_u32 s8, s8, {wsb*MB}\n  s_addc_u32 s9, s9, 0\n  s_mov_b32 s10, {(256-wsb)*MB}")
    for i in range(3): txt = txt.replace(f"WSTAMP{i}", f"s_memrealtime s[{70+2*i}:{71+2*i}]\n s_waitcnt lgkmcnt(0)\n s_mov_b32 s{93+i}, s{70+2*i}" if (prof or proftask or ctime) else "s_nop 0")
    txt = txt.replace("WLOADED", "s_memrealtime s[100:101]\n  s_waitcnt lgkmcnt(0)\n v_mov_b32 v2, s100\n v_mov_b32 v3, s39\n s_mov_b64 exec, 1\n v_mov_b32 v60, s93\n v_mov_b32 v61, s94\n v_mov_b32 v62, s95\n buffer_store_dword v2, v3, s[56:59], 0 offen offset:48\n buffer_store_dwordx3 v[60:62], v3, s[56:59], 0 offen offset:52\n s_nop 2\n s_mov_b64 exec, -1" if (prof or proftask or ctime) else "s_nop 0")
    txt = txt.replace("LOOPSTART", "s_memrealtime s[98:99]\n s_memtime s[76:77]\n  s_waitcnt lgkmcnt(0)" if (prof or proftask or ctime) else "s_nop 0")
    return txt
WS_PROF = 186*MB
def _sub(f):
    b = Asm(); f(b); return b.L

HEADER = open("concat_heads__memory_aug_recurrent_mem_tr__sliding_block__prompt.s.ref").read().split("; Override")[0] if __name__ == "__main__" else ""
def full(body, name=NAME, header=""):
    return f"""{header}; @launch grid=(256,1,1) block=(256,1,1) lds=163840
.amdgcn_target "amdgcn-amd-amdhsa--gfx950"
.text
.globl {name}
.p2align 8
.type {name},@function
{name}:
{body}
.section .rodata,"a"
.p2align 6
.amdhsa_kernel {name}
  .amdhsa_next_free_vgpr 512
  .amdhsa_next_free_sgpr 102
  .amdhsa_accum_offset 256
  .amdhsa_group_segment_fixed_size 0
  .amdhsa_kernarg_size 104
  .amdhsa_user_sgpr_count 2
  .amdhsa_user_sgpr_kernarg_segment_ptr 1
  .amdhsa_system_sgpr_workgroup_id_x 1
  .amdhsa_float_denorm_mode_32 3
.end_amdhsa_kernel
"""
if __name__ == "__main__":
    txt = full(build(), header=HEADER)
    open("concat_heads__memory_aug_recurrent_mem_tr__sliding_block__prompt.s", "w").write(txt)
    print(len(txt))
```

```python
import math
from asmlib import *
from layout import *

SM64 = "v_smfmac_f32_16x16x64_bf16"
SM32 = "v_smfmac_f32_16x16x32_bf16"
CEXP = 192**-0.5 * math.log2(math.e)
import struct
def fbits(x): return struct.unpack("<I", struct.pack("<f", x))[0]


def load_weights(a, chunks, tmp):
    n = len(chunks)
    issued = 0
    cnt_after = []
    def can_issue(k, nxt):
        c = chunks[nxt]
        for q in range(k, nxt):
            d = chunks[q]
            if c['off'] < d['off'] + d['size'] and d['off'] < c['off'] + c['size']: return False
        for q in range(0, k):
            d = chunks[q]
            if d['res'] and c['off'] < d['off'] + d['size'] and d['off'] < c['off'] + c['size']: raise Exception("overlap resident")
        out = sum(len(chunks[q]['dma']) for q in range(k, nxt+1))
        return out <= WMAX[0]
    def issue_some(k):
        nonlocal issued
        while issued < n and can_issue(k, issued):
            for it in chunks[issued]['dma']: a.e("\n".join(it))
            issued += 1
    issue_some(0)
    first = issued
    extra = 0
    if tmp and ARRIVE[0]:
        lab = a.newlabel("C_in")
        a.e("s_cmp_eq_u32 s81, 0"); a.e(f"s_cbranch_scc1 {lab}x")
        INIT[0](a, lab)
        a.label(lab + "x")
    for k in range(n):
        c = chunks[k]
        after = sum(len(chunks[q]['dma']) for q in range(k+1, issued))
        if tmp and ARRIVE[0] and k < first:
            lab = a.newlabel("C_w")
            a.e("s_cmp_eq_u32 s81, 0"); a.e(f"s_cbranch_scc1 {lab}a")
            a.e(f"s_waitcnt vmcnt({after + 4})"); a.e(f"s_branch {lab}b")
            a.label(lab + "a"); a.e(f"s_waitcnt vmcnt({after})"); a.label(lab + "b")
        else:
            a.e(f"s_waitcnt vmcnt({after})")
        a.e("s_barrier")
        if k in (0, 6, 13): a.e(f"WSTAMP{(0, 6, 13).index(k)}")
        if k == first and ARRIVE[0] and tmp:
            lab = a.newlabel("C_ar")
            a.e("s_cmp_eq_u32 s81, 0"); a.e(f"s_cbranch_scc1 {lab}x")
            ARRIVE[0](a, lab)
            a.label(lab + "x")
        issue_some(k)
        if tmp and k == n - 6 and TLBW[0]:
            a.e(f"v_lshlrev_b32 v56, {TLBW[0]}, v1"); a.e(f"s_lshl_b32 s30, s24, {TLBW[0]+6}")
            a.e("buffer_load_dword v57, v56, s[8:11], s30 offen")
        if tmp and k == n - 2:
            a.e("v_min_u32 v59, 9, v1"); a.e("v_and_b32 v58, 1, v59"); a.e("v_lshlrev_b32 v58, 7, v58"); a.e("v_lshl_add_u32 v58, v59, 2, v58")
            a.e("v_cmp_eq_u32 vcc, 9, v59"); a.e("v_mov_b32 v57, 64"); a.e("s_nop 0"); a.e("v_cndmask_b32 v59, v58, v57, vcc")
            a.e("buffer_load_dword v58, v59, s[4:7], 0 offen sc1")
        for ins in c['pre']: a.e(ins)
        for i, ins in enumerate(c['tr']):
            a.e(ins)
            if i % 12 == 11: a.e("s_waitcnt lgkmcnt(4)")
        a.e("s_waitcnt lgkmcnt(0)")
        if c['res']:
            a.e("s_barrier")
            for ins in c['res']: a.e(ins)
            a.e("s_waitcnt lgkmcnt(0)")
    a.e("s_barrier")

def census_check(a):
    lab = a.newlabel("C_cw")
    a.e(f"s_branch {lab}c")
    a.label(lab)
    a.e("s_sleep 4")
    a.e("buffer_load_dword v58, v59, s[4:7], 0 offen sc1")
    a.e("s_sub_u32 s82, s82, 1"); a.e("s_cbranch_scc1 L_abort")
    a.label(lab + "c")
    a.e("s_waitcnt vmcnt(0)")
    for i in range(10): a.e(f"v_readlane_b32 s{84+i}, v58, {i}")
    a.e("s_cmp_lg_u32 s92, 256"); a.e(f"s_cbranch_scc1 {lab}")
    a.e("s_min_u32 s81, s84, s85")
    if CAL[0]:
        a.e("s_and_b32 s30, s84, s85")
        for r in range(86, 92): a.e(f"s_and_b32 s30, s30, s{r}")
        a.e("s_cmp_lg_u32 s30, 32"); a.e(f"s_cbranch_scc1 {lab}d")
        a.e("s_cmp_eq_u32 s93, 0"); a.e(f"s_cbranch_scc1 {lab}")
        a.e("s_and_b32 s47, s93, 0x2000")
        a.label(lab + "d")

def common_consts(a, vIdx, vSB, vStW, vH2, vMk, MEMIMG, vo=False):
    a.e("v_and_b32 v2, 8, v1")
    a.e("v_cmp_eq_u32 vcc, 0, v2")
    a.e("v_mov_b32 v3, 0xeeee")
    a.e("v_mov_b32 v4, 0x4444")
    a.e(f"v_cndmask_b32 v{vIdx}, v3, v4, vcc")
    a.e("v_and_b32 v2, 1, v1")
    a.e("v_cmp_eq_u32 vcc, 0, v2")
    a.e("s_nop 1")
    a.e("v_cndmask_b32 v2, v3, v4, vcc")
    a.e(f"v_lshl_or_b32 v{vIdx}, v2, 16, v{vIdx}")
    a.e("v_lshrrev_b32 v2, 5, v1")
    a.e("v_bfe_u32 v3, v1, 3, 1")
    a.e("v_cmp_eq_u32 s[30:31], v2, v3")
    a.e("v_and_b32 v2, 1, v1")
    a.e("v_lshlrev_b32 v2, 4, v2")
    a.e("v_mov_b32 v3, 0x3f80")
    a.e("v_lshlrev_b32 v3, v2, v3")
    a.e("v_bfe_u32 v4, v1, 1, 2")
    for q in range(4):
        a.e(f"v_cmp_eq_u32 vcc, {q}, v4")
        a.e("s_and_b64 vcc, vcc, s[30:31]")
        a.e(f"v_cndmask_b32 v{vSB+q}, 0, v3, vcc")
    a.e("v_lshrrev_b32 v2, 4, v1")
    a.e(f"s_mul_i32 s30, s24, {16 if vo else 20}")
    a.e("v_add_u32 v2, s30, v2")
    a.e("v_lshlrev_b32 v2, 7, v2")
    a.e("v_and_b32 v3, 7, v1")
    a.e("v_lshl_add_u32 v2, v3, 4, v2")
    a.e("v_bfe_u32 v3, v1, 3, 1")
    a.e("v_lshl_add_u32 v2, v3, 3, v2")
    a.e(f"v_add_u32 v{vStW}, {MEMIMG}, v2")
    a.e("v_bfe_u32 v2, v1, 4, 1")
    a.e("v_lshlrev_b32 v2, 12, v2")
    a.e("v_bfe_u32 v3, v1, 2, 2")
    a.e("v_lshl_add_u32 v2, v3, 7, v2")
    a.e("v_lshrrev_b32 v3, 5, v1")
    a.e("v_lshl_add_u32 v2, v3, 6, v2")
    a.e("v_and_b32 v3, 3, v1")
    a.e(f"v_lshl_add_u32 v{vH2}, v3, 4, v2")
    a.e("v_and_b32 v2, 15, v1")
    a.e(f"v_mul_u32_u24 v{vMk}, {MKS[0]}, v2")
    if MKE[0] and not MKG[0]:
        a.e("v_and_b32 v2, 3, v1"); a.e("v_lshrrev_b32 v3, 2, v1"); a.e(f"v_mul_u32_u24 v3, {MKS[0]}, v3"); a.e(f"v_lshl_add_u32 v{vMk}, v2, 2, v3")
    for k in range(5):
        if vo and k == 4: a.e("s_add_u32 s30, s24, 16")
        else:
            a.e(f"s_mul_i32 s30, s24, {4 if vo else 5}")
            a.e(f"s_add_u32 s30, s30, {k}")
        a.e(f"s_lshr_b32 s31, s30, 3")
        a.e(f"s_lshl_b32 s31, s31, 14")
        a.e(f"s_and_b32 s30, s30, 7")
        a.e(f"s_lshl_b32 s30, s30, 9")
        a.e(f"s_add_u32 s{40+k}, s30, s31")
    a.e(f"s_mul_i32 s46, s25, {LOC_STRIDE}")
    a.e(f"s_add_u32 s46, s46, {WS_LOC}")
    a.e(f"s_add_u32 s45, s46, {LOC_MK}")
    if MKG[0]:
        a.e("s_mov_b32 s45, s47")
        if MKE[0]: a.e("v_lshrrev_b32 v2, 1, v1"); a.e("v_and_b32 v3, 1, v1"); a.e("v_lshlrev_b32 v3, 6, v3"); a.e(f"v_lshl_add_u32 v{vMk}, v2, 7, v3")
        else: a.e("v_and_b32 v2, 31, v1"); a.e(f"v_lshlrev_b32 v{vMk}, 7, v2")

def h2_base(a, dst, stepreg_plus):
    a.e(f"s_add_u32 s30, s28, 1")
    a.e(f"s_lshl_b32 {dst}, s30, 16")
    a.e(f"s_lshl_b32 s30, s30, 8")
    a.e(f"s_and_b32 s30, s30, 0x2000")
    a.e(f"s_xor_b32 s30, s30, s47")
    a.e(f"s_add_u32 {dst}, {dst}, s30")

def stage_mem0(a, MEMIMG, tmp, part):
    if part == 0:
        for i in range(3):
            a.e(f"v_add_u32 v2, {256*i}, v0")
            a.e("v_min_u32 v2, 639, v2")
            a.e("v_and_b32 v3, 7, v2")
            a.e("v_mul_u32_u24 v3, 1280, v3")
            a.e("v_lshrrev_b32 v4, 3, v2")
            a.e("v_lshl_add_u32 v3, v4, 4, v3")
            a.e(f"buffer_load_dwordx4 {vr(tmp+4*i,4)}, v3, s[20:23], 0 offen")
            a.e(f"v_lshlrev_b32 v{tmp+12+i}, 4, v2")
        return
    a.e("s_waitcnt vmcnt(0)")
    for i in range(3):
        a.e(f"v_add_u32 v{tmp+12+i}, {MEMIMG}, v{tmp+12+i}")
        a.e(f"ds_write_b128 v{tmp+12+i}, {vr(tmp+4*i,4)}")
    a.e("s_waitcnt lgkmcnt(0)")

PSEL = [0]
MKPV = [0]
MKPQ = [0]
H2RD = [0]
TLBW = [0]
MKG = [0]
QARCH = [1]
ARRIVE = [None]
INIT = [None]
WPOL = ['']
WMAX = [36]
CAL = [1]
HINT = [0]
MKPOST = [0]
MKE = [0]
MK1 = [1]
MKA = [0]
TSR = [0]
MKGAP = [24]
STEPLOG = [0]
MKS = [128]
def ts(a, prof, idx, sel=0):
    if prof and (sel == PSEL[0] or idx in (0, 5, 6)): a.e(f"{'s_memrealtime' if TSR[0] else 's_memtime'} s[{60+2*idx}:{61+2*idx}]")

def h2_stage(a, lab, PD, D0, D1, vSB, vStW, vH2, vMk, tmpv, presleep, prof, after=None, nafter=0, nobar=False, pollw=2, after2=None, nafter2=0, fused=None, w4=None):
    h2_base(a, "s53", None)
    for k in range(5): a.e(f"s_add_u32 s{48+k}, s53, s{40+k}")
    a.e("s_add_u32 s30, s28, 1")
    if MKA[0]: a.e("s_lshl_b32 s30, s30, 4")
    if MK1[0]:
        a.e(f"s_cmp_lg_u32 s24, {pollw}"); a.e(f"s_cbranch_scc1 {lab}_mkb")
    for i in range(presleep): a.e("s_sleep 1")
    if not MKE[0]: a.e(f"s_mov_b64 exec, {1 if MKA[0] else 0xffff}" if not MKG[0] else "s_mov_b32 exec_hi, 0")
    mk = (lambda r: f"buffer_load_dword v{r}, off, s[8:11], s45 sc1") if MKA[0] else (lambda r: f"buffer_load_dword v{r}, v{vMk}, s[8:11], s45 offen sc1")
    a.e(mk(tmpv))
    a.nop(MKGAP[0])
    a.label(f"{lab}_mk")
    a.e(mk(tmpv+1))
    a.e("s_waitcnt vmcnt(1)")
    a.e(f"v_cmp_gt_i32 vcc, s30, v{tmpv}")
    a.e(f"s_cbranch_vccz {lab}_mkok")
    a.e(mk(tmpv))
    a.e("s_sub_u32 s82, s82, 1"); a.e("s_cbranch_scc1 L_abort")
    a.e("s_waitcnt vmcnt(1)")
    a.e(f"v_cmp_gt_i32 vcc, s30, v{tmpv+1}")
    a.e(f"s_cbranch_vccnz {lab}_mk")
    a.label(f"{lab}_mkok")
    a.e("s_mov_b64 exec, -1")
    a.nop(MKPOST[0] + (MKPV[0] if lab.startswith('VO') else MKPQ[0]))
    if MK1[0] and not after2:
        a.label(f"{lab}_mkb")
        a.e("s_barrier")
    tmpv = tmpv + 2
    ts(a, prof, 5)
    def body(extra, aft, again):
        for k in range(5):
            a.e(f"buffer_load_dwordx4 {vr(PD+4*k,4)}, v{vH2}, s[8:11], s{48+k} offen sc1")
        if aft: aft()
        for k in range(5):
            a.e(f"s_waitcnt vmcnt({4-k+extra})")
            if again.endswith("r") and aft is after: ts(a, prof, [1,2,3,4,7][k], 1)
            r = PD+4*k
            if k == 0: a.e(f"v_max3_u32 v{tmpv}, v{r}, v{r+1}, v{r+2}"); a.e(f"v_max_u32 v{tmpv}, v{tmpv}, v{r+3}")
            else: a.e(f"v_max3_u32 v{tmpv}, v{r}, v{r+1}, v{tmpv}"); a.e(f"v_max3_u32 v{tmpv}, v{r+2}, v{r+3}, v{tmpv}")
            a.e(f"v_mfma_f32_16x16x32_bf16 {vr(r,4)}, {vr(r,4)}, {vr(vSB,4)}, 0")
            if k >= 3:
                q = PD+4*(k-3)
                a.e(f"v_cvt_pk_bf16_f32 v{q}, v{q}, v{q+1}")
                a.e(f"v_cvt_pk_bf16_f32 v{q+1}, v{q+2}, v{q+3}")
                a.e(f"ds_write_b64 v{vStW}, {vr(q,2)} offset:{512*(k-3)}")
        a.e(f"v_cmp_eq_u32 vcc, -1, v{tmpv}")
        for k in (2, 3, 4):
            q = PD+4*k
            if k == 4: a.nop(1)
            a.e(f"v_cvt_pk_bf16_f32 v{q}, v{q}, v{q+1}")
            a.e(f"v_cvt_pk_bf16_f32 v{q+1}, v{q+2}, v{q+3}")
            if k == 4 and w4: a.e(f"v_add_u32 v4, {w4}, v{vStW}"); a.e(f"ds_write_b64 v4, {vr(q,2)}")
            else: a.e(f"ds_write_b64 v{vStW}, {vr(q,2)} offset:{512*k}")
        a.e(again)
    if fused:
        def issue(aft):
            for k in range(5):
                a.e(f"buffer_load_dwordx4 {vr(PD+4*k,4)}, v{vH2}, s[8:11], s{48+k} offen sc1")
            aft()
        if after2:
            a.e("s_barrier")
            issue(after2)
            a.e(f"s_branch {lab}_fz{pollw}")
            a.label(f"{lab}_mkb")
            a.e("s_barrier")
            ts(a, prof, 5)
        issue(after)
        def retry():
            a.label(f"{lab}_h2r0")
            fused()
            a.nop(H2RD[0])
            a.label(f"{lab}_h2r")
            if prof: a.e("s_add_u32 s83, s83, 1")
            body(0, lambda: (a.e("s_sub_u32 s82, s82, 1"), a.e("s_cbranch_scc1 L_abort")), f"s_cbranch_vccnz {lab}_h2r")
            a.e(f"s_branch {lab}_loop")
        return retry
    if after2:
        a.e("s_barrier")
        body(nafter2, after2, f"s_cbranch_vccnz {lab}_h2r")
        a.e(f"s_branch {lab}_h2done")
        a.label(f"{lab}_mkb")
        a.e("s_barrier")
        ts(a, prof, 5)
    body(nafter, after, f"s_cbranch_vccnz {lab}_h2r")
    a.label(f"{lab}_h2done")
    if not nobar:
        a.e("s_waitcnt lgkmcnt(0)")
        a.e("s_barrier")
    def retry():
        a.label(f"{lab}_h2r")
        if prof: a.e("s_add_u32 s83, s83, 1")
        body(0, lambda: (a.e("s_sub_u32 s82, s82, 1"), a.e("s_cbranch_scc1 L_abort")), f"s_cbranch_vccnz {lab}_h2r")
        a.e(f"s_branch {lab}_h2done")
    return retry

def prof_dump(a, prof, lab):
    if not prof: return
    a.e(f"s_cmp_lg_u32 s28, {prof}")
    a.e(f"s_cbranch_scc1 {lab}_nodump")
    a.e("s_waitcnt lgkmcnt(0)")
    a.e("s_mov_b64 exec, 1")
    a.e("v_mov_b32 v2, s39")
    for i in range(8):
        a.e(f"v_mov_b32 v3, s{60+2*i}")
        a.e(f"buffer_store_dword v3, v2, s[56:59], 0 offen offset:{4*i}")
        a.e("s_nop 1")
    a.e("s_mov_b64 exec, -1")
    a.label(f"{lab}_nodump")

def qk_role(a, slow=False, cw=None, pre="QK", prof=0, mk_sleep=4, nsteps=64, upf=0, pfpol='', pfpos=(1,7), x_yc=1, x_km=1, x_kx=1, hk_sleep=10, BARP=3, qh_nop=24, fuse=1, qa=(22, 46)):
    LST = "sc1" if slow else ""
    MEMIMG = 98304; SCR = 108544
    vIdx, vMask, vI, vSB = 8, 9, 10, 12
    vArd, vStW, vH2, vMk, vKx32, vKx16, vScW0, vScW1, vScWm, vScR, vScRm, vPx, vPm, vKmA, vKmB, vL16 = range(16, 32)
    RING = 32; TMP = 48; ACC = 60; KX = 72; BST = 84
    WV = 132
    TMP = 48; ACC = 56; KX = 68; BST = 80; WV = 128
    def wreg(o): return ar(8*o, 8) if o < 32 else vr(WV + 8*(o-32), 8)
    def wsub(o, k): return ar(8*o+k, 2) if o < 32 else vr(WV + 8*(o-32)+k, 2)
    a.e("v_and_b32 v1, 63, v0")
    a.e("s_load_dwordx4 s[32:35], s[0:1], 16")
    a.e("s_load_dwordx2 s[20:21], s[0:1], 8")
    a.e("s_waitcnt lgkmcnt(0)")
    a.e("s_cmp_lt_u32 s24, 2")
    a.e("s_cselect_b32 s12, s32, s34")
    a.e("s_cselect_b32 s13, s33, s35")
    a.e("s_mov_b32 s14, 7864320")
    a.e("s_mov_b32 s15, 0x20000")
    a.e("s_mov_b32 s22, 10240")
    a.e("s_mov_b32 s23, 0x20000")
    DV = 40
    for i in range(6):
        a.e("s_and_b32 s30, s24, 1")
        a.e("s_mul_i32 s30, s30, 384")
        a.e(f"s_add_u32 s30, s30, {64*i}")
        a.e("v_add_u32 v2, s30, v1")
        a.e("v_mul_u32_u24 v3, 2731, v2")
        a.e("v_lshrrev_b32 v3, 16, v3")
        a.e("v_mul_u32_u24 v4, 24, v3")
        a.e("v_sub_u32 v4, v2, v4")
        a.e("v_mul_u32_u24 v3, 12288, v3")
        a.e(f"v_lshl_add_u32 v{DV+i}, v4, 4, v3")
    a.e("v_bfe_u32 v2, v1, 3, 1")
    a.e("v_mul_u32_u24 v2, 12288, v2")
    a.e("v_lshrrev_b32 v3, 4, v1")
    a.e("v_lshlrev_b32 v3, 2, v3")
    a.e("v_bfe_u32 v4, v1, 2, 1")
    a.e("v_add_u32 v3, v3, v4")
    a.e("v_mul_u32_u24 v3, 384, v3")
    a.e("v_add_u32 v2, v2, v3")
    a.e("s_mul_i32 s30, s24, 48")
    a.e("s_and_b32 s31, s24, 1")
    a.e("s_lshl_b32 s32, s31, 4")
    a.e("s_add_u32 s32, s32, s30")
    a.e("s_xor_b32 s31, s31, 1")
    a.e("s_lshl_b32 s33, s31, 5")
    a.e("s_add_u32 s33, s33, s30")
    a.e("v_bfe_u32 v3, v1, 1, 1")
    a.e("v_and_b32 v4, 1, v1")
    a.e("v_lshlrev_b32 v3, 4, v3")
    a.e("v_lshl_add_u32 v3, v4, 2, v3")
    a.e("v_add_u32 v3, s32, v3")
    a.e(f"v_lshl_add_u32 v{DV+6}, v3, 1, v2")
    a.e(f"v_add_u32 v{DV+7}, 16, v{DV+6}")
    a.e("v_and_b32 v3, 3, v1")
    a.e("v_lshlrev_b32 v3, 2, v3")
    a.e("v_add_u32 v3, s33, v3")
    a.e(f"v_lshl_add_u32 v{DV+8}, v3, 1, v2")
    a.e(f"v_lshlrev_b32 v{vL16}, 4, v1")
    a.e("s_mul_i32 s34, s27, 384")
    a.e("s_mul_i32 s35, s24, 6144")
    a.e(f"v_add_u32 v{DV+12}, s35, v{vL16}")
    chunks = []
    korder = [k for k in range(20) if k % 5 != 4] + [4, 9, 14, 19]
    def opi(k, t): return 3*(k - k//5) + t
    for ci, k in enumerate(korder):
        off = ((ci+2) % 6)*24576
        dma = []
        for i in range(6):
            p = []
            if i == 0:
                p += [f"s_add_u32 m0, s35, {off}", f"s_add_u32 s36, s34, {k*32*12288}"]
            else:
                p += ["s_add_u32 m0, m0, 1024", "s_nop 0"]
            dma.append(p + [f"buffer_load_dwordx4 v{DV+i}, s[12:15], s36 offen {WPOL[0]} lds"])
        prel = [f"v_add_u32 v{DV+9+t}, {off}, v{DV+6+t}" for t in range(3)]
        tr = []
        for t in range(3):
            for H in range(2):
                for p in range(2):
                    dst = wsub(opi(k, t), 4*H+2*p) if ci < 16 else vr(BST + 8*t + 4*H + 2*p, 2)
                    tr.append(f"ds_read_b64_tr_b16 {dst}, v{DV+9+t} offset:{(16*H+2*p)*384}")
        res = None
        if ci >= 16:
            res = [f"v_add_u32 v2, {off}, v{DV+12}"] + [f"ds_write_b128 v2, {vr(BST+4*q,4)} offset:{1024*q}" for q in range(6)]
        chunks.append(dict(off=off, size=24576, dma=dma, pre=prel, tr=tr, res=res))
    load_weights(a, chunks, cw)
    a.e("WLOADED")
    if cw: census_check(a)
    stage_mem0(a, MEMIMG, RING, 0)
    common_consts(a, vIdx, vSB, vStW, vH2, vMk, MEMIMG)
    a.e("v_lshrrev_b32 v2, 4, v1")
    a.e("v_bfe_u32 v3, v1, 2, 2")
    a.e("v_cmp_eq_u32 s[30:31], v2, v3")
    a.e("v_and_b32 v2, 1, v1")
    a.e("v_lshlrev_b32 v2, 4, v2")
    a.e("v_mov_b32 v3, 0x3f80")
    a.e("v_lshlrev_b32 v3, v2, v3")
    a.e("v_bfe_u32 v4, v1, 1, 1")
    for q in range(2):
        a.e(f"v_cmp_eq_u32 vcc, {q}, v4")
        a.e("s_and_b64 vcc, vcc, s[30:31]")
        a.e(f"v_cndmask_b32 v{vI+q}, 0, v3, vcc")
    a.e(f"v_mov_b32 v{vMask}, 0x7fff7fff")
    a.e("v_lshrrev_b32 v2, 4, v1")
    a.e("v_and_b32 v3, 7, v1")
    a.e("v_lshlrev_b32 v2, 7, v2")
    a.e("v_lshl_add_u32 v2, v3, 4, v2")
    a.e(f"v_add_u32 v{vArd}, {MEMIMG}, v2")
    a.e("v_bfe_u32 v2, v1, 2, 1"); a.e("v_lshlrev_b32 v2, 2, v2")
    a.e("v_bfe_u32 v3, v1, 3, 1"); a.e("v_lshl_add_u32 v2, v3, 1, v2")
    a.e("v_and_b32 v3, 1, v1"); a.e("v_add_u32 v2, v2, v3")
    a.e("v_bfe_u32 v3, v1, 1, 1"); a.e("v_lshl_add_u32 v2, v3, 3, v2")
    a.e("v_bfe_u32 v3, v1, 4, 1"); a.e("v_lshl_add_u32 v2, v3, 5, v2")
    a.e("v_lshlrev_b32 v2, 4, v2")
    a.e("v_lshrrev_b32 v3, 5, v1")
    a.e("s_lshl_b32 s30, s32, 6")
    a.e("s_lshl_b32 s31, s33, 6")
    a.e("v_lshl_add_u32 v4, v3, 10, v2"); a.e(f"v_add_u32 v{vKx32}, s30, v4")
    a.e("v_lshl_add_u32 v4, v3, 3, v2"); a.e(f"v_add_u32 v{vKx16}, s31, v4")
    a.e("v_and_b32 v2, 7, v1"); a.e("v_lshlrev_b32 v2, 4, v2")
    a.e("v_lshrrev_b32 v3, 4, v1"); a.e("v_lshl_add_u32 v4, v3, 7, v2")
    a.e("s_lshl_b32 s30, s32, 4"); a.e(f"v_add_u32 v{vKmA}, s30, v4")
    a.e("v_bfe_u32 v3, v1, 4, 1"); a.e("v_lshl_add_u32 v4, v3, 7, v2")
    a.e("v_lshrrev_b32 v3, 5, v1"); a.e("v_lshl_add_u32 v4, v3, 3, v4")
    a.e("s_lshl_b32 s30, s33, 4"); a.e(f"v_add_u32 v{vKmB}, s30, v4")
    a.e("s_mul_i32 s30, s24, 1536"); a.e(f"s_add_u32 s30, s30, {SCR}")
    a.e("v_and_b32 v2, 7, v1"); a.e("v_lshrrev_b32 v3, 4, v1")
    a.e("v_xor_b32 v4, v3, v2"); a.e("v_lshl_add_u32 v4, v2, 3, v4"); a.e("v_lshlrev_b32 v4, 4, v4")
    a.e(f"v_add_u32 v{vScW0}, s30, v4"); a.e(f"v_xor_b32 v4, 64, v4"); a.e(f"v_add_u32 v{vScW1}, s30, v4")
    a.e("v_bfe_u32 v3, v1, 4, 1"); a.e("v_lshl_add_u32 v4, v2, 1, v3")
    a.e("v_lshrrev_b32 v3, 5, v1"); a.e("v_xor_b32 v3, 1, v3"); a.e("v_lshl_add_u32 v4, v3, 4, v4")
    a.e("v_lshlrev_b32 v4, 4, v4"); a.e("v_add_u32 v4, 1024, v4"); a.e(f"v_add_u32 v{vScWm}, s30, v4")
    a.e("v_lshrrev_b32 v2, 4, v1"); a.e("v_bfe_u32 v3, v1, 2, 1"); a.e("v_lshl_add_u32 v2, v2, 1, v3")
    a.e("v_bfe_u32 v5, v1, 3, 1"); a.e("v_and_b32 v3, 3, v1"); a.e("v_lshl_add_u32 v3, v5, 2, v3"); a.e("v_xor_b32 v3, v3, v2"); a.e("v_lshl_add_u32 v3, v2, 3, v3")
    a.e("v_lshlrev_b32 v3, 4, v3"); a.e(f"v_add_u32 v{vScR}, {SCR}, v3")
    a.e("v_bfe_u32 v4, v1, 1, 1"); a.e("v_and_b32 v3, 1, v1"); a.e("v_lshl_add_u32 v3, v5, 1, v3"); a.e("v_lshl_add_u32 v3, v4, 2, v3"); a.e("v_lshl_add_u32 v3, v2, 3, v3")
    a.e("v_lshlrev_b32 v3, 2, v3"); a.e(f"v_add_u32 v{vScRm}, {SCR+1024}, v3")
    a.e(f"v_lshlrev_b32 v{vPx}, 3, v1")
    a.e("v_lshl_add_u32 v3, v5, 1, v4"); a.e("v_lshl_add_u32 v3, v2, 2, v3"); a.e("v_lshlrev_b32 v3, 2, v3"); a.e(f"v_add_u32 v{vPm}, 512, v3")
    a.e("s_mul_i32 s37, s26, 640"); a.e("s_add_u32 s37, s37, s46")
    a.e(f"s_mul_i32 s38, s27, 12288"); a.e(f"s_add_u32 s38, s38, {WS_K}")
    a.e(f"s_mul_i32 s54, s27, 3072"); a.e(f"s_add_u32 s54, s54, {WS_KM}")
    a.e(f"s_lshl_b32 s55, s27, 4"); a.e(f"s_add_u32 s55, s55, {WS_FLAGS+F_K}")
    a.e(f"s_lshl_b32 s34, s27, 7"); a.e(f"s_add_u32 s34, s34, {WS_FLAGS+F_KM}")
    a.e("s_lshl_b32 s84, s26, 7"); a.e("s_add_u32 s84, s84, s45"); a.e("s_add_u32 s84, s84, 2048")
    a.e("s_mov_b32 s28, 0"); a.e("s_mov_b32 s29, 0")
    a.e(f"s_mov_b32 s36, {fbits(CEXP)}")
    def kflag_wait(lab, stepexpr_reg):
        a.e(f"s_lshr_b32 s30, {stepexpr_reg}, 3")
        a.e("s_lshl_b32 s30, s30, 9"); a.e("s_add_u32 s30, s30, s55")
        a.e(f"v_and_b32 v3, 4, v{vPm}")
        a.label(lab)
        a.e(f"buffer_load_dword v2, v3, s[8:11], s30 offen sc1")
        a.e("s_sub_u32 s82, s82, 1"); a.e("s_cbranch_scc1 L_abort")
        a.e("s_waitcnt vmcnt(0)")
        a.e("v_cmp_eq_u32 vcc, 0, v2")
        a.e(f"s_cbranch_vccnz {lab}")
    def kx_loads():
        for t in range(2):
            a.e(f"buffer_load_dwordx4 {vr(KX+4*t,4)}, v{vKx32}, s[8:11], s38 offen offset:{256*t} sc1")
        for t in range(2):
            a.e(f"buffer_load_dwordx2 {vr(KX+8+2*t,2)}, v{vKx16}, s[8:11], s38 offen offset:{256*t} sc1")
        if x_kx: a.e(f"s_add_u32 s38, s38, {32*12288}")
    LR = [6, 7, TMP+6, TMP+7]
    for q in range(4):
        a.e(f"s_add_u32 s30, s24, {q}"); a.e("s_and_b32 s30, s30, 3"); a.e("s_mul_i32 s30, s30, 24576"); a.e("s_add_u32 s30, s30, s35")
        a.e(f"v_add_u32 v{LR[q]}, s30, v{vL16}")
    def lrd(q, st):
        return [f"ds_read_b128 {vr(BST+24*st+4*i,4)}, v{LR[q]} offset:{1024*i}" for i in range(6)]
    def idle_prep():
        for ins in lrd(0, 0) + lrd(1, 1): a.e(ins)
        for q in range(12): a.e(f"v_mov_b32 v{ACC+q}, 0")
    kflag_wait(f"{pre}_kf0", "s28")
    stage_mem0(a, MEMIMG, RING, 1)
    kx_loads()
    if upf:
        a.e(f"s_mul_i32 s85, s27, 40960"); a.e(f"s_add_u32 s85, s85, {WS_U + 32*40960}"); a.e("s_mul_i32 s30, s24, 10240"); a.e("s_add_u32 s85, s85, s30")
        if upf == 1:
            a.e(f"v_lshlrev_b32 v{vL16}, 7, v1"); a.e("v_lshrrev_b32 v4, 2, v1"); a.e("v_lshlrev_b32 v4, 7, v4"); a.e("v_add_u32 v4, 8192, v4")
        else:
            a.e("v_lshrrev_b32 v4, 2, v1"); a.e(f"v_lshlrev_b32 v{vL16}, 7, v4"); a.e("s_add_u32 s86, s85, 4096"); a.e("s_add_u32 s87, s85, 8192")
    if QARCH[0]:
        a.e("s_mul_i32 s30, s24, 2560"); a.e("s_mul_i32 s85, s26, 10240"); a.e("s_add_u32 s85, s85, s30"); a.e("s_add_u32 s85, s85, s46"); a.e(f"s_add_u32 s85, s85, {LOC_Y + 163840}")
        a.e("s_mul_i32 s87, s27, 10240"); a.e("s_add_u32 s87, s87, s30"); a.e(f"s_add_u32 s87, s87, {WS_YA}")
        a.e("s_add_u32 s86, s46, s30"); a.e(f"s_add_u32 s86, s86, {LOC_DUMMY}")
        a.e(f"s_mov_b32 s88, {(-163840) & 0xffffffff}")
    a.e("v_mov_b32 v0, 1")
    idle_prep()
    a.e("s_waitcnt lgkmcnt(0)")
    a.e("s_barrier")
    a.e("LOOPSTART")
    def emit_loop(pre, LST, prof):
        X = TMP; T = BST+24; XO = BST; S = BST+8
        def cv(d, s0): return f"v_cvt_pk_bf16_f32 v{d}, v{s0}, v{s0+1}"
        a.label(f"{pre}_loop")
        for w in range(3):
            a.e(f"s_cmp_eq_u32 s24, {w}"); a.e(f"s_cbranch_scc1 {pre}_s1w{w}")
        def s1_ctx(w):
            order = [(5*w + p) % 20 for p in range(20)]
            def bop(p, t):
                k = order[p]
                return wreg(opi(k, t)) if k % 5 != 4 else vr(BST + 24*((p//5) & 1) + 8*t, 8)
            def aread(p, r=None): return f"ds_read_b128 {vr(r if r is not None else RING+4*(p%4),4)}, v{vArd} offset:{512*order[p]}"
            def sm(p, t, r=None): return f"{SM64} {vr(ACC+4*t,4)}, {vr(r if r is not None else RING+4*(p%4),4)}, {bop(p, t)}, v{vIdx}"
            return order, aread, sm
        def head_std(w):
            order, aread, sm = s1_ctx(w)
            for p in range(3): a.e(aread(p))
            for p in range(5):
                a.e(f"s_waitcnt lgkmcnt({(2, 2, 2, 1, 2)[p]})")
                if p == 3: a.e("s_barrier")
                for t in range(3):
                    a.e(sm(p, t))
                    if (p, t) in ((0, 0), (1, 0)): a.e(aread(p+3))
                    if (p, t) == (3, 0): a.e(aread(5))
                    if (p, t) == (3, 1): a.e(aread(6))
                    if (p, t) == (4, 0): a.e(aread(7))
        def head_fused(w):
            order, aread, sm = s1_ctx(w)
            PD = RING; tv = 3
            def chk(k):
                r = PD+4*k
                a.e(f"s_waitcnt vmcnt({4-k})")
                if k in (0, 4): ts(a, prof, 1 if k == 0 else 7, 1)
                if k == 0: a.e(f"v_max3_u32 v{tv}, v{r}, v{r+1}, v{r+2}"); a.e(f"v_max_u32 v{tv}, v{tv}, v{r+3}")
                else: a.e(f"v_max3_u32 v{tv}, v{r}, v{r+1}, v{tv}"); a.e(f"v_max3_u32 v{tv}, v{r+2}, v{r+3}, v{tv}")
                a.e(f"v_mfma_f32_16x16x32_bf16 {vr(r,4)}, {vr(r,4)}, {vr(vSB,4)}, 0")
            def put(k):
                q = PD+4*k
                a.e(cv(q, q)); a.e(cv(q+1, q+2))
                a.e(f"ds_write_b64 v{vStW}, {vr(q,2)} offset:{512*k}")
                a.e(aread(k, q))
            chk(0); chk(1); chk(2)
            put(0)
            chk(3)
            put(1)
            chk(4)
            a.e(f"v_cmp_eq_u32 vcc, -1, v{tv}")
            put(2)
            a.e("s_waitcnt lgkmcnt(4)")
            a.e(sm(0, 0)); put(3); a.e(sm(0, 1)); a.e(sm(0, 2))
            put(4)
            a.e(f"s_cbranch_vccnz {pre}_h2r0")
            ts(a, prof, 0)
            a.e("s_waitcnt lgkmcnt(6)")
            for t in range(3): a.e(sm(1, t))
            a.e("s_waitcnt lgkmcnt(1)")
            a.e("s_barrier")
            a.e(sm(2, 0)); a.e(aread(5)); a.e(sm(2, 1)); a.e(sm(2, 2))
            a.e(sm(3, 0)); a.e(aread(6)); a.e(sm(3, 1)); a.e(sm(3, 2))
            a.e("s_waitcnt lgkmcnt(2)")
            a.e(sm(4, 0, PD+16)); a.e(aread(7)); a.e(sm(4, 1, PD+16)); a.e(sm(4, 2, PD+16))
            a.e(f"s_branch {pre}_s1t{w}")
        for w in (3, 0, 1, 2):
            a.label(f"{pre}_s1w{w}")
            ts(a, prof, 0)
            head_std(w)
            a.label(f"{pre}_s1t{w}")
            order, aread, sm = s1_ctx(w)
            lq = [("A", 5), ("A", 6), ("A", 7)]
            nextA = 8
            extra_q = []
            seq = [(p, t) for p in range(17) for t in range(3)] + [(p, t) for t in range(3) for p in (17, 18, 19)]
            for n, (p, t) in enumerate(seq):
                if n < 15: continue
                need = [("A", p)] + ([("L", p//5)] if p in (14, 19) else [])
                idx = [i for i, tg in enumerate(lq) if tg in need]
                if idx:
                    a.e(f"s_waitcnt lgkmcnt({len(lq)-1-max(idx)})"); lq = lq[max(idx)+1:]
                if (p, t) == (5, 0): extra_q = [(ins, ("L", 2)) for ins in lrd(2, 0)]
                if (p, t) == (10, 0): extra_q = [(ins, ("L", 3)) for ins in lrd(3, 1)]
                a.e(sm(p, t))
                if n < 51:
                    if nextA < 20 and nextA - 4 < p and t == 0:
                        a.e(aread(nextA)); lq.append(("A", nextA)); nextA += 1
                    elif extra_q:
                        ins, tag = extra_q.pop(0); a.e(ins); lq.append(tag)
                if QARCH[0]:
                    if n == qa[0]: a.e(f"buffer_load_dwordx4 v[2:5], v{vL16}, s[8:11], s85 offen sc1")
                    if n == qa[0]+3: a.e(f"buffer_load_dwordx4 {vr(TMP,4)}, v{vL16}, s[8:11], s85 offen offset:1024 sc1")
                    if n == qa[0]+6: a.e(f"buffer_load_dwordx2 {vr(TMP+4,2)}, v{vPx}, s[8:11], s85 offen offset:2048 sc1")
                    if n == qa[1]: a.e("s_waitcnt vmcnt(2)"); a.e(f"buffer_store_dwordx4 v[2:5], v{vL16}, s[8:11], s86 offen sc1")
                    if n == qa[1]+4: a.e("s_waitcnt vmcnt(2)"); a.e(f"buffer_store_dwordx4 {vr(TMP,4)}, v{vL16}, s[8:11], s86 offen offset:1024 sc1")
                    if n == qa[1]+8: a.e("s_waitcnt vmcnt(2)"); a.e(f"buffer_store_dwordx2 {vr(TMP+4,2)}, v{vPx}, s[8:11], s86 offen offset:2048 sc1")
                if n == 55:
                    a.e(cv(X, ACC)); a.e(cv(X+1, ACC+2))
                if n == 56:
                    a.e(f"v_mfma_f32_16x16x16_bf16 {vr(T,4)}, {vr(X,2)}, {vr(vI,2)}, 0")
                if n == 58:
                    a.e(cv(X+2, ACC+4)); a.e(cv(X+3, ACC+6))
            assert nextA == 20 and not extra_q
            if w != 2: a.e(f"s_branch {pre}_post")
        a.label(f"{pre}_post")
        ts(a, prof, 1)
        a.e(f"v_mfma_f32_16x16x16_bf16 {vr(T+4,4)}, {vr(X+2,2)}, {vr(vI,2)}, 0")
        a.e(cv(XO, T)); a.e(cv(XO+1, T+2))
        a.e(f"s_waitcnt vmcnt({3 if QARCH[0] else 0})")
        a.nop(1)
        a.e(cv(X+4, ACC+8)); a.e(cv(X+5, ACC+10))
        a.nop(2)
        a.e(f"v_mfma_f32_16x16x16_bf16 {vr(T+8,4)}, {vr(X+4,2)}, {vr(vI,2)}, 0")
        a.e(cv(XO+2, T+4)); a.e(cv(XO+3, T+6))
        a.nop(2)
        a.e(f"v_mfma_f32_16x16x32_bf16 {vr(S,4)}, {vr(KX,4)}, {vr(XO,4)}, 0")
        a.e(f"v_mfma_f32_16x16x32_bf16 {vr(S+4,4)}, {vr(KX+4,4)}, {vr(XO,4)}, 0")
        a.e(cv(XO+4, T+8)); a.e(cv(XO+5, T+10))
        a.e(f"v_mfma_f32_16x16x32_bf16 {vr(S+8,4)}, {vr(XO,4)}, {vr(XO,4)}, 0")
        a.e(f"v_mfma_f32_16x16x16_bf16 {vr(S,4)}, {vr(KX+8,2)}, {vr(XO+4,2)}, {vr(S,4)}")
        a.e(f"v_mfma_f32_16x16x16_bf16 {vr(S+4,4)}, {vr(KX+10,2)}, {vr(XO+4,2)}, {vr(S+4,4)}")
        a.e(f"v_mfma_f32_16x16x16_bf16 {vr(S+8,4)}, {vr(XO+4,2)}, {vr(XO+4,2)}, {vr(S+8,4)}")
        a.e("s_mov_b32 exec_lo, 0x00ff00ff"); a.e("s_mov_b32 exec_hi, 0x00ff00ff")
        a.e(f"ds_write_b128 v{vScW0}, {vr(S,4)}")
        a.nop(1)
        a.e(f"ds_write_b128 v{vScW1}, {vr(S+4,4)}")
        a.nop(3)
        a.e(f"ds_write_b128 v{vScWm}, {vr(S+8,4)}")
        a.e("s_mov_b64 exec, -1")
        a.e(f"s_cmp_eq_u32 s28, {nsteps-1}")
        a.e(f"s_cbranch_scc1 {pre}_last")
        a.e("s_cmp_lg_u32 s24, 0")
        a.e("s_waitcnt lgkmcnt(0)")
        a.e("s_barrier")
        a.e(f"s_cbranch_scc1 {pre}_nosm")
        ts(a, prof, 2)
        R = BST+24; M = BST+40; W = RING
        for w in range(4):
            a.e(f"ds_read_b128 {vr(R+4*w,4)}, v{vScR} offset:{1536*w}")
            a.e(f"ds_read_b32 v{M+w}, v{vScRm} offset:{1536*w}")
        a.e("s_waitcnt lgkmcnt(4)")
        a.e(f"v_pk_add_f32 {vr(R,2)}, {vr(R,2)}, {vr(R+4,2)}"); a.e(f"v_pk_add_f32 {vr(R+2,2)}, {vr(R+2,2)}, {vr(R+6,2)}")
        a.e(f"v_add_f32 v{M}, v{M}, v{M+1}")
        a.e("s_waitcnt lgkmcnt(0)")
        a.e(f"v_pk_add_f32 {vr(R+8,2)}, {vr(R+8,2)}, {vr(R+12,2)}"); a.e(f"v_pk_add_f32 {vr(R+10,2)}, {vr(R+10,2)}, {vr(R+14,2)}")
        a.e(f"v_add_f32 v{M+2}, v{M+2}, v{M+3}")
        a.e(f"v_pk_add_f32 {vr(R,2)}, {vr(R,2)}, {vr(R+8,2)}"); a.e(f"v_pk_add_f32 {vr(R+2,2)}, {vr(R+2,2)}, {vr(R+10,2)}")
        a.e(f"v_add_f32 v{M}, v{M}, v{M+2}")
        a.e(f"v_max3_f32 v{W}, v{R}, v{R+1}, v{R+2}")
        a.e(f"v_max3_f32 v{W}, v{W}, v{R+3}, v{M}")
        for d in ("quad_perm:[1,0,3,2]", "quad_perm:[2,3,0,1]", "row_ror:8"):
            a.nop(2)
            a.e(f"v_max_f32_dpp v{W}, v{W}, v{W} {d} row_mask:0xf bank_mask:0xf")
        a.e(f"v_mul_f32 v{W}, s36, v{W}")
        vals = [R, R+1, R+2, R+3, M]
        for v in (M, R, R+1, R+2, R+3): a.e(f"v_fma_f32 v{v}, v{v}, s36, -v{W}")
        for v in vals: a.e(f"v_exp_f32 v{v}, v{v}")
        a.e(f"v_add_f32 v{W}, v{R}, v{R+1}")
        a.e(f"v_add_f32 v{W+1}, v{R+2}, v{R+3}")
        a.e(f"v_add_f32 v{W}, v{W}, v{M}")
        a.e(f"v_add_f32 v{W}, v{W}, v{W+1}")
        for d in ("quad_perm:[1,0,3,2]", "quad_perm:[2,3,0,1]", "row_ror:8"):
            a.nop(2)
            a.e(f"v_add_f32_dpp v{W}, v{W}, v{W} {d} row_mask:0xf bank_mask:0xf")
        a.e(f"v_rcp_f32 v{W}, v{W}")
        a.nop(1)
        a.e(f"v_mul_f32 v{M}, v{M}, v{W}")
        for v in vals[:4]: a.e(f"v_mul_f32 v{v}, v{v}, v{W}")
        a.e(f"v_mov_b32_dpp v{W+2}, v{M} quad_perm:[0,0,2,2] row_mask:0xf bank_mask:0xf")
        a.e(f"v_mov_b32_dpp v{W+3}, v{M} quad_perm:[1,1,3,3] row_mask:0xf bank_mask:0xf")
        a.e(f"v_cvt_pk_bf16_f32 v{W+4}, v{R}, v{R+1}")
        a.e(f"v_cvt_pk_bf16_f32 v{W+5}, v{R+2}, v{R+3}")
        a.e(f"v_cvt_pk_bf16_f32 v{W+6}, v{W+2}, v{W+3}")
        for q in (4, 5): a.e(f"v_bfi_b32 v{W+q}, v{vMask}, v{W+q}, s29")
        a.e(f"buffer_store_dwordx2 {vr(W+4,2)}, v{vPx}, s[8:11], s37 offen {LST}")
        a.e(f"v_bfi_b32 v{W+6}, v{vMask}, v{W+6}, s29")
        a.e(f"buffer_store_dword v{W+6}, v{vPm}, s[8:11], s37 offen {LST}")
        ts(a, prof, 3)
        if HINT[0]:
            a.e(f"s_branch {pre}_b2")
            a.label(f"{pre}_nosm")
            a.e("s_cmp_lg_u32 s24, 1"); a.e(f"s_cbranch_scc1 {pre}_b2")
            a.e("s_add_u32 s30, s28, 1"); a.e("v_mov_b32 v2, s30"); a.e("s_mov_b64 exec, 1")
            a.nop(qh_nop)
            a.e(f"buffer_store_dword v2, off, s[8:11], s84 {LST}")
            a.e("s_mov_b64 exec, -1")
            a.label(f"{pre}_b2")
        else:
            a.label(f"{pre}_nosm")
        a.e("s_barrier")
        for i in range(hk_sleep): a.e("s_sleep 1")
        def km_export():
            a.e("s_mov_b32 exec_lo, 0xff00ff00"); a.e("s_mov_b32 exec_hi, 0xff00ff00")
            if x_km:
                a.e(f"buffer_store_dwordx4 {vr(XO,4)}, v{vKmA}, s[8:11], s54 offen sc1")
                a.e(f"buffer_store_dwordx2 {vr(XO+4,2)}, v{vKmB}, s[8:11], s54 offen sc1")
            a.e("s_mov_b64 exec, -1")
            a.e(f"s_add_u32 s54, s54, {32*3072}")
        a.e("v_cmp_eq_u32 vcc, 0, v0"); a.e("s_add_u32 s31, s28, 1")
        a.e(f"s_cbranch_vccz {pre}_nokf")
        kflag_wait(f"{pre}_kf", "s31")
        a.label(f"{pre}_nokf")
        kx_loads()
        if QARCH[0]:
            a.e("s_add_u32 s85, s85, s88"); a.e("s_sub_u32 s88, 0, s88"); a.e("s_mov_b32 s86, s87"); a.e(f"s_add_u32 s87, s87, {32*10240}")
        if upf:
            for r in ((85,) if upf == 1 else (85, 86, 87)): a.e(f"s_add_u32 s{r}, s{r}, {32*40960}")
        a.e("s_add_u32 s30, s28, 2"); a.e("s_min_u32 s30, s30, 63"); a.e("s_lshr_b32 s30, s30, 3"); a.e("s_lshl_b32 s30, s30, 9"); a.e("s_add_u32 s30, s30, s55")
        a.e(f"v_and_b32 v3, 4, v{vPm}")
        a.e(f"buffer_load_dword v0, v3, s[8:11], s30 offen sc1")
        km_export()
        a.e("s_cmp_lg_u32 s24, 3"); a.e(f"s_cbranch_scc1 {pre}_nofl")
        a.e("v_mov_b32 v2, s28"); a.e("s_mov_b64 exec, 1")
        a.e(f"buffer_store_dword v2, off, s[8:11], s34 sc1")
        if QARCH[0]:
            a.e("s_max_u32 s30, s28, 1"); a.e("s_sub_u32 s30, s30, 1"); a.e("v_mov_b32 v4, s30"); a.e(f"s_add_u32 s30, s34, {F_YR-F_KM}")
            a.e(f"buffer_store_dword v4, off, s[8:11], s30 sc1")
        if STEPLOG[0]:
            a.e("s_memrealtime s[100:101]"); a.e("s_lshl_b32 s30, s28, 2"); a.e("s_lshl_b32 s31, s27, 8"); a.e("s_add_u32 s30, s30, s31"); a.e(f"s_add_u32 s30, s30, {STEPLOG[0]}")
            a.e("s_waitcnt lgkmcnt(0)"); a.e("v_mov_b32 v3, s100")
            a.e("buffer_store_dword v3, off, s[8:11], s30")
        a.e("s_mov_b64 exec, -1")
        a.label(f"{pre}_nofl")
        ts(a, prof, 4)
        if fuse:
            def aftq():
                idle_prep()
                ts(a, prof, 6)
                prof_dump(a, prof, pre)
                a.e("s_add_u32 s28, s28, 1"); a.e("s_xor_b32 s29, s29, 0x80008000")
            def zacc():
                a.e("s_waitcnt lgkmcnt(0)")
                a.nop(8)
                for q in range(12): a.e(f"v_mov_b32 v{ACC+q}, 0")
            retry = h2_stage(a, pre, RING, None, None, vSB, vStW, vH2, vMk, 1, mk_sleep, prof, after=aftq, pollw=1, fused=zacc)
            for w in range(3):
                a.e(f"s_cmp_eq_u32 s24, {w}"); a.e(f"s_cbranch_scc1 {pre}_fz{w}")
            for w in (3, 0, 1, 2):
                a.label(f"{pre}_fz{w}")
                head_fused(w)
        else:
            retry = h2_stage(a, pre, RING, None, None, vSB, vStW, vH2, vMk, 1, mk_sleep, prof, after=idle_prep, nobar=True, pollw=1)
            ts(a, prof, 6)
            prof_dump(a, prof, pre)
            a.e("s_add_u32 s28, s28, 1"); a.e("s_xor_b32 s29, s29, 0x80008000")
            a.e(f"s_branch {pre}_loop")
        retry()
        a.label(f"{pre}_last")
        km_export()
        a.e("s_waitcnt vmcnt(0)")
        a.e("s_barrier")
        a.e(f"v_mov_b32 v2, {nsteps}"); a.e("v_mov_b32 v3, 0"); a.e("s_mov_b64 exec, 1")
        a.e(f"buffer_store_dword v2, v3, s[8:11], s34 offen sc1")
        if QARCH[0]:
            a.e(f"v_mov_b32 v4, {nsteps-1}"); a.e(f"s_add_u32 s30, s34, {F_YR-F_KM}"); a.e(f"buffer_store_dword v4, off, s[8:11], s30 sc1")
        a.e("s_waitcnt vmcnt(0)")
        a.e("s_mov_b64 exec, -1")
        a.e(f"s_branch {pre0}_end")
    pre0 = pre
    if cw:
        a.e("s_cmp_lt_u32 s81, 32"); a.e(f"s_cbranch_scc1 {pre}S_loop")
        emit_loop(pre, "", prof)
        emit_loop(pre + "S", "sc1", 0)
    else:
        emit_loop(pre, LST, prof)
    a.label(f"{pre}_end")

def vo_role(a, slow=False, cw=None, pre="VO", prof=0, mk_sleep=0, p_sleep=0, y_sleep=5, nsteps=64, uload=1, upol="", upre=2, vsp=3, mkw_sleep=1, rs_sleep=0, uwait=0, ustep=1, novm=0, mkearly=None, yfirst=0, late=0, apos=4, af='sc1', h_nop=0, ulate=0, dbl=0, ytag=1, p_nop=32, y_nop=0, fuse=1, ponly=1, pearly=1):
    mkearly = MKE[0]
    if QARCH[0]: apos = 9
    LST = "sc1" if slow else ""
    WOL = 49152; MEMIMG = 131072; VBUF = 141312; RSC = 144384
    vIdx, vSB = 8, 10
    vAst, vStW, vH2, vMk, vVw0, vVw1, vVr, vYst, vYs0, vYs2, vU0, vU1, vU2, vPx, vPm, vRw, vRr, vPub = range(14, 32)
    vL16 = 9
    PR = 32; ACC = 52; U = 72; BST = 120; WV = 160; VA = BST+24; vYs4 = 9
    def wreg(o): return ar(8*o, 8) if o < 32 else vr(WV + 8*(o-32), 8)
    def wsub(o, k): return ar(8*o+k, 2) if o < 32 else vr(WV + 8*(o-32)+k, 2)
    a.e("v_and_b32 v1, 63, v0")
    a.e("s_load_dwordx4 s[32:35], s[0:1], 32")
    a.e("s_load_dwordx2 s[20:21], s[0:1], 8")
    a.e("s_waitcnt lgkmcnt(0)")
    a.e("s_mov_b32 s12, s32"); a.e("s_mov_b32 s13, s33"); a.e("s_mov_b32 s14, 7864320"); a.e("s_mov_b32 s15, 0x20000")
    a.e("s_mov_b32 s16, s34"); a.e("s_mov_b32 s17, s35"); a.e("s_mov_b32 s18, 7864320"); a.e("s_mov_b32 s19, 0x20000")
    a.e("s_mov_b32 s22, 10240"); a.e("s_mov_b32 s23, 0x20000")
    DV = 72
    a.e("s_lshr_b32 s31, s24, 1"); a.e(f"s_mul_i32 s31, s31, {32*12288}")
    for i in range(6):
        a.e("s_and_b32 s30, s24, 1")
        a.e("s_mul_i32 s30, s30, 384")
        a.e(f"s_add_u32 s30, s30, {64*i}")
        a.e("v_add_u32 v2, s30, v1")
        a.e("v_mul_u32_u24 v3, 2731, v2")
        a.e("v_lshrrev_b32 v3, 16, v3")
        a.e("v_mul_u32_u24 v4, 24, v3")
        a.e("v_sub_u32 v4, v2, v4")
        a.e("v_mul_u32_u24 v3, 12288, v3")
        a.e(f"v_lshl_add_u32 v3, v4, 4, v3")
        a.e(f"v_add_u32 v{DV+i}, s31, v3")
    a.e(f"v_lshlrev_b32 v{vL16}, 4, v1")
    a.e("v_lshrrev_b32 v3, 4, v1"); a.e("v_lshlrev_b32 v3, 2, v3"); a.e("v_bfe_u32 v4, v1, 2, 1"); a.e("v_add_u32 v5, v3, v4")
    a.e("v_bfe_u32 v2, v1, 3, 1")
    a.e("v_mul_u32_u24 v3, 12288, v2"); a.e("v_mul_u32_u24 v4, 384, v5"); a.e("v_add_u32 v3, v3, v4")
    a.e("v_and_b32 v4, 3, v1"); a.e("v_lshl_add_u32 v3, v4, 3, v3")
    a.e("s_mul_i32 s30, s24, 96"); a.e(f"v_add_u32 v{DV+6}, s30, v3")
    a.e("v_mul_u32_u24 v3, 1280, v5"); a.e("v_lshl_add_u32 v3, v2, 5, v3"); a.e("v_lshl_add_u32 v3, v4, 3, v3")
    a.e("s_mul_i32 s30, s24, 320"); a.e(f"v_add_u32 v{DV+7}, s30, v3")
    a.e("s_mul_i32 s34, s27, 384")
    a.e("s_mul_i32 s35, s24, 6144")
    a.e("s_mul_i32 s37, s24, 5120")
    a.e("s_mul_i32 s38, s27, 245760")
    a.e(f"v_add_u32 v6, s35, v{vL16}")
    a.e(f"v_add_u32 v{DV+9}, s37, v{vL16}")
    a.e(f"v_add_u32 v7, {WOL}, v{DV+9}")
    chunks = []
    ring = [0]
    def nextslot():
        o = (ring[0] % 6)*24576; ring[0] += 1; return o
    def wv_chunk(io, off, res):
        dma = []
        for i in range(6):
            p = [f"s_add_u32 m0, s35, {off}", f"s_add_u32 s36, s34, {io*64*12288}"] if i == 0 else ["s_add_u32 m0, m0, 1024", "s_nop 0"]
            dma.append(p + [f"buffer_load_dwordx4 v{DV+i}, s[12:15], s36 offen {WPOL[0]} lds"])
        tr = []
        for s_ in range(3):
            for H in range(2):
                for p in range(2):
                    dst = vr(BST+8*s_+4*H+2*p, 2) if res else wsub(io*3+s_, 4*H+2*p)
                    tr.append(f"ds_read_b64_tr_b16 {dst}, v{DV+8} offset:{(16*H+2*p)*384 + 32*s_}")
        r = [f"ds_write_b128 v6, {vr(BST+4*q,4)} offset:{off+1024*q}" for q in range(6)] if res else None
        return dict(off=off, size=24576, dma=dma, pre=[f"v_add_u32 v{DV+8}, {off}, v{DV+6}"], tr=tr, res=r)
    def wo_chunk(ep, H, off, res):
        dma = []
        for i in range(5):
            p = [f"s_add_u32 m0, s37, {off}", f"s_add_u32 s36, s38, {(2*ep+H)*20480}"] if i == 0 else ["s_add_u32 m0, m0, 1024", "s_add_u32 s36, s36, 1024"]
            dma.append(p + [f"buffer_load_dwordx4 v{DV+9}, s[16:19], s36 offen {WPOL[0]} lds"])
        tr = []
        for t in range(5):
            for p in range(2):
                dst = vr(BST+4*t+2*p, 2) if res else wsub(24+ep*5+t, 4*H+2*p)
                tr.append(f"ds_read_b64_tr_b16 {dst}, v{DV+8} offset:{2*p*1280 + 64*t}")
        r = [f"v_add_u32 v2, {off}, v{DV+9}"] + [f"ds_write_b128 v2, {vr(BST+4*t,4)} offset:{1024*t}" for t in range(5)] if res else None
        return dict(off=off, size=20480, dma=dma, pre=[f"v_add_u32 v{DV+8}, {off}, v{DV+7}"], tr=tr, res=r)
    ring[0] = 2
    for io in range(8): chunks.append(wv_chunk(io, nextslot(), False))
    for ep in range(4):
        for H in range(2): chunks.append(wo_chunk(ep, H, nextslot(), False))
    chunks.append(wv_chunk(8, 0, True)); chunks.append(wv_chunk(9, 24576, True))
    for ep in (4, 5):
        for H in range(2): chunks.append(wo_chunk(ep, H, WOL + (ep-4)*40960 + H*20480, True))
    load_weights(a, chunks, cw)
    a.e("WLOADED")
    if cw: census_check(a)
    stage_mem0(a, MEMIMG, PR, 0)
    common_consts(a, vIdx, vSB, vStW, vH2, vMk, MEMIMG, vo=True)
    a.e("s_mul_i32 s85, s24, 1536"); a.e("s_sub_u32 s85, 8192, s85")
    a.e("v_lshrrev_b32 v2, 4, v1"); a.e("v_bfe_u32 v3, v1, 3, 1"); a.e("v_lshl_add_u32 v2, v3, 2, v2")
    a.e("v_lshlrev_b32 v2, 7, v2"); a.e("v_and_b32 v3, 7, v1"); a.e("v_lshl_add_u32 v2, v3, 4, v2")
    a.e(f"v_add_u32 v{vAst}, {MEMIMG}, v2")
    a.e("v_and_b32 v2, 15, v1"); a.e("v_lshlrev_b32 v2, 4, v2"); a.e("v_bfe_u32 v3, v1, 4, 1"); a.e("v_lshl_add_u32 v2, v3, 3, v2")
    a.e("s_mul_i32 s30, s24, 768"); a.e(f"s_add_u32 s30, s30, {VBUF}")
    a.e("v_add_u32 v2, s30, v2"); a.e(f"v_add_u32 v{vVw1}, 512, v2")
    a.e("v_lshrrev_b32 v3, 5, v1"); a.e(f"v_mul_u32_u24 v3, 4096, v3"); a.e(f"v_add_u32 v{vVw1}, v3, v{vVw1}")
    a.e("v_lshrrev_b32 v3, 5, v1"); a.e(f"v_lshl_add_u32 v{vVw0}, v3, 8, v2")
    a.e("v_lshrrev_b32 v2, 4, v1"); a.e("v_bfe_u32 v3, v1, 2, 2"); a.e("v_lshl_add_u32 v2, v2, 3, v3"); a.e("v_lshlrev_b32 v2, 4, v2")
    a.e("v_and_b32 v3, 1, v1"); a.e("v_lshl_add_u32 v2, v3, 3, v2"); a.e(f"v_add_u32 v{vVr}, {VBUF}, v2")
    a.e("v_and_b32 v2, 15, v1"); a.e("v_lshrrev_b32 v3, 5, v1"); a.e("v_lshl_add_u32 v2, v3, 4, v2"); a.e("v_lshlrev_b32 v2, 4, v2")
    a.e("v_bfe_u32 v3, v1, 4, 1"); a.e("v_lshl_add_u32 v2, v3, 3, v2")
    a.e("s_mul_i32 s30, s24, 2560"); a.e(f"v_add_u32 v{vYst}, s30, v2")
    a.e("v_lshrrev_b32 v2, 4, v1"); a.e("s_lshl_b32 s30, s24, 2"); a.e("v_add_u32 v2, s30, v2"); a.e("v_mul_u32_u24 v2, 10240, v2")
    a.e("s_mul_i32 s30, s26, 640"); a.e("v_add_u32 v2, s30, v2")
    a.e("v_and_b32 v3, 15, v1"); a.e(f"v_lshl_add_u32 v{vYs0}, v3, 4, v2")
    a.e("v_and_b32 v3, 7, v1"); a.e("v_add_u32 v3, 32, v3"); a.e(f"v_lshl_add_u32 v{vYs2}, v3, 4, v2")
    a.e("v_lshrrev_b32 v4, 4, v1"); a.e("v_lshlrev_b32 v4, 9, v4")
    a.e("s_mul_i32 s30, s26, 40")
    for t in range(3):
        a.e(f"v_and_b32 v2, {15 if t < 2 else 7}, v1"); a.e(f"v_add_u32 v2, {16*t}, v2"); a.e("v_add_u32 v2, s30, v2")
        a.e("v_lshrrev_b32 v3, 5, v2"); a.e("v_lshl_add_u32 v3, v3, 11, v4")
        a.e("v_and_b32 v2, 31, v2"); a.e(f"v_lshl_add_u32 v{vU0+t}, v2, 4, v3")
    a.e("s_mul_i32 s30, s24, 2560")
    a.e("v_lshrrev_b32 v2, 5, v1"); a.e("v_mul_u32_u24 v2, 640, v2"); a.e("v_bfe_u32 v3, v1, 2, 2"); a.e("v_lshl_add_u32 v2, v3, 7, v2")
    a.e("v_bfe_u32 v4, v1, 4, 1"); a.e("v_lshl_add_u32 v2, v4, 6, v2"); a.e("v_and_b32 v4, 3, v1"); a.e("v_lshl_add_u32 v2, v4, 4, v2")
    a.e(f"v_add_u32 v{vPx}, s30, v2")
    a.e("v_lshrrev_b32 v2, 4, v1"); a.e("v_mul_u32_u24 v2, 640, v2"); a.e("v_and_b32 v3, 15, v1"); a.e("v_lshl_add_u32 v2, v3, 3, v2")
    a.e("v_add_u32 v2, 512, v2"); a.e(f"v_add_u32 v{vPm}, s30, v2")
    a.e("s_mul_i32 s30, s24, 1536"); a.e(f"s_add_u32 s30, s30, {RSC}")
    a.e("v_and_b32 v2, 15, v1"); a.e("v_lshlrev_b32 v2, 5, v2"); a.e("v_lshrrev_b32 v3, 5, v1"); a.e("v_bfe_u32 v4, v1, 2, 1"); a.e("v_xor_b32 v3, v3, v4")
    a.e("v_lshl_add_u32 v2, v3, 4, v2"); a.e("v_bfe_u32 v3, v1, 4, 1"); a.e("v_lshl_add_u32 v2, v3, 3, v2"); a.e(f"v_add_u32 v{vRw}, s30, v2")
    a.e("v_min_u32 v2, 39, v1"); a.e("v_lshrrev_b32 v3, 1, v2"); a.e("s_and_b32 s30, s24, 1"); a.e("s_mul_i32 s30, s30, 20"); a.e("v_add_u32 v3, s30, v3")
    a.e("v_and_b32 v2, 1, v2")
    a.e("v_bfe_u32 v4, v3, 2, 1"); a.e("v_xor_b32 v4, v4, v2"); a.e("v_lshlrev_b32 v4, 4, v4"); a.e("v_lshl_add_u32 v4, v3, 5, v4")
    a.e(f"v_add_u32 v{vRr}, {RSC}, v4")
    a.e("s_mul_i32 s30, s26, 40"); a.e("v_add_u32 v3, s30, v3")
    a.e("v_lshrrev_b32 v4, 8, v3"); a.e("v_lshlrev_b32 v4, 14, v4"); a.e("v_and_b32 v3, 255, v3"); a.e("v_lshl_add_u32 v4, v3, 4, v4"); a.e("v_lshl_add_u32 v4, v2, 3, v4")
    a.e("s_lshl_b32 s30, s25, 12"); a.e(f"v_add_u32 v{vPub}, s30, v4")
    a.e(f"s_add_u32 s32, s46, {LOC_Y}")
    a.e("s_mul_i32 s33, s26, 10240"); a.e("s_add_u32 s33, s33, s32")
    a.e("s_lshl_b32 s30, s25, 4"); a.e("s_lshl_b32 s31, s24, 2"); a.e("s_add_u32 s30, s30, s31")
    a.e("s_mul_i32 s38, s30, 40960"); a.e(f"s_add_u32 s38, s38, {WS_U}")
    a.e("s_mul_i32 s54, s27, 10240"); a.e(f"s_add_u32 s54, s54, {WS_YA}")
    a.e(f"s_add_u32 s88, s46, {LOC_DUMMY}")
    a.e("s_lshl_b32 s84, s26, 7"); a.e("s_add_u32 s84, s84, s45"); a.e("s_add_u32 s84, s84, 4096")

    a.e(f"s_lshl_b32 s34, s27, 7"); a.e(f"s_add_u32 s34, s34, {WS_FLAGS+F_YR}")

    a.e(f"s_lshl_b32 s55, s25, 8"); a.e(f"s_add_u32 s55, s55, {WS_FLAGS+F_U}")
    a.e(f"s_mul_i32 s35, s26, {MKS[0]}"); a.e("s_add_u32 s35, s35, s45")
    if MKG[0]:
        a.e("s_lshl_b32 s30, s25, 11"); a.e("s_add_u32 s35, s35, s30")
        if mkearly:
            a.e("s_and_b32 s30, s24, 1"); a.e("s_lshl_b32 s30, s30, 6"); a.e("s_add_u32 s35, s35, s30")
            a.e("s_cmp_lt_u32 s24, 2"); a.e("s_cselect_b32 s30, 4096, 0"); a.e("s_add_u32 s35, s35, s30")
    if mkearly and not MKG[0]:
        a.e("s_lshl_b32 s30, s24, 2"); a.e("s_add_u32 s35, s35, s30"); a.e("s_mov_b64 s[96:97], 1")
        a.e("v_and_b32 v2, 3, v1"); a.e("v_lshrrev_b32 v3, 2, v1"); a.e(f"v_mul_u32_u24 v3, {MKS[0]}, v3"); a.e(f"v_lshl_add_u32 v{vMk}, v2, 2, v3")
    a.e("s_mov_b32 s28, 0"); a.e("s_mov_b32 s29, 0"); a.e("s_mov_b32 s37, 0"); a.e("s_mov_b32 s91, 0")
    def uflag_wait(lab, reg):
        a.e(f"s_lshr_b32 s30, {reg}, 3"); a.e("s_lshl_b32 s30, s30, 9"); a.e("s_add_u32 s30, s30, s55")
        a.e("v_mbcnt_lo_u32_b32 v3, -1, 0"); a.e("v_mbcnt_hi_u32_b32 v3, -1, v3"); a.e("v_lshlrev_b32 v3, 2, v3")
        a.label(lab)
        a.e(f"buffer_load_dword v2, v3, s[8:11], s30 offen sc1")
        a.e("s_sub_u32 s82, s82, 1"); a.e("s_cbranch_scc1 L_abort")
        a.e("s_waitcnt vmcnt(0)")
        a.e("v_cmp_eq_u32 vcc, 0, v2")
        a.e(f"s_cbranch_vccnz {lab}")
    def u_loads():
        it = []
        for hh in range(4):
            for t in range(3):
                r = U + (t*2 + (hh >> 1))*8 + (hh & 1)*4
                p = []
                if t == 0: p = [f"s_add_u32 s31, s38, {hh*40960}"]
                it.append(p + [f"buffer_load_dwordx4 {vr(r,4)}, v{vU0+t}, s[8:11], s31 offen {upol}"])
        it[-1].append(f"s_add_u32 s38, s38, {32*40960}")
        return it
    def lv(L): return [f"ds_read_b128 {vr(BST+4*q,4)}, v6 offset:{L*24576 + 1024*q}" for q in range(6)]
    def lo(L): return [f"ds_read_b128 {vr(BST+8*t+4*H,4)}, v{5 if L else 7} offset:{H*20480 + 1024*t}" for t in range(5) for H in range(2)]
    def usoff():
        for hh in range(4): a.e(f"s_add_u32 s{92+hh}, s38, {hh*40960}")
        a.e(f"s_add_u32 s38, s38, {32*40960*ustep}")
    def idle_prep(nxt=2):
        for ins in lv(0): a.e(ins)
        for q in range(12): a.e(f"v_mov_b32 v{VA+q}, 0")
        for q in range(20): a.e(f"v_mov_b32 v{ACC+q}, 0")
        a.e("v_add_u32 v5, 40960, v7")
        if not ulate or nxt == 1: usoff()
        a.e(f"s_add_u32 s89, s28, {nxt}"); a.e("s_min_u32 s89, s89, 63"); a.e("s_lshr_b32 s89, s89, 3"); a.e("s_lshl_b32 s89, s89, 9"); a.e("s_add_u32 s89, s89, s55")
    a.e("v_and_b32 v2, 15, v1"); a.e("v_bfe_u32 v3, v1, 4, 1"); a.e("v_lshl_add_u32 v2, v3, 5, v2"); a.e("v_lshrrev_b32 v3, 5, v1"); a.e("v_lshl_add_u32 v2, v3, 4, v2")
    a.e("v_lshlrev_b32 v2, 4, v2"); a.e("s_mul_i32 s30, s24, 2560"); a.e(f"v_add_u32 v{vYs4}, s30, v2")
    for q in range(4): a.e(f"v_mov_b32 v{U+32+q}, -1")
    a.e(f"s_add_u32 s36, s32, 163840")
    uflag_wait(f"{pre}_uf0", "s28")
    stage_mem0(a, MEMIMG, PR, 1)
    idle_prep(1)
    if ulate:
        for hh in range(4):
            for t in range(2): a.e(f"buffer_load_dwordx4 {vr(U + (t*2 + (hh >> 1))*8 + (hh & 1)*4,4)}, v{vU0+t}, s[8:11], s{92+hh} offen {upol}")
    a.e("s_waitcnt lgkmcnt(0)")
    a.e("s_barrier")
    a.e("LOOPSTART")
    def emit_loop(pre, LST, prof):
        def uld(hh, t): return [f"buffer_load_dwordx4 {vr(U + (t*2 + (hh >> 1))*8 + (hh & 1)*4,4)}, v{vU0+t}, s[8:11], s{92+hh} offen {upol}"]
        arch = [f"buffer_store_dwordx4 {vr(U+36,4)}, v{vYs4}, s[8:11], s88 offen {af}", f"buffer_store_dwordx4 {vr(U+40,4)}, v{vYs4}, s[8:11], s88 offen offset:1024 {af}",
                f"buffer_store_dwordx2 {vr(U+44,2)}, v{vYst}, s[8:11], s88 offen offset:2048 {af}"]
        rst = [f"buffer_store_dwordx4 {vr(U+32,4)}, v{vYs0}, s[8:11], s90 offen {LST}", f"buffer_store_dwordx4 {vr(U+32,4)}, v{vYs0}, s[8:11], s90 offen offset:256 {LST}",
               f"buffer_store_dwordx4 {vr(U+32,4)}, v{vYs2}, s[8:11], s90 offen {LST}"]
        vm = [uld(hh, t) for hh in range(4) for t in range(3)]
        if apos == 1: vm = [[x] for x in arch] + vm
        if late == 2: vm = [[x] for x in arch] + [[x.replace("s90", "s36")] for x in rst] + vm[3:]
        if late == 3: vm = [uld(hh, t) for hh in range(4) for t in range(2)][:4] + [[x] for x in arch] + [uld(hh, t) for hh in range(4) for t in range(2)][4:] + [[x.replace("s90", "s36")] for x in rst] + [uld(hh, 2) for hh in range(4)]
        if ulate: vm = [[x] for x in arch] + [uld(hh, 2) for hh in range(4)]
        if apos == 2: vm = [uld(hh, t) for hh in range(4) for t in range(2)] + [[x] for x in arch] + [uld(hh, 2) for hh in range(4)]
        vm += [["v_mbcnt_lo_u32_b32 v4, -1, 0", "v_mbcnt_hi_u32_b32 v4, -1, v4", "v_lshlrev_b32 v4, 2, v4", "buffer_load_dword v0, v4, s[8:11], s89 offen sc1"] + (["v_and_b32 v4, 127, v4", "v_lshlrev_b32 v3, 5, v4", "s_add_u32 s30, s28, 1", "v_mov_b32 v2, s30"] if HINT[0] else [])]
        if novm == 1: vm = []
        if novm == 2: vm = [x for x in vm if "sc1" not in x[0]]
        if novm == 3: vm = [x for x in vm if "store" not in x[0]]
        if novm == 4: vm = [x for x in vm if "store" in x[0]]
        def vmpop():
            if vm: a.e("\n".join(vm.pop(0)))
        vm0 = list(vm)
        def lop(i):
            return [f"ds_read_b128 {vr(BST+8*(i%5)+4*H,4)}, v{5 if i >= 5 else 7} offset:{H*20480 + 1024*(i%5)}" for H in range(2)]
        def v_ctx(w):
            rest = [(2*w + 2 + i) % 8 for i in range(6)]
            order = [2*w, 2*w+1, 8] + rest[:4] + [9] + rest[4:]
            def aread(p): return f"ds_read_b128 {vr(PR+4*(p%4),4)}, v{vAst} offset:{1024*order[p]}"
            def sm(p, t):
                io = order[p]
                return f"{SM64} {vr(VA+4*t,4)}, {vr(PR+4*(p%4),4)}, {wreg(io*3+t) if io < 8 else vr(BST+8*t, 8)}, v{vIdx}"
            return order, aread, sm
        def cv(d, s0): return f"v_cvt_pk_bf16_f32 v{d}, v{s0}, v{s0+1}"
        def vhead_fused(w, extra):
            order, aread, sm = v_ctx(w)
            PD = PR; tv = 3
            def chk(k):
                r = PD+4*k
                a.e(f"s_waitcnt vmcnt({4-k+extra})")
                if k in (0, 4): ts(a, prof, 1 if k == 0 else 7, 1)
                if k == 0: a.e(f"v_max3_u32 v{tv}, v{r}, v{r+1}, v{r+2}"); a.e(f"v_max_u32 v{tv}, v{tv}, v{r+3}")
                else: a.e(f"v_max3_u32 v{tv}, v{r}, v{r+1}, v{tv}"); a.e(f"v_max3_u32 v{tv}, v{r+2}, v{r+3}, v{tv}")
                a.e(f"v_mfma_f32_16x16x32_bf16 {vr(r,4)}, {vr(r,4)}, {vr(vSB,4)}, 0")
            def put(k):
                q = PD+4*k
                a.e(cv(q, q)); a.e(cv(q+1, q+2))
                a.e(f"ds_write_b64 v{vStW}, {vr(q,2)} offset:{512*k if k < 4 else 8192 - 1536*w}")
            chk(0); chk(1); chk(2)
            put(0)
            chk(3)
            put(1); a.e(aread(0))
            chk(4)
            a.e(f"v_cmp_eq_u32 vcc, -1, v{tv}")
            put(2); put(3); a.e(aread(1))
            put(4)
            a.e(f"s_cbranch_vccnz {pre}_h2r0")
            ts(a, prof, 0)
            a.e("s_waitcnt lgkmcnt(4)")
            for t in range(3): a.e(sm(0, t))
            a.e("s_waitcnt lgkmcnt(0)")
            a.e("s_barrier")
            a.e(aread(2)); a.e(aread(3))
            a.e(sm(1, 0)); a.e(aread(4)); a.e(sm(1, 1)); a.e(sm(1, 2))
            a.e(f"s_branch {pre}_vt{w}")
        a.label(f"{pre}_loop")
        a.e("s_waitcnt lgkmcnt(0)")
        a.e("s_barrier")
        for w in range(3):
            a.e(f"s_cmp_eq_u32 s24, {w}"); a.e(f"s_cbranch_scc1 {pre}_vw{w}")
        for w in (3, 0, 1, 2):
            a.label(f"{pre}_vw{w}")
            ts(a, prof, 0)
            order, aread, sm = v_ctx(w)
            for p in range(3): a.e(aread(p))
            for p in range(2):
                a.e("s_waitcnt lgkmcnt(2)")
                a.e(sm(p, 0)); a.e(aread(p+3)); a.e(sm(p, 1)); a.e(sm(p, 2))
            a.label(f"{pre}_vt{w}")
            vm[:] = list(vm0)
            for i in range(upre): vmpop()
            lq = [("A", 2), ("A", 3), ("A", 4)]
            ex = []
            cnt = 0
            for p in range(2, 10):
                need = [("A", p)] + ([("L", 1)] if p == 7 else [])
                idx = [i for i, t in enumerate(lq) if t in need]
                if idx:
                    a.e(f"s_waitcnt lgkmcnt({len(lq)-1-max(idx)})")
                    lq = lq[max(idx)+1:]
                if p == 3: ex = lv(1)
                if p == 8: ex = lop(0) + lop(1) + lop(2)
                for t in range(3):
                    a.e(sm(p, t))
                    cnt += 1
                    if t == 0 and p+3 < 10:
                        a.e(aread(p+3)); lq.append(("A", p+3))
                    elif p >= 8:
                        if ex: a.e(ex.pop(0)); lq.append(("O", 0))
                    elif ex:
                        a.e(ex.pop(0)); lq.append(("L", 1))
                    if cnt % vsp == 0: vmpop()
            assert not ex
            if w != 2: a.e(f"s_branch {pre}_vpost")
        a.label(f"{pre}_vpost")
        ts(a, prof, 1); ts(a, prof, 1, 2)
        a.nop(4)
        F = PR
        for q in range(4): a.e(f"v_permlane32_swap_b32 v{VA+q}, v{VA+4+q}")
        for q in range(4): a.e(f"v_permlane32_swap_b32 v{VA+8+q}, v{F+4+q}")
        a.e(f"v_pk_add_f32 {vr(F,2)}, {vr(VA,2)}, {vr(VA+4,2)}"); a.e(f"v_pk_add_f32 {vr(F+2,2)}, {vr(VA+2,2)}, {vr(VA+6,2)}")
        a.e(f"v_cvt_pk_bf16_f32 v{F}, v{F}, v{F+1}"); a.e(f"v_cvt_pk_bf16_f32 v{F+1}, v{F+2}, v{F+3}")
        a.e(f"v_pk_add_f32 {vr(F+4,2)}, {vr(VA+8,2)}, {vr(F+4,2)}"); a.e(f"v_pk_add_f32 {vr(F+6,2)}, {vr(VA+10,2)}, {vr(F+6,2)}")
        a.e(f"ds_write_b64 v{vVw0}, {vr(F,2)}")
        a.e(f"v_cvt_pk_bf16_f32 v{F+4}, v{F+4}, v{F+5}"); a.e(f"v_cvt_pk_bf16_f32 v{F+5}, v{F+6}, v{F+7}")
        a.e(f"ds_write_b64 v{vVw1}, {vr(F+4,2)}")
        ts(a, prof, 2, 2)
        vmpop()
        a.e("s_waitcnt lgkmcnt(0)")
        a.e("s_barrier")
        ts(a, prof, 3, 2)
        def areg(e): return PR+12 if e == 4 else PR+16 if e == 5 else PR+4*(e % 3)
        def vread(e): return [f"ds_read_b64_tr_b16 {vr(areg(e)+2*h,2)}, v{vVr} offset:{512*e + 64*h}" for h in range(2)]
        lq = []
        for e in (0, 4, 1):
            for ins in vread(e): a.e(ins); lq.append(("A", e))
        vmpop(); vmpop()
        seq = []; r = [(e, t) for e in range(4) for t in range(5)]; l = [(4+i//5, i%5) for i in range(10)]
        for pos in range(30): seq.append(l.pop(0) if pos % 3 == 2 else r.pop(0))
        pend = [(0, ("O", 3), lop(3)), (0, ("A", 2), vread(2)), (0, ("O", 4), lop(4)), (3, ("O", 5), lop(5)), (3, ("A", 5), vread(5)), (6, ("O", 6), lop(6)),
                (7, ("A", 3), vread(3)), (9, ("O", 7), lop(7)), (12, ("O", 8), lop(8)), (15, ("O", 9), lop(9))]
        flat = [(p0, tag, ins) for p0, tag, inss in pend for ins in inss]
        for pos, (e, t) in enumerate(seq):
            need = [("A", e)] + ([("O", (e-4)*5+t)] if e >= 4 else [])
            idxs = [i for i, tg in enumerate(lq) if tg in need]
            assert not any(tag in need for _, tag, _ in flat), (pos, need)
            if idxs:
                last = max(idxs)
                a.e(f"s_waitcnt lgkmcnt({len(lq)-1-last})")
                lq = lq[last+1:]
            B = wreg(24+e*5+t) if e < 4 else vr(BST+8*t, 8)
            a.e(f"{SM64} {vr(ACC+4*t,4)}, {vr(areg(e),4)}, {B}, v{vIdx}")
            if pos == 0: ts(a, prof, 4, 2)
            if flat and flat[0][0] <= pos:
                _, tag, ins = flat.pop(0); a.e(ins); lq.append(tag)
            if pos % 4 == 3 or pos == 29: vmpop()
        assert not vm and not flat
        ts(a, prof, 2); ts(a, prof, 7, 2)
        YC = PR
        def ycvt(t):
            a.e(f"v_cvt_pk_bf16_f32 v{YC+2*t}, v{ACC+4*t}, v{ACC+4*t+1}")
            a.e(f"v_cvt_pk_bf16_f32 v{YC+2*t+1}, v{ACC+4*t+2}, v{ACC+4*t+3}")
        def ymin(t):
            if ytag:
                a.e(f"v_and_or_b32 v{YC+2*t}, v{YC+2*t}, -2, s91"); a.e(f"v_and_or_b32 v{YC+2*t+1}, v{YC+2*t+1}, -2, s91")
            else:
                a.e(f"v_min_u32 v{YC+2*t}, -2, v{YC+2*t}"); a.e(f"v_min_u32 v{YC+2*t+1}, -2, v{YC+2*t+1}")
        def ystores(so, fl):
            ycvt(0); ycvt(1); ymin(0); ymin(1); ycvt(2)
            a.e(f"v_permlane16_swap_b32 v{YC}, v{YC+2}"); a.e(f"v_permlane16_swap_b32 v{YC+1}, v{YC+3}")
            ycvt(3)
            a.e(f"buffer_store_dwordx4 {vr(YC,4)}, v{vYs4}, s[8:11], {so} offen {fl}")
            ymin(2); ymin(3); ycvt(4)
            a.e(f"v_permlane16_swap_b32 v{YC+4}, v{YC+6}"); a.e(f"v_permlane16_swap_b32 v{YC+5}, v{YC+7}")
            ymin(4)
            a.e(f"buffer_store_dwordx4 {vr(YC+4,4)}, v{vYs4}, s[8:11], {so} offen offset:1024 {fl}")
            a.e(f"buffer_store_dwordx2 {vr(YC+8,2)}, v{vYst}, s[8:11], {so} offen offset:2048 {fl}")
        if uwait == 1:
            a.e("s_waitcnt vmcnt(0)"); ts(a, prof, 1)
        a.e(f"s_cmp_eq_u32 s28, {nsteps-1}")
        a.e(f"s_cbranch_scc1 {pre}_last")
        a.e("s_add_u32 s31, s33, s37")
        if HINT[0]:
            a.e("s_cmp_lg_u32 s24, 0"); a.e(f"s_cbranch_scc1 {pre}_noh")
            a.e("s_mov_b64 exec, 1")
            a.e(f"buffer_store_dword v2, off, s[8:11], s84 {LST}")
            a.e("s_mov_b64 exec, -1")
            a.label(f"{pre}_noh")
        ystores("s31", LST)
        if HINT[0]:
            a.e(f"buffer_load_dword v1, v3, s[8:11], s45 offen offset:2048 sc1")
        if uwait == 2:
            ts(a, prof, 1); a.e("s_waitcnt vmcnt(0)"); ts(a, prof, 2)
        YS = BST; P0 = BST+12; RA = BST+24
        for q in range(12): a.e(f"v_mov_b32 v{RA+q}, 0")
        a.e("s_add_u32 s30, s28, 1"); a.e(f"v_mov_b32 v{PR+10}, s30")
        a.e("s_add_u32 s90, s32, s37")
        h2_base(a, "s53", None)
        if HINT[0]:
            a.e("s_add_u32 s30, s28, 1")
            a.e("s_waitcnt vmcnt(0)")
            a.e("v_cmp_gt_u32 vcc, s30, v1")
            a.e(f"s_cbranch_vccz {pre}_hok")
            a.label(f"{pre}_hp")
            a.e(f"buffer_load_dword v1, v3, s[8:11], s45 offen offset:2048 sc1")
            if prof: a.e("s_add_u32 s83, s83, 0x1000000")
            a.e("s_sub_u32 s82, s82, 1"); a.e("s_cbranch_scc1 L_abort")
            a.e("s_waitcnt vmcnt(0)")
            a.e("v_cmp_gt_u32 vcc, s30, v1")
            a.e(f"s_cbranch_vccnz {pre}_hp")
            a.label(f"{pre}_hok")
            a.nop(h_nop)
        else:
            for i in range(y_sleep): a.e("s_sleep 1")
            a.nop(y_nop)
        def yload():
            a.e(f"buffer_load_dwordx4 {vr(YS,4)}, v{vYs0}, s[8:11], s90 offen sc1")
            a.e(f"buffer_load_dwordx4 {vr(YS+4,4)}, v{vYs0}, s[8:11], s90 offen offset:256 sc1")
            a.e(f"buffer_load_dwordx4 {vr(YS+8,4)}, v{vYs2}, s[8:11], s90 offen sc1")
        def ycheck():
            a.e(f"v_max3_u32 v1, v{YS}, v{YS+1}, v{YS+2}")
            for q in (3, 5, 7, 9): a.e(f"v_max3_u32 v1, v{YS+q}, v{YS+q+1}, v1")
            a.e(f"v_max_u32 v1, v{YS+11}, v1")
            a.e("v_cmp_eq_u32 vcc, -1, v1")
        def pload(P):
            a.e(f"buffer_load_dwordx4 {vr(P,4)}, v{vPx}, s[8:11], s46 offen sc1")
            a.e(f"buffer_load_dwordx4 {vr(P+4,4)}, v{vPx}, s[8:11], s46 offen offset:1280 sc1")
            a.e(f"buffer_load_dwordx2 {vr(P+8,2)}, v{vPm}, s[8:11], s46 offen sc1")
        tb = 0
        for i in range(8):
            A_, B_, C_ = (i >> 2) & 1, (i >> 1) & 1, i & 1
            if (A_ ^ C_) | (B_ ^ C_): tb |= 1 << i
        def yload2(Y):
            a.e(f"buffer_load_dwordx4 {vr(Y,4)}, v{vYs0}, s[8:11], s90 offen sc1")
            a.e(f"buffer_load_dwordx4 {vr(Y+4,4)}, v{vYs0}, s[8:11], s90 offen offset:256 sc1")
            a.e(f"buffer_load_dwordx4 {vr(Y+8,4)}, v{vYs2}, s[8:11], s90 offen sc1")
        def consume(Px, Pm, Y, young, bad, yf=False, first=False):
            if yf:
                a.e(f"s_waitcnt vmcnt({3+young})")
                for q in range(3): a.e(f"v_bitop3_b32 v{2+q}, v{Y+2*q}, v{Y+2*q+1}, s91 bitop3:{tb}")
                a.e("v_or3_b32 v2, v2, v3, v4")
                for q in range(2): a.e(f"v_bitop3_b32 v{3+q}, v{Y+6+2*q}, v{Y+7+2*q}, s91 bitop3:{tb}")
                a.e("v_or3_b32 v2, v2, v3, v4"); a.e(f"v_bitop3_b32 v3, v{Y+10}, v{Y+11}, s91 bitop3:{tb}"); a.e("v_or_b32 v2, v2, v3"); a.e(f"v_lshlrev_b32 v{PR+14}, 31, v2")
                a.e(f"s_waitcnt vmcnt({2+young})")
                ts(a, prof, 3)
                for t in range(3):
                    a.e(f"{SM64} {vr(RA+4*t,4)}, {vr(Px,4)}, {vr(U+16*t,8)}, v{vIdx} abid:1")
                    if t < 2: a.e(f"v_bitop3_b32 v{1+t}, v{Px+2*t}, v{Px+2*t+1}, s29 bitop3:{tb}")
                    else: a.e(f"v_or3_b32 v1, v1, v2, v{PR+14}")
                a.e(f"s_waitcnt vmcnt({1+young})")
                for t in range(3):
                    a.e(f"{SM64} {vr(RA+4*t,4)}, {vr(Px+4,4)}, {vr(U+16*t+8,8)}, v{vIdx} abid:1")
                    if t < 2: a.e(f"v_bitop3_b32 v{3+t}, v{Px+4+2*t}, v{Px+4+2*t+1}, s29 bitop3:{tb}")
                    else: a.e("v_or3_b32 v1, v1, v3, v4")
                a.e(f"s_waitcnt vmcnt({young})")
                for t in range(3):
                    a.e(f"{SM32} {vr(RA+4*t,4)}, {vr(Pm,2)}, {vr(Y+4*t,4)}, v{vIdx} abid:2")
                    if t == 0: a.e(f"v_bitop3_b32 v2, v{Pm}, v{Pm+1}, s29 bitop3:{tb}")
                    elif t == 1: a.e("v_or_b32 v1, v1, v2")
                a.e("v_cmp_gt_i32 vcc, 0, v1")
                a.e(f"s_cbranch_vccnz {bad}")
                return
            a.e(f"s_waitcnt vmcnt({5+young})")
            if young: ts(a, prof, 3)
            if mkearly == 2 and first:
                a.e("s_mov_b64 exec, 1")
                a.e(f"buffer_store_dword v{PR+10}, off, s[8:11], s35 sc1")
                a.e("s_mov_b64 exec, -1")
                young += 1
            for t in range(3):
                a.e(f"{SM64} {vr(RA+4*t,4)}, {vr(Px,4)}, {vr(U+16*t,8)}, v{vIdx} abid:1")
                if t < 2: a.e(f"v_bitop3_b32 v{1+t}, v{Px+2*t}, v{Px+2*t+1}, s29 bitop3:{tb}")
            a.e(f"s_waitcnt vmcnt({4+young})")
            for t in range(3):
                a.e(f"{SM64} {vr(RA+4*t,4)}, {vr(Px+4,4)}, {vr(U+16*t+8,8)}, v{vIdx} abid:1")
                if t < 2: a.e(f"v_bitop3_b32 v{3+t}, v{Px+4+2*t}, v{Px+4+2*t+1}, s29 bitop3:{tb}")
                else: a.e("v_or3_b32 v1, v1, v2, v3")
            if first and pearly:
                a.e("v_or_b32 v1, v1, v4"); a.e("v_cmp_gt_i32 vcc, 0, v1"); a.e(f"s_cbranch_vccnz {pre}_pe")
            for t in range(3):
                a.e(f"s_waitcnt vmcnt({2-t+young})")
                a.e(f"{SM32} {vr(RA+4*t,4)}, {vr(Pm,2)}, {vr(Y+4*t,4)}, v{vIdx} abid:2")
                if ytag:
                    if t == 0:
                        a.e(f"v_bitop3_b32 v2, v{Pm}, v{Pm+1}, s29 bitop3:{tb}")
                        a.e("v_or3_b32 v1, v1, v4, v2")
                        a.e(f"v_bitop3_b32 v2, v{Y}, v{Y+1}, s91 bitop3:{tb}"); a.e(f"v_bitop3_b32 v3, v{Y+2}, v{Y+3}, s91 bitop3:{tb}")
                    else:
                        a.e(f"v_bitop3_b32 v4, v{Y+4*t}, v{Y+4*t+1}, s91 bitop3:{tb}"); a.e("v_or3_b32 v2, v2, v3, v4"); a.e(f"v_bitop3_b32 v3, v{Y+4*t+2}, v{Y+4*t+3}, s91 bitop3:{tb}")
                elif t == 0:
                    a.e(f"v_bitop3_b32 v2, v{Pm}, v{Pm+1}, s29 bitop3:{tb}")
                    a.e("v_or3_b32 v1, v1, v4, v2")
                    a.e(f"v_max3_u32 v2, v{Y}, v{Y+1}, v{Y+2}"); a.e(f"v_max_u32 v2, v2, v{Y+3}")
                else:
                    a.e(f"v_max3_u32 v2, v{Y+4*t}, v{Y+4*t+1}, v2"); a.e(f"v_max3_u32 v2, v{Y+4*t+2}, v{Y+4*t+3}, v2")
            if ytag:
                a.e("v_or_b32 v2, v2, v3"); a.e("v_lshl_or_b32 v1, v2, 31, v1")
                a.e("v_cmp_gt_i32 vcc, 0, v1")
                a.e(f"s_cbranch_vccnz {bad}")
                return
            a.e("v_cmp_eq_u32 s[30:31], -1, v2")
            a.e("v_cmp_gt_i32 vcc, 0, v1")
            a.e("s_or_b64 vcc, vcc, s[30:31]")
            a.e(f"s_cbranch_vccnz {bad}")
        Px2 = ACC; Pm2 = PR+12; Y2 = ACC+8
        if yfirst:
            yload()
            a.nop(p_nop)
            pload(P0)
        else:
            pload(P0)
            for i in range(p_sleep): a.e("s_sleep 1")
            yload()
        if dbl:
            a.nop(dbl)
            a.e(f"buffer_load_dwordx4 {vr(Px2,4)}, v{vPx}, s[8:11], s46 offen sc1")
            a.e(f"buffer_load_dwordx4 {vr(Px2+4,4)}, v{vPx}, s[8:11], s46 offen offset:1280 sc1")
            a.e(f"buffer_load_dwordx2 {vr(Pm2,2)}, v{vPm}, s[8:11], s46 offen sc1")
            yload2(Y2)
        if apos == 5:
            a.e(f"buffer_store_dwordx4 {vr(YC,4)}, v{vYs4}, s[8:11], s54 offen {af}"); a.e(f"buffer_store_dwordx4 {vr(YC+4,4)}, v{vYs4}, s[8:11], s54 offen offset:1024 {af}")
            a.e(f"buffer_store_dwordx2 {vr(YC+8,2)}, v{vYst}, s[8:11], s54 offen offset:2048 {af}")
        consume(P0, P0+8, YS, (6 if dbl else 0) + (3 if apos == 5 else 0), f"{pre}_pbad1" if dbl else f"{pre}_pbad", yf=yfirst, first=True)
        a.label(f"{pre}_pok")
        ts(a, prof, 4)
        if mkearly == 2: pass
        elif mkearly and MKG[0]:
            a.e("s_cmp_lt_u32 s24, 2"); a.e(f"s_cbranch_scc1 {pre}_nme")
            a.e("s_mov_b64 exec, 1")
            a.e(f"buffer_store_dword v{PR+10}, off, s[8:11], s35 sc1")
            a.e("s_mov_b64 exec, -1")
            a.label(f"{pre}_nme")
        elif mkearly:
            a.e("s_mov_b64 exec, s[96:97]")
            a.e(f"buffer_store_dword v{PR+10}, off, s[8:11], s35 {LST}")
            a.e("s_mov_b64 exec, -1")
        a.e("s_cmp_ge_u32 s24, 2")
        for t in range(3):
            a.e(f"v_add_f32 v{RA+4*t}, v{RA+4*t}, v{RA+4*t+1}"); a.e(f"v_add_f32 v{RA+4*t+1}, v{RA+4*t+2}, v{RA+4*t+3}")
            a.e(f"ds_write_b64 v{vRw}, {vr(RA+4*t,2)} offset:{512*t}")
        a.e("s_waitcnt lgkmcnt(0)")
        a.e("s_barrier")
        a.e(f"s_cbranch_scc1 {pre}_nopub")
        R = U
        for w in range(4): a.e(f"ds_read_b128 {vr(R+4*w,4)}, v{vRr} offset:{1536*w}")
        def pa(x, y):
            a.e(f"v_pk_add_f32 {vr(x,2)}, {vr(x,2)}, {vr(y,2)}"); a.e(f"v_pk_add_f32 {vr(x+2,2)}, {vr(x+2,2)}, {vr(y+2,2)}")
        a.e("s_waitcnt lgkmcnt(2)"); pa(R, R+4)
        a.e("s_waitcnt lgkmcnt(0)"); pa(R+8, R+12); pa(R, R+8)
        a.e(f"v_cvt_pk_bf16_f32 v{R}, v{R}, v{R+1}"); a.e(f"v_cvt_pk_bf16_f32 v{R+1}, v{R+2}, v{R+3}")
        a.e(f"v_xor_b32 v{R}, s29, v{R}"); a.e(f"v_xor_b32 v{R+1}, s29, v{R+1}")
        a.e(f"v_min_u32 v{R}, -2, v{R}"); a.e(f"v_min_u32 v{R+1}, -2, v{R+1}")
        a.e(f"buffer_store_dwordx2 {vr(R,2)}, v{vPub}, s[8:11], s53 offen sc1")
        a.e(f"s_branch {pre}_pubd")
        a.label(f"{pre}_nopub")
        for i in range(mkw_sleep): a.e("s_nop 15")
        a.e("s_cmp_eq_u32 s24, 3"); a.e(f"s_cbranch_scc1 {pre}_nomk")
        if MKA[0]:
            a.e("v_mov_b32 v2, 1"); a.e("s_mov_b64 exec, 1")
            a.e(f"buffer_atomic_add v2, off, s[8:11], s45 {LST}")
        elif not mkearly:
            a.e("s_mov_b64 exec, 1")
            a.e(f"buffer_store_dword v{PR+10}, off, s[8:11], s35 {'sc1' if MKG[0] else LST}")
        a.e(f"s_branch {pre}_mkd")
        a.label(f"{pre}_nomk")
        if not QARCH[0]:
            a.e("v_mov_b32 v2, s28"); a.e("v_mov_b32 v3, 0"); a.e("s_mov_b64 exec, 1")
            a.e(f"buffer_store_dword v2, v3, s[8:11], s34 offen sc1")
        a.label(f"{pre}_mkd")
        a.e("s_mov_b64 exec, -1")
        a.label(f"{pre}_pubd")
        ts(a, prof, 7)
        if not ytag:
            for q in range(4): a.e(f"v_mov_b32 v{U+32+q}, -1")
        if apos not in (5, 9):
            for q in range(10): a.e(f"v_mov_b32 v{U+36+q}, v{YC+q}")
        a.e("s_mov_b32 s88, s54"); a.e(f"s_add_u32 s54, s54, {32*10240}"); a.e("s_mov_b32 s36, s90")
        if late == 0 and not ytag:
            for i in range(rs_sleep): a.e("s_sleep 1")
            for ins in rst: a.e(ins)
        if apos == 3:
            for ins in arch: a.e(ins)
        if apos == 4:
            a.e("s_cmp_eq_u32 s24, 2"); a.e(f"s_cbranch_scc1 {pre}_noa")
            for ins in arch: a.e(ins)
            a.label(f"{pre}_noa")
        if not ytag or QARCH[0]: a.e("s_xor_b32 s37, s37, 163840")
        if QARCH[0]: a.e("s_and_b32 s30, s28, 1"); a.e("s_xor_b32 s91, s91, s30")
        else: a.e("s_xor_b32 s91, s91, 1")
        a.e("v_cmp_eq_u32 vcc, 0, v0"); a.e("s_add_u32 s31, s28, 1")
        a.e(f"s_cbranch_vccz {pre}_nouf")
        uflag_wait(f"{pre}_uf", "s31")
        a.label(f"{pre}_nouf")
        if ulate:
            usoff()
            a.e("s_cmp_eq_u32 s24, 2"); a.e(f"s_cbranch_scc1 {pre}_nou")
            for hh in range(4):
                for t in range(2): a.e(uld(hh, t)[0])
            a.label(f"{pre}_nou")
        def aft():
            for ins in (arch if apos == 0 else []) + (rst if late == 1 else []): a.e(ins)
            if dbl: a.e(f"s_waitcnt vmcnt({5 + (3 if late == 1 else 0) + (3 if apos == 0 else 0)})")
            idle_prep()
        def aft2():
            if apos == 4:
                for ins in arch: a.e(ins)
            aft()
            if ulate:
                for hh in range(4):
                    for t in range(2): a.e(uld(hh, t)[0])
        na = (3 if late == 1 else 0) + (3 if apos == 0 else 0)
        pw = (3 if (MKG[0] and not mkearly) else 2)
        use2 = ulate or apos == 4
        n2 = na+(8 if ulate else 0)+(3 if apos == 4 else 0)
        def fin():
            ts(a, prof, 6)
            prof_dump(a, prof, pre)
            a.e("s_add_u32 s28, s28, 1"); a.e("s_xor_b32 s29, s29, 0x80008000")
        if fuse:
            cntf = [0]
            def aftf():
                aft()
                a.e("s_add_u32 s28, s28, 1"); a.e("s_xor_b32 s29, s29, 0x80008000")
                if prof:
                    a.e("s_sub_u32 s28, s28, 1"); ts(a, prof, 6); prof_dump(a, prof, pre + str(cntf[0])); cntf[0] += 1; a.e("s_add_u32 s28, s28, 1")
            assert not use2
            retry = h2_stage(a, pre, PR, None, None, vSB, vStW, vH2, vMk, 1, mk_sleep, prof, pollw=pw, after=aftf, fused=lambda: a.e("s_waitcnt lgkmcnt(0)"), w4="s85")
            for w in range(3):
                a.e(f"s_cmp_eq_u32 s24, {w}"); a.e(f"s_cbranch_scc1 {pre}_fz{w}")
            for w in (3, 0, 1, 2):
                a.label(f"{pre}_fz{w}")
                vhead_fused(w, na)
        else:
            retry = h2_stage(a, pre, PR, None, None, vSB, vStW, vH2, vMk, 1, mk_sleep, prof, pollw=pw, after=aft, nafter=na, after2=aft2 if use2 else None, nafter2=n2, nobar=True, w4="s85")
            fin()
            a.e(f"s_branch {pre}_loop")
        retry()
        if dbl:
            a.label(f"{pre}_pbad1")
            if prof: a.e("s_add_u32 s83, s83, 0x1000000")
            a.nop(4)
            for q in range(12): a.e(f"v_mov_b32 v{RA+q}, 0")
            consume(Px2, Pm2, Y2, 0, f"{pre}_pbad")
            a.e(f"s_branch {pre}_pok")
        if pearly:
            a.label(f"{pre}_pe")
            pload(P0)
            a.e("s_waitcnt vmcnt(3)")
            for q in range(3): a.e(f"v_bitop3_b32 v{2+q}, v{YS+2*q}, v{YS+2*q+1}, s91 bitop3:{tb}")
            a.e("v_or3_b32 v2, v2, v3, v4")
            for q in range(2): a.e(f"v_bitop3_b32 v{3+q}, v{YS+6+2*q}, v{YS+7+2*q}, s91 bitop3:{tb}")
            a.e("v_or3_b32 v2, v2, v3, v4"); a.e(f"v_bitop3_b32 v3, v{YS+10}, v{YS+11}, s91 bitop3:{tb}"); a.e("v_or_b32 v2, v2, v3")
            a.e("v_and_b32 v2, 1, v2"); a.e("v_cmp_ne_u32 vcc, 0, v2")
            a.e(f"s_cbranch_vccnz {pre}_ybad")
            a.e(f"s_branch {pre}_pbad2")
        a.label(f"{pre}_pbad")
        pload(P0)
        if ponly:
            a.e("v_and_b32 v2, 1, v2"); a.e("v_cmp_ne_u32 vcc, 0, v2")
            a.e(f"s_cbranch_vccnz {pre}_ybad")
            a.label(f"{pre}_pbad2")
            if prof: a.e("s_add_u32 s83, s83, 0x10000")
            a.e("s_sub_u32 s82, s82, 1"); a.e("s_cbranch_scc1 L_abort")
            for q in range(12): a.e(f"v_mov_b32 v{RA+q}, 0")
            a.e("s_waitcnt vmcnt(2)")
            for t in range(3):
                a.e(f"{SM64} {vr(RA+4*t,4)}, {vr(P0,4)}, {vr(U+16*t,8)}, v{vIdx} abid:1")
                if t < 2: a.e(f"v_bitop3_b32 v{1+t}, v{P0+2*t}, v{P0+2*t+1}, s29 bitop3:{tb}")
            a.e("s_waitcnt vmcnt(1)")
            for t in range(3):
                a.e(f"{SM64} {vr(RA+4*t,4)}, {vr(P0+4,4)}, {vr(U+16*t+8,8)}, v{vIdx} abid:1")
                if t < 2: a.e(f"v_bitop3_b32 v{3+t}, v{P0+4+2*t}, v{P0+4+2*t+1}, s29 bitop3:{tb}")
                else: a.e("v_or3_b32 v1, v1, v2, v3")
            a.e("s_waitcnt vmcnt(0)")
            for t in range(3):
                a.e(f"{SM32} {vr(RA+4*t,4)}, {vr(P0+8,2)}, {vr(YS+4*t,4)}, v{vIdx} abid:2")
                if t == 0: a.e(f"v_bitop3_b32 v2, v{P0+8}, v{P0+9}, s29 bitop3:{tb}")
                elif t == 1: a.e("v_or3_b32 v1, v1, v4, v2")
            a.e("v_cmp_gt_i32 vcc, 0, v1")
            a.e(f"s_cbranch_vccz {pre}_pok")
            pload(P0)
            a.e(f"s_branch {pre}_pbad2")
            a.label(f"{pre}_ybad")
            if prof: a.e("s_add_u32 s83, s83, 0x1000000")
        yload()
        if prof: a.e("s_add_u32 s83, s83, 0x10000")
        a.e("s_sub_u32 s82, s82, 1"); a.e("s_cbranch_scc1 L_abort")
        for q in range(12): a.e(f"v_mov_b32 v{RA+q}, 0")
        consume(P0, P0+8, YS, 0, f"{pre}_pbad")
        a.e(f"s_branch {pre}_pok")
        a.label(f"{pre}_last")
        ystores("s54", "sc1")
        a.e("s_waitcnt vmcnt(0)")
        a.e("s_barrier")
        a.e(f"v_mov_b32 v2, {nsteps}"); a.e("v_mov_b32 v3, 0"); a.e("s_mov_b64 exec, 1")
        a.e(f"buffer_store_dword v2, v3, s[8:11], s34 offen offset:4 sc1")
        if not QARCH[0]: a.e(f"buffer_store_dword v2, v3, s[8:11], s34 offen sc1")
        a.e("s_waitcnt vmcnt(0)")
        a.e("s_mov_b64 exec, -1")
        a.e(f"s_branch {pre0}_end")
    pre0 = pre
    if cw:
        a.e("s_cmp_lt_u32 s81, 32"); a.e(f"s_cbranch_scc1 {pre}S_loop")
        emit_loop(pre, "", prof)
        emit_loop(pre + "S", "sc1", 0)
    else:
        emit_loop(pre, LST, prof)
    a.label(f"{pre}_end")
```

```python
import math, struct
from asmlib import *
from layout import *
def fbits(x): return struct.unpack("<I", struct.pack("<f", x))[0]

ACC = 64
GP = dict(dma_start=16, xper=2, st='sc1', slp1=16, slp2=48, slpf=2, ost='')
MF = "v_mfma_f32_32x32x16_bf16"
GUARD = 'a.e("s_sub_u32 s82, s82, 1"); a.e("s_cbranch_scc1 L_abort")'
def guard(a): a.e("s_sub_u32 s82, s82, 1"); a.e("s_cbranch_scc1 W_abort")

def wait_flags(a, lab, soff, nwords, stride_sh, thresh, sleep=16, imm=0):
    a.e(f"v_min_u32 v3, {nwords-1}, v1")
    a.e(f"v_lshlrev_b32 v3, {stride_sh}, v3")
    a.label(lab)
    a.e(f"buffer_load_dword v2, v3, s[8:11], {soff} offen offset:{imm} sc1")
    guard(a)
    a.e("s_waitcnt vmcnt(0)")
    a.e(f"v_cmp_gt_u32 vcc, {thresh}, v2")
    a.e(f"s_cbranch_vccz {lab}_ok")
    a.e(f"s_sleep {sleep}")
    a.e(f"s_branch {lab}")
    a.label(f"{lab}_ok")

def wait_progress(a, lab, soff, thresh):
    a.e("s_mov_b64 exec, 1")
    a.label(lab)
    a.e(f"buffer_load_dword v2, off, s[8:11], {soff} sc1")
    guard(a)
    a.e("s_waitcnt vmcnt(0)")
    a.e("v_readfirstlane_b32 s30, v2")
    a.e("s_add_u32 s30, s30, 1")
    a.e(f"s_cmp_ge_u32 s30, {thresh}"); a.e(f"s_cbranch_scc1 {lab}_ok")
    a.e("s_add_u32 s30, s30, 1")
    a.e(f"s_sleep {GP['slp1']}")
    a.e(f"s_cmp_ge_u32 s30, {thresh}"); a.e(f"s_cbranch_scc1 {lab}")
    a.e(f"s_sleep {GP['slp2']}")
    a.e(f"s_branch {lab}")
    a.label(f"{lab}_ok")
    a.e("s_mov_b64 exec, -1")

def set_flag(a, soff, val="1", add=False):
    lab = a.newlabel("W_fl")
    a.e("s_waitcnt vmcnt(0)")
    a.e("s_barrier")
    a.e("s_cmp_lg_u32 s24, 0"); a.e(f"s_cbranch_scc1 {lab}")
    a.e(f"v_mov_b32 v2, {val}"); a.e("v_mov_b32 v3, 0"); a.e("s_mov_b64 exec, 1")
    if add: a.e(f"buffer_atomic_add v2, v3, s[8:11], {soff} offen sc1")
    else: a.e(f"buffer_store_dword v2, v3, s[8:11], {soff} offen sc1")
    a.e("s_mov_b64 exec, -1")
    a.label(lab)

CW = [None]
def spec_check(a):
    lab = a.newlabel("W_sp")
    a.e("s_cmp_eq_u32 s81, 0"); a.e(f"s_cbranch_scc1 {lab}")
    CW[0](a, lab + "c")
    a.e("s_mov_b32 s81, 0")
    a.e("s_and_b32 s25, s84, s85")
    for i in range(86, 92): a.e(f"s_and_b32 s25, s25, s{i}")
    a.e("s_cmp_eq_u32 s25, 32"); a.e(f"s_cbranch_scc1 {lab}r")
    a.e("s_waitcnt vmcnt(0) lgkmcnt(0)"); a.e("s_barrier"); a.e("s_branch M_worker")
    a.label(f"{lab}r")
    a.e("s_load_dwordx2 s[84:85], s[0:1], 0"); a.e("s_load_dwordx2 s[86:87], s[0:1], 56"); a.e("s_waitcnt lgkmcnt(0)")
    a.label(lab)
NS = 4; SLOT = 24576
FW = [0, 24]; XF = [48, 56]; VOP = 128
XB = 98304
WPROF = [0]
def wts(a, i):
    if WPROF[0]: a.e(f"s_memtime s[{88+2*i}:{89+2*i}]")
vW = 8; vTB = 14; vTC = 16; vW2 = 18; vT2 = 23; vXD = 24; vXR = 32; vST = 36
STG = [40, 48, 56, 224, 232, 240, 248]
def w_voffsets(a, NT, dst, ld):
    UPR = NT*4; NW = NT
    for i in range(NW):
        a.e(f"s_mul_i32 s25, s24, {NW*64}")
        a.e(f"s_add_u32 s25, s25, {i*64}")
        a.e("v_add_u32 v4, s25, v1")
        a.e(f"v_mul_u32_u24 v5, {(65536+UPR-1)//UPR}, v4")
        a.e("v_lshrrev_b32 v5, 16, v5")
        a.e(f"v_mul_u32_u24 v6, {UPR}, v5")
        a.e("v_sub_u32 v6, v4, v6")
        if NT == 6:
            a.e("v_lshlrev_b32 v7, 1, v5"); a.e("v_and_b32 v7, 4, v7"); a.e("v_xor_b32 v6, v6, v7")
        if isinstance(ld, int): a.e(f"v_mul_u32_u24 v5, {ld}, v5")
        else: a.e(f"v_mul_lo_u32 v5, v5, {ld}")
        a.e(f"v_lshl_add_u32 v{dst+i}, v6, 4, v5")
def tr_bases(a, NT, dst, khmul, two):
    RB = NT*64
    a.e("v_lshrrev_b32 v4, 5, v1"); a.e("v_bfe_u32 v5, v1, 2, 2")
    a.e(f"v_mul_u32_u24 v4, {khmul}, v4"); a.e("v_add_u32 v4, v4, v5")
    a.e(f"v_mul_u32_u24 v4, {RB}, v4")
    a.e("v_bfe_u32 v6, v1, 4, 1"); a.e("v_lshl_add_u32 v4, v6, 5, v4")
    a.e("v_and_b32 v6, 3, v1"); a.e("v_lshl_add_u32 v4, v6, 3, v4")
    if NT == 6:
        a.e("v_bfe_u32 v5, v1, 3, 1"); a.e("v_lshlrev_b32 v5, 6, v5")
        a.e(f"v_add_u32 v{dst}, v4, v5"); a.e(f"v_sub_u32 v{dst+1}, v4, v5")
    else:
        a.e(f"v_mov_b32 v{dst}, v4")
        if two: a.e(f"v_mov_b32 v{dst+1}, v4")
ADV = [f"s_add_u32 s29, s29, {SLOT}", f"s_cmp_eq_u32 s29, {NS*SLOT}", "s_cselect_b32 s29, 0, s29"]
def dmas(NW, vbase, srd, sreg, sinc, woff):
    it = []
    for i in range(NW):
        pre = [f"s_add_u32 m0, s29, {woff}"] if i == 0 else ["s_add_u32 m0, m0, 1024"]
        it.append(pre + ["s_nop 0", f"buffer_load_dwordx4 v{vbase+i}, {srd}, {sreg} offen lds"])
    it[-1] += [f"s_add_u32 {sreg}, {sreg}, {sinc}"] + ADV
    return it
def xdmas(MB, st, xsrd, sreg):
    SET = 16384*MB
    it = [[f"s_add_u32 m0, s52, {st*SET + i*1024}", "s_nop 0", f"buffer_load_dwordx4 v{vXD+i}, {xsrd}, {sreg} offen lds"] for i in range(4*MB)]
    it[-1].append(f"s_add_u32 {sreg}, {sreg}, 128")
    return it
def adv_read(a, base, two):
    a.e(f"s_add_u32 s30, s30, {SLOT}"); a.e(f"s_cmp_eq_u32 s30, {NS*SLOT}"); a.e("s_cselect_b32 s30, 0, s30")
    a.e(f"v_add_u32 v{vTC}, s30, v{base}")
    if two: a.e(f"v_add_u32 v{vTC+1}, s30, v{base+1}")
def cond(a, items, sreg):
    out = []
    for it in items:
        lab = a.newlabel("W_c")
        out.append([f"s_cmp_eq_u32 {sreg}, 0", f"s_cbranch_scc1 {lab}"] + it + [f"{lab}:"])
    return out
def main_reads(NT, MB, f, ks, st):
    RB = NT*64
    r = [[f"ds_read_b64_tr_b16 {ar(FW[f]+4*t+2*h,2)}, v{vTC+(t&1)} offset:{(8*ks+4*h)*RB + t*64}" for h in range(2)] for t in range(NT)]
    x = [[f"ds_read_b128 {ar(XF[f]+4*tb,4)}, v{vXR+ks} offset:{st*16384*MB + tb*4096}" for tb in range(MB)]]
    return x + r

def gemm_setup(a, NT, MB, withU):
    a.e("v_lshrrev_b32 v4, 3, v1"); a.e(f"s_mul_i32 s25, s24, {32*MB}"); a.e("v_add_u32 v4, s25, v4"); a.e("v_mul_u32_u24 v4, 1280, v4")
    a.e("v_lshrrev_b32 v5, 4, v1"); a.e("v_and_b32 v6, 7, v1"); a.e("v_xor_b32 v5, v5, v6")
    a.e(f"v_lshl_add_u32 v{vXD}, v5, 4, v4"); a.e("v_xor_b32 v5, 4, v5"); a.e(f"v_lshl_add_u32 v{vXD+1}, v5, 4, v4"); a.e(f"v_add_u32 v{vXD+1}, 10240, v{vXD+1}")
    for i in range(2, 4*MB): a.e(f"v_add_u32 v{vXD+i}, 20480, v{vXD+i-2}")
    a.e(f"s_mul_i32 s52, s24, {4096*MB}"); a.e(f"s_add_u32 s52, s52, {XB}")
    w_voffsets(a, NT, vW, "s33")
    a.e("s_lshl_b32 s28, s33, 6")
    a.e(f"s_mul_i32 s32, s24, {NT*1024}")
    a.e("s_mov_b32 s29, 0")
def gemm_setup2(a, NT, MB, withU):
    a.e(f"s_mul_i32 s25, s24, {32*MB}")
    a.e("v_and_b32 v4, 31, v1"); a.e("v_bfe_u32 v5, v1, 1, 3"); a.e("v_lshrrev_b32 v6, 5, v1"); a.e("v_lshlrev_b32 v6, 2, v6"); a.e("v_xor_b32 v5, v5, v6")
    a.e("v_add_u32 v4, s25, v4"); a.e("v_lshlrev_b32 v4, 7, v4"); a.e(f"v_add_u32 v4, {XB}, v4")
    for ks in range(4):
        a.e(f"v_xor_b32 v6, {ks}, v5"); a.e(f"v_lshl_add_u32 v{vXR+ks}, v6, 4, v4")
    tr_bases(a, NT, vTB, 32, True)
    a.e(f"v_lshlrev_b32 v{vST}, 4, v1")
    if withU:
        w_voffsets(a, 5, vW2, 1280)
        tr_bases(a, 5, vT2, 4, False)
        a.e("s_mul_i32 s34, s24, 5120")

def gemm_cold(a, NT, MB, xsrd, withU):
    PD = 2 if MB == 2 else 3
    gemm_setup(a, NT, MB, withU)
    for p in range(PD):
        for it in dmas(NT, vW, "s[12:15]", "s27", "s28", "s32"): a.e("\n".join(it))
        if p < PD-1:
            for it in xdmas(MB, p, xsrd, "s26"): a.e("\n".join(it))
    gemm_setup2(a, NT, MB, withU)
    a.e("s_mov_b32 s54, 0")
    a.e(f"s_waitcnt vmcnt({(PD-1)*NT + (PD-2)*4*MB})")
    a.e("s_barrier")
    wts(a, 1)
    a.e(f"v_mov_b32 v{vTC}, v{vTB}"); a.e(f"v_mov_b32 v{vTC+1}, v{vTB+1}")
    a.e("s_mov_b32 s30, 0")
    for it in main_reads(NT, MB, 0, 0, 0): a.e("\n".join(it))

def pend_flag(a):
    lab = a.newlabel("W_pf")
    a.e("s_cmp_eq_u32 s54, 0"); a.e(f"s_cbranch_scc1 {lab}")
    a.e("v_mov_b32 v2, 1"); a.e("v_lshlrev_b32 v3, 2, v1"); a.e("s_mov_b32 exec_hi, 0"); a.e("s_mov_b32 exec_lo, s54")
    a.e("buffer_store_dword v2, v3, s[8:11], s53 offen sc1")
    a.e("s_mov_b64 exec, -1"); a.e("s_mov_b32 s54, 0")
    a.label(lab)

def next_items(a):
    A = cond(a, dmas(6, vW, "s[56:59]", "s61", "s28", "s32"), "s62")
    B = cond(a, xdmas(2, 0, "s[48:51]", "s60") + dmas(6, vW, "s[56:59]", "s61", "s28", "s32"), "s62")
    return [A, B]

def gemm_loop(a, NT, MB, xsrd, tail):
    PD = 2 if MB == 2 else 3
    NX = PD
    nst = 10; NM = MB*NT
    dma_start, xper = (GP['dma_start'], GP['xper']) if MB == 2 else (0, 2)
    def mfmas(f, first):
        m = []
        for t in range(NT):
            for tb in range(MB):
                d = ACC + (tb*NT+t)*16
                m.append(f"{MF} {vr(d,16)}, {ar(FW[f]+4*t,4)}, {ar(XF[f]+4*tb,4)}, {'0' if first else vr(d,16)}")
        return m
    q = []
    for p in range(1, PD):
        q += [("W", p)]*NT
        if p < PD-1: q += [("X", p)]*(4*MB)
    for s in range(nst):
        last = s == nst-1
        ext = [[] for _ in range(4*NM)]
        tg = [[] for _ in range(4*NM)]
        xs = xdmas(MB, (s+PD-1) % NX, xsrd, "s26") if s+PD-1 < nst else []
        certain = True
        if s+PD < nst: ws = dmas(NT, vW, "s[12:15]", "s27", "s28", "s32")
        else:
            k = s+PD-nst
            ws = tail[1][k] if tail and k < len(tail[1]) else []
            certain = tail[0] if tail else True
        pos = 0
        for it in xs: ext[pos] += it; tg[pos].append(("X", s+PD-1)); pos += xper
        pos = max(pos, dma_start if xs else 0)
        if not certain and not last: pos = 3*NM
        step = max(1, ((4*NM if certain or not last else 4*NM - 6) - pos)//max(1, len(ws)))
        for it in ws:
            ext[pos] += it
            if certain: tg[pos].append(("W", s+PD))
            pos += step
        for ks in range(4):
            f = ks & 1
            if ks < 3 or last: a.e("s_waitcnt lgkmcnt(0)")
            else:
                idx = [i for i, t in enumerate(q) if t in (("W", s+1), ("X", s+1))]
                n = len(q) - 1 - max(idx) if idx else len(q)
                if idx: q = q[max(idx)+1:]
                a.e(f"s_waitcnt vmcnt({n}) lgkmcnt(0)")
                a.e("s_barrier")
                adv_read(a, vTB, True)
                if s == 0 and MB == 2 and NT == 6:
                    pend_flag(a)
                    a.e("s_add_u32 s25, s79, 4"); a.e("s_load_dword s55, s[76:77], s25")
            rd = main_reads(NT, MB, f ^ 1, ks+1, s % NX) if ks < 3 else ([] if last else main_reads(NT, MB, 0, 0, (s+1) % NX))
            per = 1 if NM >= len(rd) else 2
            fl = merge(spread(rd, NM, 0, per=per), ext[ks*NM:(ks+1)*NM])
            for ins in interleave(mfmas(f, s == 0 and ks == 0), fl): a.e(ins)
            for g in range(ks*NM, (ks+1)*NM): q += tg[g]
    wts(a, 2)

def warm_handoff(a, nyoung):
    lab = a.newlabel("W_wh")
    a.e("s_cmp_eq_u32 s62, 0"); a.e(f"s_cbranch_scc1 {lab}")
    a.e(f"s_waitcnt vmcnt({nyoung})")
    a.e("s_barrier")
    adv_read(a, vTB, True)
    for it in main_reads(6, 2, 0, 0, 0): a.e("\n".join(it))
    a.label(lab)

def finish(a, maskreg):
    lab = a.newlabel("W_fin")
    spec_check(a)
    a.e("s_cmp_eq_u32 s62, 0"); a.e(f"s_cbranch_scc1 {lab}")
    a.e("s_mov_b32 s53, s36"); a.e("s_cmp_eq_u32 s24, 0"); a.e(f"s_cselect_b32 s54, {maskreg}, 0")
    a.e("s_branch W_warm")
    a.label(lab)
    a.e("s_waitcnt vmcnt(0)"); a.e("s_barrier")
    a.e("s_mov_b32 s53, s36"); a.e("s_cmp_eq_u32 s24, 0"); a.e(f"s_cselect_b32 s54, {maskreg}, 0")
    pend_flag(a)
    a.e("s_branch W_next")

def epi_chunks(a, MB, segstride):
    a.nop(8)
    k = 0
    for tb in range(MB):
        for t in range(6):
            d = ACC + (tb*6+t)*16
            for j in range(2):
                r = 40 + (k % 6)*4; k += 1
                for q in range(4): a.e(f"v_cvt_pk_bf16_f32 v{r+q}, v{d+8*j+2*q}, v{d+8*j+2*q+1}")
                off = t*2048 + j*1024
                if off % 4096 == 0:
                    if tb == 0: a.e(f"s_add_u32 s25, s31, {off}")
                    else: a.e(f"s_add_u32 s25, {segstride}, s31"); a.e(f"s_add_u32 s25, s25, {off}")
                a.e(f"buffer_store_dwordx4 {vr(r,4)}, v{vST}, s[8:11], s25 offen offset:{off % 4096} {GP['st']}")

def task_kq(a, MB):
    if MB == 2:
        gemm_cold(a, 6, 2, "s[48:51]", True)
        a.label("W_kq_warm")
        gemm_loop(a, 6, 2, "s[48:51]", (False, next_items(a)))
        warm_handoff(a, 6)
    else:
        gemm_cold(a, 6, 1, "s[48:51]", False)
        gemm_loop(a, 6, 1, "s[48:51]", None)
    epi_chunks(a, MB, "s35")
    wts(a, 3); wts(a, 4)
    finish(a, "s39")

def task_vu(a, MB):
    RB = 320; NTL = 5*MB
    def wd2():
        it = dmas(5, vW2, "s[16:19]", "s37", 81920, "s34")
        it[-1] += ["s_add_u32 s40, s40, 1", "s_cmp_eq_u32 s40, 3", "s_cselect_b32 s40, 0, s40", f"s_cselect_b32 s42, {(320 - 3*81920) & 0xffffffff}, 0", "s_add_u32 s37, s37, s42"]
        return it
    PD = 2 if MB == 2 else 3
    gemm_cold(a, 6, MB, "s[48:51]", True)
    if MB == 2: a.label("W_vu_warm")
    a.e("s_mov_b32 s40, 0")
    gemm_loop(a, 6, MB, "s[48:51]", (True, [wd2() for _ in range(PD)]))
    a.e(f"s_waitcnt vmcnt({5*(PD-1)})")
    a.e("s_barrier")
    adv_read(a, vT2, False)
    def wreads(f, ks):
        return [[f"ds_read_b64_tr_b16 {ar(FW[f]+4*t+2*h,2)}, v{vTC} offset:{(16*ks+8*h)*RB + t*64}" for h in range(2)] for t in range(5)]
    for it in wreads(0, 0): a.e("\n".join(it))
    k = 0
    for tb in range(MB):
        for T in range(6):
            d = ACC + (tb*6+T)*16
            for q in range(8):
                r = 40 + (k % 8); k += 1
                a.e(f"v_cvt_pk_bf16_f32 v{r}, v{d+2*q}, v{d+2*q+1}")
                a.e(f"v_accvgpr_write_b32 a{VOP + (tb*6+T)*8 + q}, v{r}")
    wts(a, 3)
    ND = max(0, NTL - len(STG))
    def grp(i): return STG[0] if i < ND else STG[i-ND]
    def cvts(i):
        d = ACC + i*16; r = grp(i)
        return [f"v_cvt_pk_bf16_f32 v{r+q}, v{d+2*q}, v{d+2*q+1}" for q in range(8)]
    def stores(i):
        tb, t = divmod(i, 5); off = t*2048; r = grp(i)
        return [[f"s_add_u32 s25, s31, {tb*32*40960 + (off & ~4095)}", f"buffer_store_dwordx4 {vr(r,4)}, v{vST}, s[8:11], s25 offen offset:{off % 4096} {GP['st']}"],
                [f"buffer_store_dwordx4 {vr(r+4,4)}, v{vST}, s[8:11], s25 offen offset:{off % 4096 + 1024} {GP['st']}"]]
    def mf(f, sg, ks, i):
        tb, t = divmod(i, 5); T = 2*sg + (ks >> 1); j = ks & 1; d = ACC + i*16
        return f"{MF} {vr(d,16)}, {ar(VOP + ((tb*6+T)*2+j)*4,4)}, {ar(FW[f]+4*t,4)}, {'0' if sg == 0 and ks == 0 else vr(d,16)}"
    def pass_body(pending, final):
        NM = NTL
        st_items = []
        if pending:
            for i in range(ND, NTL): st_items += stores(i)
        nx = next_items(a) if (final and MB == 2) else [[], []]
        prev_w = 5*(PD-1)
        for sg in range(3):
            ext = [[] for _ in range(4*NM)]
            nU = (not final) or sg + PD < 3
            ws = wd2() if nU else (nx[sg - (3-2)] if sg >= 1 else [])
            nmine = (len(st_items) + (2-sg))//(3-sg) if sg < 2 else len(st_items)
            mine = st_items[:nmine]; st_items = st_items[nmine:]
            p0 = NM if (sg == 0 and pending) else 0
            if nU:
                seq = []
                wi = list(ws); si = list(mine)
                while wi or si:
                    if wi: seq.append(wi.pop(0))
                    if si: seq.append(si.pop(0))
                for n, it in enumerate(seq): ext[p0 + (n*(3*NM - p0))//len(seq)] += it
            elif sg < 2:
                for n, it in enumerate(mine): ext[p0 + (n*(3*NM - p0))//len(mine)] += it
                for n, it in enumerate(ws): ext[3*NM + (n*NM)//len(ws)] += it
            else:
                seq = list(mine) + list(ws)
                for n, it in enumerate(seq): ext[(n*(4*NM - 4))//len(seq)] += it
            if sg == 2 and pending: ext[4*NM-1] += [f"s_add_u32 s31, s31, {5*2048}"]
            for ks in range(4):
                f = ks & 1
                lastst = final and sg == 2
                if ks < 3 or lastst: a.e("s_waitcnt lgkmcnt(0)")
                else:
                    thisn = len(mine) + (5 if nU else 0)
                    older = 5*(PD-2) if (PD > 2 and ((not final) or sg + PD - 1 < 3)) else 0
                    a.e(f"s_waitcnt vmcnt({thisn + older}) lgkmcnt(0)")
                    a.e("s_barrier")
                    adv_read(a, vT2, False)
                rd = wreads(f ^ 1, ks+1) if ks < 3 else ([] if lastst else wreads(0, 0))
                fl = merge(spread(rd, NM, 0, per=1), ext[ks*NM:(ks+1)*NM])
                for i in range(NM):
                    if pending and sg == 0 and ks == 0:
                        for ins in cvts(i): a.e(ins)
                        if i < ND:
                            for it in stores(i): a.e("\n".join(it))
                    a.e(mf(f, sg, ks, i))
                    for ins in fl[i]: a.e(ins)
    lp = a.newlabel("W_pass")
    pass_body(False, False)
    a.e("s_cmp_eq_u32 s38, 2"); a.e(f"s_cbranch_scc1 {lp}_fin")
    if MB == 2:
        a.label(lp)
        pass_body(True, False)
        a.e("s_sub_u32 s38, s38, 1"); a.e("s_cmp_lg_u32 s38, 2"); a.e(f"s_cbranch_scc1 {lp}")
    a.label(f"{lp}_fin")
    pass_body(True, True)
    wts(a, 4)
    if MB == 2: warm_handoff(a, 6)
    a.nop(8)
    for i in range(NTL):
        r = 40 + 8*(i % 3)
        d = ACC + i*16; tb, t = divmod(i, 5); off = t*2048
        for q in range(8): a.e(f"v_cvt_pk_bf16_f32 v{r+q}, v{d+2*q}, v{d+2*q+1}")
        a.e(f"s_add_u32 s25, s31, {tb*32*40960 + (off & ~4095)}")
        a.e(f"buffer_store_dwordx4 {vr(r,4)}, v{vST}, s[8:11], s25 offen offset:{off % 4096} {GP['st']}")
        a.e(f"buffer_store_dwordx4 {vr(r+4,4)}, v{vST}, s[8:11], s25 offen offset:{off % 4096 + 1024} {GP['st']}")
    finish(a, "s39")

def task_bout(a):
    gemm_cold(a, 5, 2, "s[8:11]", False)
    gemm_loop(a, 5, 2, "s[8:11]", None)
    a.e("v_and_b32 v4, 31, v1"); a.e("s_lshl_b32 s25, s24, 6"); a.e("v_add_u32 v4, s25, v4"); a.e("v_mul_u32_u24 v4, 2560, v4")
    a.e("v_lshrrev_b32 v5, 5, v1"); a.e("v_lshl_add_u32 v4, v5, 4, v4"); a.e(f"v_add_u32 v5, {32*2560}, v4")
    a.nop(4)
    k = 0
    for tb in range(2):
        for t in range(5):
            d = ACC + (tb*5+t)*16
            for j in range(2):
                r = 40 + (k % 6)*4; k += 1
                for q in range(4): a.e(f"v_cvt_pk_bf16_f32 v{r+q}, v{d+8*j+2*q}, v{d+8*j+2*q+1}")
                a.nop(2)
                a.e(f"v_permlane32_swap_b32 v{r}, v{r+2}"); a.e(f"v_permlane32_swap_b32 v{r+1}, v{r+3}")
                a.e(f"buffer_store_dwordx4 {vr(r,4)}, v{4+tb}, s[20:23], s31 offen offset:{t*64 + j*32} {GP['ost']}")
    a.e("s_barrier")

NEGINF = 0xff800000
def task_tp(a):
    C = 192**-0.5 * math.log2(math.e)
    KR = 64; QR = 112; MR = 160; S = 16; SM = 32
    a.e("s_lshl_b32 s46, s45, 2"); a.e("s_add_u32 s46, s46, s24")
    a.e("s_lshl_b32 s47, s44, 5"); a.e("s_add_u32 s47, s47, s46")
    a.e("s_lshr_b32 s25, s44, 3"); a.e("s_lshl_b32 s25, s25, 5"); a.e("s_add_u32 s25, s25, s46"); a.e("s_lshl_b32 s25, s25, 4"); a.e(f"s_add_u32 s26, s25, {WS_FLAGS+F_Q}"); a.e(f"s_add_u32 s25, s25, {WS_FLAGS+F_K}")
    wait_flags(a, a.newlabel("W_k"), "s25", 2, 2, 1)
    wait_flags(a, a.newlabel("W_q"), "s26", 2, 2, 1)
    a.e("v_lshlrev_b32 v4, 4, v1")
    a.e("s_mul_i32 s26, s47, 12288"); a.e(f"s_add_u32 s27, s26, {WS_Q}"); a.e(f"s_add_u32 s26, s26, {WS_K}")
    for i in range(12):
        if i and i % 4 == 0: a.e("s_add_u32 s26, s26, 4096"); a.e("s_add_u32 s27, s27, 4096")
        a.e(f"buffer_load_dwordx4 {vr(KR+4*i,4)}, v4, s[8:11], s26 offen offset:{1024*(i%4)}")
        a.e(f"buffer_load_dwordx4 {vr(QR+4*i,4)}, v4, s[8:11], s27 offen offset:{1024*(i%4)}")
    a.e("v_and_b32 v5, 31, v1"); a.e("v_lshrrev_b32 v6, 5, v1"); a.e("v_lshlrev_b32 v7, 2, v6"); a.e("v_sub_u32 v8, v5, v7")
    a.e("v_and_b32 v7, 7, v1"); a.e("v_lshlrev_b32 v7, 4, v7"); a.e("v_lshl_add_u32 v7, v6, 7, v7"); a.e("s_mul_i32 s25, s24, 3072"); a.e("v_add_u32 v9, s25, v7")
    a.e("v_lshlrev_b32 v10, 4, v5"); a.e("v_lshl_add_u32 v10, v6, 3, v10")
    a.e(f"v_mov_b32 v11, {NEGINF}")
    for i in range(12):
        a.e(f"s_waitcnt vmcnt({22-2*i})")
        a.e(f"{MF} {vr(S,16)}, {vr(KR+4*i,4)}, {vr(QR+4*i,4)}, {'0' if i == 0 else vr(S,16)}")
    a.e("s_lshl_b32 s25, s46, 7"); a.e(f"s_add_u32 s25, s25, {WS_FLAGS+F_KM}"); a.e("s_add_u32 s28, s44, 1")
    a.nop(8)
    for r in range(16):
        kr = (r & 3) + 8*(r >> 2)
        a.e(f"v_cmp_le_i32 vcc, {kr}, v8")
        a.nop(2)
        a.e(f"v_cndmask_b32 v{S+r}, v11, v{S+r}, vcc")
    a.e(f"v_max3_f32 v12, v{S}, v{S+1}, v{S+2}")
    for r in range(3, 15, 2): a.e(f"v_max3_f32 v12, v{S+r}, v{S+r+1}, v12")
    a.e(f"v_max_f32 v12, v{S+15}, v12")
    a.e("s_min_u32 s29, s28, 63")
    wait_progress(a, a.newlabel("W_kp"), "s25", "s29")
    wait_flags(a, a.newlabel("W_km"), "s25", 1, 2, "s28", sleep=GP['slpf'])
    a.e("s_mul_i32 s26, s47, 3072"); a.e(f"s_add_u32 s26, s26, {WS_KM}"); a.e("s_mul_i32 s25, s24, 3072")
    for i in range(3):
        a.e(f"s_add_u32 m0, s25, {1024*i}"); a.e("s_nop 0")
        a.e(f"buffer_load_dwordx4 v4, s[8:11], s26 offen sc1 lds")
        a.e("s_add_u32 s26, s26, 1024")
    a.e("s_waitcnt vmcnt(0)")
    for i in range(12): a.e(f"ds_read_b128 {vr(MR+4*i,4)}, v9 offset:{256*i}")
    for i in range(12):
        a.e(f"s_waitcnt lgkmcnt({11-i})")
        a.e(f"{MF} {vr(SM,16)}, {vr(MR+4*i,4)}, {vr(QR+4*i,4)}, {'0' if i == 0 else vr(SM,16)}")
    a.e("s_mul_i32 s26, s47, 2560"); a.e(f"s_add_u32 s26, s26, {WS_PT}")
    a.e("s_lshl_b32 s27, s44, 3"); a.e("s_add_u32 s27, s27, s45"); a.e("s_lshl_b32 s27, s27, 7"); a.e(f"s_add_u32 s27, s27, {WS_FLAGS+F_PT}")
    a.e(f"s_mov_b32 s28, {fbits(C)}")
    a.nop(12)
    a.e(f"v_max3_f32 v12, v{SM}, v{SM+1}, v12"); a.e(f"v_max3_f32 v12, v{SM+2}, v{SM+3}, v12")
    a.e("v_mov_b32 v13, v12"); a.nop(2); a.e("v_permlane32_swap_b32 v12, v13"); a.nop(1); a.e("v_max_f32 v12, v12, v13")
    a.e("v_mul_f32 v12, s28, v12")
    vals = list(range(S, S+16)) + list(range(SM, SM+4))
    for v in vals: a.e(f"v_fma_f32 v{v}, v{v}, s28, -v12")
    for v in vals: a.e(f"v_exp_f32 v{v}, v{v}")
    a.e(f"v_add_f32 v13, v{S}, v{S+1}")
    for v in vals[2:]: a.e(f"v_add_f32 v13, v13, v{v}")
    a.e("v_mov_b32 v14, v13"); a.nop(2); a.e("v_permlane32_swap_b32 v13, v14"); a.nop(1); a.e("v_add_f32 v13, v13, v14")
    a.e("v_rcp_f32 v13, v13"); a.nop(1)
    for v in vals: a.e(f"v_mul_f32 v{v}, v{v}, v13")
    for q in range(8): a.e(f"v_cvt_pk_bf16_f32 v{48+q}, v{S+2*q}, v{S+2*q+1}")
    for q in range(2): a.e(f"v_cvt_pk_bf16_f32 v{56+q}, v{SM+2*q}, v{SM+2*q+1}")
    a.e("buffer_store_dwordx4 v[48:51], v4, s[8:11], s26 offen sc1")
    a.e("buffer_store_dwordx4 v[52:55], v4, s[8:11], s26 offen offset:1024 sc1")
    a.e("buffer_store_dwordx2 v[56:57], v10, s[8:11], s26 offen offset:2048 sc1")
    set_flag(a, "s27")

def task_pz(a):
    a.e("s_lshr_b32 s25, s44, 3"); a.e("s_lshl_b32 s25, s25, 9"); a.e("s_lshl_b32 s26, s24, 7"); a.e("s_add_u32 s25, s25, s26"); a.e(f"s_add_u32 s25, s25, {WS_FLAGS+F_U}")
    wait_flags(a, a.newlabel("W_u"), "s25", 32, 2, 1)
    a.e("s_lshl_b32 s46, s44, 5"); a.e("s_lshl_b32 s25, s24, 3"); a.e("s_add_u32 s46, s46, s25")
    a.e("v_and_b32 v5, 31, v1"); a.e("v_lshrrev_b32 v6, 5, v1")
    a.e("v_lshlrev_b32 v4, 4, v1")
    a.e("v_lshlrev_b32 v7, 4, v1")
    a.e("v_mul_u32_u24 v8, 2560, v6"); a.e("v_lshl_add_u32 v8, v5, 4, v8")
    a.e("v_mul_u32_u24 v9, 10240, v6"); a.e("v_lshl_add_u32 v9, v5, 4, v9")
    a.e("s_mul_i32 s26, s46, 40960"); a.e("s_lshl_b32 s25, s45, 12"); a.e("s_add_u32 s26, s26, s25"); a.e(f"s_add_u32 s26, s26, {WS_U}")
    for h in range(8):
        for i in range(4): a.e(f"buffer_load_dwordx4 {ar(16*h+4*i,4)}, v4, s[8:11], s26 offen offset:{1024*i}")
        a.e("s_add_u32 s26, s26, 40960")
    a.e("s_lshl_b32 s25, s24, 13"); a.e("v_add_u32 v10, s25, v7")
    a.e("v_and_b32 v11, 7, v0"); a.e("v_lshrrev_b32 v12, 3, v0")
    a.e("v_lshlrev_b32 v13, 10, v11"); a.e("v_lshl_add_u32 v13, v12, 4, v13")
    a.e("v_mul_u32_u24 v14, 2560, v12"); a.e("v_lshl_add_u32 v14, v11, 4, v14")
    a.e("s_lshl_b32 s27, s44, 10"); a.e("s_lshl_b32 s25, s24, 8"); a.e("s_add_u32 s27, s27, s25"); a.e(f"s_add_u32 s27, s27, {WS_FLAGS+F_PT}")
    a.e("s_add_u32 s28, s44, 1"); a.e("s_lshl_b32 s25, s24, 10"); a.e(f"s_add_u32 s25, s25, {WS_FLAGS+F_YR}")
    a.e("s_min_u32 s28, s28, 63")
    a.e("s_min_u32 s29, s28, 62")
    wait_progress(a, a.newlabel("W_yp"), "s25", "s29")
    wait_flags(a, a.newlabel("W_y"), "s25", 8, 7, "s28", sleep=GP['slpf'])
    a.e("s_cmp_lg_u32 s44, 63"); a.e("s_cbranch_scc1 W_pz_nf")
    wait_flags(a, a.newlabel("W_yf"), "s25", 8, 7, 1, sleep=GP['slpf'], imm=4)
    a.label("W_pz_nf")
    a.e("s_mul_i32 s29, s46, 10240"); a.e("s_lshl_b32 s25, s45, 10"); a.e("s_add_u32 s29, s29, s25"); a.e(f"s_add_u32 s29, s29, {WS_YA}")
    for p in range(4):
        for t in range(2): a.e(f"buffer_load_dwordx4 {vr(144+8*p+4*t,4)}, v9, s[8:11], s29 offen offset:{512*t} sc1")
        a.e("s_add_u32 s29, s29, 20480")
    wait_flags(a, a.newlabel("W_p"), "s27", 2, 7, 1, sleep=GP['slpf'])
    a.e("s_mul_i32 s26, s46, 2560"); a.e(f"s_add_u32 s26, s26, {WS_PT}")
    for p in range(4):
        a.e("s_add_u32 s25, s26, 2560")
        for j in range(2): a.e(f"buffer_load_dwordx4 {vr(64+16*p+4*j,4)}, v7, s[8:11], s26 offen offset:{1024*j} sc1")
        for j in range(2): a.e(f"buffer_load_dwordx4 {vr(64+16*p+8+4*j,4)}, v7, s[8:11], s25 offen offset:{1024*j} sc1")
        a.e(f"buffer_load_dwordx4 {vr(128+4*p,4)}, v8, s[8:11], s26 offen offset:2048 sc1")
        a.e("s_add_u32 s26, s26, 5120")
    first = True
    for p in range(4):
        for k in range(5):
            a.e(f"s_waitcnt vmcnt({19-5*p-k})")
            for t in range(2):
                d = 16+16*t
                if k < 4:
                    h = 2*p + (k >> 1); j = k & 1
                    A = ar(16*h + 8*t + 4*j, 4); B = vr(64+16*p+4*k, 4)
                else:
                    A = vr(144+8*p+4*t, 4); B = vr(128+4*p, 4)
                a.e(f"{MF} {vr(d,16)}, {A}, {B}, {'0' if first else vr(d,16)}")
            first = False
    a.e("s_mul_i32 s26, s44, 81920"); a.e("s_lshl_b32 s25, s45, 7"); a.e("s_add_u32 s26, s26, s25")
    a.nop(10)
    for t in range(2):
        if t: a.nop(4)
        for q in range(4): a.e(f"ds_write_b128 v10, {vr(16+16*t+4*q,4)} offset:{(t*4+q)*1024}")
    a.e("s_waitcnt lgkmcnt(0)")
    a.e("s_barrier")
    for w in range(4):
        for hf in range(2): a.e(f"ds_read_b128 {vr(64+8*w+4*hf,4)}, v13 offset:{8192*w + 512*hf}")
    a.e("s_waitcnt lgkmcnt(0)")
    for q in range(0, 8, 2):
        a.e(f"v_pk_add_f32 {vr(64+q,2)}, {vr(64+q,2)}, {vr(72+q,2)}"); a.e(f"v_pk_add_f32 {vr(80+q,2)}, {vr(80+q,2)}, {vr(88+q,2)}")
    for q in range(0, 8, 2): a.e(f"v_pk_add_f32 {vr(64+q,2)}, {vr(64+q,2)}, {vr(80+q,2)}")
    for q in range(4): a.e(f"v_cvt_pk_bf16_f32 v{48+q}, v{64+2*q}, v{64+2*q+1}")
    a.e(f"buffer_store_dwordx4 v[48:51], v14, s[20:23], s26 offen {GP['ost']}")
    a.e("s_barrier")

def piece_off(a, dst, c4reg):
    a.e(f"s_lshr_b32 s25, {c4reg}, 4"); a.e(f"s_lshl_b32 {dst}, s25, 10")
    a.e(f"s_bfe_u32 s25, {c4reg}, 0x10002"); a.e("s_lshl_b32 s25, s25, 9"); a.e(f"s_add_u32 {dst}, {dst}, s25")
    a.e(f"s_and_b32 s25, {c4reg}, 8"); a.e(f"s_add_u32 {dst}, {dst}, s25")
def task_batt(a):
    C = 20**-0.5 * math.log2(math.e)
    SEG = 122880; VL = 18432
    S = 64; Q0 = 16; Q1 = 20; KA = 24; DAT = 208; O = 40
    a.e("s_lshr_b32 s26, s44, 1"); a.e("s_max_u32 s27, s26, 1"); a.e("s_sub_u32 s27, s27, 1")
    a.e("s_lshl_b32 s26, s26, 6"); a.e("s_lshl_b32 s27, s27, 6"); a.e(f"s_add_u32 s26, s26, {WS_FLAGS+F_BQ}"); a.e(f"s_add_u32 s27, s27, {WS_FLAGS+F_BQ}")
    wait_flags(a, a.newlabel("W_b1"), "s26", 10, 2, 1)
    wait_flags(a, a.newlabel("W_b2"), "s27", 10, 2, 1)
    a.e("s_mul_i32 s28, s45, 20")
    for part in range(3):
        for c in range(5):
            a.e(f"s_add_u32 s29, s28, {640*part + 4*c}")
            piece_off(a, f"s{48 + 5*part + c}", "s29")
    a.e("v_and_b32 v5, 31, v1"); a.e("v_lshrrev_b32 v6, 5, v1")
    a.e(f"v_mul_u32_u24 v4, {SEG}, v6"); a.e("v_lshl_add_u32 v4, v5, 4, v4")
    a.e("v_mul_u32_u24 v7, 48, v1")
    for i in range(3):
        a.e("s_mul_i32 s29, s24, 3"); a.e(f"s_add_u32 s29, s29, {i}")
        a.e("s_cmp_ge_u32 s29, 6"); a.e("s_cselect_b32 s30, 6, 0"); a.e("s_cselect_b32 s33, 1, 0"); a.e("s_sub_u32 s29, s29, s30")
        a.e("s_lshl_b32 s30, s44, 1"); a.e("s_add_u32 s30, s30, s29"); a.e("s_max_u32 s30, s30, 4"); a.e("s_sub_u32 s30, s30, 4")
        a.e(f"s_mul_i32 s30, s30, {2*SEG}"); a.e(f"s_add_u32 s30, s30, {WS_BQKV}")
        a.e("s_mul_i32 s29, s29, 3072"); a.e(f"s_mul_i32 s34, s33, {VL}"); a.e("s_add_u32 s29, s29, s34")
        a.e(f"v_add_u32 v{8+i}, s29, v7")
        a.e("s_cmp_eq_u32 s33, 1")
        for c in range(5):
            a.e(f"s_cselect_b32 s31, s{58+c}, s{53+c}"); a.e(f"s_mov_b32 s{35+c}, s31")
        for c in range(5):
            a.e(f"s_add_u32 s31, s{35+c}, s30")
            a.e(f"buffer_load_dwordx2 {vr(DAT+10*i+2*c,2)}, v4, s[8:11], s31 offen")
    a.e("s_lshl_b32 s30, s44, 2"); a.e("s_add_u32 s30, s30, s24"); a.e(f"s_mul_i32 s30, s30, {SEG}"); a.e(f"s_add_u32 s30, s30, {WS_BQKV}")
    a.e("v_cmp_eq_u32 vcc, 0, v6"); a.e("v_lshlrev_b32 v11, 4, v5")
    for k in range(2):
        a.e(f"v_mov_b32 v12, s{50+k}"); a.e(f"v_mov_b32 v13, s{48+k}"); a.e("v_cndmask_b32 v12, v12, v13, vcc"); a.e("v_add_u32 v12, v12, v11")
        a.e(f"buffer_load_dwordx2 {vr(Q0+2*k,2)}, v12, s[8:11], s30 offen")
    a.e("s_add_u32 s30, s30, s52")
    a.e(f"buffer_load_dwordx2 {vr(Q1,2)}, v11, s[8:11], s30 offen")
    a.e("v_mov_b32 v14, 0x3f80"); a.e("v_mov_b32 v15, 0"); a.e("v_mul_u32_u24 v12, 48, v0"); a.e("v_and_b32 v13, 127, v0"); a.e("v_mul_u32_u24 v13, 48, v13")
    a.e(f"ds_write_b64 v12, v[14:15] offset:{VL+40}"); a.e(f"ds_write_b64 v13, v[14:15] offset:{VL+40+256*48}")
    for i in range(3):
        for c in range(5):
            a.e(f"s_waitcnt vmcnt({17-5*i-c})")
            a.e(f"ds_write_b64 v{8+i}, {vr(DAT+10*i+2*c,2)} offset:{8*c}")
    a.e("s_mul_i32 s29, s24, 1536")
    a.e("v_mul_u32_u24 v8, 48, v5"); a.e("v_add_u32 v8, s29, v8"); a.e("v_lshl_add_u32 v9, v6, 4, v8")
    a.e("v_bfe_u32 v10, v1, 2, 2"); a.e("v_lshl_add_u32 v10, v6, 2, v10"); a.e("v_mul_u32_u24 v10, 48, v10")
    a.e("v_bfe_u32 v12, v1, 4, 1"); a.e("v_and_b32 v13, 3, v1"); a.e("v_lshl_add_u32 v12, v12, 2, v13"); a.e("v_min_u32 v12, 5, v12"); a.e("v_lshl_add_u32 v10, v12, 3, v10")
    a.e(f"s_add_u32 s29, s29, {VL}"); a.e("v_add_u32 v10, s29, v10")
    a.e("v_lshlrev_b32 v12, 2, v6"); a.e("v_sub_u32 v12, v5, v12")
    a.e(f"v_mov_b32 v13, {NEGINF}")
    a.e("s_waitcnt vmcnt(0)")
    a.e(f"v_cndmask_b32 v{Q1}, 0, v{Q1}, vcc"); a.e(f"v_cndmask_b32 v{Q1+1}, 0, v{Q1+1}, vcc")
    a.e("s_lshl_b32 s33, s44, 2"); a.e("s_add_u32 s33, s33, s24")
    a.e("s_waitcnt lgkmcnt(0)")
    a.e("s_barrier")
    def kread(i):
        r = KA + 6*(i % 3)
        a.e(f"ds_read_b128 {vr(r,4)}, v9 offset:{1536*i}"); a.e(f"ds_read_b64 {vr(r+4,2)}, v8 offset:{1536*i+32}")
    def m8(i):
        a.e(f"v_mfma_f32_32x32x8_bf16 {vr(S+16*i,16)}, {vr(KA+6*(i%3)+4,2)}, {vr(Q1,2)}, {vr(S+16*i,16)}")
    kread(0)
    for i in range(9):
        if i < 8: kread(i+1)
        a.e(f"s_waitcnt lgkmcnt({2 if i < 8 else 0})")
        a.e(f"{MF} {vr(S+16*i,16)}, {vr(KA+6*(i%3),4)}, {vr(Q0,4)}, 0")
        if i == 1: a.nop(4)
        if i > 0: m8(i-1)
    a.nop(4)
    m8(8)
    a.nop(16)
    lab = a.newlabel("W_neg")
    for i in range(8):
        a.e(f"s_cmp_ge_u32 s33, {8-i}"); a.e(f"s_cbranch_scc1 {lab}")
        for r in range(16): a.e(f"v_mov_b32 v{S+16*i+r}, v13")
    a.label(lab)
    for r in range(16):
        kr = (r & 3) + 8*(r >> 2)
        a.e(f"v_cmp_le_i32 vcc, {kr}, v12")
        a.nop(2)
        a.e(f"v_cndmask_b32 v{S+128+r}, v13, v{S+128+r}, vcc")
        a.e(f"v_cndmask_b32 v{S+r}, v{S+r}, v13, vcc")
    a.e(f"v_max3_f32 v14, v{S}, v{S+1}, v{S+2}"); a.e(f"v_max3_f32 v15, v{S+3}, v{S+4}, v{S+5}")
    for r in range(6, 142, 4):
        a.e(f"v_max3_f32 v14, v{S+r}, v{S+r+1}, v14"); a.e(f"v_max3_f32 v15, v{S+r+2}, v{S+r+3}, v15")
    a.e(f"v_max3_f32 v14, v{S+142}, v{S+143}, v14"); a.e("v_max_f32 v14, v14, v15")
    a.e("v_mov_b32 v15, v14"); a.e(f"s_mov_b32 s28, {fbits(C)}"); a.nop(1); a.e("v_permlane32_swap_b32 v14, v15"); a.nop(1); a.e("v_max_f32 v14, v14, v15")
    a.e("v_mul_f32 v14, s28, v14")
    def vread(i):
        for jj in range(2):
            for h in range(2):
                a.e(f"ds_read_b64_tr_b16 {vr(KA+8*(i&1)+4*jj+2*h,2)}, v10 offset:{(32*i+16*jj+8*h)*48}")
    vread(0)
    for i in range(9):
        d = S+16*i
        for r in range(16): a.e(f"v_fma_f32 v{d+r}, v{d+r}, s28, -v14")
        for r in range(16): a.e(f"v_exp_f32 v{d+r}, v{d+r}")
        for q in range(8): a.e(f"v_cvt_pk_bf16_f32 v{d+q}, v{d+2*q}, v{d+2*q+1}")
        if i < 8: vread(i+1)
        a.e(f"s_waitcnt lgkmcnt({4 if i < 8 else 0})")
        if i == 8: a.nop(1)
        for jj in range(2):
            a.e(f"{MF} {vr(O,16)}, {vr(KA+8*(i&1)+4*jj,4)}, {vr(d+4*jj,4)}, {'0' if i == 0 and jj == 0 else vr(O,16)}")
    a.e(f"s_mul_i32 s30, s33, 40960"); a.e(f"s_add_u32 s30, s30, {WS_BO}"); a.e("s_mul_i32 s28, s45, 40"); a.e("s_add_u32 s30, s30, s28")
    a.e("v_mul_u32_u24 v16, 1280, v5"); a.e("v_lshl_add_u32 v16, v6, 3, v16")
    a.nop(12)
    a.e(f"v_mov_b32 v8, v{O+8}"); a.e(f"v_mov_b32 v9, v{O+8}"); a.nop(1); a.e("v_permlane32_swap_b32 v8, v9")
    a.nop(1); a.e("v_rcp_f32 v9, v9"); a.nop(1)
    for r in range(12): a.e(f"v_mul_f32 v{O+r}, v{O+r}, v9")
    for q in range(6): a.e(f"v_cvt_pk_bf16_f32 v{24+q}, v{O+2*q}, v{O+2*q+1}")
    a.e("buffer_store_dwordx2 v[24:25], v16, s[8:11], s30 offen sc1")
    a.e("buffer_store_dwordx2 v[26:27], v16, s[8:11], s30 offen offset:16 sc1")
    a.e("s_mov_b32 exec_hi, 0")
    a.e("buffer_store_dwordx2 v[28:29], v16, s[8:11], s30 offen offset:32 sc1")
    a.e("s_mov_b64 exec, -1")
    a.e("s_lshr_b32 s26, s44, 1"); a.e("s_lshl_b32 s26, s26, 7"); a.e(f"s_add_u32 s26, s26, {WS_FLAGS+F_BA}")
    set_flag(a, "s26", add=True)

T_END, T_K, T_Q, T_VU, T_BQ, T_BA, T_BO, T_P, T_PZ = range(9)
def enc(t, x, y, z=0): return t | (x << 8) | (y << 16) | (z << 24)

def worker(a, table_label, maxlen, cw):
    CW[0] = cw
    a.e("s_load_dwordx8 s[64:71], s[0:1], 16")
    a.e("s_load_dwordx4 s[72:75], s[0:1], 64")
    a.e("s_load_dwordx2 s[20:21], s[0:1], 80")
    a.e("s_load_dwordx2 s[84:85], s[0:1], 0"); a.e("s_load_dwordx2 s[86:87], s[0:1], 56")
    a.e("s_getpc_b64 s[76:77]")
    a.label("W_pc")
    a.e(f"s_add_u32 s76, s76, {table_label}-W_pc"); a.e("s_addc_u32 s77, s77, 0")
    a.e(f"s_mul_i32 s79, s79, {4*maxlen}")
    a.e("s_waitcnt lgkmcnt(0)")
    a.e("s_mov_b32 s22, 5242880"); a.e("s_mov_b32 s23, 0x20000")
    a.e("s_mov_b32 s16, s70"); a.e("s_mov_b32 s17, s71"); a.e("s_mov_b32 s18, 7864320"); a.e("s_mov_b32 s19, 0x20000")
    a.e("s_mov_b32 s12, s64"); a.e("s_mov_b32 s13, s65"); a.e("s_mov_b32 s14, 7864320"); a.e("s_mov_b32 s15, 0x20000")
    a.e("v_and_b32 v1, 63, v0")
    def fetch(warm=False):
        if warm:
            a.e("s_mov_b32 s78, s63"); a.e("s_mov_b32 s63, s55"); a.e("s_add_u32 s79, s79, 4")
        else:
            a.e("s_load_dword s78, s[76:77], s79")
            a.e("s_add_u32 s79, s79, 4")
            a.e("s_load_dword s63, s[76:77], s79")
            a.e("s_waitcnt lgkmcnt(0)")
        a.e("PROFTASK")
        a.e("s_and_b32 s47, s78, 255"); a.e("s_bfe_u32 s44, s78, 0x80008"); a.e("s_bfe_u32 s45, s78, 0x80010"); a.e("s_lshr_b32 s46, s78, 24")
    def nextparams():
        a.e("s_and_b32 s25, s63, 255"); a.e("s_cmp_eq_u32 s25, 1")
        a.e("s_cselect_b32 s56, s66, s64"); a.e("s_cselect_b32 s57, s67, s65")
        a.e("s_cmp_eq_u32 s25, 3"); a.e("s_cselect_b32 s56, s68, s56"); a.e("s_cselect_b32 s57, s69, s57")
        a.e("s_mov_b32 s58, 7864320"); a.e("s_mov_b32 s59, 0x20000")
        a.e("s_sub_u32 s25, s25, 1"); a.e("s_cmp_lt_u32 s25, 3"); a.e("s_cselect_b32 s62, 1, 0")
        a.e("s_bitcmp1_b32 s63, 26"); a.e("s_cselect_b32 s62, 0, s62")
        a.e("s_bfe_u32 s60, s63, 0x80008"); a.e("s_mul_i32 s60, s60, 327680")
        a.e("s_bfe_u32 s61, s63, 0x80010"); a.e("s_mul_i32 s61, s61, 384")
    def aout():
        a.e("s_lshl_b32 s36, s44, 5"); a.e("s_add_u32 s36, s36, s45"); a.e("s_lshl_b32 s36, s36, 4")
        a.e("s_lshl_b32 s31, s44, 3")
        a.e("s_bitcmp1_b32 s46, 2"); a.e("s_cselect_b32 s25, 0, 1"); a.e("s_lshl_b32 s25, s24, s25"); a.e("s_add_u32 s31, s31, s25")
        a.e("s_bfe_u32 s25, s46, 0x10003"); a.e("s_lshl_b32 s25, s25, 2"); a.e("s_add_u32 s31, s31, s25")
        a.e("s_lshl_b32 s31, s31, 5"); a.e("s_add_u32 s31, s31, s45")
        a.e("s_cmp_eq_u32 s47, 3"); a.e("s_cbranch_scc1 W_ao_v" + str(a.uid))
        a.e("s_mul_i32 s31, s31, 12288"); a.e("s_mov_b32 s35, 393216")
        a.e("s_cmp_eq_u32 s47, 1"); a.e(f"s_cselect_b32 s25, 0, {WS_Q-WS_K}"); a.e("s_add_u32 s31, s31, s25"); a.e(f"s_add_u32 s31, s31, {WS_K}")
        a.e("s_cmp_eq_u32 s47, 1"); a.e(f"s_cselect_b32 s25, 0, {F_Q-F_K}"); a.e("s_add_u32 s36, s36, s25"); a.e(f"s_add_u32 s36, s36, {WS_FLAGS+F_K}")
        a.e("s_bfe_u32 s25, s46, 0x10003"); a.e("s_lshl_b32 s39, 1, s25"); a.e("s_bitcmp1_b32 s46, 2"); a.e("s_cselect_b32 s39, s39, 3")
        a.e("s_branch W_ao_d" + str(a.uid))
        a.label("W_ao_v" + str(a.uid))
        a.e("s_mul_i32 s31, s31, 40960"); a.e(f"s_add_u32 s31, s31, {WS_U}"); a.e(f"s_add_u32 s36, s36, {WS_FLAGS+F_U}")
        a.e("s_mul_i32 s37, s45, 245760")
        a.e("s_and_b32 s25, s46, 3"); a.e("s_cmp_eq_u32 s25, 0"); a.e("s_cselect_b32 s38, 4, 2"); a.e("s_cselect_b32 s39, 3, s25")
        a.e("s_cmp_eq_u32 s25, 2"); a.e("s_cselect_b32 s25, 640, 0"); a.e("s_add_u32 s37, s37, s25"); a.e("s_lshl_b32 s25, s25, 5"); a.e("s_add_u32 s31, s31, s25")
        a.e("s_bfe_u32 s25, s46, 0x10003"); a.e("s_lshl_b32 s25, s25, 1"); a.e("s_lshl_b32 s25, s39, s25"); a.e("s_mul_i32 s39, s39, 5")
        a.e("s_bitcmp1_b32 s46, 2"); a.e("s_cselect_b32 s39, s25, s39")
        a.label("W_ao_d" + str(a.uid)); a.uid += 1
    a.e("s_branch W_next")
    a.label("W_abort")
    a.e("s_endpgm")
    a.label("W_warm")
    fetch(True)
    a.e("s_mov_b32 s12, s56"); a.e("s_mov_b32 s13, s57"); a.e("s_mov_b32 s26, s60"); a.e("s_mov_b32 s27, s61")
    nextparams(); aout()
    wts(a, 1)
    a.e("s_cmp_eq_u32 s47, 3"); a.e("s_cbranch_scc1 W_vu_warm"); a.e("s_branch W_kq_warm")
    a.label("W_next")
    fetch()
    for t, l in ((T_P, "W_tp"), (T_PZ, "W_pz"), (T_BA, "W_ba"), (T_BQ, "W_bq"), (T_BO, "W_bo"), (T_END, "W_done")):
        a.e(f"s_cmp_eq_u32 s47, {t}"); a.e(f"s_cbranch_scc1 {l}")
    a.e("s_cmp_eq_u32 s47, 1"); a.e("s_cselect_b32 s12, s66, s64"); a.e("s_cselect_b32 s13, s67, s65")
    a.e("s_cmp_eq_u32 s47, 3"); a.e("s_cselect_b32 s12, s68, s12"); a.e("s_cselect_b32 s13, s69, s13"); a.e("s_mov_b32 s14, 7864320")
    a.e("s_mul_i32 s26, s44, 327680"); a.e("s_bfe_u32 s25, s46, 0x10003"); a.e("s_mul_i32 s25, s25, 163840"); a.e("s_add_u32 s26, s26, s25")
    a.e("s_mov_b32 s48, s84"); a.e("s_mov_b32 s49, s85"); a.e("s_mov_b32 s50, 2621440"); a.e("s_mov_b32 s51, 0x20000")
    a.e("s_mul_i32 s27, s45, 384"); a.e("s_mov_b32 s33, 12288")
    nextparams(); aout()
    a.e("s_bitcmp1_b32 s46, 2"); a.e("s_cbranch_scc1 W_mb1")
    a.e("s_cmp_eq_u32 s47, 3"); a.e("s_cbranch_scc1 W_vu"); a.e("s_branch W_kq")
    a.label("W_mb1"); a.e("s_mov_b32 s62, 0")
    a.e("s_cmp_eq_u32 s47, 3"); a.e("s_cbranch_scc1 W_vu1")
    task_kq(a, 1)
    a.label("W_vu1"); task_vu(a, 1)
    a.label("W_bq")
    a.e("s_mov_b32 s12, s72"); a.e("s_mov_b32 s13, s73"); a.e("s_mov_b32 s14, 2457600")
    a.e("s_mul_i32 s26, s44, 327680"); a.e("s_mov_b32 s48, s86"); a.e("s_mov_b32 s49, s87"); a.e("s_mov_b32 s50, 2621440"); a.e("s_mov_b32 s51, 0x20000")
    a.e("s_mul_i32 s27, s45, 384"); a.e("s_mov_b32 s33, 3840")
    a.e("s_lshl_b32 s36, s44, 4"); a.e("s_add_u32 s36, s36, s45"); a.e("s_lshl_b32 s36, s36, 2"); a.e(f"s_add_u32 s36, s36, {WS_FLAGS+F_BQ}")
    a.e("s_lshl_b32 s31, s44, 3"); a.e("s_lshl_b32 s25, s24, 1"); a.e("s_add_u32 s31, s31, s25"); a.e("s_mul_i32 s31, s31, 10"); a.e("s_add_u32 s31, s31, s45")
    a.e("s_mul_i32 s31, s31, 12288"); a.e(f"s_add_u32 s31, s31, {WS_BQKV}"); a.e("s_mov_b32 s35, 122880")
    a.e("s_mov_b32 s39, 1"); a.e("s_mov_b32 s62, 0")
    a.e("s_mov_b32 s56, s64"); a.e("s_mov_b32 s57, s65"); a.e("s_mov_b32 s58, 7864320"); a.e("s_mov_b32 s59, 0x20000")
    a.label("W_kq"); task_kq(a, 2)
    a.label("W_vu"); task_vu(a, 2)
    a.label("W_bo")
    a.e("s_lshl_b32 s26, s44, 7"); a.e(f"s_add_u32 s26, s26, {WS_FLAGS+F_BA}")
    wait_flags(a, "W_bow", "s26", 1, 2, 64)
    a.e("s_mov_b32 s12, s74"); a.e("s_mov_b32 s13, s75"); a.e("s_mov_b32 s14, 819200")
    a.e("s_mul_i32 s26, s44, 327680"); a.e(f"s_add_u32 s26, s26, {WS_BO}")
    a.e("s_mul_i32 s27, s45, 320"); a.e("s_mov_b32 s33, 1280")
    a.e(f"s_mul_i32 s31, s44, {256*2560}"); a.e("s_add_u32 s31, s31, s27"); a.e("s_add_u32 s31, s31, 1280")
    task_bout(a); a.e("s_branch W_next")
    a.label("W_tp"); task_tp(a); a.e("s_branch W_next")
    a.label("W_pz"); task_pz(a); a.e("s_branch W_next")
    a.label("W_ba"); task_batt(a); a.e("s_branch W_next")
    a.label("W_done")
```

```python
import sys
sys.path.insert(0, "work")
from asmlib import *
from layout import *
import chain
from worker import *

NAME = "concat_heads__memory_aug_recurrent_mem_tr__sliding_block__prompt_kernel"

SP = dict(fast=(1,), split=(), t0=19.0, dt=2.1, t0F=24.0, dtF=2.7, slack=3.0, lead=20.0, K=12.5, VU=25.0, VU2=23.0, VU1=15.0, K1=10.5, BQ=16.0, BA=5.8, BO=15.0, P=3.5, PZ=5.0, cold=1.4, groups=((2,3),(4,5),(6,7)), qlag=5.0, bstart=0.0)
def schedule(**kw):
    import heapq
    S = dict(SP); S.update(kw)
    heads3 = [list(range(0,6)), list(range(6,12)), list(range(12,17)), list(range(17,22)), list(range(22,27)), list(range(27,32))]
    headsq = [list(range(0,4)), list(range(4,8)), list(range(8,14)), list(range(14,20)), list(range(20,26)), list(range(26,32))]
    t0, dt = S['t0'], S['dt']
    AQ = []
    for x in range(6):
        H = heads3[x]; q = []
        r0 = []
        for h in range(32):
            r0 += [(-3, enc(T_VU, 0, h, 4 + 8*hm + z), S['VU1'], ('U', 0)) for hm in (0, 1) for z in (1, 2)]
            r0 += [(-2, enc(T_K, 0, h, 4 + 8*hm), S['K1'], ('K', 0)) for hm in (0, 1)]
        q += r0[32*x:32*x+32]
        for bi, m in enumerate(S['fast']):
            r1 = []
            for h in range(32):
                r1 += [(-1 + 0.1*bi, enc(T_VU, m, h, 4 + 8*hm + z), S['VU1'], ('U', m)) for hm in (0, 1) for z in (1, 2)] + [(-1 + 0.1*bi + 0.05, enc(T_K, m, h), S['K'], ('K', m))]
            q += r1[(160*x)//6:(160*(x+1))//6]
        for bi, m in enumerate(S['split']):
            r1 = []
            for h in range(32):
                r1 += [(-0.5 + 0.1*bi, enc(T_VU, m, h, z), S['VU2'], ('U', m)) for z in (1, 2)] + [(-0.5 + 0.1*bi + 0.05, enc(T_K, m, h), S['K'], ('K', m))]
            q += r1[16*x:16*x+16]
        for g in S['groups']:
            dl = t0 + 8*g[0]*dt - S['lead']
            q += [(dl - S['VU'], enc(T_VU, m, h), S['VU'], ('U', m)) for h in H for m in g]
            q += [(dl - S['K'], enc(T_K, m, h), S['K'], ('K', m)) for h in H for m in g]
        for g in [(0, 1), (2, 3), (4, 5), (6, 7)]:
            dl = t0 + (8*g[0] + 2)*dt + S['qlag'] - (S['lead'] if g[0] == 6 else 0)
            q += [(dl - S['K'], enc(T_Q, m, h), S['K'], ('Q', m)) for h in headsq[x] for m in g]
        q.sort(key=lambda e: e[0])
        AQ.append(q)
    done = {}
    remain = {}
    for q in AQ:
        for e in q: remain[e[3]] = remain.get(e[3], 0) + 1
    BQs = [(enc(T_BQ, m, n), ('BQ', m)) for m in range(8) for n in range(10)]
    BAs = [(enc(T_BA, b, h), ('BA', b >> 1)) for b in range(16) for h in range(32)]
    BOs = [(enc(T_BO, m, n), ('BO', m)) for m in range(8) for n in range(4)]
    for w, k in BQs + BAs: remain[k] = remain.get(k, 0) + 1
    Fs = []
    for s in range(64):
        Fs += [(enc(T_P, s, hg), ('P', s)) for hg in range(8)] + [(enc(T_PZ, s, cg), ('PZ', s)) for cg in range(10)]
        remain[('P', s)] = 8
    fin = {}
    def ready(keys):
        t = 0
        for k in keys:
            if remain.get(k, 0) > 0: return None
            t = max(t, fin.get(k, 0))
        return t
    def chain_t(s): return S['t0F'] + S['dtF']*(s + 1.6)
    lists = [[] for _ in range(192)]
    last = [0]*192
    heap = [(1.5, i) for i in range(192)]
    heapq.heapify(heap)
    end = 0
    while heap:
        t, i = heapq.heappop(heap)
        x = i >> 5
        pick = None
        def fready():
            w, k = Fs[0]; s = k[1]
            r = ready([('K', s >> 3), ('Q', s >> 3)]) if k[0] == 'P' else ready([('U', s >> 3), ('P', s)])
            if r is None: return None
            return max(r + S['slack'], chain_t(s) + (0 if k[0] == 'P' else dt))
        def take_a():
            e = AQ[x].pop(0); d = e[2] + (0 if (last[i] in (1, 2, 3) and not (lists[i][-1] >> 26) & 1) else S['cold'])
            return e[1], e[3], t + d
        def take_b():
            if BOs:
                r = ready([('BA', BOs[0][1][1])])
                if r is not None and r + S['slack'] <= t: w, k = BOs.pop(0); return w, k, t + S['BO']
            if BAs:
                m = BAs[0][1][1]; r = ready([('BQ', m), ('BQ', max(m-1, 0))])
                if r is not None and r + S['slack'] <= t: w, k = BAs.pop(0); return w, k, t + S['BA']
            if BQs and t >= S['bstart']: w, k = BQs.pop(0); return w, k, t + S['BQ']
            return None
        if AQ[x] and AQ[x][0][0] <= t: pick = take_a()
        if not pick and Fs:
            r = fready()
            if r is not None and r <= t:
                w, k = Fs.pop(0); pick = (w, k, max(t + S[k[0]], r + (1.0 if k[0] == 'P' else 1.8)))
        if not pick: pick = take_b()
        if not pick and AQ[x]: pick = take_a()
        if not pick and not any(AQ) and not BQs:
            cand = []
            if BAs:
                m = BAs[0][1][1]; r = ready([('BQ', m), ('BQ', max(m-1, 0))]); cand.append((r, 'BA'))
            elif BOs:
                r = ready([('BA', BOs[0][1][1])]); cand.append((r, 'BO'))
            if Fs:
                r = fready()
                if r is not None: cand.append((r, 'F'))
            if cand:
                r, c = min(cand)
                if c == 'F': w, k = Fs.pop(0); pick = (w, k, max(t + S[k[0]], r + (1.0 if k[0] == 'P' else 1.8)))
                elif c == 'BA': w, k = BAs.pop(0); pick = (w, k, max(t, r) + S['BA'])
                else: w, k = BOs.pop(0); pick = (w, k, max(t, r) + S['BO'])
        if not pick:
            if any(AQ) or BQs or BAs or BOs or Fs: heapq.heappush(heap, (t + 0.5, i))
            continue
        w, k, tf = pick
        lists[i].append(w); last[i] = w & 255
        remain[k] = remain.get(k, 1) - 1; fin[k] = max(fin.get(k, 0), tf); end = max(end, tf)
        heapq.heappush(heap, (tf, i))
    return lists, fin

def init_work(a):
    a.e("v_and_b32 v1, 63, v0"); a.e("v_lshlrev_b32 v4, 4, v1")
    for q in range(4): a.e(f"v_mov_b32 v{28+q}, -1"); a.e(f"v_mov_b32 v{32+q}, 0")
    a.e("s_lshr_b32 s28, s2, 2"); a.e("s_lshl_b32 s29, s28, 16");
    a.e("s_and_b32 s28, s2, 3"); a.e("s_lshl_b32 s28, s28, 14"); a.e("s_add_u32 s29, s29, s28"); a.e("s_lshl_b32 s28, s24, 12"); a.e("s_add_u32 s29, s29, s28")
    for i in range(4): a.e(f"buffer_store_dwordx4 v[28:31], v4, s[8:11], s29 offen offset:{1024*i} sc1")
    a.e("s_cmp_eq_u32 s24, 3"); a.e("s_cbranch_scc1 I_w3")
    a.e("s_mul_i32 s28, s2, 3"); a.e("s_add_u32 s28, s28, s24"); a.e("s_cmp_ge_u32 s28, 384"); a.e("s_cselect_b32 s29, 384, 0"); a.e(f"s_cselect_b32 s30, {LOC_STRIDE}, 0"); a.e(f"s_add_u32 s30, s30, {WS_LOC}")
    a.e("s_sub_u32 s28, s28, s29"); a.e("s_lshl_b32 s29, s28, 10"); a.e("s_add_u32 s29, s29, s30"); a.e("s_lshr_b32 s28, s28, 3"); a.e("s_cmp_eq_u32 s28, 2"); a.e("s_cbranch_scc1 I_z")
    a.e("buffer_store_dwordx4 v[28:31], v4, s[8:11], s29 offen sc1"); a.e("s_branch I_d")
    a.label("I_w3")
    a.e("s_cmp_ge_u32 s2, 128"); a.e("s_cbranch_scc1 I_d")
    a.e("s_lshl_b32 s29, s2, 10"); a.e(f"s_add_u32 s29, s29, {WS_FLAGS}")
    a.label("I_z")
    a.e("buffer_store_dwordx4 v[32:35], v4, s[8:11], s29 offen sc1")
    a.label("I_d")

def census_wait(a, lab):
    a.e("v_mbcnt_lo_u32_b32 v3, -1, 0"); a.e("v_and_b32 v3, 15, v3"); a.e("v_min_u32 v3, 8, v3")
    a.e("v_and_b32 v4, 1, v3"); a.e("v_lshlrev_b32 v3, 2, v3"); a.e("v_lshl_add_u32 v3, v4, 7, v3")
    a.label(lab)
    a.e("buffer_load_dword v2, v3, s[4:7], 0 offen sc1")
    guard(a)
    a.e("s_waitcnt vmcnt(0)")
    for i in range(9): a.e(f"v_readlane_b32 s{84+i}, v2, {i}")
    a.e("s_cmp_eq_u32 s92, 256"); a.e(f"s_cbranch_scc1 {lab}_ok"); a.e("s_sleep 8"); a.e(f"s_branch {lab}")
    a.label(f"{lab}_ok")

def arrive(a, lab):
    a.e("s_cmp_lg_u32 s24, 1"); a.e(f"s_cbranch_scc1 {lab}")
    a.e("v_mov_b32 v5, 1"); a.e("s_mov_b64 exec, 1")
    a.e("buffer_atomic_add v5, off, s[4:7], 0 offset:32 sc1"); a.e("s_mov_b64 exec, -1")
    a.label(lab)

def atomic_rank(a, lab, voff_expr, dst):
    a.e("s_cmp_lg_u32 s24, 0"); a.e(f"s_cbranch_scc1 {lab}")
    a.e("v_mov_b32 v3, 1"); a.e("v_mov_b32 v4, s25"); a.e("s_mov_b64 exec, 1")
    a.e("buffer_atomic_add v3, v4, s[4:7], 0 offen sc0 sc1")
    a.e("s_waitcnt vmcnt(0)")
    a.e("v_mov_b32 v4, 0"); a.e("ds_write_b32 v4, v3"); a.e("s_waitcnt lgkmcnt(0)"); a.e("s_mov_b64 exec, -1")
    a.label(lab)
    a.e("s_waitcnt vmcnt(0)")
    a.e("s_barrier")
    a.e("v_mov_b32 v4, 0"); a.e("ds_read_b32 v8, v4")
    a.e("s_cmp_lg_u32 s24, 1"); a.e(f"s_cbranch_scc1 {lab}b")
    a.e("v_mov_b32 v5, 1"); a.e("v_mov_b32 v6, 32"); a.e("s_mov_b64 exec, 1")
    a.e("buffer_atomic_add v5, v6, s[4:7], 0 offen sc1"); a.e("s_mov_b64 exec, -1")
    a.label(f"{lab}b")
    a.e("s_waitcnt lgkmcnt(0)")
    a.e(f"v_readfirstlane_b32 {dst}, v8")
    a.e("s_barrier")

def build(diag=False, mkpv=0, mkpq=0, h2rd=0, ctlb=0, mkg=0, qarch=1, rperm=0, tlbw=1, wpf=0, cpf=1, wdelay=0, wsb=0, mke=0, mkpost=0, mkgap=24, mks=128, ctime=False, wpol='', wmax=24, hint=0, sp={}, gp={}, steplog=0, psel=0, profstart=False, prof=0, only=None, lists=None, nochain=False, budget=1 << 22, force_slow=False, qk={}, vo={}, proftask=False, flip=None):
    chain.MKPV[0] = mkpv; chain.MKPQ[0] = mkpq; chain.H2RD[0] = h2rd; chain.TLBW[0] = ctlb; chain.MKG[0] = mkg; chain.QARCH[0] = qarch; chain.MKE[0] = mke; chain.MKPOST[0] = mkpost; chain.MKGAP[0] = mkgap; chain.MKS[0] = mks; chain.WPOL[0] = wpol; chain.WMAX[0] = wmax; chain.HINT[0] = hint; chain.PSEL[0] = psel; chain.CAL[0] = flip is None
    chain.STEPLOG[0] = (WS_PROF + 524288) if steplog else 0
    import worker as WK
    WK.WPROF[0] = proftask == 2
    WK.GP.update(gp)
    a = Asm()
    if lists is None: lists, _ = schedule(**sp)
    if only is not None: lists = [[w for w in l if (w & 255) in only] for l in lists]
    maxlen = max(len(l) for l in lists) + 3
    a.e("s_cmp_ge_u32 s2, 256"); a.e("s_cbranch_scc1 W_abort")
    a.e("""
s_load_dwordx2 s[8:9], s[0:1], 96
s_load_dwordx2 s[4:5], s[0:1], 88
s_getreg_b32 s3, hwreg(HW_REG_XCC_ID)
s_and_b32 s3, s3, 7
v_lshrrev_b32 v1, 6, v0
s_nop 0
v_readfirstlane_b32 s24, v1
s_waitcnt lgkmcnt(0)
WSBASE
s_mov_b32 s11, 0x20000
s_mov_b32 s6, 256
s_mov_b32 s7, 0x20000
""")
    a.e(f"s_mov_b32 s82, {budget}")
    if prof or proftask or ctime:
        a.e("s_mov_b32 s56, s8"); a.e("s_mov_b32 s57, s9"); a.e("s_mov_b32 s58, s10"); a.e("s_mov_b32 s59, 0x20000"); a.e("s_mov_b32 s83, 0")
        a.e("s_memrealtime s[96:97]")
    if diag: a.e("s_memrealtime s[100:101]\n s_waitcnt lgkmcnt(0)\n s_not_b32 s100, s100\n v_mov_b32 v2, s100\n s_mov_b64 exec, 1\n buffer_atomic_umax v2, off, s[4:7], 0 offset:40 sc1\n s_mov_b64 exec, -1")
    if profstart: a.e("s_memrealtime s[60:61]")
    if profstart: a.e("s_memrealtime s[62:63]")
    if profstart: a.e("s_memrealtime s[64:65]")
    if force_slow: a.e("s_lshr_b32 s3, s2, 5"); a.e("s_mul_i32 s3, s3, 3"); a.e("s_and_b32 s3, s3, 7"); a.e("s_max_u32 s3, s3, 1")
    a.e("s_and_b32 s25, s3, 1"); a.e("s_lshl_b32 s25, s25, 7"); a.e("s_lshl_b32 s26, s3, 2"); a.e("s_add_u32 s95, s25, s26")
    def code_pf(ranges, lab):
        a.e("s_getpc_b64 s[26:27]"); a.label(lab)
        a.e("v_and_b32 v1, 63, v0"); a.e("v_lshlrev_b32 v10, 7, v1"); a.e("s_sub_u32 s25, s24, 1"); a.e("s_lshl_b32 s25, s25, 13"); a.e("v_add_u32 v10, s25, v10")
        for (st, n) in ranges:
            a.e(f"s_add_u32 s28, s26, {st}-{lab}"); a.e("s_addc_u32 s29, s27, 0")
            for i in range(n):
                a.e(f"global_load_dword v11, v10, s[28:29]")
                if i < n-1: a.e("s_add_u32 s28, s28, 24576"); a.e("s_addc_u32 s29, s29, 0")
    def tlb_warm():
        a.e("s_load_dwordx8 s[64:71], s[0:1], 16")
        a.e("v_and_b32 v12, 7, v0"); a.e("v_lshlrev_b32 v12, 20, v12")
        a.e("s_mov_b32 s14, 7864320"); a.e("s_mov_b32 s15, 0x20000")
        a.e("s_waitcnt lgkmcnt(0)")
        for m in range(4):
            a.e(f"s_mov_b32 s12, s{64+2*m}"); a.e(f"s_mov_b32 s13, s{65+2*m}")
            a.e("buffer_load_dword v13, v12, s[12:15], 0 offen")
    if tlbw:
        a.e("s_cmp_lg_u32 s24, 1"); a.e("s_cbranch_scc1 M_tw")
        tlb_warm()
        a.label("M_tw")
    a.e("s_cmp_ge_u32 s3, 2"); a.e("s_cbranch_scc1 M_late")
    a.e("s_cmp_lg_u32 s24, 0"); a.e("s_cbranch_scc1 M_e1")
    a.e("v_mov_b32 v3, 1"); a.e("v_mov_b32 v8, s95"); a.e("s_mov_b64 exec, 1")
    a.e("buffer_atomic_add v3, v8, s[4:7], 0 offen sc0 sc1")
    a.e("s_mov_b64 exec, -1")
    a.e("s_waitcnt vmcnt(0)")
    a.e("v_mov_b32 v4, 0"); a.e("s_mov_b64 exec, 1"); a.e("ds_write_b32 v4, v3"); a.e("s_mov_b64 exec, -1"); a.e("s_waitcnt lgkmcnt(0)")
    a.e("s_branch M_e2")
    a.label("M_e1")
    if cpf & 8: code_pf([("M_chain", 1), ("M_vo-8192", 1)], "M_pf1")
    a.label("M_e2")
    a.e("s_barrier")
    a.e("v_mov_b32 v4, 0"); a.e("ds_read_b32 v8, v4"); a.e("s_waitcnt lgkmcnt(0)")
    a.e("v_readfirstlane_b32 s80, v8")
    a.e("s_barrier")
    a.e("s_cmp_lt_u32 s80, 32"); a.e("s_cbranch_scc0 M_e3")
    a.e("s_mov_b32 s25, s3"); a.e("s_mov_b32 s26, s80"); a.e("s_mov_b32 s81, 1"); a.e("s_branch M_chain")
    a.label("M_e3")
    a.L += [l.replace("I_", "J_") for l in _sub(init_work)]
    a.e("s_waitcnt vmcnt(0)"); a.e("s_barrier")
    arrive(a, "M_e4")
    a.e("s_branch M_worker")
    a.label("M_late")
    if cpf & 7:
        a.e("s_cmp_eq_u32 s24, 0"); a.e("s_cbranch_scc1 M_pf2x")
        code_pf([("W_warm", cpf & 7)], "M_pf2")
        a.label("M_pf2x")
    init_work(a)
    a.e("s_mov_b32 s25, s95")
    atomic_rank(a, "M_a1", None, "s80")
    if profstart: a.e("s_memrealtime s[62:63]")
    if profstart:
        a.e("s_memrealtime s[66:67]"); a.e("s_waitcnt lgkmcnt(0)"); a.e("s_lshl_b32 s25, s2, 5"); a.e(f"s_add_u32 s25, s25, {WS_PROF+262144}")
        a.e("v_mov_b32 v4, s60"); a.e("v_mov_b32 v5, s62"); a.e("v_mov_b32 v6, s64"); a.e("v_mov_b32 v7, s66"); a.e("v_mov_b32 v2, 0"); a.e("v_mov_b32 v8, s3")
        a.e("s_mov_b64 exec, 1"); a.e("buffer_store_dwordx4 v[4:7], v2, s[8:11], s25 offen"); a.e("buffer_store_dword v8, v2, s[8:11], s25 offen offset:16"); a.e("s_mov_b64 exec, -1")
    a.e("s_cmp_ge_u32 s80, 32"); a.e("s_cbranch_scc1 M_worker")
    a.e("s_sub_u32 s79, s3, 2"); a.e("s_lshl_b32 s79, s79, 5"); a.e("s_add_u32 s79, s79, s80")
    a.e("s_mov_b32 s81, 1")
    if flip is None:
        a.e("s_cmp_lg_u32 s79, 31"); a.e("s_cbranch_scc1 C_skip"); a.e("s_cmp_lg_u32 s24, 0"); a.e("s_cbranch_scc1 C_skip")
        a.e(f"s_mov_b32 s25, {WS_CAL}")
        a.e("s_load_dword s27, s[8:9], s25 glc"); a.e("s_waitcnt lgkmcnt(0)")
        a.e("s_mov_b32 s32, -1"); a.e("s_mov_b32 s33, -1")
        for i in range(1, 9):
            a.e(f"s_add_u32 s25, s25, 8192")
            a.e("s_memtime s[28:29]"); a.e("s_waitcnt lgkmcnt(0)")
            a.e("s_load_dword s27, s[8:9], s25 glc"); a.e("s_waitcnt lgkmcnt(0)")
            a.e("s_memtime s[30:31]"); a.e("s_waitcnt lgkmcnt(0)")
            a.e("s_sub_u32 s30, s30, s28"); a.e(f"s_min_u32 s{32 + (i & 1)}, s{32 + (i & 1)}, s30")
        a.e("s_cmp_le_u32 s33, s32"); a.e("s_cselect_b32 s27, 1, 0x2001")
        a.e("v_mov_b32 v2, s27"); a.e("buffer_store_dword v2, off, s[4:7], 0 offset:64 sc1")
        a.label("C_skip")
    if wpf:
        a.e("s_load_dwordx8 s[64:71], s[0:1], 16")
        a.e("s_mul_i32 s25, s79, 1366"); a.e("s_lshr_b32 s25, s25, 16"); a.e("s_mul_i32 s26, s25, 48"); a.e("s_sub_u32 s26, s79, s26")
        a.e("s_mul_i32 s26, s26, 163840"); a.e("s_mul_i32 s27, s24, 40960"); a.e("s_add_u32 s26, s26, s27")
        a.e("v_and_b32 v10, 63, v0"); a.e("v_lshlrev_b32 v10, 7, v10")
        a.e("s_waitcnt lgkmcnt(0)")
        a.e("s_mov_b32 s12, s64"); a.e("s_mov_b32 s13, s65")
        for m in (1, 2, 3):
            a.e(f"s_cmp_eq_u32 s25, {m}"); a.e(f"s_cselect_b32 s12, s{64+2*m}, s12"); a.e(f"s_cselect_b32 s13, s{65+2*m}, s13")
        a.e("s_mov_b32 s14, 7864320"); a.e("s_mov_b32 s15, 0x20000")
        for i in range(5):
            a.e(f"buffer_load_dword v63, v10, s[12:15], s26 offen {wpf if wpf != 1 else ''}"); a.e("s_add_u32 s26, s26, 8192")
    for i in range(wdelay): a.e("s_sleep 37")
    a.e("s_branch M_go")
    a.label("M_worker")
    census_wait(a, "M_cw")
    a.e("s_mov_b32 s79, s80")
    a.e("s_cmp_lt_u32 s3, 2"); a.e("s_cselect_b32 s25, 32, 0"); a.e("s_sub_u32 s79, s79, s25")
    for x in range(7):
        if x < 2: a.e(f"s_max_u32 s25, s{84+x}, 32"); a.e("s_sub_u32 s25, s25, 32")
        else: a.e(f"s_mov_b32 s25, s{84+x}")
        a.e(f"s_cmp_gt_u32 s3, {x}"); a.e("s_cselect_b32 s25, s25, 0"); a.e("s_add_u32 s79, s79, s25")
    a.e("s_min_u32 s25, s84, 32"); a.e("s_sub_u32 s27, 32, s25"); a.e("s_min_u32 s26, s85, 32"); a.e("s_sub_u32 s28, 32, s26")
    a.e("s_cmp_lt_u32 s79, s27"); a.e("s_cbranch_scc0 M_n0")
    a.e("s_add_u32 s26, s25, s79"); a.e("s_mov_b32 s25, 0"); a.e("s_mov_b32 s81, 0"); a.e("s_branch M_chain")
    a.label("M_n0"); a.e("s_sub_u32 s79, s79, s27")
    a.e("s_cmp_lt_u32 s79, s28"); a.e("s_cbranch_scc0 M_n1")
    a.e("s_add_u32 s26, s26, s79"); a.e("s_mov_b32 s25, 1"); a.e("s_mov_b32 s81, 0"); a.e("s_branch M_chain")
    a.label("M_n1"); a.e("s_sub_u32 s79, s79, s28")
    a.e("s_mov_b32 s81, 0")
    a.label("M_go")
    if proftask: a.e(f"s_lshl_b32 s98, s79, {9 if proftask != 2 else 10}"); a.e(f"s_add_u32 s98, s98, {WS_PROF+65536}")
    worker(a, "W_table", maxlen, census_wait)
    if diag: a.e("s_memrealtime s[100:101]\n s_waitcnt lgkmcnt(0)\n s_nop 0\n v_mov_b32 v2, s100\n s_mov_b64 exec, 1\n buffer_atomic_umax v2, off, s[4:7], 0 offset:52 sc1\n s_mov_b64 exec, -1")
    a.e("s_branch L_fin")
    a.label("M_chain")
    if rperm: a.e("s_and_b32 s27, s26, 1"); a.e("s_lshl_b32 s27, s27, 4"); a.e("s_lshr_b32 s26, s26, 1"); a.e("s_add_u32 s26, s26, s27")
    a.e(f"s_mov_b32 s47, {(flip or 0)*8192}")
    if prof or proftask or ctime:
        a.e("s_mov_b32 s56, s8"); a.e("s_mov_b32 s57, s9"); a.e("s_mov_b32 s58, s10"); a.e("s_mov_b32 s59, 0x20000")
    if nochain: a.e("s_branch L_fin")
    if prof or proftask or ctime:
        a.e("s_lshl_b32 s39, s25, 5"); a.e("s_add_u32 s39, s39, s26"); a.e("s_lshl_b32 s39, s39, 2"); a.e("s_add_u32 s39, s39, s24"); a.e("s_lshl_b32 s39, s39, 6"); a.e(f"s_add_u32 s39, s39, {WS_PROF}")
    a.e("s_cmp_ge_u32 s26, 16"); a.e("s_cbranch_scc1 M_vo")
    a.e("s_lshl_b32 s27, s25, 4"); a.e("s_add_u32 s27, s27, s26")
    chain.ARRIVE[0] = arrive
    def init2(a, lab):
        L = _sub(init_work)
        import re
        for l in L:
            l = l.replace("I_", lab + "_")
            l = re.sub(r"\bs28\b", "s60", l); l = re.sub(r"\bs29\b", "s61", l); l = re.sub(r"\bs30\b", "s62", l)
            l = re.sub(r"\bv4\b", "v60", l)
            for q in range(8): l = re.sub(rf"\bv{28+q}\b", f"v{62+q}", l)
            l = l.replace("v[28:31]", "v[62:65]").replace("v[32:35]", "v[66:69]")
            a.L.append(l)
    chain.INIT[0] = init2
    chain.qk_role(a, prof=prof, cw=census_wait, **qk)
    a.e("s_branch L_cfin")
    a.label("M_vo")
    a.e("s_sub_u32 s26, s26, 16"); a.e("s_lshl_b32 s27, s25, 4"); a.e("s_add_u32 s27, s27, s26")
    chain.vo_role(a, prof=prof, cw=census_wait, **vo)
    a.label("L_cfin")
    if diag: a.e("s_memrealtime s[100:101]\n s_waitcnt lgkmcnt(0)\n s_nop 0\n v_mov_b32 v2, s100\n s_mov_b64 exec, 1\n buffer_atomic_umax v2, off, s[4:7], 0 offset:48 sc1\n s_mov_b64 exec, -1")
    if prof or proftask or ctime:
        a.e("""
s_memrealtime s[80:81]
s_memtime s[78:79]
s_waitcnt lgkmcnt(0)
s_sub_u32 s78, s78, s76
v_mov_b32 v8, s78
v_mov_b32 v9, s39
buffer_store_dword v8, v9, s[56:59], 0 offen offset:60
s_mov_b64 exec, 1
v_mov_b32 v2, s39
v_mov_b32 v4, s96
v_mov_b32 v5, s98
v_mov_b32 v6, s80
v_mov_b32 v7, s83
buffer_store_dwordx4 v[4:7], v2, s[56:59], 0 offen offset:32
s_waitcnt vmcnt(0)
""")
    a.label("L_abort")
    a.label("L_fin")
    a.label("L_end")
    a.e("s_endpgm")
    a.e(".p2align 2")
    a.label("W_table")
    for l in lists:
        a.e(".long " + ",".join(str(w) for w in l + [0]*(maxlen-len(l))))
    txt = a.text()
    if proftask == 2:
        pt = "s_memtime s[100:101]\n  s_waitcnt lgkmcnt(0)\n  v_mov_b32 v2, s78\n  v_mov_b32 v3, s100\n  v_mov_b32 v4, s90\n v_mov_b32 v5, s92\n v_mov_b32 v6, s94\n v_mov_b32 v7, s96\n v_mov_b32 v8, s98\n  s_mov_b64 exec, 1\n  buffer_store_dwordx4 v[2:5], v8, s[8:11], 0 offen\n buffer_store_dwordx2 v[6:7], v8, s[8:11], 0 offen offset:16\n  s_mov_b64 exec, -1\n  s_add_u32 s98, s98, 32"
        txt = txt.replace("PROFTASK", pt)
    pt = "s_memrealtime s[100:101]\n  s_waitcnt lgkmcnt(0)\n  v_mov_b32 v2, s78\n  v_mov_b32 v3, s100\n  v_mov_b32 v4, s98\n  s_mov_b64 exec, 1\n  buffer_store_dwordx2 v[2:3], v4, s[8:11], 0 offen\n  s_mov_b64 exec, -1\n  s_add_u32 s98, s98, 8" if proftask else "s_nop 0"
    txt = txt.replace("PROFTASK", pt)
    if diag: txt = txt.replace("LOOPSTART", "s_memrealtime s[100:101]\n s_waitcnt lgkmcnt(0)\n s_nop 0\n v_mov_b32 v2, s100\n s_mov_b64 exec, 1\n buffer_atomic_umax v2, off, s[4:7], 0 offset:44 sc1\n s_mov_b64 exec, -1").replace("WLOADED", "s_memrealtime s[100:101]\n s_waitcnt lgkmcnt(0)\n s_nop 0\n v_mov_b32 v2, s100\n s_mov_b64 exec, 1\n buffer_atomic_umax v2, off, s[4:7], 0 offset:56 sc1\n s_mov_b64 exec, -1")
    txt = txt.replace("WSBASE", f"s_add_u32 s8, s8, {wsb*MB}\n  s_addc_u32 s9, s9, 0\n  s_mov_b32 s10, {(256-wsb)*MB}")
    for i in range(3): txt = txt.replace(f"WSTAMP{i}", f"s_memrealtime s[{70+2*i}:{71+2*i}]\n s_waitcnt lgkmcnt(0)\n s_mov_b32 s{93+i}, s{70+2*i}" if (prof or proftask or ctime) else "s_nop 0")
    txt = txt.replace("WLOADED", "s_memrealtime s[100:101]\n  s_waitcnt lgkmcnt(0)\n v_mov_b32 v2, s100\n v_mov_b32 v3, s39\n s_mov_b64 exec, 1\n v_mov_b32 v60, s93\n v_mov_b32 v61, s94\n v_mov_b32 v62, s95\n buffer_store_dword v2, v3, s[56:59], 0 offen offset:48\n buffer_store_dwordx3 v[60:62], v3, s[56:59], 0 offen offset:52\n s_nop 2\n s_mov_b64 exec, -1" if (prof or proftask or ctime) else "s_nop 0")
    txt = txt.replace("LOOPSTART", "s_memrealtime s[98:99]\n s_memtime s[76:77]\n  s_waitcnt lgkmcnt(0)" if (prof or proftask or ctime) else "s_nop 0")
    return txt
WS_PROF = 186*MB
def _sub(f):
    b = Asm(); f(b); return b.L

HEADER = open("concat_heads__memory_aug_recurrent_mem_tr__sliding_block__prompt.s.ref").read().split("; Override")[0] if __name__ == "__main__" else ""
def full(body, name=NAME, header=""):
    return f"""{header}; @launch grid=(256,1,1) block=(256,1,1) lds=163840
.amdgcn_target "amdgcn-amd-amdhsa--gfx950"
.text
.globl {name}
.p2align 8
.type {name},@function
{name}:
{body}
.section .rodata,"a"
.p2align 6
.amdhsa_kernel {name}
  .amdhsa_next_free_vgpr 512
  .amdhsa_next_free_sgpr 102
  .amdhsa_accum_offset 256
  .amdhsa_group_segment_fixed_size 0
  .amdhsa_kernarg_size 104
  .amdhsa_user_sgpr_count 2
  .amdhsa_user_sgpr_kernarg_segment_ptr 1
  .amdhsa_system_sgpr_workgroup_id_x 1
  .amdhsa_float_denorm_mode_32 3
.end_amdhsa_kernel
"""
if __name__ == "__main__":
    kw = eval(sys.argv[2]) if len(sys.argv) > 2 else {}
    txt = full(build(**kw), header=HEADER)
    open(sys.argv[1] if len(sys.argv) > 1 else "concat_heads__memory_aug_recurrent_mem_tr__sliding_block__prompt.s", "w").write(txt)
    print(len(txt))
```

```python
import sys
sys.path.insert(0, "work")
from asmlib import *
from layout import *
import chain
from worker import *

NAME = "concat_heads__memory_aug_recurrent_mem_tr__sliding_block__prompt_kernel"

SP = dict(fast=(1,), split=(), t0=19.0, dt=2.1, t0F=24.0, dtF=2.7, slack=3.0, lead=20.0, K=12.5, VU=25.0, VU2=23.0, VU1=15.0, K1=10.5, BQ=16.0, BA=5.8, BO=15.0, P=3.5, PZ=5.0, cold=1.4, groups=((2,3),(4,5),(6,7)), qlag=5.0, bstart=0.0)
def schedule(**kw):
    import heapq
    S = dict(SP); S.update(kw)
    heads3 = [list(range(0,6)), list(range(6,12)), list(range(12,17)), list(range(17,22)), list(range(22,27)), list(range(27,32))]
    headsq = [list(range(0,4)), list(range(4,8)), list(range(8,14)), list(range(14,20)), list(range(20,26)), list(range(26,32))]
    t0, dt = S['t0'], S['dt']
    AQ = []
    for x in range(6):
        H = heads3[x]; q = []
        r0 = []
        for h in range(32):
            r0 += [(-3, enc(T_VU, 0, h, 4 + 8*hm + z), S['VU1'], ('U', 0)) for hm in (0, 1) for z in (1, 2)]
            r0 += [(-2, enc(T_K, 0, h, 4 + 8*hm), S['K1'], ('K', 0)) for hm in (0, 1)]
        q += r0[32*x:32*x+32]
        for bi, m in enumerate(S['fast']):
            r1 = []
            for h in range(32):
                r1 += [(-1 + 0.1*bi, enc(T_VU, m, h, 4 + 8*hm + z), S['VU1'], ('U', m)) for hm in (0, 1) for z in (1, 2)] + [(-1 + 0.1*bi + 0.05, enc(T_K, m, h), S['K'], ('K', m))]
            q += r1[(160*x)//6:(160*(x+1))//6]
        for bi, m in enumerate(S['split']):
            r1 = []
            for h in range(32):
                r1 += [(-0.5 + 0.1*bi, enc(T_VU, m, h, z), S['VU2'], ('U', m)) for z in (1, 2)] + [(-0.5 + 0.1*bi + 0.05, enc(T_K, m, h), S['K'], ('K', m))]
            q += r1[16*x:16*x+16]
        for g in S['groups']:
            dl = t0 + 8*g[0]*dt - S['lead']
            q += [(dl - S['VU'], enc(T_VU, m, h), S['VU'], ('U', m)) for h in H for m in g]
            q += [(dl - S['K'], enc(T_K, m, h), S['K'], ('K', m)) for h in H for m in g]
        for g in [(0, 1), (2, 3), (4, 5), (6, 7)]:
            dl = t0 + (8*g[0] + 2)*dt + S['qlag'] - (S['lead'] if g[0] == 6 else 0)
            q += [(dl - S['K'], enc(T_Q, m, h), S['K'], ('Q', m)) for h in headsq[x] for m in g]
        q.sort(key=lambda e: e[0])
        AQ.append(q)
    done = {}
    remain = {}
    for q in AQ:
        for e in q: remain[e[3]] = remain.get(e[3], 0) + 1
    BQs = [(enc(T_BQ, m, n), ('BQ', m)) for m in range(8) for n in range(10)]
    BAs = [(enc(T_BA, b, h), ('BA', b >> 1)) for b in range(16) for h in range(32)]
    BOs = [(enc(T_BO, m, n), ('BO', m)) for m in range(8) for n in range(4)]
    for w, k in BQs + BAs: remain[k] = remain.get(k, 0) + 1
    Fs = []
    for s in range(64):
        Fs += [(enc(T_P, s, hg), ('P', s)) for hg in range(8)] + [(enc(T_PZ, s, cg), ('PZ', s)) for cg in range(10)]
        remain[('P', s)] = 8
    fin = {}
    def ready(keys):
        t = 0
        for k in keys:
            if remain.get(k, 0) > 0: return None
            t = max(t, fin.get(k, 0))
        return t
    def chain_t(s): return S['t0F'] + S['dtF']*(s + 1.6)
    lists = [[] for _ in range(192)]
    last = [0]*192
    heap = [(1.5, i) for i in range(192)]
    heapq.heapify(heap)
    end = 0
    while heap:
        t, i = heapq.heappop(heap)
        x = i >> 5
        pick = None
        def fready():
            w, k = Fs[0]; s = k[1]
            r = ready([('K', s >> 3), ('Q', s >> 3)]) if k[0] == 'P' else ready([('U', s >> 3), ('P', s)])
            if r is None: return None
            return max(r + S['slack'], chain_t(s) + (0 if k[0] == 'P' else dt))
        def take_a():
            e = AQ[x].pop(0); d = e[2] + (0 if (last[i] in (1, 2, 3) and not (lists[i][-1] >> 26) & 1) else S['cold'])
            return e[1], e[3], t + d
        def take_b():
            if BOs:
                r = ready([('BA', BOs[0][1][1])])
                if r is not None and r + S['slack'] <= t: w, k = BOs.pop(0); return w, k, t + S['BO']
            if BAs:
                m = BAs[0][1][1]; r = ready([('BQ', m), ('BQ', max(m-1, 0))])
                if r is not None and r + S['slack'] <= t: w, k = BAs.pop(0); return w, k, t + S['BA']
            if BQs and t >= S['bstart']: w, k = BQs.pop(0); return w, k, t + S['BQ']
            return None
        if AQ[x] and AQ[x][0][0] <= t: pick = take_a()
        if not pick and Fs:
            r = fready()
            if r is not None and r <= t:
                w, k = Fs.pop(0); pick = (w, k, max(t + S[k[0]], r + (1.0 if k[0] == 'P' else 1.8)))
        if not pick: pick = take_b()
        if not pick and AQ[x]: pick = take_a()
        if not pick and not any(AQ) and not BQs:
            cand = []
            if BAs:
                m = BAs[0][1][1]; r = ready([('BQ', m), ('BQ', max(m-1, 0))]); cand.append((r, 'BA'))
            elif BOs:
                r = ready([('BA', BOs[0][1][1])]); cand.append((r, 'BO'))
            if Fs:
                r = fready()
                if r is not None: cand.append((r, 'F'))
            if cand:
                r, c = min(cand)
                if c == 'F': w, k = Fs.pop(0); pick = (w, k, max(t + S[k[0]], r + (1.0 if k[0] == 'P' else 1.8)))
                elif c == 'BA': w, k = BAs.pop(0); pick = (w, k, max(t, r) + S['BA'])
                else: w, k = BOs.pop(0); pick = (w, k, max(t, r) + S['BO'])
        if not pick:
            if any(AQ) or BQs or BAs or BOs or Fs: heapq.heappush(heap, (t + 0.5, i))
            continue
        w, k, tf = pick
        lists[i].append(w); last[i] = w & 255
        remain[k] = remain.get(k, 1) - 1; fin[k] = max(fin.get(k, 0), tf); end = max(end, tf)
        heapq.heappush(heap, (tf, i))
    return lists, fin

def init_work(a):
    a.e("v_and_b32 v1, 63, v0"); a.e("v_lshlrev_b32 v4, 4, v1")
    for q in range(4): a.e(f"v_mov_b32 v{28+q}, -1"); a.e(f"v_mov_b32 v{32+q}, 0")
    a.e("s_lshr_b32 s28, s2, 2"); a.e("s_lshl_b32 s29, s28, 16");
    a.e("s_and_b32 s28, s2, 3"); a.e("s_lshl_b32 s28, s28, 14"); a.e("s_add_u32 s29, s29, s28"); a.e("s_lshl_b32 s28, s24, 12"); a.e("s_add_u32 s29, s29, s28")
    for i in range(4): a.e(f"buffer_store_dwordx4 v[28:31], v4, s[8:11], s29 offen offset:{1024*i} sc1")
    a.e("s_cmp_eq_u32 s24, 3"); a.e("s_cbranch_scc1 I_w3")
    a.e("s_mul_i32 s28, s2, 3"); a.e("s_add_u32 s28, s28, s24"); a.e("s_cmp_ge_u32 s28, 384"); a.e("s_cselect_b32 s29, 384, 0"); a.e(f"s_cselect_b32 s30, {LOC_STRIDE}, 0"); a.e(f"s_add_u32 s30, s30, {WS_LOC}")
    a.e("s_sub_u32 s28, s28, s29"); a.e("s_lshl_b32 s29, s28, 10"); a.e("s_add_u32 s29, s29, s30"); a.e("s_lshr_b32 s28, s28, 3"); a.e("s_cmp_eq_u32 s28, 2"); a.e("s_cbranch_scc1 I_z")
    a.e("buffer_store_dwordx4 v[28:31], v4, s[8:11], s29 offen sc1"); a.e("s_branch I_d")
    a.label("I_w3")
    a.e("s_cmp_ge_u32 s2, 128"); a.e("s_cbranch_scc1 I_d")
    a.e("s_lshl_b32 s29, s2, 10"); a.e(f"s_add_u32 s29, s29, {WS_FLAGS}")
    a.label("I_z")
    a.e("buffer_store_dwordx4 v[32:35], v4, s[8:11], s29 offen sc1")
    a.label("I_d")

def census_wait(a, lab):
    a.e("v_mbcnt_lo_u32_b32 v3, -1, 0"); a.e("v_and_b32 v3, 15, v3"); a.e("v_min_u32 v3, 8, v3")
    a.e("v_and_b32 v4, 1, v3"); a.e("v_lshlrev_b32 v3, 2, v3"); a.e("v_lshl_add_u32 v3, v4, 7, v3")
    a.label(lab)
    a.e("buffer_load_dword v2, v3, s[4:7], 0 offen sc1")
    guard(a)
    a.e("s_waitcnt vmcnt(0)")
    for i in range(9): a.e(f"v_readlane_b32 s{84+i}, v2, {i}")
    a.e("s_cmp_eq_u32 s92, 256"); a.e(f"s_cbranch_scc1 {lab}_ok"); a.e("s_sleep 8"); a.e(f"s_branch {lab}")
    a.label(f"{lab}_ok")

def arrive(a, lab):
    a.e("s_cmp_lg_u32 s24, 1"); a.e(f"s_cbranch_scc1 {lab}")
    a.e("v_mov_b32 v5, 1"); a.e("s_mov_b64 exec, 1")
    a.e("buffer_atomic_add v5, off, s[4:7], 0 offset:32 sc1"); a.e("s_mov_b64 exec, -1")
    a.label(lab)

def atomic_rank(a, lab, voff_expr, dst):
    a.e("s_cmp_lg_u32 s24, 0"); a.e(f"s_cbranch_scc1 {lab}")
    a.e("v_mov_b32 v3, 1"); a.e("v_mov_b32 v4, s25"); a.e("s_mov_b64 exec, 1")
    a.e("buffer_atomic_add v3, v4, s[4:7], 0 offen sc0 sc1")
    a.e("s_waitcnt vmcnt(0)")
    a.e("v_mov_b32 v4, 0"); a.e("ds_write_b32 v4, v3"); a.e("s_waitcnt lgkmcnt(0)"); a.e("s_mov_b64 exec, -1")
    a.label(lab)
    a.e("s_waitcnt vmcnt(0)")
    a.e("s_barrier")
    a.e("v_mov_b32 v4, 0"); a.e("ds_read_b32 v8, v4")
    a.e("s_cmp_lg_u32 s24, 1"); a.e(f"s_cbranch_scc1 {lab}b")
    a.e("v_mov_b32 v5, 1"); a.e("v_mov_b32 v6, 32"); a.e("s_mov_b64 exec, 1")
    a.e("buffer_atomic_add v5, v6, s[4:7], 0 offen sc1"); a.e("s_mov_b64 exec, -1")
    a.label(f"{lab}b")
    a.e("s_waitcnt lgkmcnt(0)")
    a.e(f"v_readfirstlane_b32 {dst}, v8")
    a.e("s_barrier")

def build(diag=False, mkpv=0, mkpq=0, h2rd=0, ctlb=0, mkg=0, qarch=1, rperm=0, tlbw=1, wpf=0, cpf=1, wdelay=0, wsb=0, mke=0, mkpost=0, mkgap=24, mks=128, ctime=False, wpol='', wmax=24, hint=0, sp={}, gp={}, steplog=0, psel=0, profstart=False, prof=0, only=None, lists=None, nochain=False, budget=1 << 22, force_slow=False, qk={}, vo={}, proftask=False, flip=None):
    chain.MKPV[0] = mkpv; chain.MKPQ[0] = mkpq; chain.H2RD[0] = h2rd; chain.TLBW[0] = ctlb; chain.MKG[0] = mkg; chain.QARCH[0] = qarch; chain.MKE[0] = mke; chain.MKPOST[0] = mkpost; chain.MKGAP[0] = mkgap; chain.MKS[0] = mks; chain.WPOL[0] = wpol; chain.WMAX[0] = wmax; chain.HINT[0] = hint; chain.PSEL[0] = psel; chain.CAL[0] = flip is None
    chain.STEPLOG[0] = (WS_PROF + 524288) if steplog else 0
    import worker as WK
    WK.WPROF[0] = proftask == 2
    WK.GP.update(gp)
    a = Asm()
    if lists is None: lists, _ = schedule(**sp)
    if only is not None: lists = [[w for w in l if (w & 255) in only] for l in lists]
    maxlen = max(len(l) for l in lists) + 3
    a.e("s_cmp_ge_u32 s2, 256"); a.e("s_cbranch_scc1 W_abort")
    a.e("""
s_load_dwordx2 s[8:9], s[0:1], 96
s_load_dwordx2 s[4:5], s[0:1], 88
s_getreg_b32 s3, hwreg(HW_REG_XCC_ID)
s_and_b32 s3, s3, 7
v_lshrrev_b32 v1, 6, v0
s_nop 0
v_readfirstlane_b32 s24, v1
s_waitcnt lgkmcnt(0)
WSBASE
s_mov_b32 s11, 0x20000
s_mov_b32 s6, 256
s_mov_b32 s7, 0x20000
""")
    a.e(f"s_mov_b32 s82, {budget}")
    if prof or proftask or ctime:
        a.e("s_mov_b32 s56, s8"); a.e("s_mov_b32 s57, s9"); a.e("s_mov_b32 s58, s10"); a.e("s_mov_b32 s59, 0x20000"); a.e("s_mov_b32 s83, 0")
        a.e("s_memrealtime s[96:97]")
    if diag: a.e("s_or_b32 s25, s2, s24\n s_cmp_lg_u32 s25, 0\n s_cbranch_scc1 D_0\n s_memrealtime s[100:101]\n s_waitcnt lgkmcnt(0)\n s_not_b32 s100, s100\n v_mov_b32 v2, s100\n s_mov_b64 exec, 1\n buffer_atomic_umax v2, off, s[4:7], 0 offset:40 sc1\n s_mov_b64 exec, -1\nD_0:")
    if profstart: a.e("s_memrealtime s[60:61]")
    if profstart: a.e("s_memrealtime s[62:63]")
    if profstart: a.e("s_memrealtime s[64:65]")
    if force_slow: a.e("s_lshr_b32 s3, s2, 5"); a.e("s_mul_i32 s3, s3, 3"); a.e("s_and_b32 s3, s3, 7"); a.e("s_max_u32 s3, s3, 1")
    a.e("s_and_b32 s25, s3, 1"); a.e("s_lshl_b32 s25, s25, 7"); a.e("s_lshl_b32 s26, s3, 2"); a.e("s_add_u32 s95, s25, s26")
    def code_pf(ranges, lab):
        a.e("s_getpc_b64 s[26:27]"); a.label(lab)
        a.e("v_and_b32 v1, 63, v0"); a.e("v_lshlrev_b32 v10, 7, v1"); a.e("s_sub_u32 s25, s24, 1"); a.e("s_lshl_b32 s25, s25, 13"); a.e("v_add_u32 v10, s25, v10")
        for (st, n) in ranges:
            a.e(f"s_add_u32 s28, s26, {st}-{lab}"); a.e("s_addc_u32 s29, s27, 0")
            for i in range(n):
                a.e(f"global_load_dword v11, v10, s[28:29]")
                if i < n-1: a.e("s_add_u32 s28, s28, 24576"); a.e("s_addc_u32 s29, s29, 0")
    def tlb_warm():
        a.e("s_load_dwordx8 s[64:71], s[0:1], 16")
        a.e("v_and_b32 v12, 7, v0"); a.e("v_lshlrev_b32 v12, 20, v12")
        a.e("s_mov_b32 s14, 7864320"); a.e("s_mov_b32 s15, 0x20000")
        a.e("s_waitcnt lgkmcnt(0)")
        for m in range(4):
            a.e(f"s_mov_b32 s12, s{64+2*m}"); a.e(f"s_mov_b32 s13, s{65+2*m}")
            a.e("buffer_load_dword v13, v12, s[12:15], 0 offen")
    if tlbw:
        a.e("s_cmp_lg_u32 s24, 1"); a.e("s_cbranch_scc1 M_tw")
        tlb_warm()
        a.label("M_tw")
    a.e("s_cmp_ge_u32 s3, 2"); a.e("s_cbranch_scc1 M_late")
    a.e("s_cmp_lg_u32 s24, 0"); a.e("s_cbranch_scc1 M_e1")
    a.e("v_mov_b32 v3, 1"); a.e("v_mov_b32 v8, s95"); a.e("s_mov_b64 exec, 1")
    a.e("buffer_atomic_add v3, v8, s[4:7], 0 offen sc0 sc1")
    a.e("s_mov_b64 exec, -1")
    a.e("s_waitcnt vmcnt(0)")
    a.e("v_mov_b32 v4, 0"); a.e("s_mov_b64 exec, 1"); a.e("ds_write_b32 v4, v3"); a.e("s_mov_b64 exec, -1"); a.e("s_waitcnt lgkmcnt(0)")
    a.e("s_branch M_e2")
    a.label("M_e1")
    if cpf & 8: code_pf([("M_chain", 1), ("M_vo-8192", 1)], "M_pf1")
    a.label("M_e2")
    a.e("s_barrier")
    a.e("v_mov_b32 v4, 0"); a.e("ds_read_b32 v8, v4"); a.e("s_waitcnt lgkmcnt(0)")
    a.e("v_readfirstlane_b32 s80, v8")
    a.e("s_barrier")
    a.e("s_cmp_lt_u32 s80, 32"); a.e("s_cbranch_scc0 M_e3")
    a.e("s_mov_b32 s25, s3"); a.e("s_mov_b32 s26, s80"); a.e("s_mov_b32 s81, 1"); a.e("s_branch M_chain")
    a.label("M_e3")
    a.L += [l.replace("I_", "J_") for l in _sub(init_work)]
    a.e("s_waitcnt vmcnt(0)"); a.e("s_barrier")
    arrive(a, "M_e4")
    a.e("s_branch M_worker")
    a.label("M_late")
    if cpf & 7:
        a.e("s_cmp_eq_u32 s24, 0"); a.e("s_cbranch_scc1 M_pf2x")
        code_pf([("W_warm", cpf & 7)], "M_pf2")
        a.label("M_pf2x")
    init_work(a)
    a.e("s_mov_b32 s25, s95")
    atomic_rank(a, "M_a1", None, "s80")
    if profstart: a.e("s_memrealtime s[62:63]")
    if profstart:
        a.e("s_memrealtime s[66:67]"); a.e("s_waitcnt lgkmcnt(0)"); a.e("s_lshl_b32 s25, s2, 5"); a.e(f"s_add_u32 s25, s25, {WS_PROF+262144}")
        a.e("v_mov_b32 v4, s60"); a.e("v_mov_b32 v5, s62"); a.e("v_mov_b32 v6, s64"); a.e("v_mov_b32 v7, s66"); a.e("v_mov_b32 v2, 0"); a.e("v_mov_b32 v8, s3")
        a.e("s_mov_b64 exec, 1"); a.e("buffer_store_dwordx4 v[4:7], v2, s[8:11], s25 offen"); a.e("buffer_store_dword v8, v2, s[8:11], s25 offen offset:16"); a.e("s_mov_b64 exec, -1")
    a.e("s_cmp_ge_u32 s80, 32"); a.e("s_cbranch_scc1 M_worker")
    a.e("s_sub_u32 s79, s3, 2"); a.e("s_lshl_b32 s79, s79, 5"); a.e("s_add_u32 s79, s79, s80")
    a.e("s_mov_b32 s81, 1")
    if flip is None:
        a.e("s_cmp_lg_u32 s79, 31"); a.e("s_cbranch_scc1 C_skip"); a.e("s_cmp_lg_u32 s24, 0"); a.e("s_cbranch_scc1 C_skip")
        a.e(f"s_mov_b32 s25, {WS_CAL}")
        a.e("s_load_dword s27, s[8:9], s25 glc"); a.e("s_waitcnt lgkmcnt(0)")
        a.e("s_mov_b32 s32, -1"); a.e("s_mov_b32 s33, -1")
        for i in range(1, 9):
            a.e(f"s_add_u32 s25, s25, 8192")
            a.e("s_memtime s[28:29]"); a.e("s_waitcnt lgkmcnt(0)")
            a.e("s_load_dword s27, s[8:9], s25 glc"); a.e("s_waitcnt lgkmcnt(0)")
            a.e("s_memtime s[30:31]"); a.e("s_waitcnt lgkmcnt(0)")
            a.e("s_sub_u32 s30, s30, s28"); a.e(f"s_min_u32 s{32 + (i & 1)}, s{32 + (i & 1)}, s30")
        a.e("s_cmp_le_u32 s33, s32"); a.e("s_cselect_b32 s27, 1, 0x2001")
        a.e("v_mov_b32 v2, s27"); a.e("buffer_store_dword v2, off, s[4:7], 0 offset:64 sc1")
        a.label("C_skip")
    if wpf:
        a.e("s_load_dwordx8 s[64:71], s[0:1], 16")
        a.e("s_mul_i32 s25, s79, 1366"); a.e("s_lshr_b32 s25, s25, 16"); a.e("s_mul_i32 s26, s25, 48"); a.e("s_sub_u32 s26, s79, s26")
        a.e("s_mul_i32 s26, s26, 163840"); a.e("s_mul_i32 s27, s24, 40960"); a.e("s_add_u32 s26, s26, s27")
        a.e("v_and_b32 v10, 63, v0"); a.e("v_lshlrev_b32 v10, 7, v10")
        a.e("s_waitcnt lgkmcnt(0)")
        a.e("s_mov_b32 s12, s64"); a.e("s_mov_b32 s13, s65")
        for m in (1, 2, 3):
            a.e(f"s_cmp_eq_u32 s25, {m}"); a.e(f"s_cselect_b32 s12, s{64+2*m}, s12"); a.e(f"s_cselect_b32 s13, s{65+2*m}, s13")
        a.e("s_mov_b32 s14, 7864320"); a.e("s_mov_b32 s15, 0x20000")
        for i in range(5):
            a.e(f"buffer_load_dword v63, v10, s[12:15], s26 offen {wpf if wpf != 1 else ''}"); a.e("s_add_u32 s26, s26, 8192")
    for i in range(wdelay): a.e("s_sleep 37")
    a.e("s_branch M_go")
    a.label("M_worker")
    census_wait(a, "M_cw")
    a.e("s_mov_b32 s79, s80")
    a.e("s_cmp_lt_u32 s3, 2"); a.e("s_cselect_b32 s25, 32, 0"); a.e("s_sub_u32 s79, s79, s25")
    for x in range(7):
        if x < 2: a.e(f"s_max_u32 s25, s{84+x}, 32"); a.e("s_sub_u32 s25, s25, 32")
        else: a.e(f"s_mov_b32 s25, s{84+x}")
        a.e(f"s_cmp_gt_u32 s3, {x}"); a.e("s_cselect_b32 s25, s25, 0"); a.e("s_add_u32 s79, s79, s25")
    a.e("s_min_u32 s25, s84, 32"); a.e("s_sub_u32 s27, 32, s25"); a.e("s_min_u32 s26, s85, 32"); a.e("s_sub_u32 s28, 32, s26")
    a.e("s_cmp_lt_u32 s79, s27"); a.e("s_cbranch_scc0 M_n0")
    a.e("s_add_u32 s26, s25, s79"); a.e("s_mov_b32 s25, 0"); a.e("s_mov_b32 s81, 0"); a.e("s_branch M_chain")
    a.label("M_n0"); a.e("s_sub_u32 s79, s79, s27")
    a.e("s_cmp_lt_u32 s79, s28"); a.e("s_cbranch_scc0 M_n1")
    a.e("s_add_u32 s26, s26, s79"); a.e("s_mov_b32 s25, 1"); a.e("s_mov_b32 s81, 0"); a.e("s_branch M_chain")
    a.label("M_n1"); a.e("s_sub_u32 s79, s79, s28")
    a.e("s_mov_b32 s81, 0")
    a.label("M_go")
    if proftask: a.e(f"s_lshl_b32 s98, s79, {9 if proftask != 2 else 10}"); a.e(f"s_add_u32 s98, s98, {WS_PROF+65536}")
    worker(a, "W_table", maxlen, census_wait)
    if diag: a.e("s_memrealtime s[100:101]\n s_waitcnt lgkmcnt(0)\n s_cmp_eq_u32 s24, 0\n s_cselect_b64 exec, 1, 0\n v_mov_b32 v2, s100\n s_cbranch_execz 2\n buffer_atomic_umax v2, off, s[4:7], 0 offset:52 sc1\n s_mov_b64 exec, -1")
    a.e("s_branch L_fin")
    a.label("M_chain")
    if rperm: a.e("s_and_b32 s27, s26, 1"); a.e("s_lshl_b32 s27, s27, 4"); a.e("s_lshr_b32 s26, s26, 1"); a.e("s_add_u32 s26, s26, s27")
    a.e(f"s_mov_b32 s47, {(flip or 0)*8192}")
    if prof or proftask or ctime:
        a.e("s_mov_b32 s56, s8"); a.e("s_mov_b32 s57, s9"); a.e("s_mov_b32 s58, s10"); a.e("s_mov_b32 s59, 0x20000")
    if nochain: a.e("s_branch L_fin")
    if prof or proftask or ctime:
        a.e("s_lshl_b32 s39, s25, 5"); a.e("s_add_u32 s39, s39, s26"); a.e("s_lshl_b32 s39, s39, 2"); a.e("s_add_u32 s39, s39, s24"); a.e("s_lshl_b32 s39, s39, 6"); a.e(f"s_add_u32 s39, s39, {WS_PROF}")
    a.e("s_cmp_ge_u32 s26, 16"); a.e("s_cbranch_scc1 M_vo")
    a.e("s_lshl_b32 s27, s25, 4"); a.e("s_add_u32 s27, s27, s26")
    chain.ARRIVE[0] = arrive
    def init2(a, lab):
        L = _sub(init_work)
        import re
        for l in L:
            l = l.replace("I_", lab + "_")
            l = re.sub(r"\bs28\b", "s60", l); l = re.sub(r"\bs29\b", "s61", l); l = re.sub(r"\bs30\b", "s62", l)
            l = re.sub(r"\bv4\b", "v60", l)
            for q in range(8): l = re.sub(rf"\bv{28+q}\b", f"v{62+q}", l)
            l = l.replace("v[28:31]", "v[62:65]").replace("v[32:35]", "v[66:69]")
            a.L.append(l)
    chain.INIT[0] = init2
    chain.qk_role(a, prof=prof, cw=census_wait, **qk)
    a.e("s_branch L_cfin")
    a.label("M_vo")
    a.e("s_sub_u32 s26, s26, 16"); a.e("s_lshl_b32 s27, s25, 4"); a.e("s_add_u32 s27, s27, s26")
    chain.vo_role(a, prof=prof, cw=census_wait, **vo)
    a.label("L_cfin")
    if diag: a.e("s_memrealtime s[100:101]\n s_waitcnt lgkmcnt(0)\n s_cmp_eq_u32 s24, 0\n s_cselect_b64 exec, 1, 0\n v_mov_b32 v2, s100\n s_cbranch_execz 2\n buffer_atomic_umax v2, off, s[4:7], 0 offset:48 sc1\n s_mov_b64 exec, -1")
    if prof or proftask or ctime:
        a.e("""
s_memrealtime s[80:81]
s_memtime s[78:79]
s_waitcnt lgkmcnt(0)
s_sub_u32 s78, s78, s76
v_mov_b32 v8, s78
v_mov_b32 v9, s39
buffer_store_dword v8, v9, s[56:59], 0 offen offset:60
s_mov_b64 exec, 1
v_mov_b32 v2, s39
v_mov_b32 v4, s96
v_mov_b32 v5, s98
v_mov_b32 v6, s80
v_mov_b32 v7, s83
buffer_store_dwordx4 v[4:7], v2, s[56:59], 0 offen offset:32
s_waitcnt vmcnt(0)
""")
    a.label("L_abort")
    a.label("L_fin")
    a.label("L_end")
    a.e("s_endpgm")
    a.e(".p2align 2")
    a.label("W_table")
    for l in lists:
        a.e(".long " + ",".join(str(w) for w in l + [0]*(maxlen-len(l))))
    txt = a.text()
    if proftask == 2:
        pt = "s_memtime s[100:101]\n  s_waitcnt lgkmcnt(0)\n  v_mov_b32 v2, s78\n  v_mov_b32 v3, s100\n  v_mov_b32 v4, s90\n v_mov_b32 v5, s92\n v_mov_b32 v6, s94\n v_mov_b32 v7, s96\n v_mov_b32 v8, s98\n  s_mov_b64 exec, 1\n  buffer_store_dwordx4 v[2:5], v8, s[8:11], 0 offen\n buffer_store_dwordx2 v[6:7], v8, s[8:11], 0 offen offset:16\n  s_mov_b64 exec, -1\n  s_add_u32 s98, s98, 32"
        txt = txt.replace("PROFTASK", pt)
    pt = "s_memrealtime s[100:101]\n  s_waitcnt lgkmcnt(0)\n  v_mov_b32 v2, s78\n  v_mov_b32 v3, s100\n  v_mov_b32 v4, s98\n  s_mov_b64 exec, 1\n  buffer_store_dwordx2 v[2:3], v4, s[8:11], 0 offen\n  s_mov_b64 exec, -1\n  s_add_u32 s98, s98, 8" if proftask else "s_nop 0"
    txt = txt.replace("PROFTASK", pt)
    if diag: txt = txt.replace("LOOPSTART", "s_memrealtime s[100:101]\n s_waitcnt lgkmcnt(0)\n s_cmp_eq_u32 s24, 0\n s_cselect_b64 exec, 1, 0\n v_mov_b32 v2, s100\n s_cbranch_execz 2\n buffer_atomic_umax v2, off, s[4:7], 0 offset:44 sc1\n s_mov_b64 exec, -1").replace("WLOADED", "s_memrealtime s[100:101]\n s_waitcnt lgkmcnt(0)\n s_cmp_eq_u32 s24, 0\n s_cselect_b64 exec, 1, 0\n v_mov_b32 v2, s100\n s_cbranch_execz 2\n buffer_atomic_umax v2, off, s[4:7], 0 offset:56 sc1\n s_mov_b64 exec, -1")
    txt = txt.replace("WSBASE", f"s_add_u32 s8, s8, {wsb*MB}\n  s_addc_u32 s9, s9, 0\n  s_mov_b32 s10, {(256-wsb)*MB}")
    for i in range(3): txt = txt.replace(f"WSTAMP{i}", f"s_memrealtime s[{70+2*i}:{71+2*i}]\n s_waitcnt lgkmcnt(0)\n s_mov_b32 s{93+i}, s{70+2*i}" if (prof or proftask or ctime) else "s_nop 0")
    txt = txt.replace("WLOADED", "s_memrealtime s[100:101]\n  s_waitcnt lgkmcnt(0)\n v_mov_b32 v2, s100\n v_mov_b32 v3, s39\n s_mov_b64 exec, 1\n v_mov_b32 v60, s93\n v_mov_b32 v61, s94\n v_mov_b32 v62, s95\n buffer_store_dword v2, v3, s[56:59], 0 offen offset:48\n buffer_store_dwordx3 v[60:62], v3, s[56:59], 0 offen offset:52\n s_nop 2\n s_mov_b64 exec, -1" if (prof or proftask or ctime) else "s_nop 0")
    txt = txt.replace("LOOPSTART", "s_memrealtime s[98:99]\n s_memtime s[76:77]\n  s_waitcnt lgkmcnt(0)" if (prof or proftask or ctime) else "s_nop 0")
    return txt
WS_PROF = 186*MB
def _sub(f):
    b = Asm(); f(b); return b.L

HEADER = open("concat_heads__memory_aug_recurrent_mem_tr__sliding_block__prompt.s.ref").read().split("; Override")[0] if __name__ == "__main__" else ""
def full(body, name=NAME, header=""):
    return f"""{header}; @launch grid=(256,1,1) block=(256,1,1) lds=163840
.amdgcn_target "amdgcn-amd-amdhsa--gfx950"
.text
.globl {name}
.p2align 8
.type {name},@function
{name}:
{body}
.section .rodata,"a"
.p2align 6
.amdhsa_kernel {name}
  .amdhsa_next_free_vgpr 512
  .amdhsa_next_free_sgpr 102
  .amdhsa_accum_offset 256
  .amdhsa_group_segment_fixed_size 0
  .amdhsa_kernarg_size 104
  .amdhsa_user_sgpr_count 2
  .amdhsa_user_sgpr_kernarg_segment_ptr 1
  .amdhsa_system_sgpr_workgroup_id_x 1
  .amdhsa_float_denorm_mode_32 3
.end_amdhsa_kernel
"""
if __name__ == "__main__":
    kw = eval(sys.argv[2]) if len(sys.argv) > 2 else {}
    txt = full(build(**kw), header=HEADER)
    open(sys.argv[1] if len(sys.argv) > 1 else "concat_heads__memory_aug_recurrent_mem_tr__sliding_block__prompt.s", "w").write(txt)
    print(len(txt))
```

```python
import math
from asmlib import *
from layout import *

SM64 = "v_smfmac_f32_16x16x64_bf16"
SM32 = "v_smfmac_f32_16x16x32_bf16"
CEXP = 192**-0.5 * math.log2(math.e)
import struct
def fbits(x): return struct.unpack("<I", struct.pack("<f", x))[0]


def load_weights(a, chunks, tmp):
    n = len(chunks)
    issued = 0
    cnt_after = []
    def can_issue(k, nxt):
        c = chunks[nxt]
        for q in range(k, nxt):
            d = chunks[q]
            if c['off'] < d['off'] + d['size'] and d['off'] < c['off'] + c['size']: return False
        for q in range(0, k):
            d = chunks[q]
            if d['res'] and c['off'] < d['off'] + d['size'] and d['off'] < c['off'] + c['size']: raise Exception("overlap resident")
        out = sum(len(chunks[q]['dma']) for q in range(k, nxt+1))
        return out <= WMAX[0]
    def issue_some(k):
        nonlocal issued
        while issued < n and can_issue(k, issued):
            for it in chunks[issued]['dma']: a.e("\n".join(it))
            issued += 1
    issue_some(0)
    first = issued
    extra = 0
    if tmp and ARRIVE[0]:
        lab = a.newlabel("C_in")
        a.e("s_cmp_eq_u32 s81, 0"); a.e(f"s_cbranch_scc1 {lab}x")
        INIT[0](a, lab)
        a.label(lab + "x")
    for k in range(n):
        c = chunks[k]
        after = sum(len(chunks[q]['dma']) for q in range(k+1, issued))
        if tmp and ARRIVE[0] and k < first:
            lab = a.newlabel("C_w")
            a.e("s_cmp_eq_u32 s81, 0"); a.e(f"s_cbranch_scc1 {lab}a")
            a.e(f"s_waitcnt vmcnt({after + 4})"); a.e(f"s_branch {lab}b")
            a.label(lab + "a"); a.e(f"s_waitcnt vmcnt({after})"); a.label(lab + "b")
        else:
            a.e(f"s_waitcnt vmcnt({after})")
        a.e("s_barrier")
        if k in (0, 6, 13): a.e(f"WSTAMP{(0, 6, 13).index(k)}")
        if k == first and ARRIVE[0] and tmp:
            lab = a.newlabel("C_ar")
            a.e("s_cmp_eq_u32 s81, 0"); a.e(f"s_cbranch_scc1 {lab}x")
            ARRIVE[0](a, lab)
            a.label(lab + "x")
        issue_some(k)
        if tmp and k == n - 6 and TLBW[0]:
            a.e(f"v_lshlrev_b32 v56, {TLBW[0]}, v1"); a.e(f"s_lshl_b32 s30, s24, {TLBW[0]+6}")
            a.e("buffer_load_dword v57, v56, s[8:11], s30 offen")
        if tmp and k == n - 2:
            a.e("v_min_u32 v59, 9, v1"); a.e("v_and_b32 v58, 1, v59"); a.e("v_lshlrev_b32 v58, 7, v58"); a.e("v_lshl_add_u32 v58, v59, 2, v58")
            a.e("v_cmp_eq_u32 vcc, 9, v59"); a.e("v_mov_b32 v57, 64"); a.e("s_nop 0"); a.e("v_cndmask_b32 v59, v58, v57, vcc")
            a.e("buffer_load_dword v58, v59, s[4:7], 0 offen sc1")
        for ins in c['pre']: a.e(ins)
        for i, ins in enumerate(c['tr']):
            a.e(ins)
            if i % 12 == 11: a.e("s_waitcnt lgkmcnt(4)")
        a.e("s_waitcnt lgkmcnt(0)")
        if c['res']:
            a.e("s_barrier")
            for ins in c['res']: a.e(ins)
            a.e("s_waitcnt lgkmcnt(0)")
    a.e("s_barrier")

def census_check(a):
    lab = a.newlabel("C_cw")
    a.e(f"s_branch {lab}c")
    a.label(lab)
    a.e("s_sleep 4")
    a.e("buffer_load_dword v58, v59, s[4:7], 0 offen sc1")
    a.e("s_sub_u32 s82, s82, 1"); a.e("s_cbranch_scc1 L_abort")
    a.label(lab + "c")
    a.e("s_waitcnt vmcnt(0)")
    for i in range(10): a.e(f"v_readlane_b32 s{84+i}, v58, {i}")
    a.e("s_cmp_lg_u32 s92, 256"); a.e(f"s_cbranch_scc1 {lab}")
    a.e("s_min_u32 s81, s84, s85")
    if CAL[0]:
        a.e("s_and_b32 s30, s84, s85")
        for r in range(86, 92): a.e(f"s_and_b32 s30, s30, s{r}")
        a.e("s_cmp_lg_u32 s30, 32"); a.e(f"s_cbranch_scc1 {lab}d")
        a.e("s_cmp_eq_u32 s93, 0"); a.e(f"s_cbranch_scc1 {lab}")
        a.e("s_and_b32 s47, s93, 0x2000")
        a.label(lab + "d")

def common_consts(a, vIdx, vSB, vStW, vH2, vMk, MEMIMG, vo=False):
    a.e("v_and_b32 v2, 8, v1")
    a.e("v_cmp_eq_u32 vcc, 0, v2")
    a.e("v_mov_b32 v3, 0xeeee")
    a.e("v_mov_b32 v4, 0x4444")
    a.e(f"v_cndmask_b32 v{vIdx}, v3, v4, vcc")
    a.e("v_and_b32 v2, 1, v1")
    a.e("v_cmp_eq_u32 vcc, 0, v2")
    a.e("s_nop 1")
    a.e("v_cndmask_b32 v2, v3, v4, vcc")
    a.e(f"v_lshl_or_b32 v{vIdx}, v2, 16, v{vIdx}")
    a.e("v_lshrrev_b32 v2, 5, v1")
    a.e("v_bfe_u32 v3, v1, 3, 1")
    a.e("v_cmp_eq_u32 s[30:31], v2, v3")
    a.e("v_and_b32 v2, 1, v1")
    a.e("v_lshlrev_b32 v2, 4, v2")
    a.e("v_mov_b32 v3, 0x3f80")
    a.e("v_lshlrev_b32 v3, v2, v3")
    a.e("v_bfe_u32 v4, v1, 1, 2")
    for q in range(4):
        a.e(f"v_cmp_eq_u32 vcc, {q}, v4")
        a.e("s_and_b64 vcc, vcc, s[30:31]")
        a.e(f"v_cndmask_b32 v{vSB+q}, 0, v3, vcc")
    a.e("v_lshrrev_b32 v2, 4, v1")
    a.e(f"s_mul_i32 s30, s24, {16 if vo else 20}")
    a.e("v_add_u32 v2, s30, v2")
    a.e("v_lshlrev_b32 v2, 7, v2")
    a.e("v_and_b32 v3, 7, v1")
    a.e("v_lshl_add_u32 v2, v3, 4, v2")
    a.e("v_bfe_u32 v3, v1, 3, 1")
    a.e("v_lshl_add_u32 v2, v3, 3, v2")
    a.e(f"v_add_u32 v{vStW}, {MEMIMG}, v2")
    a.e("v_bfe_u32 v2, v1, 4, 1")
    a.e("v_lshlrev_b32 v2, 12, v2")
    a.e("v_bfe_u32 v3, v1, 2, 2")
    a.e("v_lshl_add_u32 v2, v3, 7, v2")
    a.e("v_lshrrev_b32 v3, 5, v1")
    a.e("v_lshl_add_u32 v2, v3, 6, v2")
    a.e("v_and_b32 v3, 3, v1")
    a.e(f"v_lshl_add_u32 v{vH2}, v3, 4, v2")
    a.e("v_and_b32 v2, 15, v1")
    a.e(f"v_mul_u32_u24 v{vMk}, {MKS[0]}, v2")
    if MKE[0] and not MKG[0]:
        a.e("v_and_b32 v2, 3, v1"); a.e("v_lshrrev_b32 v3, 2, v1"); a.e(f"v_mul_u32_u24 v3, {MKS[0]}, v3"); a.e(f"v_lshl_add_u32 v{vMk}, v2, 2, v3")
    for k in range(5):
        if vo and k == 4: a.e("s_add_u32 s30, s24, 16")
        else:
            a.e(f"s_mul_i32 s30, s24, {4 if vo else 5}")
            a.e(f"s_add_u32 s30, s30, {k}")
        a.e(f"s_lshr_b32 s31, s30, 3")
        a.e(f"s_lshl_b32 s31, s31, 14")
        a.e(f"s_and_b32 s30, s30, 7")
        a.e(f"s_lshl_b32 s30, s30, 9")
        a.e(f"s_add_u32 s{40+k}, s30, s31")
    a.e(f"s_mul_i32 s46, s25, {LOC_STRIDE}")
    a.e(f"s_add_u32 s46, s46, {WS_LOC}")
    a.e(f"s_add_u32 s45, s46, {LOC_MK}")
    if MKG[0]:
        a.e("s_mov_b32 s45, s47")
        if MKE[0]: a.e("v_lshrrev_b32 v2, 1, v1"); a.e("v_and_b32 v3, 1, v1"); a.e("v_lshlrev_b32 v3, 6, v3"); a.e(f"v_lshl_add_u32 v{vMk}, v2, 7, v3")
        else: a.e("v_and_b32 v2, 31, v1"); a.e(f"v_lshlrev_b32 v{vMk}, 7, v2")

def h2_base(a, dst, stepreg_plus):
    a.e(f"s_add_u32 s30, s28, 1")
    a.e(f"s_lshl_b32 {dst}, s30, 16")
    a.e(f"s_lshl_b32 s30, s30, 8")
    a.e(f"s_and_b32 s30, s30, 0x2000")
    a.e(f"s_xor_b32 s30, s30, s47")
    a.e(f"s_add_u32 {dst}, {dst}, s30")

def stage_mem0(a, MEMIMG, tmp, part):
    if part == 0:
        for i in range(3):
            a.e(f"v_add_u32 v2, {256*i}, v0")
            a.e("v_min_u32 v2, 639, v2")
            a.e("v_and_b32 v3, 7, v2")
            a.e("v_mul_u32_u24 v3, 1280, v3")
            a.e("v_lshrrev_b32 v4, 3, v2")
            a.e("v_lshl_add_u32 v3, v4, 4, v3")
            a.e(f"buffer_load_dwordx4 {vr(tmp+4*i,4)}, v3, s[20:23], 0 offen")
            a.e(f"v_lshlrev_b32 v{tmp+12+i}, 4, v2")
        return
    a.e("s_waitcnt vmcnt(0)")
    for i in range(3):
        a.e(f"v_add_u32 v{tmp+12+i}, {MEMIMG}, v{tmp+12+i}")
        a.e(f"ds_write_b128 v{tmp+12+i}, {vr(tmp+4*i,4)}")
    a.e("s_waitcnt lgkmcnt(0)")

PSEL = [0]
HM = [1]
MKPV = [0]
MKPQ = [0]
H2RD = [0]
TLBW = [0]
MKG = [0]
QARCH = [1]
ARRIVE = [None]
INIT = [None]
WPOL = ['', '']
WMAX = [36]
CAL = [1]
HINT = [0]
MKPOST = [0]
MKE = [0]
MK1 = [1]
MKA = [0]
TSR = [0]
MKGAP = [24]
STEPLOG = [0]
MKS = [128]
def ts(a, prof, idx, sel=0):
    if prof and (sel == PSEL[0] or idx in (0, 5, 6)): a.e(f"{'s_memrealtime' if TSR[0] else 's_memtime'} s[{60+2*idx}:{61+2*idx}]")

def h2_stage(a, lab, PD, D0, D1, vSB, vStW, vH2, vMk, tmpv, presleep, prof, after=None, nafter=0, nobar=False, pollw=2, after2=None, nafter2=0, fused=None, w4=None):
    h2_base(a, "s53", None)
    for k in range(5): a.e(f"s_add_u32 s{48+k}, s53, s{40+k}")
    a.e("s_add_u32 s30, s28, 1")
    if MKA[0]: a.e("s_lshl_b32 s30, s30, 4")
    if MK1[0]:
        a.e(f"s_cmp_lg_u32 s24, {pollw}"); a.e(f"s_cbranch_scc1 {lab}_mkb")
    for i in range(presleep): a.e("s_sleep 1")
    if not MKE[0]: a.e(f"s_mov_b64 exec, {1 if MKA[0] else 0xffff}" if not MKG[0] else "s_mov_b32 exec_hi, 0")
    mk = (lambda r: f"buffer_load_dword v{r}, off, s[8:11], s45 sc1") if MKA[0] else (lambda r: f"buffer_load_dword v{r}, v{vMk}, s[8:11], s45 offen sc1")
    a.e(mk(tmpv))
    a.nop(MKGAP[0])
    a.label(f"{lab}_mk")
    a.e(mk(tmpv+1))
    a.e("s_waitcnt vmcnt(1)")
    a.e(f"v_cmp_gt_i32 vcc, s30, v{tmpv}")
    a.e(f"s_cbranch_vccz {lab}_mkok")
    a.e(mk(tmpv))
    a.e("s_sub_u32 s82, s82, 1"); a.e("s_cbranch_scc1 L_abort")
    a.e("s_waitcnt vmcnt(1)")
    a.e(f"v_cmp_gt_i32 vcc, s30, v{tmpv+1}")
    a.e(f"s_cbranch_vccnz {lab}_mk")
    a.label(f"{lab}_mkok")
    a.e("s_mov_b64 exec, -1")
    a.nop(MKPOST[0] + (MKPV[0] if lab.startswith('VO') else MKPQ[0]))
    if MK1[0] and not after2:
        a.label(f"{lab}_mkb")
        a.e("s_barrier")
    tmpv = tmpv + 2
    ts(a, prof, 5)
    def body(extra, aft, again):
        for k in range(5):
            a.e(f"buffer_load_dwordx4 {vr(PD+4*k,4)}, v{vH2}, s[8:11], s{48+k} offen sc1")
        if aft: aft()
        for k in range(5):
            a.e(f"s_waitcnt vmcnt({4-k+extra})")
            if again.endswith("r") and aft is after: ts(a, prof, [1,2,3,4,7][k], 1)
            r = PD+4*k
            if k == 0: a.e(f"v_max3_u32 v{tmpv}, v{r}, v{r+1}, v{r+2}"); a.e(f"v_max_u32 v{tmpv}, v{tmpv}, v{r+3}")
            else: a.e(f"v_max3_u32 v{tmpv}, v{r}, v{r+1}, v{tmpv}"); a.e(f"v_max3_u32 v{tmpv}, v{r+2}, v{r+3}, v{tmpv}")
            a.e(f"v_mfma_f32_16x16x32_bf16 {vr(r,4)}, {vr(r,4)}, {vr(vSB,4)}, 0")
            if k >= 3:
                q = PD+4*(k-3)
                a.e(f"v_cvt_pk_bf16_f32 v{q}, v{q}, v{q+1}")
                a.e(f"v_cvt_pk_bf16_f32 v{q+1}, v{q+2}, v{q+3}")
                a.e(f"ds_write_b64 v{vStW}, {vr(q,2)} offset:{512*(k-3)}")
        a.e(f"v_cmp_eq_u32 vcc, -1, v{tmpv}")
        for k in (2, 3, 4):
            q = PD+4*k
            if k == 4: a.nop(1)
            a.e(f"v_cvt_pk_bf16_f32 v{q}, v{q}, v{q+1}")
            a.e(f"v_cvt_pk_bf16_f32 v{q+1}, v{q+2}, v{q+3}")
            if k == 4 and w4: a.e(f"v_add_u32 v4, {w4}, v{vStW}"); a.e(f"ds_write_b64 v4, {vr(q,2)}")
            else: a.e(f"ds_write_b64 v{vStW}, {vr(q,2)} offset:{512*k}")
        a.e(again)
    if fused:
        def issue(aft):
            for k in range(5):
                a.e(f"buffer_load_dwordx4 {vr(PD+4*k,4)}, v{vH2}, s[8:11], s{48+k} offen sc1")
            aft()
        if after2:
            a.e("s_barrier")
            issue(after2)
            a.e(f"s_branch {lab}_fz{pollw}")
            a.label(f"{lab}_mkb")
            a.e("s_barrier")
            ts(a, prof, 5)
        issue(after)
        def retry():
            a.label(f"{lab}_h2r0")
            fused()
            a.nop(H2RD[0])
            a.label(f"{lab}_h2r")
            if prof: a.e("s_add_u32 s83, s83, 1")
            body(0, lambda: (a.e("s_sub_u32 s82, s82, 1"), a.e("s_cbranch_scc1 L_abort")), f"s_cbranch_vccnz {lab}_h2r")
            a.e(f"s_branch {lab}_loop")
        return retry
    if after2:
        a.e("s_barrier")
        body(nafter2, after2, f"s_cbranch_vccnz {lab}_h2r")
        a.e(f"s_branch {lab}_h2done")
        a.label(f"{lab}_mkb")
        a.e("s_barrier")
        ts(a, prof, 5)
    body(nafter, after, f"s_cbranch_vccnz {lab}_h2r")
    a.label(f"{lab}_h2done")
    if not nobar:
        a.e("s_waitcnt lgkmcnt(0)")
        a.e("s_barrier")
    def retry():
        a.label(f"{lab}_h2r")
        if prof: a.e("s_add_u32 s83, s83, 1")
        body(0, lambda: (a.e("s_sub_u32 s82, s82, 1"), a.e("s_cbranch_scc1 L_abort")), f"s_cbranch_vccnz {lab}_h2r")
        a.e(f"s_branch {lab}_h2done")
    return retry

def prof_dump(a, prof, lab):
    if not prof: return
    a.e(f"s_cmp_lg_u32 s28, {prof}")
    a.e(f"s_cbranch_scc1 {lab}_nodump")
    a.e("s_waitcnt lgkmcnt(0)")
    a.e("s_mov_b64 exec, 1")
    a.e("v_mov_b32 v2, s39")
    for i in range(8):
        a.e(f"v_mov_b32 v3, s{60+2*i}")
        a.e(f"buffer_store_dword v3, v2, s[56:59], 0 offen offset:{4*i}")
        a.e("s_nop 1")
    a.e("s_mov_b64 exec, -1")
    a.label(f"{lab}_nodump")

def qk_role(a, slow=False, cw=None, pre="QK", prof=0, mk_sleep=4, nsteps=64, upf=0, pfpol='', pfpos=(24,28,32,36,40), x_yc=1, x_km=1, x_kx=1, hk_sleep=10, BARP=3, qh_nop=24, fuse=1, qa=(15, 44)):
    LST = "sc1" if slow else ""
    MEMIMG = 98304; SCR = 108544
    vIdx, vMask, vI, vSB = 8, 9, 10, 12
    vArd, vStW, vH2, vMk, vKx32, vKx16, vScW0, vScW1, vScWm, vScR, vScRm, vPx, vPm, vKmA, vKmB, vL16 = range(16, 32)
    RING = 32; TMP = 48; ACC = 60; KX = 72; BST = 84
    WV = 132
    TMP = 48; ACC = 56; KX = 68; BST = 80; WV = 128
    def wreg(o): return ar(8*o, 8) if o < 32 else vr(WV + 8*(o-32), 8)
    def wsub(o, k): return ar(8*o+k, 2) if o < 32 else vr(WV + 8*(o-32)+k, 2)
    a.e("v_and_b32 v1, 63, v0")
    a.e("s_load_dwordx4 s[32:35], s[0:1], 16")
    a.e("s_load_dwordx2 s[20:21], s[0:1], 8")
    a.e("s_waitcnt lgkmcnt(0)")
    a.e("s_cmp_lt_u32 s24, 2")
    a.e("s_cselect_b32 s12, s32, s34")
    a.e("s_cselect_b32 s13, s33, s35")
    a.e("s_mov_b32 s14, 7864320")
    a.e("s_mov_b32 s15, 0x20000")
    a.e("s_mov_b32 s22, 10240")
    a.e("s_mov_b32 s23, 0x20000")
    DV = 40
    for i in range(6):
        a.e("s_and_b32 s30, s24, 1")
        a.e("s_mul_i32 s30, s30, 384")
        a.e(f"s_add_u32 s30, s30, {64*i}")
        a.e("v_add_u32 v2, s30, v1")
        a.e("v_mul_u32_u24 v3, 2731, v2")
        a.e("v_lshrrev_b32 v3, 16, v3")
        a.e("v_mul_u32_u24 v4, 24, v3")
        a.e("v_sub_u32 v4, v2, v4")
        a.e("v_mul_u32_u24 v3, 12288, v3")
        a.e(f"v_lshl_add_u32 v{DV+i}, v4, 4, v3")
    a.e("v_bfe_u32 v2, v1, 3, 1")
    a.e("v_mul_u32_u24 v2, 12288, v2")
    a.e("v_lshrrev_b32 v3, 4, v1")
    a.e("v_lshlrev_b32 v3, 2, v3")
    a.e("v_bfe_u32 v4, v1, 2, 1")
    a.e("v_add_u32 v3, v3, v4")
    a.e("v_mul_u32_u24 v3, 384, v3")
    a.e("v_add_u32 v2, v2, v3")
    a.e("s_mul_i32 s30, s24, 48")
    a.e("s_and_b32 s31, s24, 1")
    a.e("s_lshl_b32 s32, s31, 4")
    a.e("s_add_u32 s32, s32, s30")
    a.e("s_xor_b32 s31, s31, 1")
    a.e("s_lshl_b32 s33, s31, 5")
    a.e("s_add_u32 s33, s33, s30")
    a.e("v_bfe_u32 v3, v1, 1, 1")
    a.e("v_and_b32 v4, 1, v1")
    a.e("v_lshlrev_b32 v3, 4, v3")
    a.e("v_lshl_add_u32 v3, v4, 2, v3")
    a.e("v_add_u32 v3, s32, v3")
    a.e(f"v_lshl_add_u32 v{DV+6}, v3, 1, v2")
    a.e(f"v_add_u32 v{DV+7}, 16, v{DV+6}")
    a.e("v_and_b32 v3, 3, v1")
    a.e("v_lshlrev_b32 v3, 2, v3")
    a.e("v_add_u32 v3, s33, v3")
    a.e(f"v_lshl_add_u32 v{DV+8}, v3, 1, v2")
    a.e(f"v_lshlrev_b32 v{vL16}, 4, v1")
    a.e("s_mul_i32 s34, s27, 384")
    a.e("s_mul_i32 s35, s24, 6144")
    a.e(f"v_add_u32 v{DV+12}, s35, v{vL16}")
    chunks = []
    korder = [k for k in range(20) if k % 5 != 4] + [4, 9, 14, 19]
    def opi(k, t): return 3*(k - k//5) + t
    for ci, k in enumerate(korder):
        off = ((ci+2) % 6)*24576
        dma = []
        for i in range(6):
            p = []
            if i == 0:
                p += [f"s_add_u32 m0, s35, {off}", f"s_add_u32 s36, s34, {k*32*12288}"]
            else:
                p += ["s_add_u32 m0, m0, 1024", "s_nop 0"]
            dma.append(p + [f"buffer_load_dwordx4 v{DV+i}, s[12:15], s36 offen {WPOL[0]} lds"])
        prel = [f"v_add_u32 v{DV+9+t}, {off}, v{DV+6+t}" for t in range(3)]
        tr = []
        for t in range(3):
            for H in range(2):
                for p in range(2):
                    dst = wsub(opi(k, t), 4*H+2*p) if ci < 16 else vr(BST + 8*t + 4*H + 2*p, 2)
                    tr.append(f"ds_read_b64_tr_b16 {dst}, v{DV+9+t} offset:{(16*H+2*p)*384}")
        res = None
        if ci >= 16:
            res = [f"v_add_u32 v2, {off}, v{DV+12}"] + [f"ds_write_b128 v2, {vr(BST+4*q,4)} offset:{1024*q}" for q in range(6)]
        chunks.append(dict(off=off, size=24576, dma=dma, pre=prel, tr=tr, res=res))
    load_weights(a, chunks, cw)
    a.e("WLOADED")
    if cw: census_check(a)
    stage_mem0(a, MEMIMG, RING, 0)
    common_consts(a, vIdx, vSB, vStW, vH2, vMk, MEMIMG)
    a.e("v_lshrrev_b32 v2, 4, v1")
    a.e("v_bfe_u32 v3, v1, 2, 2")
    a.e("v_cmp_eq_u32 s[30:31], v2, v3")
    a.e("v_and_b32 v2, 1, v1")
    a.e("v_lshlrev_b32 v2, 4, v2")
    a.e("v_mov_b32 v3, 0x3f80")
    a.e("v_lshlrev_b32 v3, v2, v3")
    a.e("v_bfe_u32 v4, v1, 1, 1")
    for q in range(2):
        a.e(f"v_cmp_eq_u32 vcc, {q}, v4")
        a.e("s_and_b64 vcc, vcc, s[30:31]")
        a.e(f"v_cndmask_b32 v{vI+q}, 0, v3, vcc")
    a.e(f"v_mov_b32 v{vMask}, 0x7fff7fff")
    a.e("v_lshrrev_b32 v2, 4, v1")
    a.e("v_and_b32 v3, 7, v1")
    a.e("v_lshlrev_b32 v2, 7, v2")
    a.e("v_lshl_add_u32 v2, v3, 4, v2")
    a.e(f"v_add_u32 v{vArd}, {MEMIMG}, v2")
    a.e("v_bfe_u32 v2, v1, 2, 1"); a.e("v_lshlrev_b32 v2, 2, v2")
    a.e("v_bfe_u32 v3, v1, 3, 1"); a.e("v_lshl_add_u32 v2, v3, 1, v2")
    a.e("v_and_b32 v3, 1, v1"); a.e("v_add_u32 v2, v2, v3")
    a.e("v_bfe_u32 v3, v1, 1, 1"); a.e("v_lshl_add_u32 v2, v3, 3, v2")
    a.e("v_bfe_u32 v3, v1, 4, 1"); a.e("v_lshl_add_u32 v2, v3, 5, v2")
    a.e("v_lshlrev_b32 v2, 4, v2")
    a.e("v_lshrrev_b32 v3, 5, v1")
    a.e("s_lshl_b32 s30, s32, 6")
    a.e("s_lshl_b32 s31, s33, 6")
    a.e("v_lshl_add_u32 v4, v3, 10, v2"); a.e(f"v_add_u32 v{vKx32}, s30, v4")
    a.e("v_lshl_add_u32 v4, v3, 3, v2"); a.e(f"v_add_u32 v{vKx16}, s31, v4")
    a.e("v_and_b32 v2, 7, v1"); a.e("v_lshlrev_b32 v2, 4, v2")
    a.e("v_lshrrev_b32 v3, 4, v1"); a.e("v_lshl_add_u32 v4, v3, 7, v2")
    a.e("s_lshl_b32 s30, s32, 4"); a.e(f"v_add_u32 v{vKmA}, s30, v4")
    a.e("v_bfe_u32 v3, v1, 4, 1"); a.e("v_lshl_add_u32 v4, v3, 7, v2")
    a.e("v_lshrrev_b32 v3, 5, v1"); a.e("v_lshl_add_u32 v4, v3, 3, v4")
    a.e("s_lshl_b32 s30, s33, 4"); a.e(f"v_add_u32 v{vKmB}, s30, v4")
    a.e("s_mul_i32 s30, s24, 1536"); a.e(f"s_add_u32 s30, s30, {SCR}")
    a.e("v_and_b32 v2, 7, v1"); a.e("v_lshrrev_b32 v3, 4, v1")
    a.e("v_xor_b32 v4, v3, v2"); a.e("v_lshl_add_u32 v4, v2, 3, v4"); a.e("v_lshlrev_b32 v4, 4, v4")
    a.e(f"v_add_u32 v{vScW0}, s30, v4"); a.e(f"v_xor_b32 v4, 64, v4"); a.e(f"v_add_u32 v{vScW1}, s30, v4")
    a.e("v_bfe_u32 v3, v1, 4, 1"); a.e("v_lshl_add_u32 v4, v2, 1, v3")
    a.e("v_lshrrev_b32 v3, 5, v1"); a.e("v_xor_b32 v3, 1, v3"); a.e("v_lshl_add_u32 v4, v3, 4, v4")
    a.e("v_lshlrev_b32 v4, 4, v4"); a.e("v_add_u32 v4, 1024, v4"); a.e(f"v_add_u32 v{vScWm}, s30, v4")
    a.e("v_lshrrev_b32 v2, 4, v1"); a.e("v_bfe_u32 v3, v1, 2, 1"); a.e("v_lshl_add_u32 v2, v2, 1, v3")
    a.e("v_bfe_u32 v5, v1, 3, 1"); a.e("v_and_b32 v3, 3, v1"); a.e("v_lshl_add_u32 v3, v5, 2, v3"); a.e("v_xor_b32 v3, v3, v2"); a.e("v_lshl_add_u32 v3, v2, 3, v3")
    a.e("v_lshlrev_b32 v3, 4, v3"); a.e(f"v_add_u32 v{vScR}, {SCR}, v3")
    a.e("v_bfe_u32 v4, v1, 1, 1"); a.e("v_and_b32 v3, 1, v1"); a.e("v_lshl_add_u32 v3, v5, 1, v3"); a.e("v_lshl_add_u32 v3, v4, 2, v3"); a.e("v_lshl_add_u32 v3, v2, 3, v3")
    a.e("v_lshlrev_b32 v3, 2, v3"); a.e(f"v_add_u32 v{vScRm}, {SCR+1024}, v3")
    a.e(f"v_lshlrev_b32 v{vPx}, 3, v1")
    a.e("v_lshl_add_u32 v3, v5, 1, v4"); a.e("v_lshl_add_u32 v3, v2, 2, v3"); a.e("v_lshlrev_b32 v3, 2, v3"); a.e(f"v_add_u32 v{vPm}, 512, v3")
    a.e("s_mul_i32 s37, s26, 640"); a.e("s_add_u32 s37, s37, s46")
    a.e(f"s_mul_i32 s38, s27, 12288"); a.e(f"s_add_u32 s38, s38, {WS_K}")
    a.e(f"s_mul_i32 s54, s27, 3072"); a.e(f"s_add_u32 s54, s54, {WS_KM}")
    a.e(f"s_lshl_b32 s55, s27, 4"); a.e(f"s_add_u32 s55, s55, {WS_FLAGS+F_K}")
    a.e(f"s_lshl_b32 s34, s27, 7"); a.e(f"s_add_u32 s34, s34, {WS_FLAGS+F_KM}")
    a.e("s_lshl_b32 s84, s26, 7"); a.e("s_add_u32 s84, s84, s45"); a.e("s_add_u32 s84, s84, 2048")
    a.e("s_mov_b32 s28, 0"); a.e("s_mov_b32 s29, 0")
    a.e(f"s_mov_b32 s36, {fbits(CEXP)}")
    def kflag_wait(lab, stepexpr_reg):
        a.e(f"s_lshr_b32 s30, {stepexpr_reg}, 3")
        a.e("s_lshl_b32 s30, s30, 9"); a.e("s_add_u32 s30, s30, s55")
        a.e(f"v_and_b32 v3, 4, v{vPm}")
        a.label(lab)
        a.e(f"buffer_load_dword v2, v3, s[8:11], s30 offen sc1")
        a.e("s_sub_u32 s82, s82, 1"); a.e("s_cbranch_scc1 L_abort")
        a.e("s_waitcnt vmcnt(0)")
        a.e("v_cmp_eq_u32 vcc, 0, v2")
        a.e(f"s_cbranch_vccnz {lab}")
    def kx_loads():
        for t in range(2):
            a.e(f"buffer_load_dwordx4 {vr(KX+4*t,4)}, v{vKx32}, s[8:11], s38 offen offset:{256*t} sc1")
        for t in range(2):
            a.e(f"buffer_load_dwordx2 {vr(KX+8+2*t,2)}, v{vKx16}, s[8:11], s38 offen offset:{256*t} sc1")
        if x_kx: a.e(f"s_add_u32 s38, s38, {32*12288}")
    LR = [6, 7, TMP+6, TMP+7]
    for q in range(4):
        a.e(f"s_add_u32 s30, s24, {q}"); a.e("s_and_b32 s30, s30, 3"); a.e("s_mul_i32 s30, s30, 24576"); a.e("s_add_u32 s30, s30, s35")
        a.e(f"v_add_u32 v{LR[q]}, s30, v{vL16}")
    def lrd(q, st):
        return [f"ds_read_b128 {vr(BST+24*st+4*i,4)}, v{LR[q]} offset:{1024*i}" for i in range(6)]
    def idle_prep():
        for ins in lrd(0, 0) + lrd(1, 1): a.e(ins)
        for q in range(12): a.e(f"v_mov_b32 v{ACC+q}, 0")
    kflag_wait(f"{pre}_kf0", "s28")
    stage_mem0(a, MEMIMG, RING, 1)
    kx_loads()
    if upf:
        a.e(f"s_mul_i32 s89, s27, 40960"); a.e(f"s_add_u32 s89, s89, {WS_U + 32*40960}"); a.e("s_mul_i32 s30, s24, 10240"); a.e("s_add_u32 s89, s89, s30")
        a.e("s_add_u32 s90, s89, 4096"); a.e("s_add_u32 s91, s89, 8192")
    if QARCH[0]:
        a.e("s_mul_i32 s30, s24, 2560"); a.e("s_mul_i32 s85, s26, 10240"); a.e("s_add_u32 s85, s85, s30"); a.e("s_add_u32 s85, s85, s46"); a.e(f"s_add_u32 s85, s85, {LOC_Y + 163840}")
        a.e("s_mul_i32 s87, s27, 10240"); a.e("s_add_u32 s87, s87, s30"); a.e(f"s_add_u32 s87, s87, {WS_YA}")
        a.e("s_add_u32 s86, s46, s30"); a.e(f"s_add_u32 s86, s86, {LOC_DUMMY}")
        a.e(f"s_mov_b32 s88, {(-163840) & 0xffffffff}")
    a.e("v_mov_b32 v0, 1")
    idle_prep()
    a.e("s_waitcnt lgkmcnt(0)")
    a.e("s_barrier")
    a.e("LOOPSTART")
    def emit_loop(pre, LST, prof):
        npf = len(pfpos) if upf else 0
        assert not upf or (qa[0]+6 < min(pfpos) and max(pfpos) < qa[1])
        X = TMP; T = BST+24; XO = BST; S = BST+8
        def cv(d, s0): return f"v_cvt_pk_bf16_f32 v{d}, v{s0}, v{s0+1}"
        a.label(f"{pre}_loop")
        for w in range(3):
            a.e(f"s_cmp_eq_u32 s24, {w}"); a.e(f"s_cbranch_scc1 {pre}_s1w{w}")
        def s1_ctx(w):
            order = [(5*w + p) % 20 for p in range(20)]
            def bop(p, t):
                k = order[p]
                return wreg(opi(k, t)) if k % 5 != 4 else vr(BST + 24*((p//5) & 1) + 8*t, 8)
            def aread(p, r=None): return f"ds_read_b128 {vr(r if r is not None else RING+4*(p%4),4)}, v{vArd} offset:{512*order[p]}"
            def sm(p, t, r=None): return f"{SM64} {vr(ACC+4*t,4)}, {vr(r if r is not None else RING+4*(p%4),4)}, {bop(p, t)}, v{vIdx}"
            return order, aread, sm
        def head_std(w):
            order, aread, sm = s1_ctx(w)
            for p in range(3): a.e(aread(p))
            for p in range(5):
                a.e(f"s_waitcnt lgkmcnt({(2, 2, 2, 1, 2)[p]})")
                if p == 3: a.e("s_barrier")
                for t in range(3):
                    a.e(sm(p, t))
                    if (p, t) in ((0, 0), (1, 0)): a.e(aread(p+3))
                    if (p, t) == (3, 0): a.e(aread(5))
                    if (p, t) == (3, 1): a.e(aread(6))
                    if (p, t) == (4, 0): a.e(aread(7))
        def head_fused(w):
            order, aread, sm = s1_ctx(w)
            PD = RING; tv = 3
            def chk(k):
                r = PD+4*k
                a.e(f"s_waitcnt vmcnt({4-k})")
                if k in (0, 4): ts(a, prof, 1 if k == 0 else 7, 1)
                if k == 0: a.e(f"v_max3_u32 v{tv}, v{r}, v{r+1}, v{r+2}"); a.e(f"v_max_u32 v{tv}, v{tv}, v{r+3}")
                else: a.e(f"v_max3_u32 v{tv}, v{r}, v{r+1}, v{tv}"); a.e(f"v_max3_u32 v{tv}, v{r+2}, v{r+3}, v{tv}")
                a.e(f"v_mfma_f32_16x16x32_bf16 {vr(r,4)}, {vr(r,4)}, {vr(vSB,4)}, 0")
            def put(k):
                q = PD+4*k
                a.e(cv(q, q)); a.e(cv(q+1, q+2))
                a.e(f"ds_write_b64 v{vStW}, {vr(q,2)} offset:{512*k}")
                a.e(aread(k, q))
            chk(0); chk(1); chk(2)
            put(0)
            chk(3)
            put(1)
            chk(4)
            a.e(f"v_cmp_eq_u32 vcc, -1, v{tv}")
            put(2)
            a.e("s_waitcnt lgkmcnt(4)")
            a.e(sm(0, 0)); put(3); a.e(sm(0, 1)); a.e(sm(0, 2))
            put(4)
            a.e(f"s_cbranch_vccnz {pre}_h2r0")
            ts(a, prof, 0)
            a.e("s_waitcnt lgkmcnt(6)")
            for t in range(3): a.e(sm(1, t))
            a.e("s_waitcnt lgkmcnt(1)")
            a.e("s_barrier")
            a.e(sm(2, 0)); a.e(aread(5)); a.e(sm(2, 1)); a.e(sm(2, 2))
            a.e(sm(3, 0)); a.e(aread(6)); a.e(sm(3, 1)); a.e(sm(3, 2))
            a.e("s_waitcnt lgkmcnt(2)")
            a.e(sm(4, 0, PD+16)); a.e(aread(7)); a.e(sm(4, 1, PD+16)); a.e(sm(4, 2, PD+16))
            a.e(f"s_branch {pre}_s1t{w}")
        for w in (3, 0, 1, 2):
            a.label(f"{pre}_s1w{w}")
            ts(a, prof, 0)
            head_std(w)
            a.label(f"{pre}_s1t{w}")
            order, aread, sm = s1_ctx(w)
            lq = [("A", 5), ("A", 6), ("A", 7)]
            nextA = 8
            extra_q = []
            seq = [(p, t) for p in range(17) for t in range(3)] + [(p, t) for t in range(3) for p in (17, 18, 19)]
            for n, (p, t) in enumerate(seq):
                if n < 15: continue
                need = [("A", p)] + ([("L", p//5)] if p in (14, 19) else [])
                idx = [i for i, tg in enumerate(lq) if tg in need]
                if idx:
                    a.e(f"s_waitcnt lgkmcnt({len(lq)-1-max(idx)})"); lq = lq[max(idx)+1:]
                if (p, t) == (5, 0): extra_q = [(ins, ("L", 2)) for ins in lrd(2, 0)]
                if (p, t) == (10, 0): extra_q = [(ins, ("L", 3)) for ins in lrd(3, 1)]
                a.e(sm(p, t))
                if n < 51:
                    if nextA < 20 and nextA - 4 < p and t == 0:
                        a.e(aread(nextA)); lq.append(("A", nextA)); nextA += 1
                    elif extra_q:
                        ins, tag = extra_q.pop(0); a.e(ins); lq.append(tag)
                if upf and n in pfpos:
                    i = pfpos.index(n)
                    if upf == 1: a.e(f"buffer_load_dword v1, v{vMk}, s[8:11], s{89 + i//2} offen offset:{2048*(i&1)} {pfpol}")
                    elif i == 0: a.e(f"v_lshlrev_b32 v1, 3, v{vL16}"); a.e(f"buffer_load_dword v1, v1, s[8:11], s89 offen {pfpol}")
                    else: a.e(f"buffer_load_dword v1, v{vMk}, s[8:11], s91 offen {pfpol}")
                if QARCH[0]:
                    if n == qa[0]: a.e(f"buffer_load_dwordx4 v[2:5], v{vL16}, s[8:11], s85 offen sc1")
                    if n == qa[0]+3: a.e(f"buffer_load_dwordx4 {vr(TMP,4)}, v{vL16}, s[8:11], s85 offen offset:1024 sc1")
                    if n == qa[0]+6: a.e(f"buffer_load_dwordx2 {vr(TMP+4,2)}, v{vPx}, s[8:11], s85 offen offset:2048 sc1")
                    if n == qa[1]: a.e(f"s_waitcnt vmcnt({2 + npf})"); a.e(f"buffer_store_dwordx4 v[2:5], v{vL16}, s[8:11], s86 offen sc1")
                    if n == qa[1]+4: a.e(f"s_waitcnt vmcnt({2 + npf})"); a.e(f"buffer_store_dwordx4 {vr(TMP,4)}, v{vL16}, s[8:11], s86 offen offset:1024 sc1")
                    if n == qa[1]+8: a.e(f"s_waitcnt vmcnt({2 + npf})"); a.e(f"buffer_store_dwordx2 {vr(TMP+4,2)}, v{vPx}, s[8:11], s86 offen offset:2048 sc1")
                if n == 55:
                    a.e(cv(X, ACC)); a.e(cv(X+1, ACC+2))
                if n == 56:
                    a.e(f"v_mfma_f32_16x16x16_bf16 {vr(T,4)}, {vr(X,2)}, {vr(vI,2)}, 0")
                if n == 58:
                    a.e(cv(X+2, ACC+4)); a.e(cv(X+3, ACC+6))
            assert nextA == 20 and not extra_q
            if w != 2: a.e(f"s_branch {pre}_post")
        a.label(f"{pre}_post")
        ts(a, prof, 1)
        a.e(f"v_mfma_f32_16x16x16_bf16 {vr(T+4,4)}, {vr(X+2,2)}, {vr(vI,2)}, 0")
        a.e(cv(XO, T)); a.e(cv(XO+1, T+2))
        a.e(f"s_waitcnt vmcnt({(3 if QARCH[0] else 0) + npf})")
        a.nop(1)
        a.e(cv(X+4, ACC+8)); a.e(cv(X+5, ACC+10))
        a.nop(2)
        a.e(f"v_mfma_f32_16x16x16_bf16 {vr(T+8,4)}, {vr(X+4,2)}, {vr(vI,2)}, 0")
        a.e(cv(XO+2, T+4)); a.e(cv(XO+3, T+6))
        a.nop(2)
        a.e(f"v_mfma_f32_16x16x32_bf16 {vr(S,4)}, {vr(KX,4)}, {vr(XO,4)}, 0")
        a.e(f"v_mfma_f32_16x16x32_bf16 {vr(S+4,4)}, {vr(KX+4,4)}, {vr(XO,4)}, 0")
        a.e(cv(XO+4, T+8)); a.e(cv(XO+5, T+10))
        a.e(f"v_mfma_f32_16x16x32_bf16 {vr(S+8,4)}, {vr(XO,4)}, {vr(XO,4)}, 0")
        a.e(f"v_mfma_f32_16x16x16_bf16 {vr(S,4)}, {vr(KX+8,2)}, {vr(XO+4,2)}, {vr(S,4)}")
        a.e(f"v_mfma_f32_16x16x16_bf16 {vr(S+4,4)}, {vr(KX+10,2)}, {vr(XO+4,2)}, {vr(S+4,4)}")
        a.e(f"v_mfma_f32_16x16x16_bf16 {vr(S+8,4)}, {vr(XO+4,2)}, {vr(XO+4,2)}, {vr(S+8,4)}")
        a.e("s_mov_b32 exec_lo, 0x00ff00ff"); a.e("s_mov_b32 exec_hi, 0x00ff00ff")
        a.e(f"ds_write_b128 v{vScW0}, {vr(S,4)}")
        a.nop(1)
        a.e(f"ds_write_b128 v{vScW1}, {vr(S+4,4)}")
        a.nop(3)
        a.e(f"ds_write_b128 v{vScWm}, {vr(S+8,4)}")
        a.e("s_mov_b64 exec, -1")
        a.e(f"s_cmp_eq_u32 s28, {nsteps-1}")
        a.e(f"s_cbranch_scc1 {pre}_last")
        a.e("s_cmp_lg_u32 s24, 0")
        a.e("s_waitcnt lgkmcnt(0)")
        a.e("s_barrier")
        a.e(f"s_cbranch_scc1 {pre}_nosm")
        ts(a, prof, 2)
        R = BST+24; M = BST+40; W = RING
        for w in range(4):
            a.e(f"ds_read_b128 {vr(R+4*w,4)}, v{vScR} offset:{1536*w}")
            a.e(f"ds_read_b32 v{M+w}, v{vScRm} offset:{1536*w}")
        a.e("s_waitcnt lgkmcnt(4)")
        a.e(f"v_pk_add_f32 {vr(R,2)}, {vr(R,2)}, {vr(R+4,2)}"); a.e(f"v_pk_add_f32 {vr(R+2,2)}, {vr(R+2,2)}, {vr(R+6,2)}")
        a.e(f"v_add_f32 v{M}, v{M}, v{M+1}")
        a.e("s_waitcnt lgkmcnt(0)")
        a.e(f"v_pk_add_f32 {vr(R+8,2)}, {vr(R+8,2)}, {vr(R+12,2)}"); a.e(f"v_pk_add_f32 {vr(R+10,2)}, {vr(R+10,2)}, {vr(R+14,2)}")
        a.e(f"v_add_f32 v{M+2}, v{M+2}, v{M+3}")
        a.e(f"v_pk_add_f32 {vr(R,2)}, {vr(R,2)}, {vr(R+8,2)}"); a.e(f"v_pk_add_f32 {vr(R+2,2)}, {vr(R+2,2)}, {vr(R+10,2)}")
        a.e(f"v_add_f32 v{M}, v{M}, v{M+2}")
        a.e(f"v_max3_f32 v{W}, v{R}, v{R+1}, v{R+2}")
        a.e(f"v_max3_f32 v{W}, v{W}, v{R+3}, v{M}")
        for d in ("quad_perm:[1,0,3,2]", "quad_perm:[2,3,0,1]", "row_ror:8"):
            a.nop(2)
            a.e(f"v_max_f32_dpp v{W}, v{W}, v{W} {d} row_mask:0xf bank_mask:0xf")
        a.e(f"v_mul_f32 v{W}, s36, v{W}")
        vals = [R, R+1, R+2, R+3, M]
        for v in (M, R, R+1, R+2, R+3): a.e(f"v_fma_f32 v{v}, v{v}, s36, -v{W}")
        for v in vals: a.e(f"v_exp_f32 v{v}, v{v}")
        a.e(f"v_add_f32 v{W}, v{R}, v{R+1}")
        a.e(f"v_add_f32 v{W+1}, v{R+2}, v{R+3}")
        a.e(f"v_add_f32 v{W}, v{W}, v{M}")
        a.e(f"v_add_f32 v{W}, v{W}, v{W+1}")
        for d in ("quad_perm:[1,0,3,2]", "quad_perm:[2,3,0,1]", "row_ror:8"):
            a.nop(2)
            a.e(f"v_add_f32_dpp v{W}, v{W}, v{W} {d} row_mask:0xf bank_mask:0xf")
        a.e(f"v_rcp_f32 v{W}, v{W}")
        a.nop(1)
        a.e(f"v_mul_f32 v{M}, v{M}, v{W}")
        for v in vals[:4]: a.e(f"v_mul_f32 v{v}, v{v}, v{W}")
        a.e(f"v_mov_b32_dpp v{W+2}, v{M} quad_perm:[0,0,2,2] row_mask:0xf bank_mask:0xf")
        a.e(f"v_mov_b32_dpp v{W+3}, v{M} quad_perm:[1,1,3,3] row_mask:0xf bank_mask:0xf")
        a.e(f"v_cvt_pk_bf16_f32 v{W+4}, v{R}, v{R+1}")
        a.e(f"v_cvt_pk_bf16_f32 v{W+5}, v{R+2}, v{R+3}")
        a.e(f"v_cvt_pk_bf16_f32 v{W+6}, v{W+2}, v{W+3}")
        for q in (4, 5): a.e(f"v_bfi_b32 v{W+q}, v{vMask}, v{W+q}, s29")
        a.e(f"buffer_store_dwordx2 {vr(W+4,2)}, v{vPx}, s[8:11], s37 offen {LST}")
        a.e(f"v_bfi_b32 v{W+6}, v{vMask}, v{W+6}, s29")
        a.e(f"buffer_store_dword v{W+6}, v{vPm}, s[8:11], s37 offen {LST}")
        ts(a, prof, 3)
        if HINT[0]:
            a.e(f"s_branch {pre}_b2")
            a.label(f"{pre}_nosm")
            a.e("s_cmp_lg_u32 s24, 1"); a.e(f"s_cbranch_scc1 {pre}_b2")
            a.e("s_add_u32 s30, s28, 1"); a.e("v_mov_b32 v2, s30"); a.e("s_mov_b64 exec, 1")
            a.nop(qh_nop)
            a.e(f"buffer_store_dword v2, off, s[8:11], s84 {LST}")
            a.e("s_mov_b64 exec, -1")
            a.label(f"{pre}_b2")
        else:
            a.label(f"{pre}_nosm")
        a.e("s_barrier")
        for i in range(hk_sleep): a.e("s_sleep 1")
        def km_export():
            a.e("s_mov_b32 exec_lo, 0xff00ff00"); a.e("s_mov_b32 exec_hi, 0xff00ff00")
            if x_km:
                a.e(f"buffer_store_dwordx4 {vr(XO,4)}, v{vKmA}, s[8:11], s54 offen sc1")
                a.e(f"buffer_store_dwordx2 {vr(XO+4,2)}, v{vKmB}, s[8:11], s54 offen sc1")
            a.e("s_mov_b64 exec, -1")
            a.e(f"s_add_u32 s54, s54, {32*3072}")
        a.e("v_cmp_eq_u32 vcc, 0, v0"); a.e("s_add_u32 s31, s28, 1")
        a.e(f"s_cbranch_vccz {pre}_nokf")
        kflag_wait(f"{pre}_kf", "s31")
        a.label(f"{pre}_nokf")
        kx_loads()
        if QARCH[0]:
            a.e("s_add_u32 s85, s85, s88"); a.e("s_sub_u32 s88, 0, s88"); a.e("s_mov_b32 s86, s87"); a.e(f"s_add_u32 s87, s87, {32*10240}")
        if upf:
            for r in (89, 90, 91): a.e(f"s_add_u32 s{r}, s{r}, {32*40960}")
        a.e("s_add_u32 s30, s28, 2"); a.e("s_min_u32 s30, s30, 63"); a.e("s_lshr_b32 s30, s30, 3"); a.e("s_lshl_b32 s30, s30, 9"); a.e("s_add_u32 s30, s30, s55")
        a.e(f"v_and_b32 v3, 4, v{vPm}")
        a.e(f"buffer_load_dword v0, v3, s[8:11], s30 offen sc1")
        km_export()
        a.e("s_cmp_lg_u32 s24, 3"); a.e(f"s_cbranch_scc1 {pre}_nofl")
        a.e("v_mov_b32 v2, s28"); a.e("s_mov_b64 exec, 1")
        a.e(f"buffer_store_dword v2, off, s[8:11], s34 sc1")
        if QARCH[0]:
            a.e("s_max_u32 s30, s28, 1"); a.e("s_sub_u32 s30, s30, 1"); a.e("v_mov_b32 v4, s30"); a.e(f"s_add_u32 s30, s34, {F_YR-F_KM}")
            a.e(f"buffer_store_dword v4, off, s[8:11], s30 sc1")
        if STEPLOG[0]:
            a.e("s_memrealtime s[100:101]"); a.e("s_lshl_b32 s30, s28, 2"); a.e("s_lshl_b32 s31, s27, 8"); a.e("s_add_u32 s30, s30, s31"); a.e(f"s_add_u32 s30, s30, {STEPLOG[0]}")
            a.e("s_waitcnt lgkmcnt(0)"); a.e("v_mov_b32 v3, s100")
            a.e("buffer_store_dword v3, off, s[8:11], s30")
        a.e("s_mov_b64 exec, -1")
        a.label(f"{pre}_nofl")
        ts(a, prof, 4)
        if fuse:
            def aftq():
                idle_prep()
                ts(a, prof, 6)
                prof_dump(a, prof, pre)
                a.e("s_add_u32 s28, s28, 1"); a.e("s_xor_b32 s29, s29, 0x80008000")
            def zacc():
                a.e("s_waitcnt lgkmcnt(0)")
                a.nop(8)
                for q in range(12): a.e(f"v_mov_b32 v{ACC+q}, 0")
            retry = h2_stage(a, pre, RING, None, None, vSB, vStW, vH2, vMk, 1, mk_sleep, prof, after=aftq, pollw=1, fused=zacc)
            for w in range(3):
                a.e(f"s_cmp_eq_u32 s24, {w}"); a.e(f"s_cbranch_scc1 {pre}_fz{w}")
            for w in (3, 0, 1, 2):
                a.label(f"{pre}_fz{w}")
                head_fused(w)
        else:
            retry = h2_stage(a, pre, RING, None, None, vSB, vStW, vH2, vMk, 1, mk_sleep, prof, after=idle_prep, nobar=True, pollw=1)
            ts(a, prof, 6)
            prof_dump(a, prof, pre)
            a.e("s_add_u32 s28, s28, 1"); a.e("s_xor_b32 s29, s29, 0x80008000")
            a.e(f"s_branch {pre}_loop")
        retry()
        a.label(f"{pre}_last")
        km_export()
        a.e("s_waitcnt vmcnt(0)")
        a.e("s_barrier")
        a.e(f"v_mov_b32 v2, {nsteps}"); a.e("v_mov_b32 v3, 0"); a.e("s_mov_b64 exec, 1")
        a.e(f"buffer_store_dword v2, v3, s[8:11], s34 offen sc1")
        if QARCH[0]:
            a.e(f"v_mov_b32 v4, {nsteps-1}"); a.e(f"s_add_u32 s30, s34, {F_YR-F_KM}"); a.e(f"buffer_store_dword v4, off, s[8:11], s30 sc1")
        a.e("s_waitcnt vmcnt(0)")
        a.e("s_mov_b64 exec, -1")
        a.e(f"s_branch {pre0}_end")
    pre0 = pre
    if cw:
        a.e("s_cmp_lt_u32 s81, 32"); a.e(f"s_cbranch_scc1 {pre}S_loop")
        emit_loop(pre, "", prof)
        emit_loop(pre + "S", "sc1", 0)
    else:
        emit_loop(pre, LST, prof)
    a.label(f"{pre}_end")

def vo_role(a, slow=False, cw=None, pre="VO", prof=0, mk_sleep=0, p_sleep=0, y_sleep=5, nsteps=64, uload=1, upol="", upre=1, vsp=3, mkw_sleep=1, rs_sleep=0, uwait=0, ustep=1, novm=0, mkearly=None, yfirst=0, late=0, apos=4, af='sc1', h_nop=0, ulate=0, dbl=0, ytag=1, p_nop=32, y_nop=0, fuse=1, ponly=1, pearly=1, ush=3):
    mkearly = MKE[0]
    if QARCH[0]: apos = 9
    LST = "sc1" if slow else ""
    WOL = 49152; MEMIMG = 131072; VBUF = 141312; RSC = 144384
    vIdx, vSB = 8, 10
    vAst, vStW, vH2, vMk, vVw0, vVw1, vVr, vYst, vYs0, vYs2, vU0, vU1, vU2, vPx, vPm, vRw, vRr, vPub = range(14, 32)
    vL16 = 9
    PR = 32; ACC = 52; U = 72; BST = 120; WV = 160; VA = BST+24; vYs4 = 9
    def wreg(o): return ar(8*o, 8) if o < 32 else vr(WV + 8*(o-32), 8)
    def wsub(o, k): return ar(8*o+k, 2) if o < 32 else vr(WV + 8*(o-32)+k, 2)
    a.e("v_and_b32 v1, 63, v0")
    a.e("s_load_dwordx4 s[32:35], s[0:1], 32")
    a.e("s_load_dwordx2 s[20:21], s[0:1], 8")
    a.e("s_waitcnt lgkmcnt(0)")
    a.e("s_mov_b32 s12, s32"); a.e("s_mov_b32 s13, s33"); a.e("s_mov_b32 s14, 7864320"); a.e("s_mov_b32 s15, 0x20000")
    a.e("s_mov_b32 s16, s34"); a.e("s_mov_b32 s17, s35"); a.e("s_mov_b32 s18, 7864320"); a.e("s_mov_b32 s19, 0x20000")
    a.e("s_mov_b32 s22, 10240"); a.e("s_mov_b32 s23, 0x20000")
    DV = 72
    a.e("s_lshr_b32 s31, s24, 1"); a.e(f"s_mul_i32 s31, s31, {32*12288}")
    for i in range(6):
        a.e("s_and_b32 s30, s24, 1")
        a.e("s_mul_i32 s30, s30, 384")
        a.e(f"s_add_u32 s30, s30, {64*i}")
        a.e("v_add_u32 v2, s30, v1")
        a.e("v_mul_u32_u24 v3, 2731, v2")
        a.e("v_lshrrev_b32 v3, 16, v3")
        a.e("v_mul_u32_u24 v4, 24, v3")
        a.e("v_sub_u32 v4, v2, v4")
        a.e("v_mul_u32_u24 v3, 12288, v3")
        a.e(f"v_lshl_add_u32 v3, v4, 4, v3")
        a.e(f"v_add_u32 v{DV+i}, s31, v3")
    a.e(f"v_lshlrev_b32 v{vL16}, 4, v1")
    a.e("v_lshrrev_b32 v3, 4, v1"); a.e("v_lshlrev_b32 v3, 2, v3"); a.e("v_bfe_u32 v4, v1, 2, 1"); a.e("v_add_u32 v5, v3, v4")
    a.e("v_bfe_u32 v2, v1, 3, 1")
    a.e("v_mul_u32_u24 v3, 12288, v2"); a.e("v_mul_u32_u24 v4, 384, v5"); a.e("v_add_u32 v3, v3, v4")
    a.e("v_and_b32 v4, 3, v1"); a.e("v_lshl_add_u32 v3, v4, 3, v3")
    a.e("s_mul_i32 s30, s24, 96"); a.e(f"v_add_u32 v{DV+6}, s30, v3")
    a.e("v_mul_u32_u24 v3, 1280, v5"); a.e("v_lshl_add_u32 v3, v2, 5, v3"); a.e("v_lshl_add_u32 v3, v4, 3, v3")
    a.e("s_mul_i32 s30, s24, 320"); a.e(f"v_add_u32 v{DV+7}, s30, v3")
    a.e("s_mul_i32 s34, s27, 384")
    a.e("s_mul_i32 s35, s24, 6144")
    a.e("s_mul_i32 s37, s24, 5120")
    a.e("s_mul_i32 s38, s27, 245760")
    a.e(f"v_add_u32 v6, s35, v{vL16}")
    a.e(f"v_add_u32 v{DV+9}, s37, v{vL16}")
    a.e(f"v_add_u32 v7, {WOL}, v{DV+9}")
    chunks = []
    ring = [0]
    def nextslot():
        o = (ring[0] % 6)*24576; ring[0] += 1; return o
    def wv_chunk(io, off, res):
        dma = []
        for i in range(6):
            p = [f"s_add_u32 m0, s35, {off}", f"s_add_u32 s36, s34, {io*64*12288}"] if i == 0 else ["s_add_u32 m0, m0, 1024", "s_nop 0"]
            dma.append(p + [f"buffer_load_dwordx4 v{DV+i}, s[12:15], s36 offen {WPOL[1]} lds"])
        tr = []
        for s_ in range(3):
            for H in range(2):
                for p in range(2):
                    dst = vr(BST+8*s_+4*H+2*p, 2) if res else wsub(io*3+s_, 4*H+2*p)
                    tr.append(f"ds_read_b64_tr_b16 {dst}, v{DV+8} offset:{(16*H+2*p)*384 + 32*s_}")
        r = [f"ds_write_b128 v6, {vr(BST+4*q,4)} offset:{off+1024*q}" for q in range(6)] if res else None
        return dict(off=off, size=24576, dma=dma, pre=[f"v_add_u32 v{DV+8}, {off}, v{DV+6}"], tr=tr, res=r)
    def wo_chunk(ep, H, off, res):
        dma = []
        for i in range(5):
            p = [f"s_add_u32 m0, s37, {off}", f"s_add_u32 s36, s38, {(2*ep+H)*20480}"] if i == 0 else ["s_add_u32 m0, m0, 1024", "s_add_u32 s36, s36, 1024"]
            dma.append(p + [f"buffer_load_dwordx4 v{DV+9}, s[16:19], s36 offen {WPOL[1]} lds"])
        tr = []
        for t in range(5):
            for p in range(2):
                dst = vr(BST+4*t+2*p, 2) if res else wsub(24+ep*5+t, 4*H+2*p)
                tr.append(f"ds_read_b64_tr_b16 {dst}, v{DV+8} offset:{2*p*1280 + 64*t}")
        r = [f"v_add_u32 v2, {off}, v{DV+9}"] + [f"ds_write_b128 v2, {vr(BST+4*t,4)} offset:{1024*t}" for t in range(5)] if res else None
        return dict(off=off, size=20480, dma=dma, pre=[f"v_add_u32 v{DV+8}, {off}, v{DV+7}"], tr=tr, res=r)
    ring[0] = 2
    for io in range(8): chunks.append(wv_chunk(io, nextslot(), False))
    for ep in range(4):
        for H in range(2): chunks.append(wo_chunk(ep, H, nextslot(), False))
    chunks.append(wv_chunk(8, 0, True)); chunks.append(wv_chunk(9, 24576, True))
    for ep in (4, 5):
        for H in range(2): chunks.append(wo_chunk(ep, H, WOL + (ep-4)*40960 + H*20480, True))
    load_weights(a, chunks, cw)
    a.e("WLOADED")
    if cw: census_check(a)
    stage_mem0(a, MEMIMG, PR, 0)
    common_consts(a, vIdx, vSB, vStW, vH2, vMk, MEMIMG, vo=True)
    a.e("s_mul_i32 s85, s24, 1536"); a.e("s_sub_u32 s85, 8192, s85")
    a.e("v_lshrrev_b32 v2, 4, v1"); a.e("v_bfe_u32 v3, v1, 3, 1"); a.e("v_lshl_add_u32 v2, v3, 2, v2")
    a.e("v_lshlrev_b32 v2, 7, v2"); a.e("v_and_b32 v3, 7, v1"); a.e("v_lshl_add_u32 v2, v3, 4, v2")
    a.e(f"v_add_u32 v{vAst}, {MEMIMG}, v2")
    a.e("v_and_b32 v2, 15, v1"); a.e("v_lshlrev_b32 v2, 4, v2"); a.e("v_bfe_u32 v3, v1, 4, 1"); a.e("v_lshl_add_u32 v2, v3, 3, v2")
    a.e("s_mul_i32 s30, s24, 768"); a.e(f"s_add_u32 s30, s30, {VBUF}")
    a.e("v_add_u32 v2, s30, v2"); a.e(f"v_add_u32 v{vVw1}, 512, v2")
    a.e("v_lshrrev_b32 v3, 5, v1"); a.e(f"v_mul_u32_u24 v3, 4096, v3"); a.e(f"v_add_u32 v{vVw1}, v3, v{vVw1}")
    a.e("v_lshrrev_b32 v3, 5, v1"); a.e(f"v_lshl_add_u32 v{vVw0}, v3, 8, v2")
    a.e("v_lshrrev_b32 v2, 4, v1"); a.e("v_bfe_u32 v3, v1, 2, 2"); a.e("v_lshl_add_u32 v2, v2, 3, v3"); a.e("v_lshlrev_b32 v2, 4, v2")
    a.e("v_and_b32 v3, 1, v1"); a.e("v_lshl_add_u32 v2, v3, 3, v2"); a.e(f"v_add_u32 v{vVr}, {VBUF}, v2")
    a.e("v_and_b32 v2, 15, v1"); a.e("v_lshrrev_b32 v3, 5, v1"); a.e("v_lshl_add_u32 v2, v3, 4, v2"); a.e("v_lshlrev_b32 v2, 4, v2")
    a.e("v_bfe_u32 v3, v1, 4, 1"); a.e("v_lshl_add_u32 v2, v3, 3, v2")
    a.e("s_mul_i32 s30, s24, 2560"); a.e(f"v_add_u32 v{vYst}, s30, v2")
    a.e("v_lshrrev_b32 v2, 4, v1"); a.e("s_lshl_b32 s30, s24, 2"); a.e("v_add_u32 v2, s30, v2"); a.e("v_mul_u32_u24 v2, 10240, v2")
    a.e("s_mul_i32 s30, s26, 640"); a.e("v_add_u32 v2, s30, v2")
    a.e("v_and_b32 v3, 15, v1"); a.e(f"v_lshl_add_u32 v{vYs0}, v3, 4, v2")
    a.e("v_and_b32 v3, 7, v1"); a.e("v_add_u32 v3, 32, v3"); a.e(f"v_lshl_add_u32 v{vYs2}, v3, 4, v2")
    a.e("v_lshrrev_b32 v4, 4, v1"); a.e("v_lshlrev_b32 v4, 9, v4")
    a.e("s_mul_i32 s30, s26, 40")
    for t in range(3):
        a.e(f"v_and_b32 v2, {15 if t < 2 else 7}, v1"); a.e(f"v_add_u32 v2, {16*t}, v2"); a.e("v_add_u32 v2, s30, v2")
        a.e("v_lshrrev_b32 v3, 5, v2"); a.e("v_lshl_add_u32 v3, v3, 11, v4")
        a.e("v_and_b32 v2, 31, v2"); a.e(f"v_lshl_add_u32 v{vU0+t}, v2, 4, v3")
    a.e("s_mul_i32 s30, s24, 2560")
    a.e("v_lshrrev_b32 v2, 5, v1"); a.e("v_mul_u32_u24 v2, 640, v2"); a.e("v_bfe_u32 v3, v1, 2, 2"); a.e("v_lshl_add_u32 v2, v3, 7, v2")
    a.e("v_bfe_u32 v4, v1, 4, 1"); a.e("v_lshl_add_u32 v2, v4, 6, v2"); a.e("v_and_b32 v4, 3, v1"); a.e("v_lshl_add_u32 v2, v4, 4, v2")
    a.e(f"v_add_u32 v{vPx}, s30, v2")
    a.e("v_lshrrev_b32 v2, 4, v1"); a.e("v_mul_u32_u24 v2, 640, v2"); a.e("v_and_b32 v3, 15, v1"); a.e("v_lshl_add_u32 v2, v3, 3, v2")
    a.e("v_add_u32 v2, 512, v2"); a.e(f"v_add_u32 v{vPm}, s30, v2")
    a.e("s_mul_i32 s30, s24, 1536"); a.e(f"s_add_u32 s30, s30, {RSC}")
    a.e("v_and_b32 v2, 15, v1"); a.e("v_lshlrev_b32 v2, 5, v2"); a.e("v_lshrrev_b32 v3, 5, v1"); a.e("v_bfe_u32 v4, v1, 2, 1"); a.e("v_xor_b32 v3, v3, v4")
    a.e("v_lshl_add_u32 v2, v3, 4, v2"); a.e("v_bfe_u32 v3, v1, 4, 1"); a.e("v_lshl_add_u32 v2, v3, 3, v2"); a.e(f"v_add_u32 v{vRw}, s30, v2")
    a.e("v_min_u32 v2, 39, v1"); a.e("v_lshrrev_b32 v3, 1, v2"); a.e("s_and_b32 s30, s24, 1"); a.e("s_mul_i32 s30, s30, 20"); a.e("v_add_u32 v3, s30, v3")
    a.e("v_and_b32 v2, 1, v2")
    a.e("v_bfe_u32 v4, v3, 2, 1"); a.e("v_xor_b32 v4, v4, v2"); a.e("v_lshlrev_b32 v4, 4, v4"); a.e("v_lshl_add_u32 v4, v3, 5, v4")
    a.e(f"v_add_u32 v{vRr}, {RSC}, v4")
    a.e("s_mul_i32 s30, s26, 40"); a.e("v_add_u32 v3, s30, v3")
    a.e("v_lshrrev_b32 v4, 8, v3"); a.e("v_lshlrev_b32 v4, 14, v4"); a.e("v_and_b32 v3, 255, v3"); a.e("v_lshl_add_u32 v4, v3, 4, v4"); a.e("v_lshl_add_u32 v4, v2, 3, v4")
    a.e("s_lshl_b32 s30, s25, 12"); a.e(f"v_add_u32 v{vPub}, s30, v4")
    a.e(f"s_add_u32 s32, s46, {LOC_Y}")
    a.e("s_mul_i32 s33, s26, 10240"); a.e("s_add_u32 s33, s33, s32")
    if HM[0]: a.e("s_lshl_b32 s30, s24, 3"); a.e("s_add_u32 s30, s30, s25")
    else: a.e("s_lshl_b32 s30, s25, 4"); a.e("s_lshl_b32 s31, s24, 2"); a.e("s_add_u32 s30, s30, s31")
    a.e("s_mul_i32 s38, s30, 40960"); a.e(f"s_add_u32 s38, s38, {WS_U}")
    a.e("s_mul_i32 s54, s27, 10240"); a.e(f"s_add_u32 s54, s54, {WS_YA}")
    a.e(f"s_add_u32 s88, s46, {LOC_DUMMY}")
    a.e("s_lshl_b32 s84, s26, 7"); a.e("s_add_u32 s84, s84, s45"); a.e("s_add_u32 s84, s84, 4096")

    a.e(f"s_lshl_b32 s34, s27, 7"); a.e(f"s_add_u32 s34, s34, {WS_FLAGS+F_YR}")

    a.e(f"s_lshl_b32 s55, s25, {4 if HM[0] else 8}"); a.e(f"s_add_u32 s55, s55, {WS_FLAGS+F_U}")
    a.e(f"s_mul_i32 s35, s26, {MKS[0]}"); a.e("s_add_u32 s35, s35, s45")
    if MKG[0]:
        a.e("s_lshl_b32 s30, s25, 11"); a.e("s_add_u32 s35, s35, s30")
        if mkearly:
            a.e("s_and_b32 s30, s24, 1"); a.e("s_lshl_b32 s30, s30, 6"); a.e("s_add_u32 s35, s35, s30")
            a.e("s_cmp_lt_u32 s24, 2"); a.e("s_cselect_b32 s30, 4096, 0"); a.e("s_add_u32 s35, s35, s30")
    if mkearly and not MKG[0]:
        a.e("s_lshl_b32 s30, s24, 2"); a.e("s_add_u32 s35, s35, s30"); a.e("s_mov_b64 s[96:97], 1")
        a.e("v_and_b32 v2, 3, v1"); a.e("v_lshrrev_b32 v3, 2, v1"); a.e(f"v_mul_u32_u24 v3, {MKS[0]}, v3"); a.e(f"v_lshl_add_u32 v{vMk}, v2, 2, v3")
    a.e("s_mov_b32 s28, 0"); a.e("s_mov_b32 s29, 0"); a.e("s_mov_b32 s37, 0"); a.e("s_mov_b32 s91, 0")
    def uflag_wait(lab, reg):
        a.e(f"s_lshr_b32 s30, {reg}, 3"); a.e("s_lshl_b32 s30, s30, 9"); a.e("s_add_u32 s30, s30, s55")
        a.e("v_mbcnt_lo_u32_b32 v3, -1, 0"); a.e("v_mbcnt_hi_u32_b32 v3, -1, v3"); a.e(f"v_and_b32 v2, {60 if HM[0] else 0}, v3"); a.e("v_add_lshl_u32 v3, v3, v2, 2")
        a.label(lab)
        a.e(f"buffer_load_dword v2, v3, s[8:11], s30 offen sc1")
        a.e("s_sub_u32 s82, s82, 1"); a.e("s_cbranch_scc1 L_abort")
        a.e("s_waitcnt vmcnt(0)")
        a.e("v_cmp_eq_u32 vcc, 0, v2")
        a.e(f"s_cbranch_vccnz {lab}")
    def u_loads():
        it = []
        for hh in range(4):
            for t in range(3):
                r = U + (t*2 + (hh >> 1))*8 + (hh & 1)*4
                p = []
                if t == 0: p = [f"s_add_u32 s31, s38, {hh*40960}"]
                it.append(p + [f"buffer_load_dwordx4 {vr(r,4)}, v{vU0+t}, s[8:11], s31 offen {upol}"])
        it[-1].append(f"s_add_u32 s38, s38, {32*40960}")
        return it
    def lv(L): return [f"ds_read_b128 {vr(BST+4*q,4)}, v6 offset:{L*24576 + 1024*q}" for q in range(6)]
    def lo(L): return [f"ds_read_b128 {vr(BST+8*t+4*H,4)}, v{5 if L else 7} offset:{H*20480 + 1024*t}" for t in range(5) for H in range(2)]
    def usoff():
        for hh in range(4): a.e(f"s_add_u32 s{92+hh}, s38, {hh*(81920 if HM[0] else 40960)}")
        a.e(f"s_add_u32 s38, s38, {32*40960*ustep}")
    def idle_prep(nxt=2):
        for ins in lv(0): a.e(ins)
        for q in range(12): a.e(f"v_mov_b32 v{VA+q}, 0")
        for q in range(20): a.e(f"v_mov_b32 v{ACC+q}, 0")
        a.e("v_add_u32 v5, 40960, v7")
        if not ulate or nxt == 1: usoff()
        a.e(f"s_add_u32 s89, s28, {nxt}"); a.e("s_min_u32 s89, s89, 63"); a.e("s_lshr_b32 s89, s89, 3"); a.e("s_lshl_b32 s89, s89, 9"); a.e("s_add_u32 s89, s89, s55")
    a.e("v_and_b32 v2, 15, v1"); a.e("v_bfe_u32 v3, v1, 4, 1"); a.e("v_lshl_add_u32 v2, v3, 5, v2"); a.e("v_lshrrev_b32 v3, 5, v1"); a.e("v_lshl_add_u32 v2, v3, 4, v2")
    a.e("v_lshlrev_b32 v2, 4, v2"); a.e("s_mul_i32 s30, s24, 2560"); a.e(f"v_add_u32 v{vYs4}, s30, v2")
    for q in range(4): a.e(f"v_mov_b32 v{U+32+q}, -1")
    a.e(f"s_add_u32 s36, s32, 163840")
    uflag_wait(f"{pre}_uf0", "s28")
    stage_mem0(a, MEMIMG, PR, 1)
    idle_prep(1)
    for hh, t in [(hh, t) for hh in range(4) for t in range(3)][:ush]:
        a.e(f"buffer_load_dwordx4 {vr(U + (t*2 + (hh >> 1))*8 + (hh & 1)*4,4)}, v{vU0+t}, s[8:11], s{92+hh} offen {upol}")
    if ulate:
        for hh in range(4):
            for t in range(2): a.e(f"buffer_load_dwordx4 {vr(U + (t*2 + (hh >> 1))*8 + (hh & 1)*4,4)}, v{vU0+t}, s[8:11], s{92+hh} offen {upol}")
    a.e("s_waitcnt lgkmcnt(0)")
    a.e("s_barrier")
    a.e("LOOPSTART")
    def emit_loop(pre, LST, prof):
        def uld(hh, t): return [f"buffer_load_dwordx4 {vr(U + (t*2 + (hh >> 1))*8 + (hh & 1)*4,4)}, v{vU0+t}, s[8:11], s{92+hh} offen {upol}"]
        arch = [f"buffer_store_dwordx4 {vr(U+36,4)}, v{vYs4}, s[8:11], s88 offen {af}", f"buffer_store_dwordx4 {vr(U+40,4)}, v{vYs4}, s[8:11], s88 offen offset:1024 {af}",
                f"buffer_store_dwordx2 {vr(U+44,2)}, v{vYst}, s[8:11], s88 offen offset:2048 {af}"]
        rst = [f"buffer_store_dwordx4 {vr(U+32,4)}, v{vYs0}, s[8:11], s90 offen {LST}", f"buffer_store_dwordx4 {vr(U+32,4)}, v{vYs0}, s[8:11], s90 offen offset:256 {LST}",
               f"buffer_store_dwordx4 {vr(U+32,4)}, v{vYs2}, s[8:11], s90 offen {LST}"]
        vm = [uld(hh, t) for hh in range(4) for t in range(3)]
        if apos == 1: vm = [[x] for x in arch] + vm
        if late == 2: vm = [[x] for x in arch] + [[x.replace("s90", "s36")] for x in rst] + vm[3:]
        if late == 3: vm = [uld(hh, t) for hh in range(4) for t in range(2)][:4] + [[x] for x in arch] + [uld(hh, t) for hh in range(4) for t in range(2)][4:] + [[x.replace("s90", "s36")] for x in rst] + [uld(hh, 2) for hh in range(4)]
        if ulate: vm = [[x] for x in arch] + [uld(hh, 2) for hh in range(4)]
        if apos == 2: vm = [uld(hh, t) for hh in range(4) for t in range(2)] + [[x] for x in arch] + [uld(hh, 2) for hh in range(4)]
        vm += [["v_mbcnt_lo_u32_b32 v4, -1, 0", "v_mbcnt_hi_u32_b32 v4, -1, v4", f"v_and_b32 v0, {60 if HM[0] else 0}, v4", "v_add_lshl_u32 v4, v4, v0, 2", "buffer_load_dword v0, v4, s[8:11], s89 offen sc1"] + (["v_and_b32 v4, 127, v4", "v_lshlrev_b32 v3, 5, v4", "s_add_u32 s30, s28, 1", "v_mov_b32 v2, s30"] if HINT[0] else [])]
        if novm == 1: vm = []
        if novm == 2: vm = [x for x in vm if "sc1" not in x[0]]
        if novm == 3: vm = [x for x in vm if "store" not in x[0]]
        if novm == 4: vm = [x for x in vm if "store" in x[0]]
        def vmpop():
            if vm: a.e("\n".join(vm.pop(0)))
        vsh = vm[:ush]; vm[:] = vm[ush:]
        vm0 = list(vm)
        def lop(i):
            return [f"ds_read_b128 {vr(BST+8*(i%5)+4*H,4)}, v{5 if i >= 5 else 7} offset:{H*20480 + 1024*(i%5)}" for H in range(2)]
        def v_ctx(w):
            rest = [(2*w + 2 + i) % 8 for i in range(6)]
            order = [2*w, 2*w+1, 8] + rest[:4] + [9] + rest[4:]
            def aread(p): return f"ds_read_b128 {vr(PR+4*(p%4),4)}, v{vAst} offset:{1024*order[p]}"
            def sm(p, t):
                io = order[p]
                return f"{SM64} {vr(VA+4*t,4)}, {vr(PR+4*(p%4),4)}, {wreg(io*3+t) if io < 8 else vr(BST+8*t, 8)}, v{vIdx}"
            return order, aread, sm
        def cv(d, s0): return f"v_cvt_pk_bf16_f32 v{d}, v{s0}, v{s0+1}"
        def vhead_fused(w, extra):
            order, aread, sm = v_ctx(w)
            PD = PR; tv = 3
            def chk(k):
                r = PD+4*k
                a.e(f"s_waitcnt vmcnt({4-k+extra})")
                if k in (0, 4): ts(a, prof, 1 if k == 0 else 7, 1)
                if k == 0: a.e(f"v_max3_u32 v{tv}, v{r}, v{r+1}, v{r+2}"); a.e(f"v_max_u32 v{tv}, v{tv}, v{r+3}")
                else: a.e(f"v_max3_u32 v{tv}, v{r}, v{r+1}, v{tv}"); a.e(f"v_max3_u32 v{tv}, v{r+2}, v{r+3}, v{tv}")
                a.e(f"v_mfma_f32_16x16x32_bf16 {vr(r,4)}, {vr(r,4)}, {vr(vSB,4)}, 0")
            def put(k):
                q = PD+4*k
                a.e(cv(q, q)); a.e(cv(q+1, q+2))
                a.e(f"ds_write_b64 v{vStW}, {vr(q,2)} offset:{512*k if k < 4 else 8192 - 1536*w}")
            chk(0); chk(1); chk(2)
            put(0)
            chk(3)
            put(1); a.e(aread(0))
            chk(4)
            a.e(f"v_cmp_eq_u32 vcc, -1, v{tv}")
            put(2); put(3); a.e(aread(1))
            put(4)
            a.e(f"s_cbranch_vccnz {pre}_h2r0")
            ts(a, prof, 0)
            a.e("s_waitcnt lgkmcnt(4)")
            for t in range(3): a.e(sm(0, t))
            a.e("s_waitcnt lgkmcnt(0)")
            a.e("s_barrier")
            a.e(aread(2)); a.e(aread(3))
            a.e(sm(1, 0)); a.e(aread(4)); a.e(sm(1, 1)); a.e(sm(1, 2))
            a.e(f"s_branch {pre}_vt{w}")
        a.label(f"{pre}_loop")
        a.e("s_waitcnt lgkmcnt(0)")
        a.e("s_barrier")
        for w in range(3):
            a.e(f"s_cmp_eq_u32 s24, {w}"); a.e(f"s_cbranch_scc1 {pre}_vw{w}")
        for w in (3, 0, 1, 2):
            a.label(f"{pre}_vw{w}")
            ts(a, prof, 0)
            order, aread, sm = v_ctx(w)
            for p in range(3): a.e(aread(p))
            for p in range(2):
                a.e("s_waitcnt lgkmcnt(2)")
                a.e(sm(p, 0)); a.e(aread(p+3)); a.e(sm(p, 1)); a.e(sm(p, 2))
            a.label(f"{pre}_vt{w}")
            vm[:] = list(vm0)
            for i in range(upre): vmpop()
            lq = [("A", 2), ("A", 3), ("A", 4)]
            ex = []
            cnt = 0
            for p in range(2, 10):
                need = [("A", p)] + ([("L", 1)] if p == 7 else [])
                idx = [i for i, t in enumerate(lq) if t in need]
                if idx:
                    a.e(f"s_waitcnt lgkmcnt({len(lq)-1-max(idx)})")
                    lq = lq[max(idx)+1:]
                if p == 3: ex = lv(1)
                if p == 8: ex = lop(0) + lop(1) + lop(2)
                for t in range(3):
                    a.e(sm(p, t))
                    cnt += 1
                    if t == 0 and p+3 < 10:
                        a.e(aread(p+3)); lq.append(("A", p+3))
                    elif p >= 8:
                        if ex: a.e(ex.pop(0)); lq.append(("O", 0))
                    elif ex:
                        a.e(ex.pop(0)); lq.append(("L", 1))
                    if cnt % vsp == 0: vmpop()
            assert not ex
            if w != 2: a.e(f"s_branch {pre}_vpost")
        a.label(f"{pre}_vpost")
        ts(a, prof, 1); ts(a, prof, 1, 2)
        a.nop(4)
        F = PR
        for q in range(4): a.e(f"v_permlane32_swap_b32 v{VA+q}, v{VA+4+q}")
        for q in range(4): a.e(f"v_permlane32_swap_b32 v{VA+8+q}, v{F+4+q}")
        a.e(f"v_pk_add_f32 {vr(F,2)}, {vr(VA,2)}, {vr(VA+4,2)}"); a.e(f"v_pk_add_f32 {vr(F+2,2)}, {vr(VA+2,2)}, {vr(VA+6,2)}")
        a.e(f"v_cvt_pk_bf16_f32 v{F}, v{F}, v{F+1}"); a.e(f"v_cvt_pk_bf16_f32 v{F+1}, v{F+2}, v{F+3}")
        a.e(f"v_pk_add_f32 {vr(F+4,2)}, {vr(VA+8,2)}, {vr(F+4,2)}"); a.e(f"v_pk_add_f32 {vr(F+6,2)}, {vr(VA+10,2)}, {vr(F+6,2)}")
        a.e(f"ds_write_b64 v{vVw0}, {vr(F,2)}")
        a.e(f"v_cvt_pk_bf16_f32 v{F+4}, v{F+4}, v{F+5}"); a.e(f"v_cvt_pk_bf16_f32 v{F+5}, v{F+6}, v{F+7}")
        a.e(f"ds_write_b64 v{vVw1}, {vr(F+4,2)}")
        ts(a, prof, 2, 2)
        vmpop()
        a.e("s_waitcnt lgkmcnt(0)")
        a.e("s_barrier")
        ts(a, prof, 3, 2)
        def areg(e): return PR+12 if e == 4 else PR+16 if e == 5 else PR+4*(e % 3)
        def vread(e): return [f"ds_read_b64_tr_b16 {vr(areg(e)+2*h,2)}, v{vVr} offset:{512*e + 64*h}" for h in range(2)]
        lq = []
        for e in (0, 4, 1):
            for ins in vread(e): a.e(ins); lq.append(("A", e))
        vmpop(); vmpop()
        seq = []; r = [(e, t) for e in range(4) for t in range(5)]; l = [(4+i//5, i%5) for i in range(10)]
        for pos in range(30): seq.append(l.pop(0) if pos % 3 == 2 else r.pop(0))
        pend = [(0, ("O", 3), lop(3)), (0, ("A", 2), vread(2)), (0, ("O", 4), lop(4)), (3, ("O", 5), lop(5)), (3, ("A", 5), vread(5)), (6, ("O", 6), lop(6)),
                (7, ("A", 3), vread(3)), (9, ("O", 7), lop(7)), (12, ("O", 8), lop(8)), (15, ("O", 9), lop(9))]
        flat = [(p0, tag, ins) for p0, tag, inss in pend for ins in inss]
        for pos, (e, t) in enumerate(seq):
            need = [("A", e)] + ([("O", (e-4)*5+t)] if e >= 4 else [])
            idxs = [i for i, tg in enumerate(lq) if tg in need]
            assert not any(tag in need for _, tag, _ in flat), (pos, need)
            if idxs:
                last = max(idxs)
                a.e(f"s_waitcnt lgkmcnt({len(lq)-1-last})")
                lq = lq[last+1:]
            B = wreg(24+e*5+t) if e < 4 else vr(BST+8*t, 8)
            a.e(f"{SM64} {vr(ACC+4*t,4)}, {vr(areg(e),4)}, {B}, v{vIdx}")
            if pos == 0: ts(a, prof, 4, 2)
            if flat and flat[0][0] <= pos:
                _, tag, ins = flat.pop(0); a.e(ins); lq.append(tag)
            if pos % 4 == 3 or pos == 29: vmpop()
        assert not vm and not flat
        ts(a, prof, 2); ts(a, prof, 7, 2)
        YC = PR
        def ycvt(t):
            a.e(f"v_cvt_pk_bf16_f32 v{YC+2*t}, v{ACC+4*t}, v{ACC+4*t+1}")
            a.e(f"v_cvt_pk_bf16_f32 v{YC+2*t+1}, v{ACC+4*t+2}, v{ACC+4*t+3}")
        def ymin(t):
            if ytag:
                a.e(f"v_and_or_b32 v{YC+2*t}, v{YC+2*t}, -2, s91"); a.e(f"v_and_or_b32 v{YC+2*t+1}, v{YC+2*t+1}, -2, s91")
            else:
                a.e(f"v_min_u32 v{YC+2*t}, -2, v{YC+2*t}"); a.e(f"v_min_u32 v{YC+2*t+1}, -2, v{YC+2*t+1}")
        def ystores(so, fl):
            ycvt(0); ycvt(1); ymin(0); ymin(1); ycvt(2)
            a.e(f"v_permlane16_swap_b32 v{YC}, v{YC+2}"); a.e(f"v_permlane16_swap_b32 v{YC+1}, v{YC+3}")
            ycvt(3)
            a.e(f"buffer_store_dwordx4 {vr(YC,4)}, v{vYs4}, s[8:11], {so} offen {fl}")
            ymin(2); ymin(3); ycvt(4)
            a.e(f"v_permlane16_swap_b32 v{YC+4}, v{YC+6}"); a.e(f"v_permlane16_swap_b32 v{YC+5}, v{YC+7}")
            ymin(4)
            a.e(f"buffer_store_dwordx4 {vr(YC+4,4)}, v{vYs4}, s[8:11], {so} offen offset:1024 {fl}")
            a.e(f"buffer_store_dwordx2 {vr(YC+8,2)}, v{vYst}, s[8:11], {so} offen offset:2048 {fl}")
        if uwait == 1:
            a.e("s_waitcnt vmcnt(0)"); ts(a, prof, 1)
        a.e(f"s_cmp_eq_u32 s28, {nsteps-1}")
        a.e(f"s_cbranch_scc1 {pre}_last")
        a.e("s_add_u32 s31, s33, s37")
        if HINT[0]:
            a.e("s_cmp_lg_u32 s24, 0"); a.e(f"s_cbranch_scc1 {pre}_noh")
            a.e("s_mov_b64 exec, 1")
            a.e(f"buffer_store_dword v2, off, s[8:11], s84 {LST}")
            a.e("s_mov_b64 exec, -1")
            a.label(f"{pre}_noh")
        ystores("s31", LST)
        if HINT[0]:
            a.e(f"buffer_load_dword v1, v3, s[8:11], s45 offen offset:2048 sc1")
        if uwait == 2:
            ts(a, prof, 1); a.e("s_waitcnt vmcnt(0)"); ts(a, prof, 2)
        YS = BST; P0 = BST+12; RA = BST+24
        for q in range(12): a.e(f"v_mov_b32 v{RA+q}, 0")
        a.e("s_add_u32 s30, s28, 1"); a.e(f"v_mov_b32 v{PR+10}, s30")
        a.e("s_add_u32 s90, s32, s37")
        h2_base(a, "s53", None)
        if HINT[0]:
            a.e("s_add_u32 s30, s28, 1")
            a.e("s_waitcnt vmcnt(0)")
            a.e("v_cmp_gt_u32 vcc, s30, v1")
            a.e(f"s_cbranch_vccz {pre}_hok")
            a.label(f"{pre}_hp")
            a.e(f"buffer_load_dword v1, v3, s[8:11], s45 offen offset:2048 sc1")
            if prof: a.e("s_add_u32 s83, s83, 0x1000000")
            a.e("s_sub_u32 s82, s82, 1"); a.e("s_cbranch_scc1 L_abort")
            a.e("s_waitcnt vmcnt(0)")
            a.e("v_cmp_gt_u32 vcc, s30, v1")
            a.e(f"s_cbranch_vccnz {pre}_hp")
            a.label(f"{pre}_hok")
            a.nop(h_nop)
        else:
            for i in range(y_sleep): a.e("s_sleep 1")
            a.nop(y_nop)
        def yload():
            a.e(f"buffer_load_dwordx4 {vr(YS,4)}, v{vYs0}, s[8:11], s90 offen sc1")
            a.e(f"buffer_load_dwordx4 {vr(YS+4,4)}, v{vYs0}, s[8:11], s90 offen offset:256 sc1")
            a.e(f"buffer_load_dwordx4 {vr(YS+8,4)}, v{vYs2}, s[8:11], s90 offen sc1")
        def ycheck():
            a.e(f"v_max3_u32 v1, v{YS}, v{YS+1}, v{YS+2}")
            for q in (3, 5, 7, 9): a.e(f"v_max3_u32 v1, v{YS+q}, v{YS+q+1}, v1")
            a.e(f"v_max_u32 v1, v{YS+11}, v1")
            a.e("v_cmp_eq_u32 vcc, -1, v1")
        def pload(P):
            a.e(f"buffer_load_dwordx4 {vr(P,4)}, v{vPx}, s[8:11], s46 offen sc1")
            a.e(f"buffer_load_dwordx4 {vr(P+4,4)}, v{vPx}, s[8:11], s46 offen offset:1280 sc1")
            a.e(f"buffer_load_dwordx2 {vr(P+8,2)}, v{vPm}, s[8:11], s46 offen sc1")
        tb = 0
        for i in range(8):
            A_, B_, C_ = (i >> 2) & 1, (i >> 1) & 1, i & 1
            if (A_ ^ C_) | (B_ ^ C_): tb |= 1 << i
        def yload2(Y):
            a.e(f"buffer_load_dwordx4 {vr(Y,4)}, v{vYs0}, s[8:11], s90 offen sc1")
            a.e(f"buffer_load_dwordx4 {vr(Y+4,4)}, v{vYs0}, s[8:11], s90 offen offset:256 sc1")
            a.e(f"buffer_load_dwordx4 {vr(Y+8,4)}, v{vYs2}, s[8:11], s90 offen sc1")
        def consume(Px, Pm, Y, young, bad, yf=False, first=False):
            if yf:
                a.e(f"s_waitcnt vmcnt({3+young})")
                for q in range(3): a.e(f"v_bitop3_b32 v{2+q}, v{Y+2*q}, v{Y+2*q+1}, s91 bitop3:{tb}")
                a.e("v_or3_b32 v2, v2, v3, v4")
                for q in range(2): a.e(f"v_bitop3_b32 v{3+q}, v{Y+6+2*q}, v{Y+7+2*q}, s91 bitop3:{tb}")
                a.e("v_or3_b32 v2, v2, v3, v4"); a.e(f"v_bitop3_b32 v3, v{Y+10}, v{Y+11}, s91 bitop3:{tb}"); a.e("v_or_b32 v2, v2, v3"); a.e(f"v_lshlrev_b32 v{PR+14}, 31, v2")
                a.e(f"s_waitcnt vmcnt({2+young})")
                ts(a, prof, 3)
                for t in range(3):
                    a.e(f"{SM64} {vr(RA+4*t,4)}, {vr(Px,4)}, {vr(U+16*t,8)}, v{vIdx} abid:1")
                    if t < 2: a.e(f"v_bitop3_b32 v{1+t}, v{Px+2*t}, v{Px+2*t+1}, s29 bitop3:{tb}")
                    else: a.e(f"v_or3_b32 v1, v1, v2, v{PR+14}")
                a.e(f"s_waitcnt vmcnt({1+young})")
                for t in range(3):
                    a.e(f"{SM64} {vr(RA+4*t,4)}, {vr(Px+4,4)}, {vr(U+16*t+8,8)}, v{vIdx} abid:1")
                    if t < 2: a.e(f"v_bitop3_b32 v{3+t}, v{Px+4+2*t}, v{Px+4+2*t+1}, s29 bitop3:{tb}")
                    else: a.e("v_or3_b32 v1, v1, v3, v4")
                a.e(f"s_waitcnt vmcnt({young})")
                for t in range(3):
                    a.e(f"{SM32} {vr(RA+4*t,4)}, {vr(Pm,2)}, {vr(Y+4*t,4)}, v{vIdx} abid:2")
                    if t == 0: a.e(f"v_bitop3_b32 v2, v{Pm}, v{Pm+1}, s29 bitop3:{tb}")
                    elif t == 1: a.e("v_or_b32 v1, v1, v2")
                a.e("v_cmp_gt_i32 vcc, 0, v1")
                a.e(f"s_cbranch_vccnz {bad}")
                return
            a.e(f"s_waitcnt vmcnt({5+young})")
            if young: ts(a, prof, 3)
            if mkearly == 2 and first:
                a.e("s_mov_b64 exec, 1")
                a.e(f"buffer_store_dword v{PR+10}, off, s[8:11], s35 sc1")
                a.e("s_mov_b64 exec, -1")
                young += 1
            for t in range(3):
                a.e(f"{SM64} {vr(RA+4*t,4)}, {vr(Px,4)}, {vr(U+16*t,8)}, v{vIdx} abid:1")
                if t < 2: a.e(f"v_bitop3_b32 v{1+t}, v{Px+2*t}, v{Px+2*t+1}, s29 bitop3:{tb}")
            a.e(f"s_waitcnt vmcnt({4+young})")
            for t in range(3):
                a.e(f"{SM64} {vr(RA+4*t,4)}, {vr(Px+4,4)}, {vr(U+16*t+8,8)}, v{vIdx} abid:1")
                if t < 2: a.e(f"v_bitop3_b32 v{3+t}, v{Px+4+2*t}, v{Px+4+2*t+1}, s29 bitop3:{tb}")
                else: a.e("v_or3_b32 v1, v1, v2, v3")
            if first and pearly:
                a.e("v_or_b32 v1, v1, v4"); a.e("v_cmp_gt_i32 vcc, 0, v1"); a.e(f"s_cbranch_vccnz {pre}_pe")
            for t in range(3):
                a.e(f"s_waitcnt vmcnt({2-t+young})")
                a.e(f"{SM32} {vr(RA+4*t,4)}, {vr(Pm,2)}, {vr(Y+4*t,4)}, v{vIdx} abid:2")
                if ytag:
                    if t == 0:
                        a.e(f"v_bitop3_b32 v2, v{Pm}, v{Pm+1}, s29 bitop3:{tb}")
                        a.e("v_or3_b32 v1, v1, v4, v2")
                        a.e(f"v_bitop3_b32 v2, v{Y}, v{Y+1}, s91 bitop3:{tb}"); a.e(f"v_bitop3_b32 v3, v{Y+2}, v{Y+3}, s91 bitop3:{tb}")
                    else:
                        a.e(f"v_bitop3_b32 v4, v{Y+4*t}, v{Y+4*t+1}, s91 bitop3:{tb}"); a.e("v_or3_b32 v2, v2, v3, v4"); a.e(f"v_bitop3_b32 v3, v{Y+4*t+2}, v{Y+4*t+3}, s91 bitop3:{tb}")
                elif t == 0:
                    a.e(f"v_bitop3_b32 v2, v{Pm}, v{Pm+1}, s29 bitop3:{tb}")
                    a.e("v_or3_b32 v1, v1, v4, v2")
                    a.e(f"v_max3_u32 v2, v{Y}, v{Y+1}, v{Y+2}"); a.e(f"v_max_u32 v2, v2, v{Y+3}")
                else:
                    a.e(f"v_max3_u32 v2, v{Y+4*t}, v{Y+4*t+1}, v2"); a.e(f"v_max3_u32 v2, v{Y+4*t+2}, v{Y+4*t+3}, v2")
            if ytag:
                a.e("v_or_b32 v2, v2, v3"); a.e("v_lshl_or_b32 v1, v2, 31, v1")
                a.e("v_cmp_gt_i32 vcc, 0, v1")
                a.e(f"s_cbranch_vccnz {bad}")
                return
            a.e("v_cmp_eq_u32 s[30:31], -1, v2")
            a.e("v_cmp_gt_i32 vcc, 0, v1")
            a.e("s_or_b64 vcc, vcc, s[30:31]")
            a.e(f"s_cbranch_vccnz {bad}")
        Px2 = ACC; Pm2 = PR+12; Y2 = ACC+8
        if yfirst:
            yload()
            a.nop(p_nop)
            pload(P0)
        else:
            pload(P0)
            for i in range(p_sleep): a.e("s_sleep 1")
            yload()
        if dbl:
            a.nop(dbl)
            a.e(f"buffer_load_dwordx4 {vr(Px2,4)}, v{vPx}, s[8:11], s46 offen sc1")
            a.e(f"buffer_load_dwordx4 {vr(Px2+4,4)}, v{vPx}, s[8:11], s46 offen offset:1280 sc1")
            a.e(f"buffer_load_dwordx2 {vr(Pm2,2)}, v{vPm}, s[8:11], s46 offen sc1")
            yload2(Y2)
        if apos == 5:
            a.e(f"buffer_store_dwordx4 {vr(YC,4)}, v{vYs4}, s[8:11], s54 offen {af}"); a.e(f"buffer_store_dwordx4 {vr(YC+4,4)}, v{vYs4}, s[8:11], s54 offen offset:1024 {af}")
            a.e(f"buffer_store_dwordx2 {vr(YC+8,2)}, v{vYst}, s[8:11], s54 offen offset:2048 {af}")
        consume(P0, P0+8, YS, (6 if dbl else 0) + (3 if apos == 5 else 0), f"{pre}_pbad1" if dbl else f"{pre}_pbad", yf=yfirst, first=True)
        a.label(f"{pre}_pok")
        ts(a, prof, 4)
        if mkearly == 2: pass
        elif mkearly and MKG[0]:
            a.e("s_cmp_lt_u32 s24, 2"); a.e(f"s_cbranch_scc1 {pre}_nme")
            a.e("s_mov_b64 exec, 1")
            a.e(f"buffer_store_dword v{PR+10}, off, s[8:11], s35 sc1")
            a.e("s_mov_b64 exec, -1")
            a.label(f"{pre}_nme")
        elif mkearly:
            a.e("s_mov_b64 exec, s[96:97]")
            a.e(f"buffer_store_dword v{PR+10}, off, s[8:11], s35 {LST}")
            a.e("s_mov_b64 exec, -1")
        a.e("s_cmp_ge_u32 s24, 2")
        for t in range(3):
            a.e(f"v_add_f32 v{RA+4*t}, v{RA+4*t}, v{RA+4*t+1}"); a.e(f"v_add_f32 v{RA+4*t+1}, v{RA+4*t+2}, v{RA+4*t+3}")
            a.e(f"ds_write_b64 v{vRw}, {vr(RA+4*t,2)} offset:{512*t}")
        a.e("s_waitcnt lgkmcnt(0)")
        a.e("s_barrier")
        a.e(f"s_cbranch_scc1 {pre}_nopub")
        R = U
        for w in range(4): a.e(f"ds_read_b128 {vr(R+4*w,4)}, v{vRr} offset:{1536*w}")
        def pa(x, y):
            a.e(f"v_pk_add_f32 {vr(x,2)}, {vr(x,2)}, {vr(y,2)}"); a.e(f"v_pk_add_f32 {vr(x+2,2)}, {vr(x+2,2)}, {vr(y+2,2)}")
        a.e("s_waitcnt lgkmcnt(2)"); pa(R, R+4)
        a.e("s_waitcnt lgkmcnt(0)"); pa(R+8, R+12); pa(R, R+8)
        a.e(f"v_cvt_pk_bf16_f32 v{R}, v{R}, v{R+1}"); a.e(f"v_cvt_pk_bf16_f32 v{R+1}, v{R+2}, v{R+3}")
        a.e(f"v_xor_b32 v{R}, s29, v{R}"); a.e(f"v_xor_b32 v{R+1}, s29, v{R+1}")
        a.e(f"v_min_u32 v{R}, -2, v{R}"); a.e(f"v_min_u32 v{R+1}, -2, v{R+1}")
        a.e(f"buffer_store_dwordx2 {vr(R,2)}, v{vPub}, s[8:11], s53 offen sc1")
        a.e(f"s_branch {pre}_pubd")
        a.label(f"{pre}_nopub")
        for i in range(mkw_sleep): a.e("s_nop 15")
        a.e("s_cmp_eq_u32 s24, 3"); a.e(f"s_cbranch_scc1 {pre}_nomk")
        if MKA[0]:
            a.e("v_mov_b32 v2, 1"); a.e("s_mov_b64 exec, 1")
            a.e(f"buffer_atomic_add v2, off, s[8:11], s45 {LST}")
        elif not mkearly:
            a.e("s_mov_b64 exec, 1")
            a.e(f"buffer_store_dword v{PR+10}, off, s[8:11], s35 {'sc1' if MKG[0] else LST}")
        a.e(f"s_branch {pre}_mkd")
        a.label(f"{pre}_nomk")
        if not QARCH[0]:
            a.e("v_mov_b32 v2, s28"); a.e("v_mov_b32 v3, 0"); a.e("s_mov_b64 exec, 1")
            a.e(f"buffer_store_dword v2, v3, s[8:11], s34 offen sc1")
        a.label(f"{pre}_mkd")
        a.e("s_mov_b64 exec, -1")
        a.label(f"{pre}_pubd")
        ts(a, prof, 7)
        if not ytag:
            for q in range(4): a.e(f"v_mov_b32 v{U+32+q}, -1")
        if apos not in (5, 9):
            for q in range(10): a.e(f"v_mov_b32 v{U+36+q}, v{YC+q}")
        a.e("s_mov_b32 s88, s54"); a.e(f"s_add_u32 s54, s54, {32*10240}"); a.e("s_mov_b32 s36, s90")
        if late == 0 and not ytag:
            for i in range(rs_sleep): a.e("s_sleep 1")
            for ins in rst: a.e(ins)
        if apos == 3:
            for ins in arch: a.e(ins)
        if apos == 4:
            a.e("s_cmp_eq_u32 s24, 2"); a.e(f"s_cbranch_scc1 {pre}_noa")
            for ins in arch: a.e(ins)
            a.label(f"{pre}_noa")
        if not ytag or QARCH[0]: a.e("s_xor_b32 s37, s37, 163840")
        if QARCH[0]: a.e("s_and_b32 s30, s28, 1"); a.e("s_xor_b32 s91, s91, s30")
        else: a.e("s_xor_b32 s91, s91, 1")
        a.e("v_cmp_eq_u32 vcc, 0, v0"); a.e("s_add_u32 s31, s28, 1")
        a.e(f"s_cbranch_vccz {pre}_nouf")
        uflag_wait(f"{pre}_uf", "s31")
        a.label(f"{pre}_nouf")
        if ulate:
            usoff()
            a.e("s_cmp_eq_u32 s24, 2"); a.e(f"s_cbranch_scc1 {pre}_nou")
            for hh in range(4):
                for t in range(2): a.e(uld(hh, t)[0])
            a.label(f"{pre}_nou")
        def aft():
            for ins in (arch if apos == 0 else []) + (rst if late == 1 else []): a.e(ins)
            if dbl: a.e(f"s_waitcnt vmcnt({5 + (3 if late == 1 else 0) + (3 if apos == 0 else 0)})")
            idle_prep()
        def aft2():
            if apos == 4:
                for ins in arch: a.e(ins)
            aft()
            if ulate:
                for hh in range(4):
                    for t in range(2): a.e(uld(hh, t)[0])
        na = (3 if late == 1 else 0) + (3 if apos == 0 else 0)
        pw = (3 if (MKG[0] and not mkearly) else 2)
        use2 = ulate or apos == 4
        n2 = na+(8 if ulate else 0)+(3 if apos == 4 else 0)
        def fin():
            ts(a, prof, 6)
            prof_dump(a, prof, pre)
            a.e("s_add_u32 s28, s28, 1"); a.e("s_xor_b32 s29, s29, 0x80008000")
        if fuse:
            cntf = [0]
            def aftf():
                aft()
                for it in vsh: a.e("\n".join(it))
                a.e("s_add_u32 s28, s28, 1"); a.e("s_xor_b32 s29, s29, 0x80008000")
                if prof:
                    a.e("s_sub_u32 s28, s28, 1"); ts(a, prof, 6); prof_dump(a, prof, pre + str(cntf[0])); cntf[0] += 1; a.e("s_add_u32 s28, s28, 1")
            assert not use2
            retry = h2_stage(a, pre, PR, None, None, vSB, vStW, vH2, vMk, 1, mk_sleep, prof, pollw=pw, after=aftf, fused=lambda: a.e("s_waitcnt lgkmcnt(0)"), w4="s85")
            for w in range(3):
                a.e(f"s_cmp_eq_u32 s24, {w}"); a.e(f"s_cbranch_scc1 {pre}_fz{w}")
            for w in (3, 0, 1, 2):
                a.label(f"{pre}_fz{w}")
                vhead_fused(w, na + ush)
        else:
            retry = h2_stage(a, pre, PR, None, None, vSB, vStW, vH2, vMk, 1, mk_sleep, prof, pollw=pw, after=aft, nafter=na, after2=aft2 if use2 else None, nafter2=n2, nobar=True, w4="s85")
            fin()
            a.e(f"s_branch {pre}_loop")
        retry()
        if dbl:
            a.label(f"{pre}_pbad1")
            if prof: a.e("s_add_u32 s83, s83, 0x1000000")
            a.nop(4)
            for q in range(12): a.e(f"v_mov_b32 v{RA+q}, 0")
            consume(Px2, Pm2, Y2, 0, f"{pre}_pbad")
            a.e(f"s_branch {pre}_pok")
        if pearly:
            a.label(f"{pre}_pe")
            pload(P0)
            a.e("s_waitcnt vmcnt(3)")
            for q in range(3): a.e(f"v_bitop3_b32 v{2+q}, v{YS+2*q}, v{YS+2*q+1}, s91 bitop3:{tb}")
            a.e("v_or3_b32 v2, v2, v3, v4")
            for q in range(2): a.e(f"v_bitop3_b32 v{3+q}, v{YS+6+2*q}, v{YS+7+2*q}, s91 bitop3:{tb}")
            a.e("v_or3_b32 v2, v2, v3, v4"); a.e(f"v_bitop3_b32 v3, v{YS+10}, v{YS+11}, s91 bitop3:{tb}"); a.e("v_or_b32 v2, v2, v3")
            a.e("v_and_b32 v2, 1, v2"); a.e("v_cmp_ne_u32 vcc, 0, v2")
            a.e(f"s_cbranch_vccnz {pre}_ybad")
            a.e(f"s_branch {pre}_pbad2")
        a.label(f"{pre}_pbad")
        pload(P0)
        if ponly:
            a.e("v_and_b32 v2, 1, v2"); a.e("v_cmp_ne_u32 vcc, 0, v2")
            a.e(f"s_cbranch_vccnz {pre}_ybad")
            a.label(f"{pre}_pbad2")
            if prof: a.e("s_add_u32 s83, s83, 0x10000")
            a.e("s_sub_u32 s82, s82, 1"); a.e("s_cbranch_scc1 L_abort")
            for q in range(12): a.e(f"v_mov_b32 v{RA+q}, 0")
            a.e("s_waitcnt vmcnt(2)")
            for t in range(3):
                a.e(f"{SM64} {vr(RA+4*t,4)}, {vr(P0,4)}, {vr(U+16*t,8)}, v{vIdx} abid:1")
                if t < 2: a.e(f"v_bitop3_b32 v{1+t}, v{P0+2*t}, v{P0+2*t+1}, s29 bitop3:{tb}")
            a.e("s_waitcnt vmcnt(1)")
            for t in range(3):
                a.e(f"{SM64} {vr(RA+4*t,4)}, {vr(P0+4,4)}, {vr(U+16*t+8,8)}, v{vIdx} abid:1")
                if t < 2: a.e(f"v_bitop3_b32 v{3+t}, v{P0+4+2*t}, v{P0+4+2*t+1}, s29 bitop3:{tb}")
                else: a.e("v_or3_b32 v1, v1, v2, v3")
            a.e("s_waitcnt vmcnt(0)")
            for t in range(3):
                a.e(f"{SM32} {vr(RA+4*t,4)}, {vr(P0+8,2)}, {vr(YS+4*t,4)}, v{vIdx} abid:2")
                if t == 0: a.e(f"v_bitop3_b32 v2, v{P0+8}, v{P0+9}, s29 bitop3:{tb}")
                elif t == 1: a.e("v_or3_b32 v1, v1, v4, v2")
            a.e("v_cmp_gt_i32 vcc, 0, v1")
            a.e(f"s_cbranch_vccz {pre}_pok")
            pload(P0)
            a.e(f"s_branch {pre}_pbad2")
            a.label(f"{pre}_ybad")
            if prof: a.e("s_add_u32 s83, s83, 0x1000000")
        yload()
        if prof: a.e("s_add_u32 s83, s83, 0x10000")
        a.e("s_sub_u32 s82, s82, 1"); a.e("s_cbranch_scc1 L_abort")
        for q in range(12): a.e(f"v_mov_b32 v{RA+q}, 0")
        consume(P0, P0+8, YS, 0, f"{pre}_pbad")
        a.e(f"s_branch {pre}_pok")
        a.label(f"{pre}_last")
        ystores("s54", "sc1")
        a.e("s_waitcnt vmcnt(0)")
        a.e("s_barrier")
        a.e(f"v_mov_b32 v2, {nsteps}"); a.e("v_mov_b32 v3, 0"); a.e("s_mov_b64 exec, 1")
        a.e(f"buffer_store_dword v2, v3, s[8:11], s34 offen offset:4 sc1")
        if not QARCH[0]: a.e(f"buffer_store_dword v2, v3, s[8:11], s34 offen sc1")
        a.e("s_waitcnt vmcnt(0)")
        a.e("s_mov_b64 exec, -1")
        a.e(f"s_branch {pre0}_end")
    pre0 = pre
    if cw:
        a.e("s_cmp_lt_u32 s81, 32"); a.e(f"s_cbranch_scc1 {pre}S_loop")
        emit_loop(pre, "", prof)
        emit_loop(pre + "S", "sc1", 0)
    else:
        emit_loop(pre, LST, prof)
    a.label(f"{pre}_end")
```

```python
import math, struct
from asmlib import *
from layout import *
def fbits(x): return struct.unpack("<I", struct.pack("<f", x))[0]

ACC = 64
GP = dict(dma_start=16, xper=2, st='sc1', slp1=16, slp2=48, slpf=2, ost='', ld='')
MF = "v_mfma_f32_32x32x16_bf16"
GUARD = 'a.e("s_sub_u32 s82, s82, 1"); a.e("s_cbranch_scc1 L_abort")'
def guard(a): a.e("s_sub_u32 s82, s82, 1"); a.e("s_cbranch_scc1 W_abort")

def wait_flags(a, lab, soff, nwords, stride_sh, thresh, sleep=16, imm=0):
    a.e(f"v_min_u32 v3, {nwords-1}, v1")
    a.e(f"v_lshlrev_b32 v3, {stride_sh}, v3")
    a.label(lab)
    a.e(f"buffer_load_dword v2, v3, s[8:11], {soff} offen offset:{imm} sc1")
    guard(a)
    a.e("s_waitcnt vmcnt(0)")
    a.e(f"v_cmp_gt_u32 vcc, {thresh}, v2")
    a.e(f"s_cbranch_vccz {lab}_ok")
    a.e(f"s_sleep {sleep}")
    a.e(f"s_branch {lab}")
    a.label(f"{lab}_ok")

def wait_progress(a, lab, soff, thresh):
    a.e("s_mov_b64 exec, 1")
    a.label(lab)
    a.e(f"buffer_load_dword v2, off, s[8:11], {soff} sc1")
    guard(a)
    a.e("s_waitcnt vmcnt(0)")
    a.e("v_readfirstlane_b32 s30, v2")
    a.e("s_add_u32 s30, s30, 1")
    a.e(f"s_cmp_ge_u32 s30, {thresh}"); a.e(f"s_cbranch_scc1 {lab}_ok")
    a.e("s_add_u32 s30, s30, 1")
    a.e(f"s_sleep {GP['slp1']}")
    a.e(f"s_cmp_ge_u32 s30, {thresh}"); a.e(f"s_cbranch_scc1 {lab}")
    a.e(f"s_sleep {GP['slp2']}")
    a.e(f"s_branch {lab}")
    a.label(f"{lab}_ok")
    a.e("s_mov_b64 exec, -1")

def set_flag(a, soff, val="1", add=False):
    lab = a.newlabel("W_fl")
    a.e("s_waitcnt vmcnt(0)")
    a.e("s_barrier")
    a.e("s_cmp_lg_u32 s24, 0"); a.e(f"s_cbranch_scc1 {lab}")
    a.e(f"v_mov_b32 v2, {val}"); a.e("v_mov_b32 v3, 0"); a.e("s_mov_b64 exec, 1")
    if add: a.e(f"buffer_atomic_add v2, v3, s[8:11], {soff} offen sc1")
    else: a.e(f"buffer_store_dword v2, v3, s[8:11], {soff} offen sc1")
    a.e("s_mov_b64 exec, -1")
    a.label(lab)

CW = [None]
def spec_check(a):
    lab = a.newlabel("W_sp")
    a.e("s_cmp_eq_u32 s81, 0"); a.e(f"s_cbranch_scc1 {lab}")
    CW[0](a, lab + "c")
    a.e("s_mov_b32 s81, 0")
    a.e("s_and_b32 s25, s84, s85")
    for i in range(86, 92): a.e(f"s_and_b32 s25, s25, s{i}")
    a.e("s_cmp_eq_u32 s25, 32"); a.e(f"s_cbranch_scc1 {lab}r")
    a.e("s_waitcnt vmcnt(0) lgkmcnt(0)"); a.e("s_barrier"); a.e("s_branch M_worker")
    a.label(f"{lab}r")
    a.e("s_load_dwordx2 s[84:85], s[0:1], 0"); a.e("s_load_dwordx2 s[86:87], s[0:1], 56"); a.e("s_waitcnt lgkmcnt(0)")
    a.label(lab)
NS = 4; SLOT = 24576
FW = [0, 24]; XF = [48, 56]; VOP = 128
XB = 98304
WPROF = [0]
def wts(a, i):
    if WPROF[0]: a.e(f"s_memtime s[{88+2*i}:{89+2*i}]")
vW = 8; vTB = 14; vTC = 16; vW2 = 18; vT2 = 23; vXD = 24; vXR = 32; vST = 36
STG = [40, 48, 56, 224, 232, 240, 248]
def w_voffsets(a, NT, dst, ld):
    UPR = NT*4; NW = NT
    for i in range(NW):
        a.e(f"s_mul_i32 s25, s24, {NW*64}")
        a.e(f"s_add_u32 s25, s25, {i*64}")
        a.e("v_add_u32 v4, s25, v1")
        a.e(f"v_mul_u32_u24 v5, {(65536+UPR-1)//UPR}, v4")
        a.e("v_lshrrev_b32 v5, 16, v5")
        a.e(f"v_mul_u32_u24 v6, {UPR}, v5")
        a.e("v_sub_u32 v6, v4, v6")
        if NT == 6:
            a.e("v_lshlrev_b32 v7, 1, v5"); a.e("v_and_b32 v7, 4, v7"); a.e("v_xor_b32 v6, v6, v7")
        if isinstance(ld, int): a.e(f"v_mul_u32_u24 v5, {ld}, v5")
        else: a.e(f"v_mul_lo_u32 v5, v5, {ld}")
        a.e(f"v_lshl_add_u32 v{dst+i}, v6, 4, v5")
def tr_bases(a, NT, dst, khmul, two):
    RB = NT*64
    a.e("v_lshrrev_b32 v4, 5, v1"); a.e("v_bfe_u32 v5, v1, 2, 2")
    a.e(f"v_mul_u32_u24 v4, {khmul}, v4"); a.e("v_add_u32 v4, v4, v5")
    a.e(f"v_mul_u32_u24 v4, {RB}, v4")
    a.e("v_bfe_u32 v6, v1, 4, 1"); a.e("v_lshl_add_u32 v4, v6, 5, v4")
    a.e("v_and_b32 v6, 3, v1"); a.e("v_lshl_add_u32 v4, v6, 3, v4")
    if NT == 6:
        a.e("v_bfe_u32 v5, v1, 3, 1"); a.e("v_lshlrev_b32 v5, 6, v5")
        a.e(f"v_add_u32 v{dst}, v4, v5"); a.e(f"v_sub_u32 v{dst+1}, v4, v5")
    else:
        a.e(f"v_mov_b32 v{dst}, v4")
        if two: a.e(f"v_mov_b32 v{dst+1}, v4")
ADV = [f"s_add_u32 s29, s29, {SLOT}", f"s_cmp_eq_u32 s29, {NS*SLOT}", "s_cselect_b32 s29, 0, s29"]
def dmas(NW, vbase, srd, sreg, sinc, woff):
    it = []
    for i in range(NW):
        pre = [f"s_add_u32 m0, s29, {woff}"] if i == 0 else ["s_add_u32 m0, m0, 1024"]
        it.append(pre + ["s_nop 0", f"buffer_load_dwordx4 v{vbase+i}, {srd}, {sreg} offen lds"])
    it[-1] += [f"s_add_u32 {sreg}, {sreg}, {sinc}"] + ADV
    return it
def xdmas(MB, st, xsrd, sreg):
    SET = 16384*MB
    it = [[f"s_add_u32 m0, s52, {st*SET + i*1024}", "s_nop 0", f"buffer_load_dwordx4 v{vXD+i}, {xsrd}, {sreg} offen lds"] for i in range(4*MB)]
    it[-1].append(f"s_add_u32 {sreg}, {sreg}, 128")
    return it
def adv_read(a, base, two):
    a.e(f"s_add_u32 s30, s30, {SLOT}"); a.e(f"s_cmp_eq_u32 s30, {NS*SLOT}"); a.e("s_cselect_b32 s30, 0, s30")
    a.e(f"v_add_u32 v{vTC}, s30, v{base}")
    if two: a.e(f"v_add_u32 v{vTC+1}, s30, v{base+1}")
def cond(a, items, sreg):
    out = []
    for it in items:
        lab = a.newlabel("W_c")
        out.append([f"s_cmp_eq_u32 {sreg}, 0", f"s_cbranch_scc1 {lab}"] + it + [f"{lab}:"])
    return out
def main_reads(NT, MB, f, ks, st):
    RB = NT*64
    r = [[f"ds_read_b64_tr_b16 {ar(FW[f]+4*t+2*h,2)}, v{vTC+(t&1)} offset:{(8*ks+4*h)*RB + t*64}" for h in range(2)] for t in range(NT)]
    x = [[f"ds_read_b128 {ar(XF[f]+4*tb,4)}, v{vXR+ks} offset:{st*16384*MB + tb*4096}" for tb in range(MB)]]
    return x + r

def gemm_setup(a, NT, MB, withU):
    a.e("v_lshrrev_b32 v4, 3, v1"); a.e(f"s_mul_i32 s25, s24, {32*MB}"); a.e("v_add_u32 v4, s25, v4"); a.e("v_mul_u32_u24 v4, 1280, v4")
    a.e("v_lshrrev_b32 v5, 4, v1"); a.e("v_and_b32 v6, 7, v1"); a.e("v_xor_b32 v5, v5, v6")
    a.e(f"v_lshl_add_u32 v{vXD}, v5, 4, v4"); a.e("v_xor_b32 v5, 4, v5"); a.e(f"v_lshl_add_u32 v{vXD+1}, v5, 4, v4"); a.e(f"v_add_u32 v{vXD+1}, 10240, v{vXD+1}")
    for i in range(2, 4*MB): a.e(f"v_add_u32 v{vXD+i}, 20480, v{vXD+i-2}")
    a.e(f"s_mul_i32 s52, s24, {4096*MB}"); a.e(f"s_add_u32 s52, s52, {XB}")
    w_voffsets(a, NT, vW, "s33")
    a.e("s_lshl_b32 s28, s33, 6")
    a.e(f"s_mul_i32 s32, s24, {NT*1024}")
    a.e("s_mov_b32 s29, 0")
def gemm_setup2(a, NT, MB, withU):
    a.e(f"s_mul_i32 s25, s24, {32*MB}")
    a.e("v_and_b32 v4, 31, v1"); a.e("v_bfe_u32 v5, v1, 1, 3"); a.e("v_lshrrev_b32 v6, 5, v1"); a.e("v_lshlrev_b32 v6, 2, v6"); a.e("v_xor_b32 v5, v5, v6")
    a.e("v_add_u32 v4, s25, v4"); a.e("v_lshlrev_b32 v4, 7, v4"); a.e(f"v_add_u32 v4, {XB}, v4")
    for ks in range(4):
        a.e(f"v_xor_b32 v6, {ks}, v5"); a.e(f"v_lshl_add_u32 v{vXR+ks}, v6, 4, v4")
    tr_bases(a, NT, vTB, 32, True)
    a.e(f"v_lshlrev_b32 v{vST}, 4, v1")
    if withU:
        w_voffsets(a, 5, vW2, 1280)
        tr_bases(a, 5, vT2, 4, False)
        a.e("s_mul_i32 s34, s24, 5120")

def gemm_cold(a, NT, MB, xsrd, withU):
    PD = 2 if MB == 2 else 3
    gemm_setup(a, NT, MB, withU)
    for p in range(PD):
        for it in dmas(NT, vW, "s[12:15]", "s27", "s28", "s32"): a.e("\n".join(it))
        if p < PD-1:
            for it in xdmas(MB, p, xsrd, "s26"): a.e("\n".join(it))
    gemm_setup2(a, NT, MB, withU)
    a.e("s_mov_b32 s54, 0")
    a.e(f"s_waitcnt vmcnt({(PD-1)*NT + (PD-2)*4*MB})")
    a.e("s_barrier")
    wts(a, 1)
    a.e(f"v_mov_b32 v{vTC}, v{vTB}"); a.e(f"v_mov_b32 v{vTC+1}, v{vTB+1}")
    a.e("s_mov_b32 s30, 0")
    for it in main_reads(NT, MB, 0, 0, 0): a.e("\n".join(it))

def pend_flag(a):
    lab = a.newlabel("W_pf")
    a.e("s_cmp_eq_u32 s54, 0"); a.e(f"s_cbranch_scc1 {lab}")
    a.e("v_mov_b32 v2, 1"); a.e("v_lshlrev_b32 v3, 2, v1"); a.e("s_mov_b32 exec_hi, 0"); a.e("s_mov_b32 exec_lo, s54")
    a.e("buffer_store_dword v2, v3, s[8:11], s53 offen sc1")
    a.e("s_mov_b64 exec, -1"); a.e("s_mov_b32 s54, 0")
    a.label(lab)

def next_items(a):
    A = cond(a, dmas(6, vW, "s[56:59]", "s61", "s28", "s32"), "s62")
    B = cond(a, xdmas(2, 0, "s[48:51]", "s60") + dmas(6, vW, "s[56:59]", "s61", "s28", "s32"), "s62")
    return [A, B]

def gemm_loop(a, NT, MB, xsrd, tail):
    PD = 2 if MB == 2 else 3
    NX = PD
    nst = 10; NM = MB*NT
    dma_start, xper = (GP['dma_start'], GP['xper']) if MB == 2 else (0, 2)
    def mfmas(f, first):
        m = []
        for t in range(NT):
            for tb in range(MB):
                d = ACC + (tb*NT+t)*16
                m.append(f"{MF} {vr(d,16)}, {ar(FW[f]+4*t,4)}, {ar(XF[f]+4*tb,4)}, {'0' if first else vr(d,16)}")
        return m
    q = []
    for p in range(1, PD):
        q += [("W", p)]*NT
        if p < PD-1: q += [("X", p)]*(4*MB)
    for s in range(nst):
        last = s == nst-1
        ext = [[] for _ in range(4*NM)]
        tg = [[] for _ in range(4*NM)]
        xs = xdmas(MB, (s+PD-1) % NX, xsrd, "s26") if s+PD-1 < nst else []
        certain = True
        if s+PD < nst: ws = dmas(NT, vW, "s[12:15]", "s27", "s28", "s32")
        else:
            k = s+PD-nst
            ws = tail[1][k] if tail and k < len(tail[1]) else []
            certain = tail[0] if tail else True
        pos = 0
        for it in xs: ext[pos] += it; tg[pos].append(("X", s+PD-1)); pos += xper
        pos = max(pos, dma_start if xs else 0)
        if not certain and not last: pos = 3*NM
        step = max(1, ((4*NM if certain or not last else 4*NM - 6) - pos)//max(1, len(ws)))
        for it in ws:
            ext[pos] += it
            if certain: tg[pos].append(("W", s+PD))
            pos += step
        for ks in range(4):
            f = ks & 1
            if ks < 3 or last: a.e("s_waitcnt lgkmcnt(0)")
            else:
                idx = [i for i, t in enumerate(q) if t in (("W", s+1), ("X", s+1))]
                n = len(q) - 1 - max(idx) if idx else len(q)
                if idx: q = q[max(idx)+1:]
                a.e(f"s_waitcnt vmcnt({n}) lgkmcnt(0)")
                a.e("s_barrier")
                adv_read(a, vTB, True)
                if s == 0 and MB == 2 and NT == 6:
                    pend_flag(a)
                    a.e("s_add_u32 s25, s79, 4"); a.e("s_load_dword s55, s[76:77], s25")
            rd = main_reads(NT, MB, f ^ 1, ks+1, s % NX) if ks < 3 else ([] if last else main_reads(NT, MB, 0, 0, (s+1) % NX))
            per = 1 if NM >= len(rd) else 2
            fl = merge(spread(rd, NM, 0, per=per), ext[ks*NM:(ks+1)*NM])
            for ins in interleave(mfmas(f, s == 0 and ks == 0), fl): a.e(ins)
            for g in range(ks*NM, (ks+1)*NM): q += tg[g]
    wts(a, 2)

def warm_handoff(a, nyoung):
    lab = a.newlabel("W_wh")
    a.e("s_cmp_eq_u32 s62, 0"); a.e(f"s_cbranch_scc1 {lab}")
    a.e(f"s_waitcnt vmcnt({nyoung})")
    a.e("s_barrier")
    adv_read(a, vTB, True)
    for it in main_reads(6, 2, 0, 0, 0): a.e("\n".join(it))
    a.label(lab)

def finish(a, maskreg):
    lab = a.newlabel("W_fin")
    spec_check(a)
    a.e("s_cmp_eq_u32 s62, 0"); a.e(f"s_cbranch_scc1 {lab}")
    a.e("s_mov_b32 s53, s36"); a.e("s_cmp_eq_u32 s24, 0"); a.e(f"s_cselect_b32 s54, {maskreg}, 0")
    a.e("s_branch W_warm")
    a.label(lab)
    a.e("s_waitcnt vmcnt(0)"); a.e("s_barrier")
    a.e("s_mov_b32 s53, s36"); a.e("s_cmp_eq_u32 s24, 0"); a.e(f"s_cselect_b32 s54, {maskreg}, 0")
    pend_flag(a)
    a.e("s_branch W_next")

def epi_chunks(a, MB, segstride):
    a.nop(8)
    k = 0
    for tb in range(MB):
        for t in range(6):
            d = ACC + (tb*6+t)*16
            for j in range(2):
                r = 40 + (k % 6)*4; k += 1
                for q in range(4): a.e(f"v_cvt_pk_bf16_f32 v{r+q}, v{d+8*j+2*q}, v{d+8*j+2*q+1}")
                off = t*2048 + j*1024
                if off % 4096 == 0:
                    if tb == 0: a.e(f"s_add_u32 s25, s31, {off}")
                    else: a.e(f"s_add_u32 s25, {segstride}, s31"); a.e(f"s_add_u32 s25, s25, {off}")
                a.e(f"buffer_store_dwordx4 {vr(r,4)}, v{vST}, s[8:11], s25 offen offset:{off % 4096} {GP['st']}")

def task_kq(a, MB):
    if MB == 2:
        gemm_cold(a, 6, 2, "s[48:51]", True)
        a.label("W_kq_warm")
        gemm_loop(a, 6, 2, "s[48:51]", (False, next_items(a)))
        warm_handoff(a, 6)
    else:
        gemm_cold(a, 6, 1, "s[48:51]", False)
        gemm_loop(a, 6, 1, "s[48:51]", None)
    epi_chunks(a, MB, "s35")
    wts(a, 3); wts(a, 4)
    finish(a, "s39")

def task_vu(a, MB):
    RB = 320; NTL = 5*MB
    def wd2():
        it = dmas(5, vW2, "s[16:19]", "s37", 81920, "s34")
        it[-1] += ["s_add_u32 s40, s40, 1", "s_cmp_eq_u32 s40, 3", "s_cselect_b32 s40, 0, s40", f"s_cselect_b32 s42, {(320 - 3*81920) & 0xffffffff}, 0", "s_add_u32 s37, s37, s42"]
        return it
    PD = 2 if MB == 2 else 3
    gemm_cold(a, 6, MB, "s[48:51]", True)
    if MB == 2: a.label("W_vu_warm")
    a.e("s_mov_b32 s40, 0")
    gemm_loop(a, 6, MB, "s[48:51]", (True, [wd2() for _ in range(PD)]))
    a.e(f"s_waitcnt vmcnt({5*(PD-1)})")
    a.e("s_barrier")
    adv_read(a, vT2, False)
    def wreads(f, ks):
        return [[f"ds_read_b64_tr_b16 {ar(FW[f]+4*t+2*h,2)}, v{vTC} offset:{(16*ks+8*h)*RB + t*64}" for h in range(2)] for t in range(5)]
    for it in wreads(0, 0): a.e("\n".join(it))
    k = 0
    for tb in range(MB):
        for T in range(6):
            d = ACC + (tb*6+T)*16
            for q in range(8):
                r = 40 + (k % 8); k += 1
                a.e(f"v_cvt_pk_bf16_f32 v{r}, v{d+2*q}, v{d+2*q+1}")
                a.e(f"v_accvgpr_write_b32 a{VOP + (tb*6+T)*8 + q}, v{r}")
    wts(a, 3)
    ND = max(0, NTL - len(STG))
    def grp(i): return STG[0] if i < ND else STG[i-ND]
    def cvts(i):
        d = ACC + i*16; r = grp(i)
        return [f"v_cvt_pk_bf16_f32 v{r+q}, v{d+2*q}, v{d+2*q+1}" for q in range(8)]
    def stores(i):
        tb, t = divmod(i, 5); off = t*2048; r = grp(i)
        return [[f"s_add_u32 s25, s31, {tb*32*40960 + (off & ~4095)}", f"buffer_store_dwordx4 {vr(r,4)}, v{vST}, s[8:11], s25 offen offset:{off % 4096} {GP['st']}"],
                [f"buffer_store_dwordx4 {vr(r+4,4)}, v{vST}, s[8:11], s25 offen offset:{off % 4096 + 1024} {GP['st']}"]]
    def mf(f, sg, ks, i):
        tb, t = divmod(i, 5); T = 2*sg + (ks >> 1); j = ks & 1; d = ACC + i*16
        return f"{MF} {vr(d,16)}, {ar(VOP + ((tb*6+T)*2+j)*4,4)}, {ar(FW[f]+4*t,4)}, {'0' if sg == 0 and ks == 0 else vr(d,16)}"
    def pass_body(pending, final):
        NM = NTL
        st_items = []
        if pending:
            for i in range(ND, NTL): st_items += stores(i)
        nx = next_items(a) if (final and MB == 2) else [[], []]
        prev_w = 5*(PD-1)
        for sg in range(3):
            ext = [[] for _ in range(4*NM)]
            nU = (not final) or sg + PD < 3
            ws = wd2() if nU else (nx[sg - (3-2)] if sg >= 1 else [])
            nmine = (len(st_items) + (2-sg))//(3-sg) if sg < 2 else len(st_items)
            mine = st_items[:nmine]; st_items = st_items[nmine:]
            p0 = NM if (sg == 0 and pending) else 0
            if nU:
                seq = []
                wi = list(ws); si = list(mine)
                while wi or si:
                    if wi: seq.append(wi.pop(0))
                    if si: seq.append(si.pop(0))
                for n, it in enumerate(seq): ext[p0 + (n*(3*NM - p0))//len(seq)] += it
            elif sg < 2:
                for n, it in enumerate(mine): ext[p0 + (n*(3*NM - p0))//len(mine)] += it
                for n, it in enumerate(ws): ext[3*NM + (n*NM)//len(ws)] += it
            else:
                seq = list(mine) + list(ws)
                for n, it in enumerate(seq): ext[(n*(4*NM - 4))//len(seq)] += it
            if sg == 2 and pending: ext[4*NM-1] += [f"s_add_u32 s31, s31, {5*2048}"]
            for ks in range(4):
                f = ks & 1
                lastst = final and sg == 2
                if ks < 3 or lastst: a.e("s_waitcnt lgkmcnt(0)")
                else:
                    thisn = len(mine) + (5 if nU else 0)
                    older = 5*(PD-2) if (PD > 2 and ((not final) or sg + PD - 1 < 3)) else 0
                    a.e(f"s_waitcnt vmcnt({thisn + older}) lgkmcnt(0)")
                    a.e("s_barrier")
                    adv_read(a, vT2, False)
                rd = wreads(f ^ 1, ks+1) if ks < 3 else ([] if lastst else wreads(0, 0))
                fl = merge(spread(rd, NM, 0, per=1), ext[ks*NM:(ks+1)*NM])
                for i in range(NM):
                    if pending and sg == 0 and ks == 0:
                        for ins in cvts(i): a.e(ins)
                        if i < ND:
                            for it in stores(i): a.e("\n".join(it))
                    a.e(mf(f, sg, ks, i))
                    for ins in fl[i]: a.e(ins)
    lp = a.newlabel("W_pass")
    pass_body(False, False)
    a.e("s_cmp_eq_u32 s38, 2"); a.e(f"s_cbranch_scc1 {lp}_fin")
    if MB == 2:
        a.label(lp)
        pass_body(True, False)
        a.e("s_sub_u32 s38, s38, 1"); a.e("s_cmp_lg_u32 s38, 2"); a.e(f"s_cbranch_scc1 {lp}")
    a.label(f"{lp}_fin")
    pass_body(True, True)
    wts(a, 4)
    if MB == 2: warm_handoff(a, 6)
    a.nop(8)
    for i in range(NTL):
        r = 40 + 8*(i % 3)
        d = ACC + i*16; tb, t = divmod(i, 5); off = t*2048
        for q in range(8): a.e(f"v_cvt_pk_bf16_f32 v{r+q}, v{d+2*q}, v{d+2*q+1}")
        a.e(f"s_add_u32 s25, s31, {tb*32*40960 + (off & ~4095)}")
        a.e(f"buffer_store_dwordx4 {vr(r,4)}, v{vST}, s[8:11], s25 offen offset:{off % 4096} {GP['st']}")
        a.e(f"buffer_store_dwordx4 {vr(r+4,4)}, v{vST}, s[8:11], s25 offen offset:{off % 4096 + 1024} {GP['st']}")
    finish(a, "s39")

def task_bout(a):
    gemm_cold(a, 5, 2, "s[8:11]", False)
    gemm_loop(a, 5, 2, "s[8:11]", None)
    a.e("v_and_b32 v4, 31, v1"); a.e("s_lshl_b32 s25, s24, 6"); a.e("v_add_u32 v4, s25, v4"); a.e("v_mul_u32_u24 v4, 2560, v4")
    a.e("v_lshrrev_b32 v5, 5, v1"); a.e("v_lshl_add_u32 v4, v5, 4, v4"); a.e(f"v_add_u32 v5, {32*2560}, v4")
    a.nop(4)
    k = 0
    for tb in range(2):
        for t in range(5):
            d = ACC + (tb*5+t)*16
            for j in range(2):
                r = 40 + (k % 6)*4; k += 1
                for q in range(4): a.e(f"v_cvt_pk_bf16_f32 v{r+q}, v{d+8*j+2*q}, v{d+8*j+2*q+1}")
                a.nop(2)
                a.e(f"v_permlane32_swap_b32 v{r}, v{r+2}"); a.e(f"v_permlane32_swap_b32 v{r+1}, v{r+3}")
                a.e(f"buffer_store_dwordx4 {vr(r,4)}, v{4+tb}, s[20:23], s31 offen offset:{t*64 + j*32} {GP['ost']}")
    a.e("s_barrier")

NEGINF = 0xff800000
def task_tp(a):
    C = 192**-0.5 * math.log2(math.e)
    KR = 64; QR = 112; MR = 160; S = 16; SM = 32
    a.e("s_lshl_b32 s46, s45, 2"); a.e("s_add_u32 s46, s46, s24")
    a.e("s_lshl_b32 s47, s44, 5"); a.e("s_add_u32 s47, s47, s46")
    a.e("s_lshr_b32 s25, s44, 3"); a.e("s_lshl_b32 s25, s25, 5"); a.e("s_add_u32 s25, s25, s46"); a.e("s_lshl_b32 s25, s25, 4"); a.e(f"s_add_u32 s26, s25, {WS_FLAGS+F_Q}"); a.e(f"s_add_u32 s25, s25, {WS_FLAGS+F_K}")
    wait_flags(a, a.newlabel("W_k"), "s25", 2, 2, 1)
    wait_flags(a, a.newlabel("W_q"), "s26", 2, 2, 1)
    a.e("v_lshlrev_b32 v4, 4, v1")
    a.e("s_mul_i32 s26, s47, 12288"); a.e(f"s_add_u32 s27, s26, {WS_Q}"); a.e(f"s_add_u32 s26, s26, {WS_K}")
    for i in range(12):
        if i and i % 4 == 0: a.e("s_add_u32 s26, s26, 4096"); a.e("s_add_u32 s27, s27, 4096")
        a.e(f"buffer_load_dwordx4 {vr(KR+4*i,4)}, v4, s[8:11], s26 offen offset:{1024*(i%4)} {GP['ld']}")
        a.e(f"buffer_load_dwordx4 {vr(QR+4*i,4)}, v4, s[8:11], s27 offen offset:{1024*(i%4)} {GP['ld']}")
    a.e("v_and_b32 v5, 31, v1"); a.e("v_lshrrev_b32 v6, 5, v1"); a.e("v_lshlrev_b32 v7, 2, v6"); a.e("v_sub_u32 v8, v5, v7")
    a.e("v_and_b32 v7, 7, v1"); a.e("v_lshlrev_b32 v7, 4, v7"); a.e("v_lshl_add_u32 v7, v6, 7, v7"); a.e("s_mul_i32 s25, s24, 3072"); a.e("v_add_u32 v9, s25, v7")
    a.e("v_lshlrev_b32 v10, 4, v5"); a.e("v_lshl_add_u32 v10, v6, 3, v10")
    a.e(f"v_mov_b32 v11, {NEGINF}")
    for i in range(12):
        a.e(f"s_waitcnt vmcnt({22-2*i})")
        a.e(f"{MF} {vr(S,16)}, {vr(KR+4*i,4)}, {vr(QR+4*i,4)}, {'0' if i == 0 else vr(S,16)}")
    a.e("s_lshl_b32 s25, s46, 7"); a.e(f"s_add_u32 s25, s25, {WS_FLAGS+F_KM}"); a.e("s_add_u32 s28, s44, 1")
    a.nop(8)
    for r in range(16):
        kr = (r & 3) + 8*(r >> 2)
        a.e(f"v_cmp_le_i32 vcc, {kr}, v8")
        a.nop(2)
        a.e(f"v_cndmask_b32 v{S+r}, v11, v{S+r}, vcc")
    a.e(f"v_max3_f32 v12, v{S}, v{S+1}, v{S+2}")
    for r in range(3, 15, 2): a.e(f"v_max3_f32 v12, v{S+r}, v{S+r+1}, v12")
    a.e(f"v_max_f32 v12, v{S+15}, v12")
    a.e("s_min_u32 s29, s28, 63")
    wait_progress(a, a.newlabel("W_kp"), "s25", "s29")
    wait_flags(a, a.newlabel("W_km"), "s25", 1, 2, "s28", sleep=GP['slpf'])
    a.e("s_mul_i32 s26, s47, 3072"); a.e(f"s_add_u32 s26, s26, {WS_KM}"); a.e("s_mul_i32 s25, s24, 3072")
    for i in range(3):
        a.e(f"s_add_u32 m0, s25, {1024*i}"); a.e("s_nop 0")
        a.e(f"buffer_load_dwordx4 v4, s[8:11], s26 offen sc1 lds")
        a.e("s_add_u32 s26, s26, 1024")
    a.e("s_waitcnt vmcnt(0)")
    for i in range(12): a.e(f"ds_read_b128 {vr(MR+4*i,4)}, v9 offset:{256*i}")
    for i in range(12):
        a.e(f"s_waitcnt lgkmcnt({11-i})")
        a.e(f"{MF} {vr(SM,16)}, {vr(MR+4*i,4)}, {vr(QR+4*i,4)}, {'0' if i == 0 else vr(SM,16)}")
    a.e("s_mul_i32 s26, s47, 2560"); a.e(f"s_add_u32 s26, s26, {WS_PT}")
    a.e("s_lshl_b32 s27, s44, 3"); a.e("s_add_u32 s27, s27, s45"); a.e("s_lshl_b32 s27, s27, 7"); a.e(f"s_add_u32 s27, s27, {WS_FLAGS+F_PT}")
    a.e(f"s_mov_b32 s28, {fbits(C)}")
    a.nop(12)
    a.e(f"v_max3_f32 v12, v{SM}, v{SM+1}, v12"); a.e(f"v_max3_f32 v12, v{SM+2}, v{SM+3}, v12")
    a.e("v_mov_b32 v13, v12"); a.nop(2); a.e("v_permlane32_swap_b32 v12, v13"); a.nop(1); a.e("v_max_f32 v12, v12, v13")
    a.e("v_mul_f32 v12, s28, v12")
    vals = list(range(S, S+16)) + list(range(SM, SM+4))
    for v in vals: a.e(f"v_fma_f32 v{v}, v{v}, s28, -v12")
    for v in vals: a.e(f"v_exp_f32 v{v}, v{v}")
    a.e(f"v_add_f32 v13, v{S}, v{S+1}")
    for v in vals[2:]: a.e(f"v_add_f32 v13, v13, v{v}")
    a.e("v_mov_b32 v14, v13"); a.nop(2); a.e("v_permlane32_swap_b32 v13, v14"); a.nop(1); a.e("v_add_f32 v13, v13, v14")
    a.e("v_rcp_f32 v13, v13"); a.nop(1)
    for v in vals: a.e(f"v_mul_f32 v{v}, v{v}, v13")
    for q in range(8): a.e(f"v_cvt_pk_bf16_f32 v{48+q}, v{S+2*q}, v{S+2*q+1}")
    for q in range(2): a.e(f"v_cvt_pk_bf16_f32 v{56+q}, v{SM+2*q}, v{SM+2*q+1}")
    a.e("buffer_store_dwordx4 v[48:51], v4, s[8:11], s26 offen sc1")
    a.e("buffer_store_dwordx4 v[52:55], v4, s[8:11], s26 offen offset:1024 sc1")
    a.e("buffer_store_dwordx2 v[56:57], v10, s[8:11], s26 offen offset:2048 sc1")
    set_flag(a, "s27")

def task_pz(a):
    a.e("s_lshr_b32 s25, s44, 3"); a.e("s_lshl_b32 s25, s25, 9"); a.e("s_lshl_b32 s26, s24, 7"); a.e("s_add_u32 s25, s25, s26"); a.e(f"s_add_u32 s25, s25, {WS_FLAGS+F_U}")
    wait_flags(a, a.newlabel("W_u"), "s25", 32, 2, 1)
    a.e("s_lshl_b32 s46, s44, 5"); a.e("s_lshl_b32 s25, s24, 3"); a.e("s_add_u32 s46, s46, s25")
    a.e("v_and_b32 v5, 31, v1"); a.e("v_lshrrev_b32 v6, 5, v1")
    a.e("v_lshlrev_b32 v4, 4, v1")
    a.e("v_lshlrev_b32 v7, 4, v1")
    a.e("v_mul_u32_u24 v8, 2560, v6"); a.e("v_lshl_add_u32 v8, v5, 4, v8")
    a.e("v_mul_u32_u24 v9, 10240, v6"); a.e("v_lshl_add_u32 v9, v5, 4, v9")
    a.e("s_mul_i32 s26, s46, 40960"); a.e("s_lshl_b32 s25, s45, 12"); a.e("s_add_u32 s26, s26, s25"); a.e(f"s_add_u32 s26, s26, {WS_U}")
    for h in range(8):
        for i in range(4): a.e(f"buffer_load_dwordx4 {ar(16*h+4*i,4)}, v4, s[8:11], s26 offen offset:{1024*i} {GP['ld']}")
        a.e("s_add_u32 s26, s26, 40960")
    a.e("s_lshl_b32 s25, s24, 13"); a.e("v_add_u32 v10, s25, v7")
    a.e("v_and_b32 v11, 7, v0"); a.e("v_lshrrev_b32 v12, 3, v0")
    a.e("v_lshlrev_b32 v13, 10, v11"); a.e("v_lshl_add_u32 v13, v12, 4, v13")
    a.e("v_mul_u32_u24 v14, 2560, v12"); a.e("v_lshl_add_u32 v14, v11, 4, v14")
    a.e("s_lshl_b32 s27, s44, 10"); a.e("s_lshl_b32 s25, s24, 8"); a.e("s_add_u32 s27, s27, s25"); a.e(f"s_add_u32 s27, s27, {WS_FLAGS+F_PT}")
    a.e("s_add_u32 s28, s44, 1"); a.e("s_lshl_b32 s25, s24, 10"); a.e(f"s_add_u32 s25, s25, {WS_FLAGS+F_YR}")
    a.e("s_min_u32 s28, s28, 63")
    a.e("s_min_u32 s29, s28, 62")
    wait_progress(a, a.newlabel("W_yp"), "s25", "s29")
    wait_flags(a, a.newlabel("W_y"), "s25", 8, 7, "s28", sleep=GP['slpf'])
    a.e("s_cmp_lg_u32 s44, 63"); a.e("s_cbranch_scc1 W_pz_nf")
    wait_flags(a, a.newlabel("W_yf"), "s25", 8, 7, 1, sleep=GP['slpf'], imm=4)
    a.label("W_pz_nf")
    a.e("s_mul_i32 s29, s46, 10240"); a.e("s_lshl_b32 s25, s45, 10"); a.e("s_add_u32 s29, s29, s25"); a.e(f"s_add_u32 s29, s29, {WS_YA}")
    for p in range(4):
        for t in range(2): a.e(f"buffer_load_dwordx4 {vr(144+8*p+4*t,4)}, v9, s[8:11], s29 offen offset:{512*t} sc1")
        a.e("s_add_u32 s29, s29, 20480")
    wait_flags(a, a.newlabel("W_p"), "s27", 2, 7, 1, sleep=GP['slpf'])
    a.e("s_mul_i32 s26, s46, 2560"); a.e(f"s_add_u32 s26, s26, {WS_PT}")
    for p in range(4):
        a.e("s_add_u32 s25, s26, 2560")
        for j in range(2): a.e(f"buffer_load_dwordx4 {vr(64+16*p+4*j,4)}, v7, s[8:11], s26 offen offset:{1024*j} sc1")
        for j in range(2): a.e(f"buffer_load_dwordx4 {vr(64+16*p+8+4*j,4)}, v7, s[8:11], s25 offen offset:{1024*j} sc1")
        a.e(f"buffer_load_dwordx4 {vr(128+4*p,4)}, v8, s[8:11], s26 offen offset:2048 sc1")
        a.e("s_add_u32 s26, s26, 5120")
    first = True
    for p in range(4):
        for k in range(5):
            a.e(f"s_waitcnt vmcnt({19-5*p-k})")
            for t in range(2):
                d = 16+16*t
                if k < 4:
                    h = 2*p + (k >> 1); j = k & 1
                    A = ar(16*h + 8*t + 4*j, 4); B = vr(64+16*p+4*k, 4)
                else:
                    A = vr(144+8*p+4*t, 4); B = vr(128+4*p, 4)
                a.e(f"{MF} {vr(d,16)}, {A}, {B}, {'0' if first else vr(d,16)}")
            first = False
    a.e("s_mul_i32 s26, s44, 81920"); a.e("s_lshl_b32 s25, s45, 7"); a.e("s_add_u32 s26, s26, s25")
    a.nop(10)
    for t in range(2):
        if t: a.nop(4)
        for q in range(4): a.e(f"ds_write_b128 v10, {vr(16+16*t+4*q,4)} offset:{(t*4+q)*1024}")
    a.e("s_waitcnt lgkmcnt(0)")
    a.e("s_barrier")
    for w in range(4):
        for hf in range(2): a.e(f"ds_read_b128 {vr(64+8*w+4*hf,4)}, v13 offset:{8192*w + 512*hf}")
    a.e("s_waitcnt lgkmcnt(0)")
    for q in range(0, 8, 2):
        a.e(f"v_pk_add_f32 {vr(64+q,2)}, {vr(64+q,2)}, {vr(72+q,2)}"); a.e(f"v_pk_add_f32 {vr(80+q,2)}, {vr(80+q,2)}, {vr(88+q,2)}")
    for q in range(0, 8, 2): a.e(f"v_pk_add_f32 {vr(64+q,2)}, {vr(64+q,2)}, {vr(80+q,2)}")
    for q in range(4): a.e(f"v_cvt_pk_bf16_f32 v{48+q}, v{64+2*q}, v{64+2*q+1}")
    a.e(f"buffer_store_dwordx4 v[48:51], v14, s[20:23], s26 offen {GP['ost']}")
    a.e("s_barrier")

def piece_off(a, dst, c4reg):
    a.e(f"s_lshr_b32 s25, {c4reg}, 4"); a.e(f"s_lshl_b32 {dst}, s25, 10")
    a.e(f"s_bfe_u32 s25, {c4reg}, 0x10002"); a.e("s_lshl_b32 s25, s25, 9"); a.e(f"s_add_u32 {dst}, {dst}, s25")
    a.e(f"s_and_b32 s25, {c4reg}, 8"); a.e(f"s_add_u32 {dst}, {dst}, s25")
def task_batt(a):
    C = 20**-0.5 * math.log2(math.e)
    SEG = 122880; VL = 18432
    S = 64; Q0 = 16; Q1 = 20; KA = 24; DAT = 208; O = 40
    a.e("s_lshr_b32 s26, s44, 1"); a.e("s_max_u32 s27, s26, 1"); a.e("s_sub_u32 s27, s27, 1")
    a.e("s_lshl_b32 s26, s26, 6"); a.e("s_lshl_b32 s27, s27, 6"); a.e(f"s_add_u32 s26, s26, {WS_FLAGS+F_BQ}"); a.e(f"s_add_u32 s27, s27, {WS_FLAGS+F_BQ}")
    wait_flags(a, a.newlabel("W_b1"), "s26", 10, 2, 1)
    wait_flags(a, a.newlabel("W_b2"), "s27", 10, 2, 1)
    a.e("s_mul_i32 s28, s45, 20")
    for part in range(3):
        for c in range(5):
            a.e(f"s_add_u32 s29, s28, {640*part + 4*c}")
            piece_off(a, f"s{48 + 5*part + c}", "s29")
    a.e("v_and_b32 v5, 31, v1"); a.e("v_lshrrev_b32 v6, 5, v1")
    a.e(f"v_mul_u32_u24 v4, {SEG}, v6"); a.e("v_lshl_add_u32 v4, v5, 4, v4")
    a.e("v_mul_u32_u24 v7, 48, v1")
    for i in range(3):
        a.e("s_mul_i32 s29, s24, 3"); a.e(f"s_add_u32 s29, s29, {i}")
        a.e("s_cmp_ge_u32 s29, 6"); a.e("s_cselect_b32 s30, 6, 0"); a.e("s_cselect_b32 s33, 1, 0"); a.e("s_sub_u32 s29, s29, s30")
        a.e("s_lshl_b32 s30, s44, 1"); a.e("s_add_u32 s30, s30, s29"); a.e("s_max_u32 s30, s30, 4"); a.e("s_sub_u32 s30, s30, 4")
        a.e(f"s_mul_i32 s30, s30, {2*SEG}"); a.e(f"s_add_u32 s30, s30, {WS_BQKV}")
        a.e("s_mul_i32 s29, s29, 3072"); a.e(f"s_mul_i32 s34, s33, {VL}"); a.e("s_add_u32 s29, s29, s34")
        a.e(f"v_add_u32 v{8+i}, s29, v7")
        a.e("s_cmp_eq_u32 s33, 1")
        for c in range(5):
            a.e(f"s_cselect_b32 s31, s{58+c}, s{53+c}"); a.e(f"s_mov_b32 s{35+c}, s31")
        for c in range(5):
            a.e(f"s_add_u32 s31, s{35+c}, s30")
            a.e(f"buffer_load_dwordx2 {vr(DAT+10*i+2*c,2)}, v4, s[8:11], s31 offen")
    a.e("s_lshl_b32 s30, s44, 2"); a.e("s_add_u32 s30, s30, s24"); a.e(f"s_mul_i32 s30, s30, {SEG}"); a.e(f"s_add_u32 s30, s30, {WS_BQKV}")
    a.e("v_cmp_eq_u32 vcc, 0, v6"); a.e("v_lshlrev_b32 v11, 4, v5")
    for k in range(2):
        a.e(f"v_mov_b32 v12, s{50+k}"); a.e(f"v_mov_b32 v13, s{48+k}"); a.e("v_cndmask_b32 v12, v12, v13, vcc"); a.e("v_add_u32 v12, v12, v11")
        a.e(f"buffer_load_dwordx2 {vr(Q0+2*k,2)}, v12, s[8:11], s30 offen")
    a.e("s_add_u32 s30, s30, s52")
    a.e(f"buffer_load_dwordx2 {vr(Q1,2)}, v11, s[8:11], s30 offen")
    a.e("v_mov_b32 v14, 0x3f80"); a.e("v_mov_b32 v15, 0"); a.e("v_mul_u32_u24 v12, 48, v0"); a.e("v_and_b32 v13, 127, v0"); a.e("v_mul_u32_u24 v13, 48, v13")
    a.e(f"ds_write_b64 v12, v[14:15] offset:{VL+40}"); a.e(f"ds_write_b64 v13, v[14:15] offset:{VL+40+256*48}")
    for i in range(3):
        for c in range(5):
            a.e(f"s_waitcnt vmcnt({17-5*i-c})")
            a.e(f"ds_write_b64 v{8+i}, {vr(DAT+10*i+2*c,2)} offset:{8*c}")
    a.e("s_mul_i32 s29, s24, 1536")
    a.e("v_mul_u32_u24 v8, 48, v5"); a.e("v_add_u32 v8, s29, v8"); a.e("v_lshl_add_u32 v9, v6, 4, v8")
    a.e("v_bfe_u32 v10, v1, 2, 2"); a.e("v_lshl_add_u32 v10, v6, 2, v10"); a.e("v_mul_u32_u24 v10, 48, v10")
    a.e("v_bfe_u32 v12, v1, 4, 1"); a.e("v_and_b32 v13, 3, v1"); a.e("v_lshl_add_u32 v12, v12, 2, v13"); a.e("v_min_u32 v12, 5, v12"); a.e("v_lshl_add_u32 v10, v12, 3, v10")
    a.e(f"s_add_u32 s29, s29, {VL}"); a.e("v_add_u32 v10, s29, v10")
    a.e("v_lshlrev_b32 v12, 2, v6"); a.e("v_sub_u32 v12, v5, v12")
    a.e(f"v_mov_b32 v13, {NEGINF}")
    a.e("s_waitcnt vmcnt(0)")
    a.e(f"v_cndmask_b32 v{Q1}, 0, v{Q1}, vcc"); a.e(f"v_cndmask_b32 v{Q1+1}, 0, v{Q1+1}, vcc")
    a.e("s_lshl_b32 s33, s44, 2"); a.e("s_add_u32 s33, s33, s24")
    a.e("s_waitcnt lgkmcnt(0)")
    a.e("s_barrier")
    def kread(i):
        r = KA + 6*(i % 3)
        a.e(f"ds_read_b128 {vr(r,4)}, v9 offset:{1536*i}"); a.e(f"ds_read_b64 {vr(r+4,2)}, v8 offset:{1536*i+32}")
    def m8(i):
        a.e(f"v_mfma_f32_32x32x8_bf16 {vr(S+16*i,16)}, {vr(KA+6*(i%3)+4,2)}, {vr(Q1,2)}, {vr(S+16*i,16)}")
    kread(0)
    for i in range(9):
        if i < 8: kread(i+1)
        a.e(f"s_waitcnt lgkmcnt({2 if i < 8 else 0})")
        a.e(f"{MF} {vr(S+16*i,16)}, {vr(KA+6*(i%3),4)}, {vr(Q0,4)}, 0")
        if i == 1: a.nop(4)
        if i > 0: m8(i-1)
    a.nop(4)
    m8(8)
    a.nop(16)
    lab = a.newlabel("W_neg")
    for i in range(8):
        a.e(f"s_cmp_ge_u32 s33, {8-i}"); a.e(f"s_cbranch_scc1 {lab}")
        for r in range(16): a.e(f"v_mov_b32 v{S+16*i+r}, v13")
    a.label(lab)
    for r in range(16):
        kr = (r & 3) + 8*(r >> 2)
        a.e(f"v_cmp_le_i32 vcc, {kr}, v12")
        a.nop(2)
        a.e(f"v_cndmask_b32 v{S+128+r}, v13, v{S+128+r}, vcc")
        a.e(f"v_cndmask_b32 v{S+r}, v{S+r}, v13, vcc")
    a.e(f"v_max3_f32 v14, v{S}, v{S+1}, v{S+2}"); a.e(f"v_max3_f32 v15, v{S+3}, v{S+4}, v{S+5}")
    for r in range(6, 142, 4):
        a.e(f"v_max3_f32 v14, v{S+r}, v{S+r+1}, v14"); a.e(f"v_max3_f32 v15, v{S+r+2}, v{S+r+3}, v15")
    a.e(f"v_max3_f32 v14, v{S+142}, v{S+143}, v14"); a.e("v_max_f32 v14, v14, v15")
    a.e("v_mov_b32 v15, v14"); a.e(f"s_mov_b32 s28, {fbits(C)}"); a.nop(1); a.e("v_permlane32_swap_b32 v14, v15"); a.nop(1); a.e("v_max_f32 v14, v14, v15")
    a.e("v_mul_f32 v14, s28, v14")
    def vread(i):
        for jj in range(2):
            for h in range(2):
                a.e(f"ds_read_b64_tr_b16 {vr(KA+8*(i&1)+4*jj+2*h,2)}, v10 offset:{(32*i+16*jj+8*h)*48}")
    vread(0)
    for i in range(9):
        d = S+16*i
        for r in range(16): a.e(f"v_fma_f32 v{d+r}, v{d+r}, s28, -v14")
        for r in range(16): a.e(f"v_exp_f32 v{d+r}, v{d+r}")
        for q in range(8): a.e(f"v_cvt_pk_bf16_f32 v{d+q}, v{d+2*q}, v{d+2*q+1}")
        if i < 8: vread(i+1)
        a.e(f"s_waitcnt lgkmcnt({4 if i < 8 else 0})")
        if i == 8: a.nop(1)
        for jj in range(2):
            a.e(f"{MF} {vr(O,16)}, {vr(KA+8*(i&1)+4*jj,4)}, {vr(d+4*jj,4)}, {'0' if i == 0 and jj == 0 else vr(O,16)}")
    a.e(f"s_mul_i32 s30, s33, 40960"); a.e(f"s_add_u32 s30, s30, {WS_BO}"); a.e("s_mul_i32 s28, s45, 40"); a.e("s_add_u32 s30, s30, s28")
    a.e("v_mul_u32_u24 v16, 1280, v5"); a.e("v_lshl_add_u32 v16, v6, 3, v16")
    a.nop(12)
    a.e(f"v_mov_b32 v8, v{O+8}"); a.e(f"v_mov_b32 v9, v{O+8}"); a.nop(1); a.e("v_permlane32_swap_b32 v8, v9")
    a.nop(1); a.e("v_rcp_f32 v9, v9"); a.nop(1)
    for r in range(12): a.e(f"v_mul_f32 v{O+r}, v{O+r}, v9")
    for q in range(6): a.e(f"v_cvt_pk_bf16_f32 v{24+q}, v{O+2*q}, v{O+2*q+1}")
    a.e("buffer_store_dwordx2 v[24:25], v16, s[8:11], s30 offen sc1")
    a.e("buffer_store_dwordx2 v[26:27], v16, s[8:11], s30 offen offset:16 sc1")
    a.e("s_mov_b32 exec_hi, 0")
    a.e("buffer_store_dwordx2 v[28:29], v16, s[8:11], s30 offen offset:32 sc1")
    a.e("s_mov_b64 exec, -1")
    a.e("s_lshr_b32 s26, s44, 1"); a.e("s_lshl_b32 s26, s26, 7"); a.e(f"s_add_u32 s26, s26, {WS_FLAGS+F_BA}")
    set_flag(a, "s26", add=True)

T_END, T_K, T_Q, T_VU, T_BQ, T_BA, T_BO, T_P, T_PZ = range(9)
def enc(t, x, y, z=0): return t | (x << 8) | (y << 16) | (z << 24)

def worker(a, table_label, maxlen, cw):
    CW[0] = cw
    a.e("s_load_dwordx8 s[64:71], s[0:1], 16")
    a.e("s_load_dwordx4 s[72:75], s[0:1], 64")
    a.e("s_load_dwordx2 s[20:21], s[0:1], 80")
    a.e("s_load_dwordx2 s[84:85], s[0:1], 0"); a.e("s_load_dwordx2 s[86:87], s[0:1], 56")
    a.e("s_getpc_b64 s[76:77]")
    a.label("W_pc")
    a.e(f"s_add_u32 s76, s76, {table_label}-W_pc"); a.e("s_addc_u32 s77, s77, 0")
    a.e(f"s_mul_i32 s79, s79, {4*maxlen}")
    a.e("s_waitcnt lgkmcnt(0)")
    a.e("s_mov_b32 s22, 5242880"); a.e("s_mov_b32 s23, 0x20000")
    a.e("s_mov_b32 s16, s70"); a.e("s_mov_b32 s17, s71"); a.e("s_mov_b32 s18, 7864320"); a.e("s_mov_b32 s19, 0x20000")
    a.e("s_mov_b32 s12, s64"); a.e("s_mov_b32 s13, s65"); a.e("s_mov_b32 s14, 7864320"); a.e("s_mov_b32 s15, 0x20000")
    a.e("v_and_b32 v1, 63, v0")
    def fetch(warm=False):
        if warm:
            a.e("s_mov_b32 s78, s63"); a.e("s_mov_b32 s63, s55"); a.e("s_add_u32 s79, s79, 4")
        else:
            a.e("s_load_dword s78, s[76:77], s79")
            a.e("s_add_u32 s79, s79, 4")
            a.e("s_load_dword s63, s[76:77], s79")
            a.e("s_waitcnt lgkmcnt(0)")
        a.e("PROFTASK")
        a.e("s_and_b32 s47, s78, 255"); a.e("s_bfe_u32 s44, s78, 0x80008"); a.e("s_bfe_u32 s45, s78, 0x80010"); a.e("s_lshr_b32 s46, s78, 24")
    def nextparams():
        a.e("s_and_b32 s25, s63, 255"); a.e("s_cmp_eq_u32 s25, 1")
        a.e("s_cselect_b32 s56, s66, s64"); a.e("s_cselect_b32 s57, s67, s65")
        a.e("s_cmp_eq_u32 s25, 3"); a.e("s_cselect_b32 s56, s68, s56"); a.e("s_cselect_b32 s57, s69, s57")
        a.e("s_mov_b32 s58, 7864320"); a.e("s_mov_b32 s59, 0x20000")
        a.e("s_sub_u32 s25, s25, 1"); a.e("s_cmp_lt_u32 s25, 3"); a.e("s_cselect_b32 s62, 1, 0")
        a.e("s_bitcmp1_b32 s63, 26"); a.e("s_cselect_b32 s62, 0, s62")
        a.e("s_bfe_u32 s60, s63, 0x80008"); a.e("s_mul_i32 s60, s60, 327680")
        a.e("s_bfe_u32 s61, s63, 0x80010"); a.e("s_mul_i32 s61, s61, 384")
    def aout():
        a.e("s_lshl_b32 s36, s44, 5"); a.e("s_add_u32 s36, s36, s45"); a.e("s_lshl_b32 s36, s36, 4")
        a.e("s_lshl_b32 s31, s44, 3")
        a.e("s_bitcmp1_b32 s46, 2"); a.e("s_cselect_b32 s25, 0, 1"); a.e("s_lshl_b32 s25, s24, s25"); a.e("s_add_u32 s31, s31, s25")
        a.e("s_bfe_u32 s25, s46, 0x10003"); a.e("s_lshl_b32 s25, s25, 2"); a.e("s_add_u32 s31, s31, s25")
        a.e("s_lshl_b32 s31, s31, 5"); a.e("s_add_u32 s31, s31, s45")
        a.e("s_cmp_eq_u32 s47, 3"); a.e("s_cbranch_scc1 W_ao_v" + str(a.uid))
        a.e("s_mul_i32 s31, s31, 12288"); a.e("s_mov_b32 s35, 393216")
        a.e("s_cmp_eq_u32 s47, 1"); a.e(f"s_cselect_b32 s25, 0, {WS_Q-WS_K}"); a.e("s_add_u32 s31, s31, s25"); a.e(f"s_add_u32 s31, s31, {WS_K}")
        a.e("s_cmp_eq_u32 s47, 1"); a.e(f"s_cselect_b32 s25, 0, {F_Q-F_K}"); a.e("s_add_u32 s36, s36, s25"); a.e(f"s_add_u32 s36, s36, {WS_FLAGS+F_K}")
        a.e("s_bfe_u32 s25, s46, 0x10003"); a.e("s_lshl_b32 s39, 1, s25"); a.e("s_bitcmp1_b32 s46, 2"); a.e("s_cselect_b32 s39, s39, 3")
        a.e("s_branch W_ao_d" + str(a.uid))
        a.label("W_ao_v" + str(a.uid))
        a.e("s_mul_i32 s31, s31, 40960"); a.e(f"s_add_u32 s31, s31, {WS_U}"); a.e(f"s_add_u32 s36, s36, {WS_FLAGS+F_U}")
        a.e("s_mul_i32 s37, s45, 245760")
        a.e("s_and_b32 s25, s46, 3"); a.e("s_cmp_eq_u32 s25, 0"); a.e("s_cselect_b32 s38, 4, 2"); a.e("s_cselect_b32 s39, 3, s25")
        a.e("s_cmp_eq_u32 s25, 2"); a.e("s_cselect_b32 s25, 640, 0"); a.e("s_add_u32 s37, s37, s25"); a.e("s_lshl_b32 s25, s25, 5"); a.e("s_add_u32 s31, s31, s25")
        a.e("s_bfe_u32 s25, s46, 0x10003"); a.e("s_lshl_b32 s25, s25, 1"); a.e("s_lshl_b32 s25, s39, s25"); a.e("s_mul_i32 s39, s39, 5")
        a.e("s_bitcmp1_b32 s46, 2"); a.e("s_cselect_b32 s39, s25, s39")
        a.label("W_ao_d" + str(a.uid)); a.uid += 1
    a.e("s_branch W_next")
    a.label("W_abort")
    a.e("s_endpgm")
    a.label("W_warm")
    fetch(True)
    a.e("s_mov_b32 s12, s56"); a.e("s_mov_b32 s13, s57"); a.e("s_mov_b32 s26, s60"); a.e("s_mov_b32 s27, s61")
    nextparams(); aout()
    wts(a, 1)
    a.e("s_cmp_eq_u32 s47, 3"); a.e("s_cbranch_scc1 W_vu_warm"); a.e("s_branch W_kq_warm")
    a.label("W_next")
    fetch()
    for t, l in ((T_P, "W_tp"), (T_PZ, "W_pz"), (T_BA, "W_ba"), (T_BQ, "W_bq"), (T_BO, "W_bo"), (T_END, "W_done")):
        a.e(f"s_cmp_eq_u32 s47, {t}"); a.e(f"s_cbranch_scc1 {l}")
    a.e("s_cmp_eq_u32 s47, 1"); a.e("s_cselect_b32 s12, s66, s64"); a.e("s_cselect_b32 s13, s67, s65")
    a.e("s_cmp_eq_u32 s47, 3"); a.e("s_cselect_b32 s12, s68, s12"); a.e("s_cselect_b32 s13, s69, s13"); a.e("s_mov_b32 s14, 7864320")
    a.e("s_mul_i32 s26, s44, 327680"); a.e("s_bfe_u32 s25, s46, 0x10003"); a.e("s_mul_i32 s25, s25, 163840"); a.e("s_add_u32 s26, s26, s25")
    a.e("s_mov_b32 s48, s84"); a.e("s_mov_b32 s49, s85"); a.e("s_mov_b32 s50, 2621440"); a.e("s_mov_b32 s51, 0x20000")
    a.e("s_mul_i32 s27, s45, 384"); a.e("s_mov_b32 s33, 12288")
    nextparams(); aout()
    a.e("s_bitcmp1_b32 s46, 2"); a.e("s_cbranch_scc1 W_mb1")
    a.e("s_cmp_eq_u32 s47, 3"); a.e("s_cbranch_scc1 W_vu"); a.e("s_branch W_kq")
    a.label("W_mb1"); a.e("s_mov_b32 s62, 0")
    a.e("s_cmp_eq_u32 s47, 3"); a.e("s_cbranch_scc1 W_vu1")
    task_kq(a, 1)
    a.label("W_vu1"); task_vu(a, 1)
    a.label("W_bq")
    a.e("s_mov_b32 s12, s72"); a.e("s_mov_b32 s13, s73"); a.e("s_mov_b32 s14, 2457600")
    a.e("s_mul_i32 s26, s44, 327680"); a.e("s_mov_b32 s48, s86"); a.e("s_mov_b32 s49, s87"); a.e("s_mov_b32 s50, 2621440"); a.e("s_mov_b32 s51, 0x20000")
    a.e("s_mul_i32 s27, s45, 384"); a.e("s_mov_b32 s33, 3840")
    a.e("s_lshl_b32 s36, s44, 4"); a.e("s_add_u32 s36, s36, s45"); a.e("s_lshl_b32 s36, s36, 2"); a.e(f"s_add_u32 s36, s36, {WS_FLAGS+F_BQ}")
    a.e("s_lshl_b32 s31, s44, 3"); a.e("s_lshl_b32 s25, s24, 1"); a.e("s_add_u32 s31, s31, s25"); a.e("s_mul_i32 s31, s31, 10"); a.e("s_add_u32 s31, s31, s45")
    a.e("s_mul_i32 s31, s31, 12288"); a.e(f"s_add_u32 s31, s31, {WS_BQKV}"); a.e("s_mov_b32 s35, 122880")
    a.e("s_mov_b32 s39, 1"); a.e("s_mov_b32 s62, 0")
    a.e("s_mov_b32 s56, s64"); a.e("s_mov_b32 s57, s65"); a.e("s_mov_b32 s58, 7864320"); a.e("s_mov_b32 s59, 0x20000")
    a.label("W_kq"); task_kq(a, 2)
    a.label("W_vu"); task_vu(a, 2)
    a.label("W_bo")
    a.e("s_lshl_b32 s26, s44, 7"); a.e(f"s_add_u32 s26, s26, {WS_FLAGS+F_BA}")
    wait_flags(a, "W_bow", "s26", 1, 2, 64)
    a.e("s_mov_b32 s12, s74"); a.e("s_mov_b32 s13, s75"); a.e("s_mov_b32 s14, 819200")
    a.e("s_mul_i32 s26, s44, 327680"); a.e(f"s_add_u32 s26, s26, {WS_BO}")
    a.e("s_mul_i32 s27, s45, 320"); a.e("s_mov_b32 s33, 1280")
    a.e(f"s_mul_i32 s31, s44, {256*2560}"); a.e("s_add_u32 s31, s31, s27"); a.e("s_add_u32 s31, s31, 1280")
    task_bout(a); a.e("s_branch W_next")
    a.label("W_tp"); task_tp(a); a.e("s_branch W_next")
    a.label("W_pz"); task_pz(a); a.e("s_branch W_next")
    a.label("W_ba"); task_batt(a); a.e("s_branch W_next")
    a.label("W_done")
```

```python
import sys
sys.path.insert(0, "work")
from asmlib import *
from layout import *
import chain
from worker import *

NAME = "concat_heads__memory_aug_recurrent_mem_tr__sliding_block__prompt_kernel"

SP = dict(fast=(1,), split=(), t0=19.0, dt=2.1, t0F=24.0, dtF=2.7, slack=3.0, lead=20.0, K=12.5, VU=25.0, VU2=23.0, VU1=15.0, K1=10.5, BQ=16.0, BA=5.8, BO=15.0, P=3.5, PZ=5.0, cold=1.4, groups=((2,3),(4,5),(6,7)), qlag=5.0, bstart=0.0)
def schedule(**kw):
    import heapq
    S = dict(SP); S.update(kw)
    heads3 = [list(range(0,6)), list(range(6,12)), list(range(12,17)), list(range(17,22)), list(range(22,27)), list(range(27,32))]
    headsq = [list(range(0,4)), list(range(4,8)), list(range(8,14)), list(range(14,20)), list(range(20,26)), list(range(26,32))]
    t0, dt = S['t0'], S['dt']
    AQ = []
    for x in range(6):
        H = heads3[x]; q = []
        r0 = []
        for h in range(32):
            r0 += [(-3, enc(T_VU, 0, h, 4 + 8*hm + z), S['VU1'], ('U', 0)) for hm in (0, 1) for z in (1, 2)]
            r0 += [(-2, enc(T_K, 0, h, 4 + 8*hm), S['K1'], ('K', 0)) for hm in (0, 1)]
        q += r0[32*x:32*x+32]
        for bi, m in enumerate(S['fast']):
            r1 = []
            for h in range(32):
                r1 += [(-1 + 0.1*bi, enc(T_VU, m, h, 4 + 8*hm + z), S['VU1'], ('U', m)) for hm in (0, 1) for z in (1, 2)] + [(-1 + 0.1*bi + 0.05, enc(T_K, m, h), S['K'], ('K', m))]
            q += r1[(160*x)//6:(160*(x+1))//6]
        for bi, m in enumerate(S['split']):
            r1 = []
            for h in range(32):
                r1 += [(-0.5 + 0.1*bi, enc(T_VU, m, h, z), S['VU2'], ('U', m)) for z in (1, 2)] + [(-0.5 + 0.1*bi + 0.05, enc(T_K, m, h), S['K'], ('K', m))]
            q += r1[16*x:16*x+16]
        for g in S['groups']:
            dl = t0 + 8*g[0]*dt - S['lead']
            q += [(dl - S['VU'], enc(T_VU, m, h), S['VU'], ('U', m)) for h in H for m in g]
            q += [(dl - S['K'], enc(T_K, m, h), S['K'], ('K', m)) for h in H for m in g]
        for g in [(0, 1), (2, 3), (4, 5), (6, 7)]:
            dl = t0 + (8*g[0] + 2)*dt + S['qlag'] - (S['lead'] if g[0] == 6 else 0)
            q += [(dl - S['K'], enc(T_Q, m, h), S['K'], ('Q', m)) for h in headsq[x] for m in g]
        q.sort(key=lambda e: e[0])
        AQ.append(q)
    done = {}
    remain = {}
    for q in AQ:
        for e in q: remain[e[3]] = remain.get(e[3], 0) + 1
    BQs = [(enc(T_BQ, m, n), ('BQ', m)) for m in range(8) for n in range(10)]
    BAs = [(enc(T_BA, b, h), ('BA', b >> 1)) for b in range(16) for h in range(32)]
    BOs = [(enc(T_BO, m, n), ('BO', m)) for m in range(8) for n in range(4)]
    for w, k in BQs + BAs: remain[k] = remain.get(k, 0) + 1
    Fs = []
    for s in range(64):
        Fs += [(enc(T_P, s, hg), ('P', s)) for hg in range(8)] + [(enc(T_PZ, s, cg), ('PZ', s)) for cg in range(10)]
        remain[('P', s)] = 8
    fin = {}
    def ready(keys):
        t = 0
        for k in keys:
            if remain.get(k, 0) > 0: return None
            t = max(t, fin.get(k, 0))
        return t
    def chain_t(s): return S['t0F'] + S['dtF']*(s + 1.6)
    lists = [[] for _ in range(192)]
    last = [0]*192
    heap = [(1.5, i) for i in range(192)]
    heapq.heapify(heap)
    end = 0
    while heap:
        t, i = heapq.heappop(heap)
        x = i >> 5
        pick = None
        def fready():
            w, k = Fs[0]; s = k[1]
            r = ready([('K', s >> 3), ('Q', s >> 3)]) if k[0] == 'P' else ready([('U', s >> 3), ('P', s)])
            if r is None: return None
            return max(r + S['slack'], chain_t(s) + (0 if k[0] == 'P' else dt))
        def take_a():
            e = AQ[x].pop(0); d = e[2] + (0 if (last[i] in (1, 2, 3) and not (lists[i][-1] >> 26) & 1) else S['cold'])
            return e[1], e[3], t + d
        def take_b():
            if BOs:
                r = ready([('BA', BOs[0][1][1])])
                if r is not None and r + S['slack'] <= t: w, k = BOs.pop(0); return w, k, t + S['BO']
            if BAs:
                m = BAs[0][1][1]; r = ready([('BQ', m), ('BQ', max(m-1, 0))])
                if r is not None and r + S['slack'] <= t: w, k = BAs.pop(0); return w, k, t + S['BA']
            if BQs and t >= S['bstart']: w, k = BQs.pop(0); return w, k, t + S['BQ']
            return None
        if AQ[x] and AQ[x][0][0] <= t: pick = take_a()
        if not pick and Fs:
            r = fready()
            if r is not None and r <= t:
                w, k = Fs.pop(0); pick = (w, k, max(t + S[k[0]], r + (1.0 if k[0] == 'P' else 1.8)))
        if not pick: pick = take_b()
        if not pick and AQ[x]: pick = take_a()
        if not pick and not any(AQ) and not BQs:
            cand = []
            if BAs:
                m = BAs[0][1][1]; r = ready([('BQ', m), ('BQ', max(m-1, 0))]); cand.append((r, 'BA'))
            elif BOs:
                r = ready([('BA', BOs[0][1][1])]); cand.append((r, 'BO'))
            if Fs:
                r = fready()
                if r is not None: cand.append((r, 'F'))
            if cand:
                r, c = min(cand)
                if c == 'F': w, k = Fs.pop(0); pick = (w, k, max(t + S[k[0]], r + (1.0 if k[0] == 'P' else 1.8)))
                elif c == 'BA': w, k = BAs.pop(0); pick = (w, k, max(t, r) + S['BA'])
                else: w, k = BOs.pop(0); pick = (w, k, max(t, r) + S['BO'])
        if not pick:
            if any(AQ) or BQs or BAs or BOs or Fs: heapq.heappush(heap, (t + 0.5, i))
            continue
        w, k, tf = pick
        lists[i].append(w); last[i] = w & 255
        remain[k] = remain.get(k, 1) - 1; fin[k] = max(fin.get(k, 0), tf); end = max(end, tf)
        heapq.heappush(heap, (tf, i))
    return lists, fin

def init_work(a):
    a.e("v_and_b32 v1, 63, v0"); a.e("v_lshlrev_b32 v4, 4, v1")
    for q in range(4): a.e(f"v_mov_b32 v{28+q}, -1"); a.e(f"v_mov_b32 v{32+q}, 0")
    a.e("s_lshr_b32 s28, s2, 2"); a.e("s_lshl_b32 s29, s28, 16");
    a.e("s_and_b32 s28, s2, 3"); a.e("s_lshl_b32 s28, s28, 14"); a.e("s_add_u32 s29, s29, s28"); a.e("s_lshl_b32 s28, s24, 12"); a.e("s_add_u32 s29, s29, s28")
    for i in range(4): a.e(f"buffer_store_dwordx4 v[28:31], v4, s[8:11], s29 offen offset:{1024*i} sc1")
    a.e("s_cmp_eq_u32 s24, 3"); a.e("s_cbranch_scc1 I_w3")
    a.e("s_mul_i32 s28, s2, 3"); a.e("s_add_u32 s28, s28, s24"); a.e("s_cmp_ge_u32 s28, 384"); a.e("s_cselect_b32 s29, 384, 0"); a.e(f"s_cselect_b32 s30, {LOC_STRIDE}, 0"); a.e(f"s_add_u32 s30, s30, {WS_LOC}")
    a.e("s_sub_u32 s28, s28, s29"); a.e("s_lshl_b32 s29, s28, 10"); a.e("s_add_u32 s29, s29, s30"); a.e("s_lshr_b32 s28, s28, 3"); a.e("s_cmp_eq_u32 s28, 2"); a.e("s_cbranch_scc1 I_z")
    a.e("buffer_store_dwordx4 v[28:31], v4, s[8:11], s29 offen sc1"); a.e("s_branch I_d")
    a.label("I_w3")
    a.e("s_cmp_ge_u32 s2, 128"); a.e("s_cbranch_scc1 I_d")
    a.e("s_lshl_b32 s29, s2, 10"); a.e(f"s_add_u32 s29, s29, {WS_FLAGS}")
    a.label("I_z")
    a.e("buffer_store_dwordx4 v[32:35], v4, s[8:11], s29 offen sc1")
    a.label("I_d")

def census_wait(a, lab):
    a.e("v_mbcnt_lo_u32_b32 v3, -1, 0"); a.e("v_and_b32 v3, 15, v3"); a.e("v_min_u32 v3, 8, v3")
    a.e("v_and_b32 v4, 1, v3"); a.e("v_lshlrev_b32 v3, 2, v3"); a.e("v_lshl_add_u32 v3, v4, 7, v3")
    a.label(lab)
    a.e("buffer_load_dword v2, v3, s[4:7], 0 offen sc1")
    guard(a)
    a.e("s_waitcnt vmcnt(0)")
    for i in range(9): a.e(f"v_readlane_b32 s{84+i}, v2, {i}")
    a.e("s_cmp_eq_u32 s92, 256"); a.e(f"s_cbranch_scc1 {lab}_ok"); a.e("s_sleep 8"); a.e(f"s_branch {lab}")
    a.label(f"{lab}_ok")

def arrive(a, lab):
    a.e("s_cmp_lg_u32 s24, 1"); a.e(f"s_cbranch_scc1 {lab}")
    a.e("v_mov_b32 v5, 1"); a.e("s_mov_b64 exec, 1")
    a.e("buffer_atomic_add v5, off, s[4:7], 0 offset:32 sc1"); a.e("s_mov_b64 exec, -1")
    a.label(lab)

def atomic_rank(a, lab, voff_expr, dst):
    a.e("s_cmp_lg_u32 s24, 0"); a.e(f"s_cbranch_scc1 {lab}")
    a.e("v_mov_b32 v3, 1"); a.e("v_mov_b32 v4, s25"); a.e("s_mov_b64 exec, 1")
    a.e("buffer_atomic_add v3, v4, s[4:7], 0 offen sc0 sc1")
    a.e("s_waitcnt vmcnt(0)")
    a.e("v_mov_b32 v4, 0"); a.e("ds_write_b32 v4, v3"); a.e("s_waitcnt lgkmcnt(0)"); a.e("s_mov_b64 exec, -1")
    a.label(lab)
    a.e("s_waitcnt vmcnt(0)")
    a.e("s_barrier")
    a.e("v_mov_b32 v4, 0"); a.e("ds_read_b32 v8, v4")
    a.e("s_cmp_lg_u32 s24, 1"); a.e(f"s_cbranch_scc1 {lab}b")
    a.e("v_mov_b32 v5, 1"); a.e("v_mov_b32 v6, 32"); a.e("s_mov_b64 exec, 1")
    a.e("buffer_atomic_add v5, v6, s[4:7], 0 offen sc1"); a.e("s_mov_b64 exec, -1")
    a.label(f"{lab}b")
    a.e("s_waitcnt lgkmcnt(0)")
    a.e(f"v_readfirstlane_b32 {dst}, v8")
    a.e("s_barrier")

def build(hm=0, diag=False, mkpv=0, mkpq=0, h2rd=0, ctlb=0, mkg=0, qarch=1, rperm=0, tlbw=1, wpf=0, cpf=1, wdelay=0, wsb=0, mke=0, mkpost=0, mkgap=24, mks=128, ctime=False, wpol='nt', wpol2='', wmax=24, hint=0, sp={}, gp={}, steplog=0, psel=0, profstart=False, prof=0, only=None, lists=None, nochain=False, budget=1 << 22, force_slow=False, qk={}, vo={}, proftask=False, flip=None):
    chain.HM[0] = hm; chain.MKPV[0] = mkpv; chain.MKPQ[0] = mkpq; chain.H2RD[0] = h2rd; chain.TLBW[0] = ctlb; chain.MKG[0] = mkg; chain.QARCH[0] = qarch; chain.MKE[0] = mke; chain.MKPOST[0] = mkpost; chain.MKGAP[0] = mkgap; chain.MKS[0] = mks; chain.WPOL[:] = [wpol, wpol2]; chain.WMAX[0] = wmax; chain.HINT[0] = hint; chain.PSEL[0] = psel; chain.CAL[0] = flip is None
    chain.STEPLOG[0] = (WS_PROF + 524288) if steplog else 0
    import worker as WK
    WK.WPROF[0] = proftask == 2
    WK.GP.update(gp)
    a = Asm()
    if lists is None: lists, _ = schedule(**sp)
    if only is not None: lists = [[w for w in l if (w & 255) in only] for l in lists]
    maxlen = max(len(l) for l in lists) + 3
    a.e("s_cmp_ge_u32 s2, 256"); a.e("s_cbranch_scc1 W_abort")
    a.e("""
s_load_dwordx2 s[8:9], s[0:1], 96
s_load_dwordx2 s[4:5], s[0:1], 88
s_getreg_b32 s3, hwreg(HW_REG_XCC_ID)
s_and_b32 s3, s3, 7
v_lshrrev_b32 v1, 6, v0
s_nop 0
v_readfirstlane_b32 s24, v1
s_waitcnt lgkmcnt(0)
WSBASE
s_mov_b32 s11, 0x20000
s_mov_b32 s6, 256
s_mov_b32 s7, 0x20000
""")
    a.e(f"s_mov_b32 s82, {budget}")
    if prof or proftask or ctime:
        a.e("s_mov_b32 s56, s8"); a.e("s_mov_b32 s57, s9"); a.e("s_mov_b32 s58, s10"); a.e("s_mov_b32 s59, 0x20000"); a.e("s_mov_b32 s83, 0")
        a.e("s_memrealtime s[96:97]")
    if diag: a.e("s_or_b32 s25, s2, s24\n s_cmp_lg_u32 s25, 0\n s_cbranch_scc1 D_0\n s_memrealtime s[100:101]\n s_waitcnt lgkmcnt(0)\n s_not_b32 s100, s100\n v_mov_b32 v2, s100\n s_mov_b64 exec, 1\n buffer_atomic_umax v2, off, s[4:7], 0 offset:40 sc1\n s_mov_b64 exec, -1\nD_0:")
    if profstart: a.e("s_memrealtime s[60:61]")
    if profstart: a.e("s_memrealtime s[62:63]")
    if profstart: a.e("s_memrealtime s[64:65]")
    if force_slow: a.e("s_lshr_b32 s3, s2, 5"); a.e("s_mul_i32 s3, s3, 3"); a.e("s_and_b32 s3, s3, 7"); a.e("s_max_u32 s3, s3, 1")
    a.e("s_and_b32 s25, s3, 1"); a.e("s_lshl_b32 s25, s25, 7"); a.e("s_lshl_b32 s26, s3, 2"); a.e("s_add_u32 s95, s25, s26")
    def code_pf(ranges, lab):
        a.e("s_getpc_b64 s[26:27]"); a.label(lab)
        a.e("v_and_b32 v1, 63, v0"); a.e("v_lshlrev_b32 v10, 7, v1"); a.e("s_sub_u32 s25, s24, 1"); a.e("s_lshl_b32 s25, s25, 13"); a.e("v_add_u32 v10, s25, v10")
        for (st, n) in ranges:
            a.e(f"s_add_u32 s28, s26, {st}-{lab}"); a.e("s_addc_u32 s29, s27, 0")
            for i in range(n):
                a.e(f"global_load_dword v11, v10, s[28:29]")
                if i < n-1: a.e("s_add_u32 s28, s28, 24576"); a.e("s_addc_u32 s29, s29, 0")
    def tlb_warm():
        a.e("s_load_dwordx8 s[64:71], s[0:1], 16")
        a.e("v_and_b32 v12, 7, v0"); a.e("v_lshlrev_b32 v12, 20, v12")
        a.e("s_mov_b32 s14, 7864320"); a.e("s_mov_b32 s15, 0x20000")
        a.e("s_waitcnt lgkmcnt(0)")
        for m in range(4):
            a.e(f"s_mov_b32 s12, s{64+2*m}"); a.e(f"s_mov_b32 s13, s{65+2*m}")
            a.e("buffer_load_dword v13, v12, s[12:15], 0 offen")
    if tlbw:
        a.e("s_cmp_lg_u32 s24, 1"); a.e("s_cbranch_scc1 M_tw")
        tlb_warm()
        a.label("M_tw")
    a.e("s_cmp_ge_u32 s3, 2"); a.e("s_cbranch_scc1 M_late")
    a.e("s_cmp_lg_u32 s24, 0"); a.e("s_cbranch_scc1 M_e1")
    a.e("v_mov_b32 v3, 1"); a.e("v_mov_b32 v8, s95"); a.e("s_mov_b64 exec, 1")
    a.e("buffer_atomic_add v3, v8, s[4:7], 0 offen sc0 sc1")
    a.e("s_mov_b64 exec, -1")
    a.e("s_waitcnt vmcnt(0)")
    a.e("v_mov_b32 v4, 0"); a.e("s_mov_b64 exec, 1"); a.e("ds_write_b32 v4, v3"); a.e("s_mov_b64 exec, -1"); a.e("s_waitcnt lgkmcnt(0)")
    a.e("s_branch M_e2")
    a.label("M_e1")
    if cpf & 8: code_pf([("M_chain", 1), ("M_vo-8192", 1)], "M_pf1")
    a.label("M_e2")
    a.e("s_barrier")
    a.e("v_mov_b32 v4, 0"); a.e("ds_read_b32 v8, v4"); a.e("s_waitcnt lgkmcnt(0)")
    a.e("v_readfirstlane_b32 s80, v8")
    a.e("s_barrier")
    a.e("s_cmp_lt_u32 s80, 32"); a.e("s_cbranch_scc0 M_e3")
    a.e("s_mov_b32 s25, s3"); a.e("s_mov_b32 s26, s80"); a.e("s_mov_b32 s81, 1"); a.e("s_branch M_chain")
    a.label("M_e3")
    a.L += [l.replace("I_", "J_") for l in _sub(init_work)]
    a.e("s_waitcnt vmcnt(0)"); a.e("s_barrier")
    arrive(a, "M_e4")
    a.e("s_branch M_worker")
    a.label("M_late")
    if cpf & 7:
        a.e("s_cmp_eq_u32 s24, 0"); a.e("s_cbranch_scc1 M_pf2x")
        code_pf([("W_warm", cpf & 7)], "M_pf2")
        a.label("M_pf2x")
    init_work(a)
    a.e("s_mov_b32 s25, s95")
    atomic_rank(a, "M_a1", None, "s80")
    if profstart: a.e("s_memrealtime s[62:63]")
    if profstart:
        a.e("s_memrealtime s[66:67]"); a.e("s_waitcnt lgkmcnt(0)"); a.e("s_lshl_b32 s25, s2, 5"); a.e(f"s_add_u32 s25, s25, {WS_PROF+262144}")
        a.e("v_mov_b32 v4, s60"); a.e("v_mov_b32 v5, s62"); a.e("v_mov_b32 v6, s64"); a.e("v_mov_b32 v7, s66"); a.e("v_mov_b32 v2, 0"); a.e("v_mov_b32 v8, s3")
        a.e("s_mov_b64 exec, 1"); a.e("buffer_store_dwordx4 v[4:7], v2, s[8:11], s25 offen"); a.e("buffer_store_dword v8, v2, s[8:11], s25 offen offset:16"); a.e("s_mov_b64 exec, -1")
    a.e("s_cmp_ge_u32 s80, 32"); a.e("s_cbranch_scc1 M_worker")
    a.e("s_sub_u32 s79, s3, 2"); a.e("s_lshl_b32 s79, s79, 5"); a.e("s_add_u32 s79, s79, s80")
    a.e("s_mov_b32 s81, 1")
    if flip is None:
        a.e("s_cmp_lg_u32 s79, 31"); a.e("s_cbranch_scc1 C_skip"); a.e("s_cmp_lg_u32 s24, 0"); a.e("s_cbranch_scc1 C_skip")
        a.e(f"s_mov_b32 s25, {WS_CAL}")
        a.e("s_load_dword s27, s[8:9], s25 glc"); a.e("s_waitcnt lgkmcnt(0)")
        a.e("s_mov_b32 s32, -1"); a.e("s_mov_b32 s33, -1")
        for i in range(1, 9):
            a.e(f"s_add_u32 s25, s25, 8192")
            a.e("s_memtime s[28:29]"); a.e("s_waitcnt lgkmcnt(0)")
            a.e("s_load_dword s27, s[8:9], s25 glc"); a.e("s_waitcnt lgkmcnt(0)")
            a.e("s_memtime s[30:31]"); a.e("s_waitcnt lgkmcnt(0)")
            a.e("s_sub_u32 s30, s30, s28"); a.e(f"s_min_u32 s{32 + (i & 1)}, s{32 + (i & 1)}, s30")
        a.e("s_cmp_le_u32 s33, s32"); a.e("s_cselect_b32 s27, 1, 0x2001")
        a.e("v_mov_b32 v2, s27"); a.e("buffer_store_dword v2, off, s[4:7], 0 offset:64 sc1")
        a.label("C_skip")
    if wpf:
        a.e("s_load_dwordx8 s[64:71], s[0:1], 16")
        a.e("s_mul_i32 s25, s79, 1366"); a.e("s_lshr_b32 s25, s25, 16"); a.e("s_mul_i32 s26, s25, 48"); a.e("s_sub_u32 s26, s79, s26")
        a.e("s_mul_i32 s26, s26, 163840"); a.e("s_mul_i32 s27, s24, 40960"); a.e("s_add_u32 s26, s26, s27")
        a.e("v_and_b32 v10, 63, v0"); a.e("v_lshlrev_b32 v10, 7, v10")
        a.e("s_waitcnt lgkmcnt(0)")
        a.e("s_mov_b32 s12, s64"); a.e("s_mov_b32 s13, s65")
        for m in (1, 2, 3):
            a.e(f"s_cmp_eq_u32 s25, {m}"); a.e(f"s_cselect_b32 s12, s{64+2*m}, s12"); a.e(f"s_cselect_b32 s13, s{65+2*m}, s13")
        a.e("s_mov_b32 s14, 7864320"); a.e("s_mov_b32 s15, 0x20000")
        for i in range(5):
            a.e(f"buffer_load_dword v63, v10, s[12:15], s26 offen {wpf if wpf != 1 else ''}"); a.e("s_add_u32 s26, s26, 8192")
    for i in range(wdelay): a.e("s_sleep 37")
    a.e("s_branch M_go")
    a.label("M_worker")
    census_wait(a, "M_cw")
    a.e("s_mov_b32 s79, s80")
    a.e("s_cmp_lt_u32 s3, 2"); a.e("s_cselect_b32 s25, 32, 0"); a.e("s_sub_u32 s79, s79, s25")
    for x in range(7):
        if x < 2: a.e(f"s_max_u32 s25, s{84+x}, 32"); a.e("s_sub_u32 s25, s25, 32")
        else: a.e(f"s_mov_b32 s25, s{84+x}")
        a.e(f"s_cmp_gt_u32 s3, {x}"); a.e("s_cselect_b32 s25, s25, 0"); a.e("s_add_u32 s79, s79, s25")
    a.e("s_min_u32 s25, s84, 32"); a.e("s_sub_u32 s27, 32, s25"); a.e("s_min_u32 s26, s85, 32"); a.e("s_sub_u32 s28, 32, s26")
    a.e("s_cmp_lt_u32 s79, s27"); a.e("s_cbranch_scc0 M_n0")
    a.e("s_add_u32 s26, s25, s79"); a.e("s_mov_b32 s25, 0"); a.e("s_mov_b32 s81, 0"); a.e("s_branch M_chain")
    a.label("M_n0"); a.e("s_sub_u32 s79, s79, s27")
    a.e("s_cmp_lt_u32 s79, s28"); a.e("s_cbranch_scc0 M_n1")
    a.e("s_add_u32 s26, s26, s79"); a.e("s_mov_b32 s25, 1"); a.e("s_mov_b32 s81, 0"); a.e("s_branch M_chain")
    a.label("M_n1"); a.e("s_sub_u32 s79, s79, s28")
    a.e("s_mov_b32 s81, 0")
    a.label("M_go")
    if proftask: a.e(f"s_lshl_b32 s98, s79, {9 if proftask != 2 else 10}"); a.e(f"s_add_u32 s98, s98, {WS_PROF+65536}")
    worker(a, "W_table", maxlen, census_wait)
    if diag: a.e("s_memrealtime s[100:101]\n s_waitcnt lgkmcnt(0)\n s_cmp_eq_u32 s24, 0\n s_cselect_b64 exec, 1, 0\n v_mov_b32 v2, s100\n s_cbranch_execz 2\n buffer_atomic_umax v2, off, s[4:7], 0 offset:52 sc1\n s_mov_b64 exec, -1")
    a.e("s_branch L_fin")
    a.label("M_chain")
    if rperm: a.e("s_and_b32 s27, s26, 1"); a.e("s_lshl_b32 s27, s27, 4"); a.e("s_lshr_b32 s26, s26, 1"); a.e("s_add_u32 s26, s26, s27")
    a.e(f"s_mov_b32 s47, {(flip or 0)*8192}")
    if prof or proftask or ctime:
        a.e("s_mov_b32 s56, s8"); a.e("s_mov_b32 s57, s9"); a.e("s_mov_b32 s58, s10"); a.e("s_mov_b32 s59, 0x20000")
    if nochain: a.e("s_branch L_fin")
    if prof or proftask or ctime:
        a.e("s_lshl_b32 s39, s25, 5"); a.e("s_add_u32 s39, s39, s26"); a.e("s_lshl_b32 s39, s39, 2"); a.e("s_add_u32 s39, s39, s24"); a.e("s_lshl_b32 s39, s39, 6"); a.e(f"s_add_u32 s39, s39, {WS_PROF}")
    a.e("s_cmp_ge_u32 s26, 16"); a.e("s_cbranch_scc1 M_vo")
    (a.e("s_lshl_b32 s27, s26, 1"), a.e("s_add_u32 s27, s27, s25")) if hm else (a.e("s_lshl_b32 s27, s25, 4"), a.e("s_add_u32 s27, s27, s26"))
    chain.ARRIVE[0] = arrive
    def init2(a, lab):
        L = _sub(init_work)
        import re
        for l in L:
            l = l.replace("I_", lab + "_")
            l = re.sub(r"\bs28\b", "s60", l); l = re.sub(r"\bs29\b", "s61", l); l = re.sub(r"\bs30\b", "s62", l)
            l = re.sub(r"\bv4\b", "v60", l)
            for q in range(8): l = re.sub(rf"\bv{28+q}\b", f"v{62+q}", l)
            l = l.replace("v[28:31]", "v[62:65]").replace("v[32:35]", "v[66:69]")
            a.L.append(l)
    chain.INIT[0] = init2
    chain.qk_role(a, prof=prof, cw=census_wait, **qk)
    a.e("s_branch L_cfin")
    a.label("M_vo")
    a.e("s_sub_u32 s26, s26, 16"); (a.e("s_lshl_b32 s27, s26, 1"), a.e("s_add_u32 s27, s27, s25")) if hm else (a.e("s_lshl_b32 s27, s25, 4"), a.e("s_add_u32 s27, s27, s26"))
    chain.vo_role(a, prof=prof, cw=census_wait, **vo)
    a.label("L_cfin")
    if diag: a.e("s_memrealtime s[100:101]\n s_waitcnt lgkmcnt(0)\n s_cmp_eq_u32 s24, 0\n s_cselect_b64 exec, 1, 0\n v_mov_b32 v2, s100\n s_cbranch_execz 2\n buffer_atomic_umax v2, off, s[4:7], 0 offset:48 sc1\n s_mov_b64 exec, -1")
    if prof or proftask or ctime:
        a.e("""
s_memrealtime s[80:81]
s_memtime s[78:79]
s_waitcnt lgkmcnt(0)
s_sub_u32 s78, s78, s76
v_mov_b32 v8, s78
v_mov_b32 v9, s39
buffer_store_dword v8, v9, s[56:59], 0 offen offset:60
s_mov_b64 exec, 1
v_mov_b32 v2, s39
v_mov_b32 v4, s96
v_mov_b32 v5, s98
v_mov_b32 v6, s80
v_mov_b32 v7, s83
buffer_store_dwordx4 v[4:7], v2, s[56:59], 0 offen offset:32
s_waitcnt vmcnt(0)
""")
    a.label("L_abort")
    a.label("L_fin")
    a.label("L_end")
    a.e("s_endpgm")
    a.e(".p2align 2")
    a.label("W_table")
    for l in lists:
        a.e(".long " + ",".join(str(w) for w in l + [0]*(maxlen-len(l))))
    txt = a.text()
    if proftask == 2:
        pt = "s_memtime s[100:101]\n  s_waitcnt lgkmcnt(0)\n  v_mov_b32 v2, s78\n  v_mov_b32 v3, s100\n  v_mov_b32 v4, s90\n v_mov_b32 v5, s92\n v_mov_b32 v6, s94\n v_mov_b32 v7, s96\n v_mov_b32 v8, s98\n  s_mov_b64 exec, 1\n  buffer_store_dwordx4 v[2:5], v8, s[8:11], 0 offen\n buffer_store_dwordx2 v[6:7], v8, s[8:11], 0 offen offset:16\n  s_mov_b64 exec, -1\n  s_add_u32 s98, s98, 32"
        txt = txt.replace("PROFTASK", pt)
    pt = "s_memrealtime s[100:101]\n  s_waitcnt lgkmcnt(0)\n  v_mov_b32 v2, s78\n  v_mov_b32 v3, s100\n  v_mov_b32 v4, s98\n  s_mov_b64 exec, 1\n  buffer_store_dwordx2 v[2:3], v4, s[8:11], 0 offen\n  s_mov_b64 exec, -1\n  s_add_u32 s98, s98, 8" if proftask else "s_nop 0"
    txt = txt.replace("PROFTASK", pt)
    if diag: txt = txt.replace("LOOPSTART", "s_memrealtime s[100:101]\n s_waitcnt lgkmcnt(0)\n s_cmp_eq_u32 s24, 0\n s_cselect_b64 exec, 1, 0\n v_mov_b32 v2, s100\n s_cbranch_execz 2\n buffer_atomic_umax v2, off, s[4:7], 0 offset:44 sc1\n s_mov_b64 exec, -1").replace("WLOADED", "s_memrealtime s[100:101]\n s_waitcnt lgkmcnt(0)\n s_cmp_eq_u32 s24, 0\n s_cselect_b64 exec, 1, 0\n v_mov_b32 v2, s100\n s_cbranch_execz 2\n buffer_atomic_umax v2, off, s[4:7], 0 offset:56 sc1\n s_mov_b64 exec, -1")
    txt = txt.replace("WSBASE", f"s_add_u32 s8, s8, {wsb*MB}\n  s_addc_u32 s9, s9, 0\n  s_mov_b32 s10, {(256-wsb)*MB}")
    for i in range(3): txt = txt.replace(f"WSTAMP{i}", f"s_memrealtime s[{70+2*i}:{71+2*i}]\n s_waitcnt lgkmcnt(0)\n s_mov_b32 s{76+i}, s{70+2*i}" if (prof or proftask or ctime) else "s_nop 0")
    txt = txt.replace("WLOADED", "s_memrealtime s[100:101]\n  s_waitcnt lgkmcnt(0)\n v_mov_b32 v2, s100\n v_mov_b32 v3, s39\n s_mov_b64 exec, 1\n v_mov_b32 v60, s76\n v_mov_b32 v61, s77\n v_mov_b32 v62, s78\n buffer_store_dword v2, v3, s[56:59], 0 offen offset:48\n buffer_store_dwordx3 v[60:62], v3, s[56:59], 0 offen offset:52\n s_nop 2\n s_mov_b64 exec, -1" if (prof or proftask or ctime) else "s_nop 0")
    txt = txt.replace("LOOPSTART", "s_memrealtime s[98:99]\n s_memtime s[76:77]\n  s_waitcnt lgkmcnt(0)" if (prof or proftask or ctime) else "s_nop 0")
    return txt
WS_PROF = 186*MB
def _sub(f):
    b = Asm(); f(b); return b.L

HEADER = open("concat_heads__memory_aug_recurrent_mem_tr__sliding_block__prompt.s.ref").read().split("; Override")[0] if __name__ == "__main__" else ""
def full(body, name=NAME, header=""):
    return f"""{header}; @launch grid=(256,1,1) block=(256,1,1) lds=163840
.amdgcn_target "amdgcn-amd-amdhsa--gfx950"
.text
.globl {name}
.p2align 8
.type {name},@function
{name}:
{body}
.section .rodata,"a"
.p2align 6
.amdhsa_kernel {name}
  .amdhsa_next_free_vgpr 512
  .amdhsa_next_free_sgpr 102
  .amdhsa_accum_offset 256
  .amdhsa_group_segment_fixed_size 0
  .amdhsa_kernarg_size 104
  .amdhsa_user_sgpr_count 2
  .amdhsa_user_sgpr_kernarg_segment_ptr 1
  .amdhsa_system_sgpr_workgroup_id_x 1
  .amdhsa_float_denorm_mode_32 3
.end_amdhsa_kernel
"""
if __name__ == "__main__":
    kw = eval(sys.argv[2]) if len(sys.argv) > 2 else {}
    txt = full(build(**kw), header=HEADER)
    open(sys.argv[1] if len(sys.argv) > 1 else "concat_heads__memory_aug_recurrent_mem_tr__sliding_block__prompt.s", "w").write(txt)
    print(len(txt))
```

```python
import math
from asmlib import *
from layout import *

SM64 = "v_smfmac_f32_16x16x64_bf16"
SM32 = "v_smfmac_f32_16x16x32_bf16"
CEXP = 192**-0.5 * math.log2(math.e)
import struct
def fbits(x): return struct.unpack("<I", struct.pack("<f", x))[0]


def load_weights(a, chunks, tmp):
    n = len(chunks)
    issued = 0
    cnt_after = []
    def can_issue(k, nxt):
        c = chunks[nxt]
        for q in range(k, nxt):
            d = chunks[q]
            if c['off'] < d['off'] + d['size'] and d['off'] < c['off'] + c['size']: return False
        for q in range(0, k):
            d = chunks[q]
            if d['res'] and c['off'] < d['off'] + d['size'] and d['off'] < c['off'] + c['size']: raise Exception("overlap resident")
        out = sum(len(chunks[q]['dma']) for q in range(k, nxt+1))
        return out <= WMAX[0]
    def issue_some(k):
        nonlocal issued
        while issued < n and can_issue(k, issued):
            for it in chunks[issued]['dma']: a.e("\n".join(it))
            issued += 1
    issue_some(0)
    first = issued
    extra = 0
    if tmp and ARRIVE[0]:
        lab = a.newlabel("C_in")
        a.e("s_cmp_eq_u32 s81, 0"); a.e(f"s_cbranch_scc1 {lab}x")
        INIT[0](a, lab)
        a.label(lab + "x")
    for k in range(n):
        c = chunks[k]
        after = sum(len(chunks[q]['dma']) for q in range(k+1, issued))
        if tmp and ARRIVE[0] and k < first:
            lab = a.newlabel("C_w")
            a.e("s_cmp_eq_u32 s81, 0"); a.e(f"s_cbranch_scc1 {lab}a")
            a.e(f"s_waitcnt vmcnt({after + 3})"); a.e(f"s_branch {lab}b")
            a.label(lab + "a"); a.e(f"s_waitcnt vmcnt({after})"); a.label(lab + "b")
        else:
            a.e(f"s_waitcnt vmcnt({after})")
        a.e("s_barrier")
        if k in (0, 6, 13): a.e(f"WSTAMP{(0, 6, 13).index(k)}")
        if k == first and ARRIVE[0] and tmp:
            lab = a.newlabel("C_ar")
            a.e("s_cmp_eq_u32 s81, 0"); a.e(f"s_cbranch_scc1 {lab}x")
            ARRIVE[0](a, lab)
            a.label(lab + "x")
        issue_some(k)
        if tmp and k == n - 6 and TLBW[0]:
            a.e(f"v_lshlrev_b32 v56, {TLBW[0]}, v1"); a.e(f"s_lshl_b32 s30, s24, {TLBW[0]+6}")
            a.e("buffer_load_dword v57, v56, s[8:11], s30 offen")
        if tmp and k == n - 2:
            a.e("v_min_u32 v59, 9, v1"); a.e("v_and_b32 v58, 1, v59"); a.e("v_lshlrev_b32 v58, 7, v58"); a.e("v_lshl_add_u32 v58, v59, 2, v58")
            a.e("v_cmp_eq_u32 vcc, 9, v59"); a.e("v_mov_b32 v57, 64"); a.e("s_nop 0"); a.e("v_cndmask_b32 v59, v58, v57, vcc")
            a.e("buffer_load_dword v58, v59, s[4:7], 0 offen sc1")
        for ins in c['pre']: a.e(ins)
        for i, ins in enumerate(c['tr']):
            a.e(ins)
            if i % 12 == 11: a.e("s_waitcnt lgkmcnt(4)")
        a.e("s_waitcnt lgkmcnt(0)")
        if c['res']:
            a.e("s_barrier")
            for ins in c['res']: a.e(ins)
            a.e("s_waitcnt lgkmcnt(0)")
    a.e("s_barrier")

def census_check(a):
    lab = a.newlabel("C_cw")
    a.e(f"s_branch {lab}c")
    a.label(lab)
    a.e("s_sleep 4")
    a.e("buffer_load_dword v58, v59, s[4:7], 0 offen sc1")
    a.e("s_sub_u32 s82, s82, 1"); a.e("s_cbranch_scc1 L_abort")
    a.label(lab + "c")
    a.e("s_waitcnt vmcnt(0)")
    for i in range(10): a.e(f"v_readlane_b32 s{84+i}, v58, {i}")
    a.e("s_cmp_lg_u32 s92, 256"); a.e(f"s_cbranch_scc1 {lab}")
    a.e("s_min_u32 s81, s84, s85")
    if CAL[0]:
        a.e("s_and_b32 s30, s84, s85")
        for r in range(86, 92): a.e(f"s_and_b32 s30, s30, s{r}")
        a.e("s_cmp_lg_u32 s30, 32"); a.e(f"s_cbranch_scc1 {lab}d")
        a.e("s_cmp_eq_u32 s93, 0"); a.e(f"s_cbranch_scc1 {lab}")
        a.e("s_and_b32 s30, s93, 0x6000"); a.e("s_or_b32 s47, s47, s30")
        a.label(lab + "d")

def common_consts(a, vIdx, vSB, vStW, vH2, vMk, MEMIMG, vo=False):
    a.e("v_and_b32 v2, 8, v1")
    a.e("v_cmp_eq_u32 vcc, 0, v2")
    a.e("v_mov_b32 v3, 0xeeee")
    a.e("v_mov_b32 v4, 0x4444")
    a.e(f"v_cndmask_b32 v{vIdx}, v3, v4, vcc")
    a.e("v_and_b32 v2, 1, v1")
    a.e("v_cmp_eq_u32 vcc, 0, v2")
    a.e("s_nop 1")
    a.e("v_cndmask_b32 v2, v3, v4, vcc")
    a.e(f"v_lshl_or_b32 v{vIdx}, v2, 16, v{vIdx}")
    a.e("v_lshrrev_b32 v2, 5, v1")
    a.e("v_bfe_u32 v3, v1, 3, 1")
    a.e("v_cmp_eq_u32 s[30:31], v2, v3")
    a.e("v_and_b32 v2, 1, v1")
    a.e("v_lshlrev_b32 v2, 4, v2")
    a.e("v_mov_b32 v3, 0x3f80")
    a.e("v_lshlrev_b32 v3, v2, v3")
    a.e("v_bfe_u32 v4, v1, 1, 2")
    for q in range(4):
        a.e(f"v_cmp_eq_u32 vcc, {q}, v4")
        a.e("s_and_b64 vcc, vcc, s[30:31]")
        a.e(f"v_cndmask_b32 v{vSB+q}, 0, v3, vcc")
    a.e("v_lshrrev_b32 v2, 4, v1")
    a.e(f"s_mul_i32 s30, s24, {16 if vo else 20}")
    a.e("v_add_u32 v2, s30, v2")
    a.e("v_lshlrev_b32 v2, 7, v2")
    a.e("v_and_b32 v3, 7, v1")
    a.e("v_lshl_add_u32 v2, v3, 4, v2")
    a.e("v_bfe_u32 v3, v1, 3, 1")
    a.e("v_lshl_add_u32 v2, v3, 3, v2")
    a.e(f"v_add_u32 v{vStW}, {MEMIMG}, v2")
    a.e("v_bfe_u32 v2, v1, 4, 1")
    a.e("v_lshlrev_b32 v2, 12, v2")
    a.e("v_bfe_u32 v3, v1, 2, 2")
    a.e("v_lshl_add_u32 v2, v3, 7, v2")
    a.e("v_lshrrev_b32 v3, 5, v1")
    a.e("v_lshl_add_u32 v2, v3, 6, v2")
    a.e("v_and_b32 v3, 3, v1")
    a.e(f"v_lshl_add_u32 v{vH2}, v3, 4, v2")
    a.e("v_and_b32 v2, 15, v1")
    a.e(f"v_mul_u32_u24 v{vMk}, {MKS[0]}, v2")
    if MKE[0] and not MKG[0]:
        a.e("v_and_b32 v2, 3, v1"); a.e("v_lshrrev_b32 v3, 2, v1"); a.e(f"v_mul_u32_u24 v3, {MKS[0]}, v3"); a.e(f"v_lshl_add_u32 v{vMk}, v2, 2, v3")
    for k in range(5):
        if vo and k == 4: a.e("s_add_u32 s30, s24, 16")
        else:
            a.e(f"s_mul_i32 s30, s24, {4 if vo else 5}")
            a.e(f"s_add_u32 s30, s30, {k}")
        a.e(f"s_lshr_b32 s31, s30, 3")
        a.e(f"s_lshl_b32 s31, s31, {CSH[0]}")
        a.e(f"s_and_b32 s30, s30, 7")
        a.e(f"s_lshl_b32 s30, s30, 9")
        a.e(f"s_add_u32 s{40+k}, s30, s31")
    a.e(f"s_mul_i32 s46, s25, {LOC_STRIDE}")
    a.e(f"s_add_u32 s46, s46, {WS_LOC}")
    a.e(f"s_add_u32 s45, s46, {LOC_MK}")
    if MKG[0]:
        a.e("s_mov_b32 s45, s47")
        if MKE[0]: a.e("v_lshrrev_b32 v2, 1, v1"); a.e("v_and_b32 v3, 1, v1"); a.e("v_lshlrev_b32 v3, 6, v3"); a.e(f"v_lshl_add_u32 v{vMk}, v2, 7, v3")
        else: a.e("v_and_b32 v2, 31, v1"); a.e(f"v_lshlrev_b32 v{vMk}, 7, v2")

def h2_base(a, dst, stepreg_plus):
    a.e(f"s_add_u32 s30, s28, 1")
    a.e(f"s_lshl_b32 {dst}, s30, 17")
    a.e(f"s_lshl_b32 s30, s30, 9")
    a.e(f"s_and_b32 s30, s30, 0x2000")
    a.e(f"s_xor_b32 s30, s30, s47")
    a.e(f"s_add_u32 {dst}, {dst}, s30")

def stage_mem0(a, MEMIMG, tmp, part):
    if part == 0:
        for i in range(3):
            a.e(f"v_add_u32 v2, {256*i}, v0")
            a.e("v_min_u32 v2, 639, v2")
            a.e("v_and_b32 v3, 7, v2")
            a.e("v_mul_u32_u24 v3, 1280, v3")
            a.e("v_lshrrev_b32 v4, 3, v2")
            a.e("v_lshl_add_u32 v3, v4, 4, v3")
            a.e(f"buffer_load_dwordx4 {vr(tmp+4*i,4)}, v3, s[20:23], 0 offen")
            a.e(f"v_lshlrev_b32 v{tmp+12+i}, 4, v2")
        return
    a.e("s_waitcnt vmcnt(0)")
    for i in range(3):
        a.e(f"v_add_u32 v{tmp+12+i}, {MEMIMG}, v{tmp+12+i}")
        a.e(f"ds_write_b128 v{tmp+12+i}, {vr(tmp+4*i,4)}")
    a.e("s_waitcnt lgkmcnt(0)")

PSEL = [0]
CSH = [15]
PUB24 = [1]
HM = [1]
MKPV = [0]
MKPQ = [0]
H2RD = [0]
TLBW = [0]
MKG = [0]
QARCH = [1]
ARRIVE = [None]
INIT = [None]
WPOL = ['', '']
WMAX = [36]
CAL = [1]
HINT = [0]
MKPOST = [0]
MKE = [0]
MK1 = [1]
MKA = [0]
TSR = [0]
MKGAP = [24]
STEPLOG = [0]
MKS = [128]
def ts(a, prof, idx, sel=0):
    if prof and (sel == PSEL[0] or idx in (0, 5, 6)): a.e(f"{'s_memrealtime' if TSR[0] else 's_memtime'} s[{60+2*idx}:{61+2*idx}]")

def h2_stage(a, lab, PD, D0, D1, vSB, vStW, vH2, vMk, tmpv, presleep, prof, after=None, nafter=0, nobar=False, pollw=2, after2=None, nafter2=0, fused=None, w4=None):
    h2_base(a, "s53", None)
    for k in range(5): a.e(f"s_add_u32 s{48+k}, s53, s{40+k}")
    a.e("s_add_u32 s30, s28, 1")
    if MKA[0]: a.e("s_lshl_b32 s30, s30, 4")
    if MK1[0]:
        a.e(f"s_cmp_lg_u32 s24, {pollw}"); a.e(f"s_cbranch_scc1 {lab}_mkb")
    for i in range(presleep): a.e("s_sleep 1")
    if not MKE[0]: a.e(f"s_mov_b64 exec, {1 if MKA[0] else 0xffff}" if not MKG[0] else "s_mov_b32 exec_hi, 0")
    mk = (lambda r: f"buffer_load_dword v{r}, off, s[8:11], s45 sc1") if MKA[0] else (lambda r: f"buffer_load_dword v{r}, v{vMk}, s[8:11], s45 offen sc1")
    a.e(mk(tmpv))
    a.nop(MKGAP[0])
    a.label(f"{lab}_mk")
    a.e(mk(tmpv+1))
    a.e("s_waitcnt vmcnt(1)")
    a.e(f"v_cmp_gt_i32 vcc, s30, v{tmpv}")
    a.e(f"s_cbranch_vccz {lab}_mkok")
    a.e(mk(tmpv))
    a.e("s_sub_u32 s82, s82, 1"); a.e("s_cbranch_scc1 L_abort")
    a.e("s_waitcnt vmcnt(1)")
    a.e(f"v_cmp_gt_i32 vcc, s30, v{tmpv+1}")
    a.e(f"s_cbranch_vccnz {lab}_mk")
    a.label(f"{lab}_mkok")
    a.e("s_mov_b64 exec, -1")
    a.nop(MKPOST[0] + (MKPV[0] if lab.startswith('VO') else MKPQ[0]))
    if MK1[0] and not after2:
        a.label(f"{lab}_mkb")
        a.e("s_barrier")
    tmpv = tmpv + 2
    ts(a, prof, 5)
    def body(extra, aft, again):
        for k in range(5):
            a.e(f"buffer_load_dwordx4 {vr(PD+4*k,4)}, v{vH2}, s[8:11], s{48+k} offen sc1")
        if aft: aft()
        for k in range(5):
            a.e(f"s_waitcnt vmcnt({4-k+extra})")
            if again.endswith("r") and aft is after: ts(a, prof, [1,2,3,4,7][k], 1)
            r = PD+4*k
            if k == 0: a.e(f"v_max3_u32 v{tmpv}, v{r}, v{r+1}, v{r+2}"); a.e(f"v_max_u32 v{tmpv}, v{tmpv}, v{r+3}")
            else: a.e(f"v_max3_u32 v{tmpv}, v{r}, v{r+1}, v{tmpv}"); a.e(f"v_max3_u32 v{tmpv}, v{r+2}, v{r+3}, v{tmpv}")
            a.e(f"v_mfma_f32_16x16x32_bf16 {vr(r,4)}, {vr(r,4)}, {vr(vSB,4)}, 0")
            if k >= 3:
                q = PD+4*(k-3)
                a.e(f"v_cvt_pk_bf16_f32 v{q}, v{q}, v{q+1}")
                a.e(f"v_cvt_pk_bf16_f32 v{q+1}, v{q+2}, v{q+3}")
                a.e(f"ds_write_b64 v{vStW}, {vr(q,2)} offset:{512*(k-3)}")
        a.e(f"v_cmp_eq_u32 vcc, -1, v{tmpv}")
        for k in (2, 3, 4):
            q = PD+4*k
            if k == 4: a.nop(1)
            a.e(f"v_cvt_pk_bf16_f32 v{q}, v{q}, v{q+1}")
            a.e(f"v_cvt_pk_bf16_f32 v{q+1}, v{q+2}, v{q+3}")
            if k == 4 and w4: a.e(f"v_add_u32 v4, {w4}, v{vStW}"); a.e(f"ds_write_b64 v4, {vr(q,2)}")
            else: a.e(f"ds_write_b64 v{vStW}, {vr(q,2)} offset:{512*k}")
        a.e(again)
    if fused:
        def issue(aft):
            for k in range(5):
                a.e(f"buffer_load_dwordx4 {vr(PD+4*k,4)}, v{vH2}, s[8:11], s{48+k} offen sc1")
            aft()
        if after2:
            a.e("s_barrier")
            issue(after2)
            a.e(f"s_branch {lab}_fz{pollw}")
            a.label(f"{lab}_mkb")
            a.e("s_barrier")
            ts(a, prof, 5)
        issue(after)
        def retry():
            a.label(f"{lab}_h2r0")
            fused()
            a.nop(H2RD[0])
            a.label(f"{lab}_h2r")
            if prof: a.e("s_add_u32 s83, s83, 1")
            body(0, lambda: (a.e("s_sub_u32 s82, s82, 1"), a.e("s_cbranch_scc1 L_abort")), f"s_cbranch_vccnz {lab}_h2r")
            a.e(f"s_branch {lab}_loop")
        return retry
    if after2:
        a.e("s_barrier")
        body(nafter2, after2, f"s_cbranch_vccnz {lab}_h2r")
        a.e(f"s_branch {lab}_h2done")
        a.label(f"{lab}_mkb")
        a.e("s_barrier")
        ts(a, prof, 5)
    body(nafter, after, f"s_cbranch_vccnz {lab}_h2r")
    a.label(f"{lab}_h2done")
    if not nobar:
        a.e("s_waitcnt lgkmcnt(0)")
        a.e("s_barrier")
    def retry():
        a.label(f"{lab}_h2r")
        if prof: a.e("s_add_u32 s83, s83, 1")
        body(0, lambda: (a.e("s_sub_u32 s82, s82, 1"), a.e("s_cbranch_scc1 L_abort")), f"s_cbranch_vccnz {lab}_h2r")
        a.e(f"s_branch {lab}_h2done")
    return retry

def prof_dump(a, prof, lab):
    if not prof: return
    a.e(f"s_cmp_lg_u32 s28, {prof}")
    a.e(f"s_cbranch_scc1 {lab}_nodump")
    a.e("s_waitcnt lgkmcnt(0)")
    a.e("s_mov_b64 exec, 1")
    a.e("v_mov_b32 v2, s39")
    for i in range(8):
        a.e(f"v_mov_b32 v3, s{60+2*i}")
        a.e(f"buffer_store_dword v3, v2, s[56:59], 0 offen offset:{4*i}")
        a.e("s_nop 1")
    a.e("s_mov_b64 exec, -1")
    a.label(f"{lab}_nodump")

def qk_role(a, slow=False, cw=None, pre="QK", prof=0, mk_sleep=4, nsteps=64, upf=0, pfpol='', pfpos=(24,28,32,36,40), x_yc=1, x_km=1, x_kx=1, hk_sleep=10, BARP=3, qh_nop=24, fuse=1, qa=(15, 42), qs=4, qw=1, pack=0):
    LST = "sc1" if slow else ""
    MEMIMG = 98304; SCR = 108544
    vIdx, vMask, vI, vSB = 8, 9, 10, 12
    vArd, vStW, vH2, vMk, vKx32, vKx16, vScW0, vScW1, vScWm, vScR, vScRm, vPx, vPm, vKmA, vKmB, vL16 = range(16, 32)
    RING = 32; TMP = 48; ACC = 60; KX = 72; BST = 84
    WV = 132
    TMP = 48; ACC = 56; KX = 68; BST = 80; WV = 128
    def wreg(o): return ar(8*o, 8) if o < 32 else vr(WV + 8*(o-32), 8)
    def wsub(o, k): return ar(8*o+k, 2) if o < 32 else vr(WV + 8*(o-32)+k, 2)
    a.e("v_and_b32 v1, 63, v0")
    a.e("s_load_dwordx4 s[32:35], s[0:1], 16")
    a.e("s_load_dwordx2 s[20:21], s[0:1], 8")
    a.e("s_waitcnt lgkmcnt(0)")
    a.e("s_cmp_lt_u32 s24, 2")
    a.e("s_cselect_b32 s12, s32, s34")
    a.e("s_cselect_b32 s13, s33, s35")
    a.e("s_mov_b32 s14, 7864320")
    a.e("s_mov_b32 s15, 0x20000")
    a.e("s_mov_b32 s22, 10240")
    a.e("s_mov_b32 s23, 0x20000")
    DV = 40
    for i in range(6):
        a.e("s_and_b32 s30, s24, 1")
        a.e("s_mul_i32 s30, s30, 384")
        a.e(f"s_add_u32 s30, s30, {64*i}")
        a.e("v_add_u32 v2, s30, v1")
        a.e("v_mul_u32_u24 v3, 2731, v2")
        a.e("v_lshrrev_b32 v3, 16, v3")
        a.e("v_mul_u32_u24 v4, 24, v3")
        a.e("v_sub_u32 v4, v2, v4")
        a.e("v_mul_u32_u24 v3, 12288, v3")
        a.e(f"v_lshl_add_u32 v{DV+i}, v4, 4, v3")
    a.e("v_bfe_u32 v2, v1, 3, 1")
    a.e("v_mul_u32_u24 v2, 12288, v2")
    a.e("v_lshrrev_b32 v3, 4, v1")
    a.e("v_lshlrev_b32 v3, 2, v3")
    a.e("v_bfe_u32 v4, v1, 2, 1")
    a.e("v_add_u32 v3, v3, v4")
    a.e("v_mul_u32_u24 v3, 384, v3")
    a.e("v_add_u32 v2, v2, v3")
    a.e("s_mul_i32 s30, s24, 48")
    a.e("s_and_b32 s31, s24, 1")
    a.e("s_lshl_b32 s32, s31, 4")
    a.e("s_add_u32 s32, s32, s30")
    a.e("s_xor_b32 s31, s31, 1")
    a.e("s_lshl_b32 s33, s31, 5")
    a.e("s_add_u32 s33, s33, s30")
    a.e("v_bfe_u32 v3, v1, 1, 1")
    a.e("v_and_b32 v4, 1, v1")
    a.e("v_lshlrev_b32 v3, 4, v3")
    a.e("v_lshl_add_u32 v3, v4, 2, v3")
    a.e("v_add_u32 v3, s32, v3")
    a.e(f"v_lshl_add_u32 v{DV+6}, v3, 1, v2")
    a.e(f"v_add_u32 v{DV+7}, 16, v{DV+6}")
    a.e("v_and_b32 v3, 3, v1")
    a.e("v_lshlrev_b32 v3, 2, v3")
    a.e("v_add_u32 v3, s33, v3")
    a.e(f"v_lshl_add_u32 v{DV+8}, v3, 1, v2")
    a.e(f"v_lshlrev_b32 v{vL16}, 4, v1")
    a.e("s_mul_i32 s34, s27, 384")
    a.e("s_mul_i32 s35, s24, 6144")
    a.e(f"v_add_u32 v{DV+12}, s35, v{vL16}")
    chunks = []
    korder = [k for k in range(20) if k % 5 != 4] + [4, 9, 14, 19]
    def opi(k, t): return 3*(k - k//5) + t
    for ci, k in enumerate(korder):
        off = ((ci+2) % 6)*24576
        dma = []
        for i in range(6):
            p = []
            if i == 0:
                p += [f"s_add_u32 m0, s35, {off}", f"s_add_u32 s36, s34, {k*32*12288}"]
            else:
                p += ["s_add_u32 m0, m0, 1024", "s_nop 0"]
            dma.append(p + [f"buffer_load_dwordx4 v{DV+i}, s[12:15], s36 offen {WPOL[0]} lds"])
        prel = [f"v_add_u32 v{DV+9+t}, {off}, v{DV+6+t}" for t in range(3)]
        tr = []
        for t in range(3):
            for H in range(2):
                for p in range(2):
                    dst = wsub(opi(k, t), 4*H+2*p) if ci < 16 else vr(BST + 8*t + 4*H + 2*p, 2)
                    tr.append(f"ds_read_b64_tr_b16 {dst}, v{DV+9+t} offset:{(16*H+2*p)*384}")
        res = None
        if ci >= 16:
            res = [f"v_add_u32 v2, {off}, v{DV+12}"] + [f"ds_write_b128 v2, {vr(BST+4*q,4)} offset:{1024*q}" for q in range(6)]
        chunks.append(dict(off=off, size=24576, dma=dma, pre=prel, tr=tr, res=res))
    load_weights(a, chunks, cw)
    a.e("WLOADED")
    if cw: census_check(a)
    stage_mem0(a, MEMIMG, RING, 0)
    common_consts(a, vIdx, vSB, vStW, vH2, vMk, MEMIMG)
    a.e("v_lshrrev_b32 v2, 4, v1")
    a.e("v_bfe_u32 v3, v1, 2, 2")
    a.e("v_cmp_eq_u32 s[30:31], v2, v3")
    a.e("v_and_b32 v2, 1, v1")
    a.e("v_lshlrev_b32 v2, 4, v2")
    a.e("v_mov_b32 v3, 0x3f80")
    a.e("v_lshlrev_b32 v3, v2, v3")
    a.e("v_bfe_u32 v4, v1, 1, 1")
    for q in range(2):
        a.e(f"v_cmp_eq_u32 vcc, {q}, v4")
        a.e("s_and_b64 vcc, vcc, s[30:31]")
        a.e(f"v_cndmask_b32 v{vI+q}, 0, v3, vcc")
    a.e(f"v_mov_b32 v{vMask}, 0x7fff7fff")
    a.e("v_lshrrev_b32 v2, 4, v1")
    a.e("v_and_b32 v3, 7, v1")
    a.e("v_lshlrev_b32 v2, 7, v2")
    a.e("v_lshl_add_u32 v2, v3, 4, v2")
    a.e(f"v_add_u32 v{vArd}, {MEMIMG}, v2")
    a.e("v_bfe_u32 v2, v1, 2, 1"); a.e("v_lshlrev_b32 v2, 2, v2")
    a.e("v_bfe_u32 v3, v1, 3, 1"); a.e("v_lshl_add_u32 v2, v3, 1, v2")
    a.e("v_and_b32 v3, 1, v1"); a.e("v_add_u32 v2, v2, v3")
    a.e("v_bfe_u32 v3, v1, 1, 1"); a.e("v_lshl_add_u32 v2, v3, 3, v2")
    a.e("v_bfe_u32 v3, v1, 4, 1"); a.e("v_lshl_add_u32 v2, v3, 5, v2")
    a.e("v_lshlrev_b32 v2, 4, v2")
    a.e("v_lshrrev_b32 v3, 5, v1")
    a.e("s_lshl_b32 s30, s32, 6")
    a.e("s_lshl_b32 s31, s33, 6")
    a.e("v_lshl_add_u32 v4, v3, 10, v2"); a.e(f"v_add_u32 v{vKx32}, s30, v4")
    a.e("v_lshl_add_u32 v4, v3, 3, v2"); a.e(f"v_add_u32 v{vKx16}, s31, v4")
    a.e("v_and_b32 v2, 7, v1"); a.e("v_lshlrev_b32 v2, 4, v2")
    a.e("v_lshrrev_b32 v3, 4, v1"); a.e("v_lshl_add_u32 v4, v3, 7, v2")
    a.e("s_lshl_b32 s30, s32, 4"); a.e(f"v_add_u32 v{vKmA}, s30, v4")
    a.e("v_bfe_u32 v3, v1, 4, 1"); a.e("v_lshl_add_u32 v4, v3, 7, v2")
    a.e("v_lshrrev_b32 v3, 5, v1"); a.e("v_lshl_add_u32 v4, v3, 3, v4")
    a.e("s_lshl_b32 s30, s33, 4"); a.e(f"v_add_u32 v{vKmB}, s30, v4")
    a.e("s_mul_i32 s30, s24, 1536"); a.e(f"s_add_u32 s30, s30, {SCR}")
    a.e("v_and_b32 v2, 7, v1"); a.e("v_lshrrev_b32 v3, 4, v1")
    a.e("v_xor_b32 v4, v3, v2"); a.e("v_lshl_add_u32 v4, v2, 3, v4"); a.e("v_lshlrev_b32 v4, 4, v4")
    a.e(f"v_add_u32 v{vScW0}, s30, v4"); a.e(f"v_xor_b32 v4, 64, v4"); a.e(f"v_add_u32 v{vScW1}, s30, v4")
    a.e("v_bfe_u32 v3, v1, 4, 1"); a.e("v_lshl_add_u32 v4, v2, 1, v3")
    a.e("v_lshrrev_b32 v3, 5, v1"); a.e("v_xor_b32 v3, 1, v3"); a.e("v_lshl_add_u32 v4, v3, 4, v4")
    a.e("v_lshlrev_b32 v4, 4, v4"); a.e("v_add_u32 v4, 1024, v4"); a.e(f"v_add_u32 v{vScWm}, s30, v4")
    a.e("v_lshrrev_b32 v2, 4, v1"); a.e("v_bfe_u32 v3, v1, 2, 1"); a.e("v_lshl_add_u32 v2, v2, 1, v3")
    a.e("v_bfe_u32 v5, v1, 3, 1"); a.e("v_and_b32 v3, 3, v1"); a.e("v_lshl_add_u32 v3, v5, 2, v3"); a.e("v_xor_b32 v3, v3, v2"); a.e("v_lshl_add_u32 v3, v2, 3, v3")
    a.e("v_lshlrev_b32 v3, 4, v3"); a.e(f"v_add_u32 v{vScR}, {SCR}, v3")
    a.e("v_bfe_u32 v4, v1, 1, 1"); a.e("v_and_b32 v3, 1, v1"); a.e("v_lshl_add_u32 v3, v5, 1, v3"); a.e("v_lshl_add_u32 v3, v4, 2, v3"); a.e("v_lshl_add_u32 v3, v2, 3, v3")
    a.e("v_lshlrev_b32 v3, 2, v3"); a.e(f"v_add_u32 v{vScRm}, {SCR+1024}, v3")
    a.e(f"v_lshlrev_b32 v{vPx}, 3, v1")
    a.e("v_lshl_add_u32 v3, v5, 1, v4"); a.e("v_lshl_add_u32 v3, v2, 2, v3"); a.e("v_lshlrev_b32 v3, 2, v3"); a.e(f"v_add_u32 v{vPm}, 512, v3")
    a.e("s_mul_i32 s37, s26, 640"); a.e("s_add_u32 s37, s37, s46")
    a.e(f"s_mul_i32 s38, s27, 12288"); a.e(f"s_add_u32 s38, s38, {WS_K}")
    a.e(f"s_mul_i32 s54, s27, 3072"); a.e(f"s_add_u32 s54, s54, {WS_KM}")
    a.e(f"s_lshl_b32 s55, s27, 4"); a.e(f"s_add_u32 s55, s55, {WS_FLAGS+F_K}")
    a.e(f"s_lshl_b32 s34, s27, 7"); a.e(f"s_add_u32 s34, s34, {WS_FLAGS+F_KM}")
    a.e("s_lshl_b32 s84, s26, 7"); a.e("s_add_u32 s84, s84, s45"); a.e("s_add_u32 s84, s84, 2048")
    a.e("s_mov_b32 s28, 0"); a.e("s_mov_b32 s29, 0")
    a.e(f"s_mov_b32 s36, {fbits(CEXP)}")
    def kflag_wait(lab, stepexpr_reg):
        a.e(f"s_lshr_b32 s30, {stepexpr_reg}, 3")
        a.e("s_lshl_b32 s30, s30, 9"); a.e("s_add_u32 s30, s30, s55")
        a.e(f"v_and_b32 v3, 4, v{vPm}")
        a.label(lab)
        a.e(f"buffer_load_dword v2, v3, s[8:11], s30 offen sc1")
        a.e("s_sub_u32 s82, s82, 1"); a.e("s_cbranch_scc1 L_abort")
        a.e("s_waitcnt vmcnt(0)")
        a.e("v_cmp_eq_u32 vcc, 0, v2")
        a.e(f"s_cbranch_vccnz {lab}")
    def kx_loads():
        for t in range(2):
            a.e(f"buffer_load_dwordx4 {vr(KX+4*t,4)}, v{vKx32}, s[8:11], s38 offen offset:{256*t} sc1")
        for t in range(2):
            a.e(f"buffer_load_dwordx2 {vr(KX+8+2*t,2)}, v{vKx16}, s[8:11], s38 offen offset:{256*t} sc1")
        if x_kx: a.e(f"s_add_u32 s38, s38, {32*12288}")
    LR = [6, 7, TMP+6, TMP+7]
    for q in range(4):
        a.e(f"s_add_u32 s30, s24, {q}"); a.e("s_and_b32 s30, s30, 3"); a.e("s_mul_i32 s30, s30, 24576"); a.e("s_add_u32 s30, s30, s35")
        a.e(f"v_add_u32 v{LR[q]}, s30, v{vL16}")
    def lrd(q, st):
        return [f"ds_read_b128 {vr(BST+24*st+4*i,4)}, v{LR[q]} offset:{1024*i}" for i in range(6)]
    def idle_prep():
        for ins in lrd(0, 0) + lrd(1, 1): a.e(ins)
        for q in range(12): a.e(f"v_mov_b32 v{ACC+q}, 0")
    kflag_wait(f"{pre}_kf0", "s28")
    stage_mem0(a, MEMIMG, RING, 1)
    kx_loads()
    if upf:
        a.e(f"s_mul_i32 s89, s27, 40960"); a.e(f"s_add_u32 s89, s89, {WS_U + 32*40960}"); a.e("s_mul_i32 s30, s24, 10240"); a.e("s_add_u32 s89, s89, s30")
        a.e("s_add_u32 s90, s89, 4096"); a.e("s_add_u32 s91, s89, 8192")
    if QARCH[0]:
        a.e("s_mul_i32 s30, s24, 2560"); a.e("s_mul_i32 s85, s26, 10240"); a.e("s_add_u32 s85, s85, s30"); a.e("s_add_u32 s85, s85, s46"); a.e(f"s_add_u32 s85, s85, {LOC_Y + (163840 if QARCH[0] == 1 else 0)}")
        if QARCH[0] == 2: a.e(f"s_mov_b32 s92, {2*163840}")
        a.e("s_mul_i32 s87, s27, 10240"); a.e("s_add_u32 s87, s87, s30"); a.e(f"s_add_u32 s87, s87, {WS_YA}")
        a.e("s_add_u32 s86, s46, s30"); a.e(f"s_add_u32 s86, s86, {LOC_DUMMY}")
        a.e(f"s_mov_b32 s88, {(-163840) & 0xffffffff}")
    a.e("v_mov_b32 v0, 1")
    idle_prep()
    a.e("s_waitcnt lgkmcnt(0)")
    a.e("s_barrier")
    a.e("LOOPSTART")
    def emit_loop(pre, LST, prof):
        npf = len(pfpos) if upf in (1, 2, 3) else 0
        assert upf in (0, 4) or (qa[0]+2*qs < min(pfpos) and max(pfpos) < qa[1])
        def halfpf():
            a.e(f"v_lshrrev_b32 v1, 7, v{vL16}"); a.e(f"v_lshl_add_u32 v1, v1, 7, v{vL16}"); a.e("v_lshlrev_b32 v1, 3, v1")
            a.e("s_mov_b32 exec_hi, 0xff")
            a.e(f"buffer_load_dword v1, v1, s[8:11], s89 offen {pfpol}")
            a.e("s_mov_b32 exec_hi, -1")
        X = TMP; T = BST+24; XO = BST; S = BST+8
        def cv(d, s0): return f"v_cvt_pk_bf16_f32 v{d}, v{s0}, v{s0+1}"
        a.label(f"{pre}_loop")
        for w in range(3):
            a.e(f"s_cmp_eq_u32 s24, {w}"); a.e(f"s_cbranch_scc1 {pre}_s1w{w}")
        def s1_ctx(w):
            order = [(5*w + p) % 20 for p in range(20)]
            def bop(p, t):
                k = order[p]
                return wreg(opi(k, t)) if k % 5 != 4 else vr(BST + 24*((p//5) & 1) + 8*t, 8)
            def aread(p, r=None): return f"ds_read_b128 {vr(r if r is not None else RING+4*(p%4),4)}, v{vArd} offset:{512*order[p]}"
            def sm(p, t, r=None): return f"{SM64} {vr(ACC+4*t,4)}, {vr(r if r is not None else RING+4*(p%4),4)}, {bop(p, t)}, v{vIdx}"
            return order, aread, sm
        def head_std(w):
            order, aread, sm = s1_ctx(w)
            for p in range(3): a.e(aread(p))
            for p in range(5):
                a.e(f"s_waitcnt lgkmcnt({(2, 2, 2, 1, 2)[p]})")
                if p == 3: a.e("s_barrier")
                for t in range(3):
                    a.e(sm(p, t))
                    if (p, t) in ((0, 0), (1, 0)): a.e(aread(p+3))
                    if (p, t) == (3, 0): a.e(aread(5))
                    if (p, t) == (3, 1): a.e(aread(6))
                    if (p, t) == (4, 0): a.e(aread(7))
        def head_fused(w):
            order, aread, sm = s1_ctx(w)
            PD = RING; tv = 3
            def chk(k):
                r = PD+4*k
                a.e(f"s_waitcnt vmcnt({4-k})")
                if k in (0, 4): ts(a, prof, 1 if k == 0 else 7, 1)
                if k == 0: a.e(f"v_max3_u32 v{tv}, v{r}, v{r+1}, v{r+2}"); a.e(f"v_max_u32 v{tv}, v{tv}, v{r+3}")
                else: a.e(f"v_max3_u32 v{tv}, v{r}, v{r+1}, v{tv}"); a.e(f"v_max3_u32 v{tv}, v{r+2}, v{r+3}, v{tv}")
                a.e(f"v_mfma_f32_16x16x32_bf16 {vr(r,4)}, {vr(r,4)}, {vr(vSB,4)}, 0")
            def put(k):
                q = PD+4*k
                a.e(cv(q, q)); a.e(cv(q+1, q+2))
                a.e(f"ds_write_b64 v{vStW}, {vr(q,2)} offset:{512*k}")
                a.e(aread(k, q))
            chk(0); chk(1); chk(2)
            put(0)
            chk(3)
            put(1)
            chk(4)
            a.e(f"v_cmp_eq_u32 vcc, -1, v{tv}")
            put(2)
            a.e("s_waitcnt lgkmcnt(4)")
            a.e(sm(0, 0)); put(3); a.e(sm(0, 1)); a.e(sm(0, 2))
            put(4)
            a.e(f"s_cbranch_vccnz {pre}_h2r0")
            ts(a, prof, 0)
            a.e("s_waitcnt lgkmcnt(6)")
            for t in range(3): a.e(sm(1, t))
            a.e("s_waitcnt lgkmcnt(1)")
            a.e("s_barrier")
            a.e(sm(2, 0)); a.e(aread(5)); a.e(sm(2, 1)); a.e(sm(2, 2))
            a.e(sm(3, 0)); a.e(aread(6)); a.e(sm(3, 1)); a.e(sm(3, 2))
            a.e("s_waitcnt lgkmcnt(2)")
            a.e(sm(4, 0, PD+16)); a.e(aread(7)); a.e(sm(4, 1, PD+16)); a.e(sm(4, 2, PD+16))
            a.e(f"s_branch {pre}_s1t{w}")
        for w in (3, 0, 1, 2):
            a.label(f"{pre}_s1w{w}")
            ts(a, prof, 0)
            head_std(w)
            a.label(f"{pre}_s1t{w}")
            order, aread, sm = s1_ctx(w)
            lq = [("A", 5), ("A", 6), ("A", 7)]
            nextA = 8
            extra_q = []
            seq = [(p, t) for p in range(17) for t in range(3)] + [(p, t) for t in range(3) for p in (17, 18, 19)]
            for n, (p, t) in enumerate(seq):
                if n < 15: continue
                need = [("A", p)] + ([("L", p//5)] if p in (14, 19) else [])
                idx = [i for i, tg in enumerate(lq) if tg in need]
                if idx:
                    a.e(f"s_waitcnt lgkmcnt({len(lq)-1-max(idx)})"); lq = lq[max(idx)+1:]
                if (p, t) == (5, 0): extra_q = [(ins, ("L", 2)) for ins in lrd(2, 0)]
                if (p, t) == (10, 0): extra_q = [(ins, ("L", 3)) for ins in lrd(3, 1)]
                a.e(sm(p, t))
                if n < 51:
                    if nextA < 20 and nextA - 4 < p and t == 0:
                        a.e(aread(nextA)); lq.append(("A", nextA)); nextA += 1
                    elif extra_q:
                        ins, tag = extra_q.pop(0); a.e(ins); lq.append(tag)
                if upf in (1, 2, 3) and n in pfpos:
                    i = pfpos.index(n)
                    if upf == 3: halfpf()
                    elif upf == 1: a.e(f"buffer_load_dword v1, v{vMk}, s[8:11], s{89 + i//2} offen offset:{2048*(i&1)} {pfpol}")
                    elif i == 0: a.e(f"v_lshlrev_b32 v1, 3, v{vL16}"); a.e(f"buffer_load_dword v1, v1, s[8:11], s89 offen {pfpol}")
                    else: a.e(f"buffer_load_dword v1, v{vMk}, s[8:11], s91 offen {pfpol}")
                if QARCH[0] == 1:
                    if n == qa[0]+w*qw: a.e(f"buffer_load_dwordx4 v[2:5], v{vL16}, s[8:11], s85 offen sc1")
                    if n == qa[0]+qs+w*qw: a.e(f"buffer_load_dwordx4 {vr(TMP,4)}, v{vL16}, s[8:11], s85 offen offset:1024 sc1")
                    if n == qa[0]+2*qs+w*qw: a.e(f"buffer_load_dwordx2 {vr(TMP+4,2)}, v{vPx}, s[8:11], s85 offen offset:2048 sc1")
                    if n == qa[1]+w*qw: a.e(f"s_waitcnt vmcnt({2 + npf})"); a.e(f"buffer_store_dwordx4 v[2:5], v{vL16}, s[8:11], s86 offen sc1")
                    if n == qa[1]+qs+w*qw: a.e(f"s_waitcnt vmcnt({2 + npf})"); a.e(f"buffer_store_dwordx4 {vr(TMP,4)}, v{vL16}, s[8:11], s86 offen offset:1024 sc1")
                    if n == qa[1]+2*qs+w*qw: a.e(f"s_waitcnt vmcnt({2 + npf})"); a.e(f"buffer_store_dwordx2 {vr(TMP+4,2)}, v{vPx}, s[8:11], s86 offen offset:2048 sc1")
                if n == 55:
                    a.e(cv(X, ACC)); a.e(cv(X+1, ACC+2))
                if n == 56:
                    a.e(f"v_mfma_f32_16x16x16_bf16 {vr(T,4)}, {vr(X,2)}, {vr(vI,2)}, 0")
                if n == 58:
                    a.e(cv(X+2, ACC+4)); a.e(cv(X+3, ACC+6))
            assert nextA == 20 and not extra_q
            if w != 2: a.e(f"s_branch {pre}_post")
        a.label(f"{pre}_post")
        ts(a, prof, 1)
        a.e(f"v_mfma_f32_16x16x16_bf16 {vr(T+4,4)}, {vr(X+2,2)}, {vr(vI,2)}, 0")
        a.e(cv(XO, T)); a.e(cv(XO+1, T+2))
        a.e(f"s_waitcnt vmcnt({(3 if QARCH[0] == 1 else 0) + npf})")
        a.nop(1)
        a.e(cv(X+4, ACC+8)); a.e(cv(X+5, ACC+10))
        a.nop(2)
        a.e(f"v_mfma_f32_16x16x16_bf16 {vr(T+8,4)}, {vr(X+4,2)}, {vr(vI,2)}, 0")
        a.e(cv(XO+2, T+4)); a.e(cv(XO+3, T+6))
        a.nop(2)
        a.e(f"v_mfma_f32_16x16x32_bf16 {vr(S,4)}, {vr(KX,4)}, {vr(XO,4)}, 0")
        a.e(f"v_mfma_f32_16x16x32_bf16 {vr(S+4,4)}, {vr(KX+4,4)}, {vr(XO,4)}, 0")
        a.e(cv(XO+4, T+8)); a.e(cv(XO+5, T+10))
        a.e(f"v_mfma_f32_16x16x32_bf16 {vr(S+8,4)}, {vr(XO,4)}, {vr(XO,4)}, 0")
        a.e(f"v_mfma_f32_16x16x16_bf16 {vr(S,4)}, {vr(KX+8,2)}, {vr(XO+4,2)}, {vr(S,4)}")
        a.e(f"v_mfma_f32_16x16x16_bf16 {vr(S+4,4)}, {vr(KX+10,2)}, {vr(XO+4,2)}, {vr(S+4,4)}")
        a.e(f"v_mfma_f32_16x16x16_bf16 {vr(S+8,4)}, {vr(XO+4,2)}, {vr(XO+4,2)}, {vr(S+8,4)}")
        a.e("s_mov_b32 exec_lo, 0x00ff00ff"); a.e("s_mov_b32 exec_hi, 0x00ff00ff")
        a.e(f"ds_write_b128 v{vScW0}, {vr(S,4)}")
        a.nop(1)
        a.e(f"ds_write_b128 v{vScW1}, {vr(S+4,4)}")
        a.nop(3)
        a.e(f"ds_write_b128 v{vScWm}, {vr(S+8,4)}")
        a.e("s_mov_b64 exec, -1")
        a.e(f"s_cmp_eq_u32 s28, {nsteps-1}")
        a.e(f"s_cbranch_scc1 {pre}_last")
        a.e("s_cmp_lg_u32 s24, 0")
        a.e("s_waitcnt lgkmcnt(0)")
        a.e("s_barrier")
        a.e(f"s_cbranch_scc1 {pre}_nosm")
        ts(a, prof, 2)
        R = BST+24; M = BST+40; W = RING
        for w in range(4):
            a.e(f"ds_read_b128 {vr(R+4*w,4)}, v{vScR} offset:{1536*w}")
            a.e(f"ds_read_b32 v{M+w}, v{vScRm} offset:{1536*w}")
        a.e("s_waitcnt lgkmcnt(4)")
        a.e(f"v_pk_add_f32 {vr(R,2)}, {vr(R,2)}, {vr(R+4,2)}"); a.e(f"v_pk_add_f32 {vr(R+2,2)}, {vr(R+2,2)}, {vr(R+6,2)}")
        a.e(f"v_add_f32 v{M}, v{M}, v{M+1}")
        a.e("s_waitcnt lgkmcnt(0)")
        a.e(f"v_pk_add_f32 {vr(R+8,2)}, {vr(R+8,2)}, {vr(R+12,2)}"); a.e(f"v_pk_add_f32 {vr(R+10,2)}, {vr(R+10,2)}, {vr(R+14,2)}")
        a.e(f"v_add_f32 v{M+2}, v{M+2}, v{M+3}")
        a.e(f"v_pk_add_f32 {vr(R,2)}, {vr(R,2)}, {vr(R+8,2)}"); a.e(f"v_pk_add_f32 {vr(R+2,2)}, {vr(R+2,2)}, {vr(R+10,2)}")
        a.e(f"v_add_f32 v{M}, v{M}, v{M+2}")
        a.e(f"v_max3_f32 v{W}, v{R}, v{R+1}, v{R+2}")
        a.e(f"v_max3_f32 v{W}, v{W}, v{R+3}, v{M}")
        for d in ("quad_perm:[1,0,3,2]", "quad_perm:[2,3,0,1]", "row_ror:8"):
            a.nop(2)
            a.e(f"v_max_f32_dpp v{W}, v{W}, v{W} {d} row_mask:0xf bank_mask:0xf")
        a.e(f"v_mul_f32 v{W}, s36, v{W}")
        vals = [R, R+1, R+2, R+3, M]
        for v in (M, R, R+1, R+2, R+3): a.e(f"v_fma_f32 v{v}, v{v}, s36, -v{W}")
        for v in vals: a.e(f"v_exp_f32 v{v}, v{v}")
        a.e(f"v_add_f32 v{W}, v{R}, v{R+1}")
        a.e(f"v_add_f32 v{W+1}, v{R+2}, v{R+3}")
        a.e(f"v_add_f32 v{W}, v{W}, v{M}")
        a.e(f"v_add_f32 v{W}, v{W}, v{W+1}")
        for d in ("quad_perm:[1,0,3,2]", "quad_perm:[2,3,0,1]", "row_ror:8"):
            a.nop(2)
            a.e(f"v_add_f32_dpp v{W}, v{W}, v{W} {d} row_mask:0xf bank_mask:0xf")
        a.e(f"v_rcp_f32 v{W}, v{W}")
        a.nop(1)
        a.e(f"v_mul_f32 v{M}, v{M}, v{W}")
        for v in vals[:4]: a.e(f"v_mul_f32 v{v}, v{v}, v{W}")
        a.e(f"v_mov_b32_dpp v{W+2}, v{M} quad_perm:[0,0,2,2] row_mask:0xf bank_mask:0xf")
        a.e(f"v_mov_b32_dpp v{W+3}, v{M} quad_perm:[1,1,3,3] row_mask:0xf bank_mask:0xf")
        a.e(f"v_cvt_pk_bf16_f32 v{W+4}, v{R}, v{R+1}")
        a.e(f"v_cvt_pk_bf16_f32 v{W+5}, v{R+2}, v{R+3}")
        a.e(f"v_cvt_pk_bf16_f32 v{W+6}, v{W+2}, v{W+3}")
        for q in (4, 5): a.e(f"v_bfi_b32 v{W+q}, v{vMask}, v{W+q}, s29")
        a.e(f"buffer_store_dwordx2 {vr(W+4,2)}, v{vPx}, s[8:11], s37 offen {LST}")
        a.e(f"v_bfi_b32 v{W+6}, v{vMask}, v{W+6}, s29")
        a.e(f"buffer_store_dword v{W+6}, v{vPm}, s[8:11], s37 offen {LST}")
        ts(a, prof, 3)
        if pack: a.e("s_waitcnt vmcnt(0)"); ts(a, prof, 7)
        if HINT[0]:
            a.e(f"s_branch {pre}_b2")
            a.label(f"{pre}_nosm")
            a.e("s_cmp_lg_u32 s24, 1"); a.e(f"s_cbranch_scc1 {pre}_b2")
            a.e("s_add_u32 s30, s28, 1"); a.e("v_mov_b32 v2, s30"); a.e("s_mov_b64 exec, 1")
            a.nop(qh_nop)
            a.e(f"buffer_store_dword v2, off, s[8:11], s84 {LST}")
            a.e("s_mov_b64 exec, -1")
            a.label(f"{pre}_b2")
        else:
            a.label(f"{pre}_nosm")
        a.e("s_barrier")
        for i in range(hk_sleep): a.e("s_sleep 1")
        def km_export():
            a.e("s_mov_b32 exec_lo, 0xff00ff00"); a.e("s_mov_b32 exec_hi, 0xff00ff00")
            if x_km:
                a.e(f"buffer_store_dwordx4 {vr(XO,4)}, v{vKmA}, s[8:11], s54 offen sc1")
                a.e(f"buffer_store_dwordx2 {vr(XO+4,2)}, v{vKmB}, s[8:11], s54 offen sc1")
            a.e("s_mov_b64 exec, -1")
            a.e(f"s_add_u32 s54, s54, {32*3072}")
        def yl2():
            a.e("s_add_u32 s30, s85, s92")
            a.e(f"buffer_load_dwordx4 {vr(BST+24,4)}, v{vL16}, s[8:11], s30 offen sc1"); a.e(f"buffer_load_dwordx4 {vr(BST+28,4)}, v{vL16}, s[8:11], s30 offen offset:1024 sc1")
            a.e(f"buffer_load_dwordx2 {vr(BST+32,2)}, v{vPx}, s[8:11], s30 offen offset:2048 sc1")
        def ys2():
            a.e(f"buffer_store_dwordx4 {vr(BST+24,4)}, v{vL16}, s[8:11], s86 offen sc1"); a.e(f"buffer_store_dwordx4 {vr(BST+28,4)}, v{vL16}, s[8:11], s86 offen offset:1024 sc1")
            a.e(f"buffer_store_dwordx2 {vr(BST+32,2)}, v{vPx}, s[8:11], s86 offen offset:2048 sc1")
        if QARCH[0] == 2: yl2()
        a.e("v_cmp_eq_u32 vcc, 0, v0"); a.e("s_add_u32 s31, s28, 1")
        a.e(f"s_cbranch_vccz {pre}_nokf")
        kflag_wait(f"{pre}_kf", "s31")
        a.label(f"{pre}_nokf")
        if QARCH[0] == 2:
            a.e("s_waitcnt vmcnt(0)"); ys2()
            a.e("s_mov_b32 s86, s87"); a.e(f"s_add_u32 s87, s87, {32*10240}")
            a.e("s_add_u32 s92, s92, 163840"); a.e(f"s_cmp_eq_u32 s92, {3*163840}"); a.e("s_cselect_b32 s92, 0, s92")
        kx_loads()
        if upf == 4: halfpf()
        if QARCH[0] == 1:
            a.e("s_add_u32 s85, s85, s88"); a.e("s_sub_u32 s88, 0, s88"); a.e("s_mov_b32 s86, s87"); a.e(f"s_add_u32 s87, s87, {32*10240}")
        if upf:
            for r in (89, 90, 91): a.e(f"s_add_u32 s{r}, s{r}, {32*40960}")
        a.e("s_add_u32 s30, s28, 2"); a.e("s_min_u32 s30, s30, 63"); a.e("s_lshr_b32 s30, s30, 3"); a.e("s_lshl_b32 s30, s30, 9"); a.e("s_add_u32 s30, s30, s55")
        a.e(f"v_and_b32 v3, 4, v{vPm}")
        a.e(f"buffer_load_dword v0, v3, s[8:11], s30 offen sc1")
        km_export()
        a.e("s_cmp_lg_u32 s24, 3"); a.e(f"s_cbranch_scc1 {pre}_nofl")
        a.e("v_mov_b32 v2, s28"); a.e("s_mov_b64 exec, 1")
        a.e(f"buffer_store_dword v2, off, s[8:11], s34 sc1")
        if QARCH[0]:
            a.e("s_max_u32 s30, s28, 1"); a.e("s_sub_u32 s30, s30, 1"); a.e("v_mov_b32 v4, s30"); a.e(f"s_add_u32 s30, s34, {F_YR-F_KM}")
            a.e(f"buffer_store_dword v4, off, s[8:11], s30 sc1")
        if STEPLOG[0]:
            a.e("s_memrealtime s[100:101]"); a.e("s_lshl_b32 s30, s28, 2"); a.e("s_lshl_b32 s31, s27, 8"); a.e("s_add_u32 s30, s30, s31"); a.e(f"s_add_u32 s30, s30, {STEPLOG[0]}")
            a.e("s_waitcnt lgkmcnt(0)"); a.e("v_mov_b32 v3, s100")
            a.e("buffer_store_dword v3, off, s[8:11], s30")
        a.e("s_mov_b64 exec, -1")
        a.label(f"{pre}_nofl")
        ts(a, prof, 4)
        if fuse:
            def aftq():
                idle_prep()
                ts(a, prof, 6)
                prof_dump(a, prof, pre)
                a.e("s_add_u32 s28, s28, 1"); a.e("s_xor_b32 s29, s29, 0x80008000")
            def zacc():
                a.e("s_waitcnt lgkmcnt(0)")
                a.nop(8)
                for q in range(12): a.e(f"v_mov_b32 v{ACC+q}, 0")
            retry = h2_stage(a, pre, RING, None, None, vSB, vStW, vH2, vMk, 1, mk_sleep, prof, after=aftq, pollw=1, fused=zacc)
            for w in range(3):
                a.e(f"s_cmp_eq_u32 s24, {w}"); a.e(f"s_cbranch_scc1 {pre}_fz{w}")
            for w in (3, 0, 1, 2):
                a.label(f"{pre}_fz{w}")
                head_fused(w)
        else:
            retry = h2_stage(a, pre, RING, None, None, vSB, vStW, vH2, vMk, 1, mk_sleep, prof, after=idle_prep, nobar=True, pollw=1)
            ts(a, prof, 6)
            prof_dump(a, prof, pre)
            a.e("s_add_u32 s28, s28, 1"); a.e("s_xor_b32 s29, s29, 0x80008000")
            a.e(f"s_branch {pre}_loop")
        retry()
        a.label(f"{pre}_last")
        km_export()
        if QARCH[0] == 2: yl2(); a.e("s_waitcnt vmcnt(0)"); ys2()
        a.e("s_waitcnt vmcnt(0)")
        a.e("s_barrier")
        a.e(f"v_mov_b32 v2, {nsteps}"); a.e("v_mov_b32 v3, 0"); a.e("s_mov_b64 exec, 1")
        a.e(f"buffer_store_dword v2, v3, s[8:11], s34 offen sc1")
        if QARCH[0]:
            a.e(f"v_mov_b32 v4, {nsteps-1}"); a.e(f"s_add_u32 s30, s34, {F_YR-F_KM}"); a.e(f"buffer_store_dword v4, off, s[8:11], s30 sc1")
        a.e("s_waitcnt vmcnt(0)")
        a.e("s_mov_b64 exec, -1")
        a.e(f"s_branch {pre0}_end")
    pre0 = pre
    if cw:
        a.e("s_cmp_lt_u32 s81, 32"); a.e(f"s_cbranch_scc1 {pre}S_loop")
        emit_loop(pre, "", prof)
        emit_loop(pre + "S", "sc1", 0)
    else:
        emit_loop(pre, LST, prof)
    a.label(f"{pre}_end")

def vo_role(a, slow=False, cw=None, pre="VO", prof=0, mk_sleep=0, p_sleep=0, y_sleep=5, nsteps=64, uload=1, upol="", upre=1, vsp=3, mkw_sleep=1, rs_sleep=0, uwait=0, ustep=1, novm=0, mkearly=None, yfirst=0, late=0, apos=4, af='sc1', h_nop=0, ulate=0, dbl=0, ytag=1, p_nop=32, y_nop=0, fuse=1, ponly=1, pearly=1, ush=3, ppipe=0):
    mkearly = MKE[0]
    if yfirst: ponly = pearly = 0
    if QARCH[0]: apos = 9
    LST = "sc1" if slow else ""
    WOL = 49152; MEMIMG = 131072; VBUF = 141312; RSC = 144384
    vIdx, vSB = 8, 10
    vAst, vStW, vH2, vMk, vVw0, vVw1, vVr, vYst, vYs0, vYs2, vU0, vU1, vU2, vPx, vPm, vRw, vRr, vPub = range(14, 32)
    vL16 = 9
    PR = 32; ACC = 52; U = 72; BST = 120; WV = 160; VA = BST+24; vYs4 = 9
    def wreg(o): return ar(8*o, 8) if o < 32 else vr(WV + 8*(o-32), 8)
    def wsub(o, k): return ar(8*o+k, 2) if o < 32 else vr(WV + 8*(o-32)+k, 2)
    a.e("v_and_b32 v1, 63, v0")
    a.e("s_load_dwordx4 s[32:35], s[0:1], 32")
    a.e("s_load_dwordx2 s[20:21], s[0:1], 8")
    a.e("s_waitcnt lgkmcnt(0)")
    a.e("s_mov_b32 s12, s32"); a.e("s_mov_b32 s13, s33"); a.e("s_mov_b32 s14, 7864320"); a.e("s_mov_b32 s15, 0x20000")
    a.e("s_mov_b32 s16, s34"); a.e("s_mov_b32 s17, s35"); a.e("s_mov_b32 s18, 7864320"); a.e("s_mov_b32 s19, 0x20000")
    a.e("s_mov_b32 s22, 10240"); a.e("s_mov_b32 s23, 0x20000")
    DV = 72
    a.e("s_lshr_b32 s31, s24, 1"); a.e(f"s_mul_i32 s31, s31, {32*12288}")
    for i in range(6):
        a.e("s_and_b32 s30, s24, 1")
        a.e("s_mul_i32 s30, s30, 384")
        a.e(f"s_add_u32 s30, s30, {64*i}")
        a.e("v_add_u32 v2, s30, v1")
        a.e("v_mul_u32_u24 v3, 2731, v2")
        a.e("v_lshrrev_b32 v3, 16, v3")
        a.e("v_mul_u32_u24 v4, 24, v3")
        a.e("v_sub_u32 v4, v2, v4")
        a.e("v_mul_u32_u24 v3, 12288, v3")
        a.e(f"v_lshl_add_u32 v3, v4, 4, v3")
        a.e(f"v_add_u32 v{DV+i}, s31, v3")
    a.e(f"v_lshlrev_b32 v{vL16}, 4, v1")
    a.e("v_lshrrev_b32 v3, 4, v1"); a.e("v_lshlrev_b32 v3, 2, v3"); a.e("v_bfe_u32 v4, v1, 2, 1"); a.e("v_add_u32 v5, v3, v4")
    a.e("v_bfe_u32 v2, v1, 3, 1")
    a.e("v_mul_u32_u24 v3, 12288, v2"); a.e("v_mul_u32_u24 v4, 384, v5"); a.e("v_add_u32 v3, v3, v4")
    a.e("v_and_b32 v4, 3, v1"); a.e("v_lshl_add_u32 v3, v4, 3, v3")
    a.e("s_mul_i32 s30, s24, 96"); a.e(f"v_add_u32 v{DV+6}, s30, v3")
    a.e("v_mul_u32_u24 v3, 1280, v5"); a.e("v_lshl_add_u32 v3, v2, 5, v3"); a.e("v_lshl_add_u32 v3, v4, 3, v3")
    a.e("s_mul_i32 s30, s24, 320"); a.e(f"v_add_u32 v{DV+7}, s30, v3")
    a.e("s_mul_i32 s34, s27, 384")
    a.e("s_mul_i32 s35, s24, 6144")
    a.e("s_mul_i32 s37, s24, 5120")
    a.e("s_mul_i32 s38, s27, 245760")
    a.e(f"v_add_u32 v6, s35, v{vL16}")
    a.e(f"v_add_u32 v{DV+9}, s37, v{vL16}")
    a.e(f"v_add_u32 v7, {WOL}, v{DV+9}")
    chunks = []
    ring = [0]
    def nextslot():
        o = (ring[0] % 6)*24576; ring[0] += 1; return o
    def wv_chunk(io, off, res):
        dma = []
        for i in range(6):
            p = [f"s_add_u32 m0, s35, {off}", f"s_add_u32 s36, s34, {io*64*12288}"] if i == 0 else ["s_add_u32 m0, m0, 1024", "s_nop 0"]
            dma.append(p + [f"buffer_load_dwordx4 v{DV+i}, s[12:15], s36 offen {WPOL[1]} lds"])
        tr = []
        for s_ in range(3):
            for H in range(2):
                for p in range(2):
                    dst = vr(BST+8*s_+4*H+2*p, 2) if res else wsub(io*3+s_, 4*H+2*p)
                    tr.append(f"ds_read_b64_tr_b16 {dst}, v{DV+8} offset:{(16*H+2*p)*384 + 32*s_}")
        r = [f"ds_write_b128 v6, {vr(BST+4*q,4)} offset:{off+1024*q}" for q in range(6)] if res else None
        return dict(off=off, size=24576, dma=dma, pre=[f"v_add_u32 v{DV+8}, {off}, v{DV+6}"], tr=tr, res=r)
    def wo_chunk(ep, H, off, res):
        dma = []
        for i in range(5):
            p = [f"s_add_u32 m0, s37, {off}", f"s_add_u32 s36, s38, {(2*ep+H)*20480}"] if i == 0 else ["s_add_u32 m0, m0, 1024", "s_add_u32 s36, s36, 1024"]
            dma.append(p + [f"buffer_load_dwordx4 v{DV+9}, s[16:19], s36 offen {WPOL[1]} lds"])
        tr = []
        for t in range(5):
            for p in range(2):
                dst = vr(BST+4*t+2*p, 2) if res else wsub(24+ep*5+t, 4*H+2*p)
                tr.append(f"ds_read_b64_tr_b16 {dst}, v{DV+8} offset:{2*p*1280 + 64*t}")
        r = [f"v_add_u32 v2, {off}, v{DV+9}"] + [f"ds_write_b128 v2, {vr(BST+4*t,4)} offset:{1024*t}" for t in range(5)] if res else None
        return dict(off=off, size=20480, dma=dma, pre=[f"v_add_u32 v{DV+8}, {off}, v{DV+7}"], tr=tr, res=r)
    ring[0] = 2
    for io in range(8): chunks.append(wv_chunk(io, nextslot(), False))
    for ep in range(4):
        for H in range(2): chunks.append(wo_chunk(ep, H, nextslot(), False))
    chunks.append(wv_chunk(8, 0, True)); chunks.append(wv_chunk(9, 24576, True))
    for ep in (4, 5):
        for H in range(2): chunks.append(wo_chunk(ep, H, WOL + (ep-4)*40960 + H*20480, True))
    load_weights(a, chunks, cw)
    a.e("WLOADED")
    if cw: census_check(a)
    stage_mem0(a, MEMIMG, PR, 0)
    common_consts(a, vIdx, vSB, vStW, vH2, vMk, MEMIMG, vo=True)
    a.e("s_mul_i32 s85, s24, 1536"); a.e("s_sub_u32 s85, 8192, s85")
    a.e("v_lshrrev_b32 v2, 4, v1"); a.e("v_bfe_u32 v3, v1, 3, 1"); a.e("v_lshl_add_u32 v2, v3, 2, v2")
    a.e("v_lshlrev_b32 v2, 7, v2"); a.e("v_and_b32 v3, 7, v1"); a.e("v_lshl_add_u32 v2, v3, 4, v2")
    a.e(f"v_add_u32 v{vAst}, {MEMIMG}, v2")
    a.e("v_and_b32 v2, 15, v1"); a.e("v_lshlrev_b32 v2, 4, v2"); a.e("v_bfe_u32 v3, v1, 4, 1"); a.e("v_lshl_add_u32 v2, v3, 3, v2")
    a.e("s_mul_i32 s30, s24, 768"); a.e(f"s_add_u32 s30, s30, {VBUF}")
    a.e("v_add_u32 v2, s30, v2"); a.e(f"v_add_u32 v{vVw1}, 512, v2")
    a.e("v_lshrrev_b32 v3, 5, v1"); a.e(f"v_mul_u32_u24 v3, 4096, v3"); a.e(f"v_add_u32 v{vVw1}, v3, v{vVw1}")
    a.e("v_lshrrev_b32 v3, 5, v1"); a.e(f"v_lshl_add_u32 v{vVw0}, v3, 8, v2")
    a.e("v_lshrrev_b32 v2, 4, v1"); a.e("v_bfe_u32 v3, v1, 2, 2"); a.e("v_lshl_add_u32 v2, v2, 3, v3"); a.e("v_lshlrev_b32 v2, 4, v2")
    a.e("v_and_b32 v3, 1, v1"); a.e("v_lshl_add_u32 v2, v3, 3, v2"); a.e(f"v_add_u32 v{vVr}, {VBUF}, v2")
    a.e("v_and_b32 v2, 15, v1"); a.e("v_lshrrev_b32 v3, 5, v1"); a.e("v_lshl_add_u32 v2, v3, 4, v2"); a.e("v_lshlrev_b32 v2, 4, v2")
    a.e("v_bfe_u32 v3, v1, 4, 1"); a.e("v_lshl_add_u32 v2, v3, 3, v2")
    a.e("s_mul_i32 s30, s24, 2560"); a.e(f"v_add_u32 v{vYst}, s30, v2")
    a.e("v_lshrrev_b32 v2, 4, v1"); a.e("s_lshl_b32 s30, s24, 2"); a.e("v_add_u32 v2, s30, v2"); a.e("v_mul_u32_u24 v2, 10240, v2")
    a.e("s_mul_i32 s30, s26, 640"); a.e("v_add_u32 v2, s30, v2")
    a.e("v_and_b32 v3, 15, v1"); a.e(f"v_lshl_add_u32 v{vYs0}, v3, 4, v2")
    a.e("v_and_b32 v3, 7, v1"); a.e("v_add_u32 v3, 32, v3"); a.e(f"v_lshl_add_u32 v{vYs2}, v3, 4, v2")
    a.e("v_lshrrev_b32 v4, 4, v1"); a.e("v_lshlrev_b32 v4, 9, v4")
    a.e("s_mul_i32 s30, s26, 40")
    for t in range(3):
        a.e(f"v_and_b32 v2, {15 if t < 2 else 7}, v1"); a.e(f"v_add_u32 v2, {16*t}, v2"); a.e("v_add_u32 v2, s30, v2")
        a.e("v_lshrrev_b32 v3, 5, v2"); a.e("v_lshl_add_u32 v3, v3, 11, v4")
        a.e("v_and_b32 v2, 31, v2"); a.e(f"v_lshl_add_u32 v{vU0+t}, v2, 4, v3")
    a.e("s_mul_i32 s30, s24, 2560")
    a.e("v_lshrrev_b32 v2, 5, v1"); a.e("v_mul_u32_u24 v2, 640, v2"); a.e("v_bfe_u32 v3, v1, 2, 2"); a.e("v_lshl_add_u32 v2, v3, 7, v2")
    a.e("v_bfe_u32 v4, v1, 4, 1"); a.e("v_lshl_add_u32 v2, v4, 6, v2"); a.e("v_and_b32 v4, 3, v1"); a.e("v_lshl_add_u32 v2, v4, 4, v2")
    a.e(f"v_add_u32 v{vPx}, s30, v2")
    a.e("v_lshrrev_b32 v2, 4, v1"); a.e("v_mul_u32_u24 v2, 640, v2"); a.e("v_and_b32 v3, 15, v1"); a.e("v_lshl_add_u32 v2, v3, 3, v2")
    a.e("v_add_u32 v2, 512, v2"); a.e(f"v_add_u32 v{vPm}, s30, v2")
    a.e("s_mul_i32 s30, s24, 1536"); a.e(f"s_add_u32 s30, s30, {RSC}")
    a.e("v_and_b32 v2, 15, v1"); a.e("v_lshlrev_b32 v2, 5, v2"); a.e("v_lshrrev_b32 v3, 5, v1"); a.e("v_bfe_u32 v4, v1, 2, 1"); a.e("v_xor_b32 v3, v3, v4")
    a.e("v_lshl_add_u32 v2, v3, 4, v2"); a.e("v_bfe_u32 v3, v1, 4, 1"); a.e("v_lshl_add_u32 v2, v3, 3, v2"); a.e(f"v_add_u32 v{vRw}, s30, v2")
    if PUB24[0]:
        a.e("s_and_b32 s30, s24, 1"); a.e("s_lshl_b32 s31, s30, 4"); a.e("s_sub_u32 s31, 47, s31")
        a.e("v_min_u32 v2, s31, v1"); a.e("v_lshrrev_b32 v3, 1, v2"); a.e("s_mul_i32 s30, s30, 24"); a.e("v_add_u32 v3, s30, v3")
    else:
        a.e("v_min_u32 v2, 39, v1"); a.e("v_lshrrev_b32 v3, 1, v2"); a.e("s_and_b32 s30, s24, 1"); a.e("s_mul_i32 s30, s30, 20"); a.e("v_add_u32 v3, s30, v3")
    a.e("v_and_b32 v2, 1, v2")
    a.e("v_bfe_u32 v4, v3, 2, 1"); a.e("v_xor_b32 v4, v4, v2"); a.e("v_lshlrev_b32 v4, 4, v4"); a.e("v_lshl_add_u32 v4, v3, 5, v4")
    a.e(f"v_add_u32 v{vRr}, {RSC}, v4")
    a.e("s_mul_i32 s30, s26, 40"); a.e("v_add_u32 v3, s30, v3")
    a.e("v_lshrrev_b32 v4, 8, v3"); a.e(f"v_lshlrev_b32 v4, {CSH[0]}, v4"); a.e("v_and_b32 v3, 255, v3"); a.e("v_lshl_add_u32 v4, v3, 4, v4"); a.e("v_lshl_add_u32 v4, v2, 3, v4")
    a.e("s_lshl_b32 s30, s25, 12"); a.e(f"v_add_u32 v{vPub}, s30, v4")
    a.e(f"s_add_u32 s32, s46, {LOC_Y}")
    a.e("s_mul_i32 s33, s26, 10240"); a.e("s_add_u32 s33, s33, s32")
    if HM[0]: a.e("s_lshl_b32 s30, s24, 3"); a.e("s_add_u32 s30, s30, s25")
    else: a.e("s_lshl_b32 s30, s25, 4"); a.e("s_lshl_b32 s31, s24, 2"); a.e("s_add_u32 s30, s30, s31")
    a.e("s_mul_i32 s38, s30, 40960"); a.e(f"s_add_u32 s38, s38, {WS_U}")
    a.e("s_mul_i32 s54, s27, 10240"); a.e(f"s_add_u32 s54, s54, {WS_YA}")
    a.e(f"s_add_u32 s88, s46, {LOC_DUMMY}")
    a.e("s_lshl_b32 s84, s26, 7"); a.e("s_add_u32 s84, s84, s45"); a.e("s_add_u32 s84, s84, 4096")

    a.e(f"s_lshl_b32 s34, s27, 7"); a.e(f"s_add_u32 s34, s34, {WS_FLAGS+F_YR}")

    a.e(f"s_lshl_b32 s55, s25, {4 if HM[0] else 8}"); a.e(f"s_add_u32 s55, s55, {WS_FLAGS+F_U}")
    a.e(f"s_mul_i32 s35, s26, {MKS[0]}"); a.e("s_add_u32 s35, s35, s45")
    if MKG[0]:
        a.e("s_lshl_b32 s30, s25, 11"); a.e("s_add_u32 s35, s35, s30")
        if mkearly:
            a.e("s_and_b32 s30, s24, 1"); a.e("s_lshl_b32 s30, s30, 6"); a.e("s_add_u32 s35, s35, s30")
            a.e("s_cmp_lt_u32 s24, 2"); a.e("s_cselect_b32 s30, 4096, 0"); a.e("s_add_u32 s35, s35, s30")
    if mkearly and not MKG[0]:
        a.e("s_lshl_b32 s30, s24, 2"); a.e("s_add_u32 s35, s35, s30"); a.e("s_mov_b64 s[96:97], 1")
        a.e("v_and_b32 v2, 3, v1"); a.e("v_lshrrev_b32 v3, 2, v1"); a.e(f"v_mul_u32_u24 v3, {MKS[0]}, v3"); a.e(f"v_lshl_add_u32 v{vMk}, v2, 2, v3")
    a.e("s_mov_b32 s28, 0"); a.e("s_mov_b32 s29, 0"); a.e("s_mov_b32 s37, 0"); a.e("s_mov_b32 s91, 0")
    def uflag_wait(lab, reg):
        a.e(f"s_lshr_b32 s30, {reg}, 3"); a.e("s_lshl_b32 s30, s30, 9"); a.e("s_add_u32 s30, s30, s55")
        a.e("v_mbcnt_lo_u32_b32 v3, -1, 0"); a.e("v_mbcnt_hi_u32_b32 v3, -1, v3"); a.e(f"v_and_b32 v2, {60 if HM[0] else 0}, v3"); a.e("v_add_lshl_u32 v3, v3, v2, 2")
        a.label(lab)
        a.e(f"buffer_load_dword v2, v3, s[8:11], s30 offen sc1")
        a.e("s_sub_u32 s82, s82, 1"); a.e("s_cbranch_scc1 L_abort")
        a.e("s_waitcnt vmcnt(0)")
        a.e("v_cmp_eq_u32 vcc, 0, v2")
        a.e(f"s_cbranch_vccnz {lab}")
    def u_loads():
        it = []
        for hh in range(4):
            for t in range(3):
                r = U + (t*2 + (hh >> 1))*8 + (hh & 1)*4
                p = []
                if t == 0: p = [f"s_add_u32 s31, s38, {hh*40960}"]
                it.append(p + [f"buffer_load_dwordx4 {vr(r,4)}, v{vU0+t}, s[8:11], s31 offen {upol}"])
        it[-1].append(f"s_add_u32 s38, s38, {32*40960}")
        return it
    def lv(L): return [f"ds_read_b128 {vr(BST+4*q,4)}, v6 offset:{L*24576 + 1024*q}" for q in range(6)]
    def lo(L): return [f"ds_read_b128 {vr(BST+8*t+4*H,4)}, v{5 if L else 7} offset:{H*20480 + 1024*t}" for t in range(5) for H in range(2)]
    def usoff():
        for hh in range(4): a.e(f"s_add_u32 s{92+hh}, s38, {hh*(81920 if HM[0] else 40960)}")
        a.e(f"s_add_u32 s38, s38, {32*40960*ustep}")
    def idle_prep(nxt=2):
        for ins in lv(0): a.e(ins)
        for q in range(12): a.e(f"v_mov_b32 v{VA+q}, 0")
        for q in range(20): a.e(f"v_mov_b32 v{ACC+q}, 0")
        a.e("v_add_u32 v5, 40960, v7")
        if not ulate or nxt == 1: usoff()
        a.e(f"s_add_u32 s89, s28, {nxt}"); a.e("s_min_u32 s89, s89, 63"); a.e("s_lshr_b32 s89, s89, 3"); a.e("s_lshl_b32 s89, s89, 9"); a.e("s_add_u32 s89, s89, s55")
    a.e("v_and_b32 v2, 15, v1"); a.e("v_bfe_u32 v3, v1, 4, 1"); a.e("v_lshl_add_u32 v2, v3, 5, v2"); a.e("v_lshrrev_b32 v3, 5, v1"); a.e("v_lshl_add_u32 v2, v3, 4, v2")
    a.e("v_lshlrev_b32 v2, 4, v2"); a.e("s_mul_i32 s30, s24, 2560"); a.e(f"v_add_u32 v{vYs4}, s30, v2")
    for q in range(4): a.e(f"v_mov_b32 v{U+32+q}, -1")
    a.e(f"s_add_u32 s36, s32, 163840")
    uflag_wait(f"{pre}_uf0", "s28")
    stage_mem0(a, MEMIMG, PR, 1)
    idle_prep(1)
    for hh, t in [(hh, t) for hh in range(4) for t in range(3)][:ush]:
        a.e(f"buffer_load_dwordx4 {vr(U + (t*2 + (hh >> 1))*8 + (hh & 1)*4,4)}, v{vU0+t}, s[8:11], s{92+hh} offen {upol}")
    if ulate:
        for hh in range(4):
            for t in range(2): a.e(f"buffer_load_dwordx4 {vr(U + (t*2 + (hh >> 1))*8 + (hh & 1)*4,4)}, v{vU0+t}, s[8:11], s{92+hh} offen {upol}")
    a.e("s_waitcnt lgkmcnt(0)")
    a.e("s_barrier")
    a.e("LOOPSTART")
    def emit_loop(pre, LST, prof):
        def uld(hh, t): return [f"buffer_load_dwordx4 {vr(U + (t*2 + (hh >> 1))*8 + (hh & 1)*4,4)}, v{vU0+t}, s[8:11], s{92+hh} offen {upol}"]
        arch = [f"buffer_store_dwordx4 {vr(U+36,4)}, v{vYs4}, s[8:11], s88 offen {af}", f"buffer_store_dwordx4 {vr(U+40,4)}, v{vYs4}, s[8:11], s88 offen offset:1024 {af}",
                f"buffer_store_dwordx2 {vr(U+44,2)}, v{vYst}, s[8:11], s88 offen offset:2048 {af}"]
        rst = [f"buffer_store_dwordx4 {vr(U+32,4)}, v{vYs0}, s[8:11], s90 offen {LST}", f"buffer_store_dwordx4 {vr(U+32,4)}, v{vYs0}, s[8:11], s90 offen offset:256 {LST}",
               f"buffer_store_dwordx4 {vr(U+32,4)}, v{vYs2}, s[8:11], s90 offen {LST}"]
        vm = [uld(hh, t) for hh in range(4) for t in range(3)]
        if apos == 1: vm = [[x] for x in arch] + vm
        if late == 2: vm = [[x] for x in arch] + [[x.replace("s90", "s36")] for x in rst] + vm[3:]
        if late == 3: vm = [uld(hh, t) for hh in range(4) for t in range(2)][:4] + [[x] for x in arch] + [uld(hh, t) for hh in range(4) for t in range(2)][4:] + [[x.replace("s90", "s36")] for x in rst] + [uld(hh, 2) for hh in range(4)]
        if ulate: vm = [[x] for x in arch] + [uld(hh, 2) for hh in range(4)]
        if apos == 2: vm = [uld(hh, t) for hh in range(4) for t in range(2)] + [[x] for x in arch] + [uld(hh, 2) for hh in range(4)]
        vm += [["v_mbcnt_lo_u32_b32 v4, -1, 0", "v_mbcnt_hi_u32_b32 v4, -1, v4", f"v_and_b32 v0, {60 if HM[0] else 0}, v4", "v_add_lshl_u32 v4, v4, v0, 2", "buffer_load_dword v0, v4, s[8:11], s89 offen sc1"] + (["v_and_b32 v4, 127, v4", "v_lshlrev_b32 v3, 5, v4", "s_add_u32 s30, s28, 1", "v_mov_b32 v2, s30"] if HINT[0] else [])]
        if novm == 1: vm = []
        if novm == 2: vm = [x for x in vm if "sc1" not in x[0]]
        if novm == 3: vm = [x for x in vm if "store" not in x[0]]
        if novm == 4: vm = [x for x in vm if "store" in x[0]]
        def vmpop():
            if vm: a.e("\n".join(vm.pop(0)))
        vsh = vm[:ush]; vm[:] = vm[ush:]
        vm0 = list(vm)
        def lop(i):
            return [f"ds_read_b128 {vr(BST+8*(i%5)+4*H,4)}, v{5 if i >= 5 else 7} offset:{H*20480 + 1024*(i%5)}" for H in range(2)]
        def v_ctx(w):
            rest = [(2*w + 2 + i) % 8 for i in range(6)]
            order = [2*w, 2*w+1, 8] + rest[:4] + [9] + rest[4:]
            def aread(p): return f"ds_read_b128 {vr(PR+4*(p%4),4)}, v{vAst} offset:{1024*order[p]}"
            def sm(p, t):
                io = order[p]
                return f"{SM64} {vr(VA+4*t,4)}, {vr(PR+4*(p%4),4)}, {wreg(io*3+t) if io < 8 else vr(BST+8*t, 8)}, v{vIdx}"
            return order, aread, sm
        def cv(d, s0): return f"v_cvt_pk_bf16_f32 v{d}, v{s0}, v{s0+1}"
        def vhead_fused(w, extra):
            order, aread, sm = v_ctx(w)
            PD = PR; tv = 3
            def chk(k):
                r = PD+4*k
                a.e(f"s_waitcnt vmcnt({4-k+extra})")
                if k in (0, 4): ts(a, prof, 1 if k == 0 else 7, 1)
                if k == 0: a.e(f"v_max3_u32 v{tv}, v{r}, v{r+1}, v{r+2}"); a.e(f"v_max_u32 v{tv}, v{tv}, v{r+3}")
                else: a.e(f"v_max3_u32 v{tv}, v{r}, v{r+1}, v{tv}"); a.e(f"v_max3_u32 v{tv}, v{r+2}, v{r+3}, v{tv}")
                a.e(f"v_mfma_f32_16x16x32_bf16 {vr(r,4)}, {vr(r,4)}, {vr(vSB,4)}, 0")
            def put(k):
                q = PD+4*k
                a.e(cv(q, q)); a.e(cv(q+1, q+2))
                a.e(f"ds_write_b64 v{vStW}, {vr(q,2)} offset:{512*k if k < 4 else 8192 - 1536*w}")
            chk(0); chk(1); chk(2)
            put(0)
            chk(3)
            put(1); a.e(aread(0))
            chk(4)
            a.e(f"v_cmp_eq_u32 vcc, -1, v{tv}")
            put(2); put(3); a.e(aread(1))
            put(4)
            a.e(f"s_cbranch_vccnz {pre}_h2r0")
            ts(a, prof, 0)
            a.e("s_waitcnt lgkmcnt(4)")
            for t in range(3): a.e(sm(0, t))
            a.e("s_waitcnt lgkmcnt(0)")
            a.e("s_barrier")
            a.e(aread(2)); a.e(aread(3))
            a.e(sm(1, 0)); a.e(aread(4)); a.e(sm(1, 1)); a.e(sm(1, 2))
            a.e(f"s_branch {pre}_vt{w}")
        a.label(f"{pre}_loop")
        a.e("s_waitcnt lgkmcnt(0)")
        a.e("s_barrier")
        for w in range(3):
            a.e(f"s_cmp_eq_u32 s24, {w}"); a.e(f"s_cbranch_scc1 {pre}_vw{w}")
        for w in (3, 0, 1, 2):
            a.label(f"{pre}_vw{w}")
            ts(a, prof, 0)
            order, aread, sm = v_ctx(w)
            for p in range(3): a.e(aread(p))
            for p in range(2):
                a.e("s_waitcnt lgkmcnt(2)")
                a.e(sm(p, 0)); a.e(aread(p+3)); a.e(sm(p, 1)); a.e(sm(p, 2))
            a.label(f"{pre}_vt{w}")
            vm[:] = list(vm0)
            for i in range(upre): vmpop()
            lq = [("A", 2), ("A", 3), ("A", 4)]
            ex = []
            cnt = 0
            for p in range(2, 10):
                need = [("A", p)] + ([("L", 1)] if p == 7 else [])
                idx = [i for i, t in enumerate(lq) if t in need]
                if idx:
                    a.e(f"s_waitcnt lgkmcnt({len(lq)-1-max(idx)})")
                    lq = lq[max(idx)+1:]
                if p == 3: ex = lv(1)
                if p == 8: ex = lop(0) + lop(1) + lop(2)
                for t in range(3):
                    a.e(sm(p, t))
                    cnt += 1
                    if t == 0 and p+3 < 10:
                        a.e(aread(p+3)); lq.append(("A", p+3))
                    elif p >= 8:
                        if ex: a.e(ex.pop(0)); lq.append(("O", 0))
                    elif ex:
                        a.e(ex.pop(0)); lq.append(("L", 1))
                    if cnt % vsp == 0: vmpop()
            assert not ex
            if w != 2: a.e(f"s_branch {pre}_vpost")
        a.label(f"{pre}_vpost")
        ts(a, prof, 1); ts(a, prof, 1, 2)
        a.nop(4)
        F = PR
        for q in range(4): a.e(f"v_permlane32_swap_b32 v{VA+q}, v{VA+4+q}")
        for q in range(4): a.e(f"v_permlane32_swap_b32 v{VA+8+q}, v{F+4+q}")
        a.e(f"v_pk_add_f32 {vr(F,2)}, {vr(VA,2)}, {vr(VA+4,2)}"); a.e(f"v_pk_add_f32 {vr(F+2,2)}, {vr(VA+2,2)}, {vr(VA+6,2)}")
        a.e(f"v_cvt_pk_bf16_f32 v{F}, v{F}, v{F+1}"); a.e(f"v_cvt_pk_bf16_f32 v{F+1}, v{F+2}, v{F+3}")
        a.e(f"v_pk_add_f32 {vr(F+4,2)}, {vr(VA+8,2)}, {vr(F+4,2)}"); a.e(f"v_pk_add_f32 {vr(F+6,2)}, {vr(VA+10,2)}, {vr(F+6,2)}")
        a.e(f"ds_write_b64 v{vVw0}, {vr(F,2)}")
        a.e(f"v_cvt_pk_bf16_f32 v{F+4}, v{F+4}, v{F+5}"); a.e(f"v_cvt_pk_bf16_f32 v{F+5}, v{F+6}, v{F+7}")
        a.e(f"ds_write_b64 v{vVw1}, {vr(F+4,2)}")
        ts(a, prof, 2, 2)
        vmpop()
        a.e("s_waitcnt lgkmcnt(0)")
        a.e("s_barrier")
        ts(a, prof, 3, 2)
        def areg(e): return PR+12 if e == 4 else PR+16 if e == 5 else PR+4*(e % 3)
        def vread(e): return [f"ds_read_b64_tr_b16 {vr(areg(e)+2*h,2)}, v{vVr} offset:{512*e + 64*h}" for h in range(2)]
        lq = []
        for e in (0, 4, 1):
            for ins in vread(e): a.e(ins); lq.append(("A", e))
        vmpop(); vmpop()
        seq = []; r = [(e, t) for e in range(4) for t in range(5)]; l = [(4+i//5, i%5) for i in range(10)]
        for pos in range(30): seq.append(l.pop(0) if pos % 3 == 2 else r.pop(0))
        pend = [(0, ("O", 3), lop(3)), (0, ("A", 2), vread(2)), (0, ("O", 4), lop(4)), (3, ("O", 5), lop(5)), (3, ("A", 5), vread(5)), (6, ("O", 6), lop(6)),
                (7, ("A", 3), vread(3)), (9, ("O", 7), lop(7)), (12, ("O", 8), lop(8)), (15, ("O", 9), lop(9))]
        flat = [(p0, tag, ins) for p0, tag, inss in pend for ins in inss]
        for pos, (e, t) in enumerate(seq):
            need = [("A", e)] + ([("O", (e-4)*5+t)] if e >= 4 else [])
            idxs = [i for i, tg in enumerate(lq) if tg in need]
            assert not any(tag in need for _, tag, _ in flat), (pos, need)
            if idxs:
                last = max(idxs)
                a.e(f"s_waitcnt lgkmcnt({len(lq)-1-last})")
                lq = lq[last+1:]
            B = wreg(24+e*5+t) if e < 4 else vr(BST+8*t, 8)
            a.e(f"{SM64} {vr(ACC+4*t,4)}, {vr(areg(e),4)}, {B}, v{vIdx}")
            if pos == 0: ts(a, prof, 4, 2)
            if flat and flat[0][0] <= pos:
                _, tag, ins = flat.pop(0); a.e(ins); lq.append(tag)
            if pos % 4 == 3 or pos == 29: vmpop()
        assert not vm and not flat
        ts(a, prof, 2); ts(a, prof, 7, 2)
        YC = PR
        def ycvt(t):
            a.e(f"v_cvt_pk_bf16_f32 v{YC+2*t}, v{ACC+4*t}, v{ACC+4*t+1}")
            a.e(f"v_cvt_pk_bf16_f32 v{YC+2*t+1}, v{ACC+4*t+2}, v{ACC+4*t+3}")
        def ymin(t):
            if ytag:
                a.e(f"v_and_or_b32 v{YC+2*t}, v{YC+2*t}, -2, s91"); a.e(f"v_and_or_b32 v{YC+2*t+1}, v{YC+2*t+1}, -2, s91")
            else:
                a.e(f"v_min_u32 v{YC+2*t}, -2, v{YC+2*t}"); a.e(f"v_min_u32 v{YC+2*t+1}, -2, v{YC+2*t+1}")
        def ystores(so, fl):
            ycvt(0); ycvt(1); ymin(0); ymin(1); ycvt(2)
            a.e(f"v_permlane16_swap_b32 v{YC}, v{YC+2}"); a.e(f"v_permlane16_swap_b32 v{YC+1}, v{YC+3}")
            ycvt(3)
            a.e(f"buffer_store_dwordx4 {vr(YC,4)}, v{vYs4}, s[8:11], {so} offen {fl}")
            ymin(2); ymin(3); ycvt(4)
            a.e(f"v_permlane16_swap_b32 v{YC+4}, v{YC+6}"); a.e(f"v_permlane16_swap_b32 v{YC+5}, v{YC+7}")
            ymin(4)
            a.e(f"buffer_store_dwordx4 {vr(YC+4,4)}, v{vYs4}, s[8:11], {so} offen offset:1024 {fl}")
            a.e(f"buffer_store_dwordx2 {vr(YC+8,2)}, v{vYst}, s[8:11], {so} offen offset:2048 {fl}")
        if uwait == 1:
            a.e("s_waitcnt vmcnt(0)"); ts(a, prof, 1)
        a.e(f"s_cmp_eq_u32 s28, {nsteps-1}")
        a.e(f"s_cbranch_scc1 {pre}_last")
        a.e("s_add_u32 s31, s33, s37")
        if HINT[0]:
            a.e("s_cmp_lg_u32 s24, 0"); a.e(f"s_cbranch_scc1 {pre}_noh")
            a.e("s_mov_b64 exec, 1")
            a.e(f"buffer_store_dword v2, off, s[8:11], s84 {LST}")
            a.e("s_mov_b64 exec, -1")
            a.label(f"{pre}_noh")
        ystores("s31", LST)
        if HINT[0]:
            a.e(f"buffer_load_dword v1, v3, s[8:11], s45 offen offset:2048 sc1")
        if uwait == 2:
            ts(a, prof, 1); a.e("s_waitcnt vmcnt(0)"); ts(a, prof, 2)
        YS = BST; P0 = BST+12; RA = BST+24
        for q in range(12): a.e(f"v_mov_b32 v{RA+q}, 0")
        a.e("s_add_u32 s30, s28, 1"); a.e(f"v_mov_b32 v{PR+10}, s30")
        a.e("s_add_u32 s90, s32, s37")
        h2_base(a, "s53", None)
        if HINT[0]:
            a.e("s_add_u32 s30, s28, 1")
            a.e("s_waitcnt vmcnt(0)")
            a.e("v_cmp_gt_u32 vcc, s30, v1")
            a.e(f"s_cbranch_vccz {pre}_hok")
            a.label(f"{pre}_hp")
            a.e(f"buffer_load_dword v1, v3, s[8:11], s45 offen offset:2048 sc1")
            if prof: a.e("s_add_u32 s83, s83, 0x1000000")
            a.e("s_sub_u32 s82, s82, 1"); a.e("s_cbranch_scc1 L_abort")
            a.e("s_waitcnt vmcnt(0)")
            a.e("v_cmp_gt_u32 vcc, s30, v1")
            a.e(f"s_cbranch_vccnz {pre}_hp")
            a.label(f"{pre}_hok")
            a.nop(h_nop)
        else:
            for i in range(y_sleep): a.e("s_sleep 1")
            a.nop(y_nop)
        def yload():
            a.e(f"buffer_load_dwordx4 {vr(YS,4)}, v{vYs0}, s[8:11], s90 offen sc1")
            a.e(f"buffer_load_dwordx4 {vr(YS+4,4)}, v{vYs0}, s[8:11], s90 offen offset:256 sc1")
            a.e(f"buffer_load_dwordx4 {vr(YS+8,4)}, v{vYs2}, s[8:11], s90 offen sc1")
        def ycheck():
            a.e(f"v_max3_u32 v1, v{YS}, v{YS+1}, v{YS+2}")
            for q in (3, 5, 7, 9): a.e(f"v_max3_u32 v1, v{YS+q}, v{YS+q+1}, v1")
            a.e(f"v_max_u32 v1, v{YS+11}, v1")
            a.e("v_cmp_eq_u32 vcc, -1, v1")
        def pload(P):
            a.e(f"buffer_load_dwordx4 {vr(P,4)}, v{vPx}, s[8:11], s46 offen sc1")
            a.e(f"buffer_load_dwordx4 {vr(P+4,4)}, v{vPx}, s[8:11], s46 offen offset:1280 sc1")
            a.e(f"buffer_load_dwordx2 {vr(P+8,2)}, v{vPm}, s[8:11], s46 offen sc1")
        tb = 0
        for i in range(8):
            A_, B_, C_ = (i >> 2) & 1, (i >> 1) & 1, i & 1
            if (A_ ^ C_) | (B_ ^ C_): tb |= 1 << i
        def yload2(Y):
            a.e(f"buffer_load_dwordx4 {vr(Y,4)}, v{vYs0}, s[8:11], s90 offen sc1")
            a.e(f"buffer_load_dwordx4 {vr(Y+4,4)}, v{vYs0}, s[8:11], s90 offen offset:256 sc1")
            a.e(f"buffer_load_dwordx4 {vr(Y+8,4)}, v{vYs2}, s[8:11], s90 offen sc1")
        def consume(Px, Pm, Y, young, bad, yf=False, first=False):
            if yf:
                a.e(f"s_waitcnt vmcnt({3+young})")
                for q in range(3): a.e(f"v_bitop3_b32 v{2+q}, v{Y+2*q}, v{Y+2*q+1}, s91 bitop3:{tb}")
                a.e("v_or3_b32 v2, v2, v3, v4")
                for q in range(2): a.e(f"v_bitop3_b32 v{3+q}, v{Y+6+2*q}, v{Y+7+2*q}, s91 bitop3:{tb}")
                a.e("v_or3_b32 v2, v2, v3, v4"); a.e(f"v_bitop3_b32 v3, v{Y+10}, v{Y+11}, s91 bitop3:{tb}"); a.e("v_or_b32 v2, v2, v3"); a.e(f"v_lshlrev_b32 v{PR+14}, 31, v2")
                a.e(f"s_waitcnt vmcnt({2+young})")
                ts(a, prof, 3)
                for t in range(3):
                    a.e(f"{SM64} {vr(RA+4*t,4)}, {vr(Px,4)}, {vr(U+16*t,8)}, v{vIdx} abid:1")
                    if t < 2: a.e(f"v_bitop3_b32 v{1+t}, v{Px+2*t}, v{Px+2*t+1}, s29 bitop3:{tb}")
                    else: a.e(f"v_or3_b32 v1, v1, v2, v{PR+14}")
                a.e(f"s_waitcnt vmcnt({1+young})")
                for t in range(3):
                    a.e(f"{SM64} {vr(RA+4*t,4)}, {vr(Px+4,4)}, {vr(U+16*t+8,8)}, v{vIdx} abid:1")
                    if t < 2: a.e(f"v_bitop3_b32 v{3+t}, v{Px+4+2*t}, v{Px+4+2*t+1}, s29 bitop3:{tb}")
                    else: a.e("v_or3_b32 v1, v1, v3, v4")
                a.e(f"s_waitcnt vmcnt({young})")
                for t in range(3):
                    a.e(f"{SM32} {vr(RA+4*t,4)}, {vr(Pm,2)}, {vr(Y+4*t,4)}, v{vIdx} abid:2")
                    if t == 0: a.e(f"v_bitop3_b32 v2, v{Pm}, v{Pm+1}, s29 bitop3:{tb}")
                    elif t == 1: a.e("v_or_b32 v1, v1, v2")
                a.e("v_cmp_gt_i32 vcc, 0, v1")
                a.e(f"s_cbranch_vccnz {bad}")
                return
            a.e(f"s_waitcnt vmcnt({5+young})")
            if first: ts(a, prof, 3)
            if mkearly == 2 and first:
                a.e("s_mov_b64 exec, 1")
                a.e(f"buffer_store_dword v{PR+10}, off, s[8:11], s35 sc1")
                a.e("s_mov_b64 exec, -1")
                young += 1
            for t in range(3):
                a.e(f"{SM64} {vr(RA+4*t,4)}, {vr(Px,4)}, {vr(U+16*t,8)}, v{vIdx} abid:1")
                if t < 2: a.e(f"v_bitop3_b32 v{1+t}, v{Px+2*t}, v{Px+2*t+1}, s29 bitop3:{tb}")
            a.e(f"s_waitcnt vmcnt({4+young})")
            for t in range(3):
                a.e(f"{SM64} {vr(RA+4*t,4)}, {vr(Px+4,4)}, {vr(U+16*t+8,8)}, v{vIdx} abid:1")
                if t < 2: a.e(f"v_bitop3_b32 v{3+t}, v{Px+4+2*t}, v{Px+4+2*t+1}, s29 bitop3:{tb}")
                else: a.e("v_or3_b32 v1, v1, v2, v3")
            if first and pearly:
                a.e("v_or_b32 v1, v1, v4"); a.e("v_cmp_gt_i32 vcc, 0, v1"); a.e(f"s_cbranch_vccnz {pre}_pe")
            for t in range(3):
                a.e(f"s_waitcnt vmcnt({2-t+young})")
                a.e(f"{SM32} {vr(RA+4*t,4)}, {vr(Pm,2)}, {vr(Y+4*t,4)}, v{vIdx} abid:2")
                if ytag:
                    if t == 0:
                        a.e(f"v_bitop3_b32 v2, v{Pm}, v{Pm+1}, s29 bitop3:{tb}")
                        a.e("v_or3_b32 v1, v1, v4, v2")
                        a.e(f"v_bitop3_b32 v2, v{Y}, v{Y+1}, s91 bitop3:{tb}"); a.e(f"v_bitop3_b32 v3, v{Y+2}, v{Y+3}, s91 bitop3:{tb}")
                    else:
                        a.e(f"v_bitop3_b32 v4, v{Y+4*t}, v{Y+4*t+1}, s91 bitop3:{tb}"); a.e("v_or3_b32 v2, v2, v3, v4"); a.e(f"v_bitop3_b32 v3, v{Y+4*t+2}, v{Y+4*t+3}, s91 bitop3:{tb}")
                elif t == 0:
                    a.e(f"v_bitop3_b32 v2, v{Pm}, v{Pm+1}, s29 bitop3:{tb}")
                    a.e("v_or3_b32 v1, v1, v4, v2")
                    a.e(f"v_max3_u32 v2, v{Y}, v{Y+1}, v{Y+2}"); a.e(f"v_max_u32 v2, v2, v{Y+3}")
                else:
                    a.e(f"v_max3_u32 v2, v{Y+4*t}, v{Y+4*t+1}, v2"); a.e(f"v_max3_u32 v2, v{Y+4*t+2}, v{Y+4*t+3}, v2")
            if ytag:
                a.e("v_or_b32 v2, v2, v3"); a.e("v_lshl_or_b32 v1, v2, 31, v1")
                a.e("v_cmp_gt_i32 vcc, 0, v1")
                a.e(f"s_cbranch_vccnz {bad}")
                return
            a.e("v_cmp_eq_u32 s[30:31], -1, v2")
            a.e("v_cmp_gt_i32 vcc, 0, v1")
            a.e("s_or_b64 vcc, vcc, s[30:31]")
            a.e(f"s_cbranch_vccnz {bad}")
        Px2 = ACC; Pm2 = PR+12; Y2 = ACC+8
        def pl(Px, Pm):
            a.e(f"buffer_load_dwordx4 {vr(Px,4)}, v{vPx}, s[8:11], s46 offen sc1")
            a.e(f"buffer_load_dwordx4 {vr(Px+4,4)}, v{vPx}, s[8:11], s46 offen offset:1280 sc1")
            a.e(f"buffer_load_dwordx2 {vr(Pm,2)}, v{vPm}, s[8:11], s46 offen sc1")
        def attempt(Px, Pm, young):
            a.e(f"s_waitcnt vmcnt({2+young})")
            for t in range(3):
                a.e(f"{SM64} {vr(RA+4*t,4)}, {vr(Px,4)}, {vr(U+16*t,8)}, v{vIdx} abid:1")
                if t < 2: a.e(f"v_bitop3_b32 v{1+t}, v{Px+2*t}, v{Px+2*t+1}, s29 bitop3:{tb}")
            a.e(f"s_waitcnt vmcnt({1+young})")
            for t in range(3):
                a.e(f"{SM64} {vr(RA+4*t,4)}, {vr(Px+4,4)}, {vr(U+16*t+8,8)}, v{vIdx} abid:1")
                if t < 2: a.e(f"v_bitop3_b32 v{3+t}, v{Px+4+2*t}, v{Px+4+2*t+1}, s29 bitop3:{tb}")
                else: a.e("v_or3_b32 v1, v1, v2, v3")
            a.e(f"s_waitcnt vmcnt({young})")
            for t in range(3):
                a.e(f"{SM32} {vr(RA+4*t,4)}, {vr(Pm,2)}, {vr(YS+4*t,4)}, v{vIdx} abid:2")
                if t == 0: a.e(f"v_bitop3_b32 v2, v{Pm}, v{Pm+1}, s29 bitop3:{tb}")
                elif t == 1: a.e("v_or3_b32 v1, v1, v4, v2")
            a.e("v_cmp_gt_i32 vcc, 0, v1")
        def ychk():
            for q in range(3): a.e(f"v_bitop3_b32 v{2+q}, v{YS+2*q}, v{YS+2*q+1}, s91 bitop3:{tb}")
            a.e("v_or3_b32 v2, v2, v3, v4")
            for q in range(2): a.e(f"v_bitop3_b32 v{3+q}, v{YS+6+2*q}, v{YS+7+2*q}, s91 bitop3:{tb}")
            a.e("v_or3_b32 v2, v2, v3, v4"); a.e(f"v_bitop3_b32 v3, v{YS+10}, v{YS+11}, s91 bitop3:{tb}"); a.e("v_or_b32 v2, v2, v3")
            a.e("v_and_b32 v2, 1, v2"); a.e("v_cmp_ne_u32 vcc, 0, v2")
        if ppipe:
            yload()
            a.nop(p_nop)
            pl(P0, P0+8)
            a.nop(ppipe)
            pl(Px2, Pm2)
            a.e("s_waitcnt vmcnt(6)")
            ychk()
            a.e(f"s_cbranch_vccnz {pre}_y2bad")
            a.label(f"{pre}_y2ok")
            ts(a, prof, 3)
            attempt(P0, P0+8, 3)
            a.e(f"s_cbranch_vccnz {pre}_pp1")
        else:
            if yfirst:
                yload()
                a.nop(p_nop)
                pload(P0)
            else:
                pload(P0)
                for i in range(p_sleep): a.e("s_sleep 1")
                yload()
            if dbl:
                a.nop(dbl)
                a.e(f"buffer_load_dwordx4 {vr(Px2,4)}, v{vPx}, s[8:11], s46 offen sc1")
                a.e(f"buffer_load_dwordx4 {vr(Px2+4,4)}, v{vPx}, s[8:11], s46 offen offset:1280 sc1")
                a.e(f"buffer_load_dwordx2 {vr(Pm2,2)}, v{vPm}, s[8:11], s46 offen sc1")
                yload2(Y2)
            if apos == 5:
                a.e(f"buffer_store_dwordx4 {vr(YC,4)}, v{vYs4}, s[8:11], s54 offen {af}"); a.e(f"buffer_store_dwordx4 {vr(YC+4,4)}, v{vYs4}, s[8:11], s54 offen offset:1024 {af}")
                a.e(f"buffer_store_dwordx2 {vr(YC+8,2)}, v{vYst}, s[8:11], s54 offen offset:2048 {af}")
            consume(P0, P0+8, YS, (6 if dbl else 0) + (3 if apos == 5 else 0), f"{pre}_pbad1" if dbl else f"{pre}_pbad", yf=yfirst, first=True)
        a.label(f"{pre}_pok")
        ts(a, prof, 4)
        if mkearly == 2: pass
        elif mkearly and MKG[0]:
            a.e("s_cmp_lt_u32 s24, 2"); a.e(f"s_cbranch_scc1 {pre}_nme")
            a.e("s_mov_b64 exec, 1")
            a.e(f"buffer_store_dword v{PR+10}, off, s[8:11], s35 sc1")
            a.e("s_mov_b64 exec, -1")
            a.label(f"{pre}_nme")
        elif mkearly:
            a.e("s_mov_b64 exec, s[96:97]")
            a.e(f"buffer_store_dword v{PR+10}, off, s[8:11], s35 {LST}")
            a.e("s_mov_b64 exec, -1")
        a.e("s_cmp_ge_u32 s24, 2")
        for t in range(3):
            a.e(f"v_add_f32 v{RA+4*t}, v{RA+4*t}, v{RA+4*t+1}"); a.e(f"v_add_f32 v{RA+4*t+1}, v{RA+4*t+2}, v{RA+4*t+3}")
            a.e(f"ds_write_b64 v{vRw}, {vr(RA+4*t,2)} offset:{512*t}")
        a.e("s_waitcnt lgkmcnt(0)")
        a.e("s_barrier")
        a.e(f"s_cbranch_scc1 {pre}_nopub")
        R = U
        for w in range(4): a.e(f"ds_read_b128 {vr(R+4*w,4)}, v{vRr} offset:{1536*w}")
        def pa(x, y):
            a.e(f"v_pk_add_f32 {vr(x,2)}, {vr(x,2)}, {vr(y,2)}"); a.e(f"v_pk_add_f32 {vr(x+2,2)}, {vr(x+2,2)}, {vr(y+2,2)}")
        a.e("s_waitcnt lgkmcnt(2)"); pa(R, R+4)
        a.e("s_waitcnt lgkmcnt(0)"); pa(R+8, R+12); pa(R, R+8)
        a.e(f"v_cvt_pk_bf16_f32 v{R}, v{R}, v{R+1}"); a.e(f"v_cvt_pk_bf16_f32 v{R+1}, v{R+2}, v{R+3}")
        a.e(f"v_xor_b32 v{R}, s29, v{R}"); a.e(f"v_xor_b32 v{R+1}, s29, v{R+1}")
        a.e(f"v_min_u32 v{R}, -2, v{R}"); a.e(f"v_min_u32 v{R+1}, -2, v{R+1}")
        a.e(f"buffer_store_dwordx2 {vr(R,2)}, v{vPub}, s[8:11], s53 offen sc1")
        a.e(f"s_branch {pre}_pubd")
        a.label(f"{pre}_nopub")
        for i in range(mkw_sleep): a.e("s_nop 15")
        a.e("s_cmp_eq_u32 s24, 3"); a.e(f"s_cbranch_scc1 {pre}_nomk")
        if MKA[0]:
            a.e("v_mov_b32 v2, 1"); a.e("s_mov_b64 exec, 1")
            a.e(f"buffer_atomic_add v2, off, s[8:11], s45 {LST}")
        elif not mkearly:
            a.e("s_mov_b64 exec, 1")
            a.e(f"buffer_store_dword v{PR+10}, off, s[8:11], s35 {'sc1' if MKG[0] else LST}")
        a.e(f"s_branch {pre}_mkd")
        a.label(f"{pre}_nomk")
        if not QARCH[0]:
            a.e("v_mov_b32 v2, s28"); a.e("v_mov_b32 v3, 0"); a.e("s_mov_b64 exec, 1")
            a.e(f"buffer_store_dword v2, v3, s[8:11], s34 offen sc1")
        a.label(f"{pre}_mkd")
        a.e("s_mov_b64 exec, -1")
        a.label(f"{pre}_pubd")
        ts(a, prof, 7)
        if not ytag:
            for q in range(4): a.e(f"v_mov_b32 v{U+32+q}, -1")
        if apos not in (5, 9):
            for q in range(10): a.e(f"v_mov_b32 v{U+36+q}, v{YC+q}")
        a.e("s_mov_b32 s88, s54"); a.e(f"s_add_u32 s54, s54, {32*10240}"); a.e("s_mov_b32 s36, s90")
        if late == 0 and not ytag:
            for i in range(rs_sleep): a.e("s_sleep 1")
            for ins in rst: a.e(ins)
        if apos == 3:
            for ins in arch: a.e(ins)
        if apos == 4:
            a.e("s_cmp_eq_u32 s24, 2"); a.e(f"s_cbranch_scc1 {pre}_noa")
            for ins in arch: a.e(ins)
            a.label(f"{pre}_noa")
        if QARCH[0] == 2: a.e("s_add_u32 s37, s37, 163840"); a.e(f"s_cmp_eq_u32 s37, {3*163840}"); a.e("s_cselect_b32 s37, 0, s37"); a.e("s_cselect_b32 s30, 1, 0"); a.e("s_xor_b32 s91, s91, s30")
        elif not ytag or QARCH[0]: a.e("s_xor_b32 s37, s37, 163840")
        if QARCH[0] == 1: a.e("s_and_b32 s30, s28, 1"); a.e("s_xor_b32 s91, s91, s30")
        elif QARCH[0] == 0: a.e("s_xor_b32 s91, s91, 1")
        a.e("v_cmp_eq_u32 vcc, 0, v0"); a.e("s_add_u32 s31, s28, 1")
        a.e(f"s_cbranch_vccz {pre}_nouf")
        uflag_wait(f"{pre}_uf", "s31")
        a.label(f"{pre}_nouf")
        if ulate:
            usoff()
            a.e("s_cmp_eq_u32 s24, 2"); a.e(f"s_cbranch_scc1 {pre}_nou")
            for hh in range(4):
                for t in range(2): a.e(uld(hh, t)[0])
            a.label(f"{pre}_nou")
        def aft():
            for ins in (arch if apos == 0 else []) + (rst if late == 1 else []): a.e(ins)
            if dbl or ppipe: a.e(f"s_waitcnt vmcnt({5 + (3 if late == 1 else 0) + (3 if apos == 0 else 0)})")
            idle_prep()
        def aft2():
            if apos == 4:
                for ins in arch: a.e(ins)
            aft()
            if ulate:
                for hh in range(4):
                    for t in range(2): a.e(uld(hh, t)[0])
        na = (3 if late == 1 else 0) + (3 if apos == 0 else 0)
        pw = (3 if (MKG[0] and not mkearly) else 2)
        use2 = ulate or apos == 4
        n2 = na+(8 if ulate else 0)+(3 if apos == 4 else 0)
        def fin():
            ts(a, prof, 6)
            prof_dump(a, prof, pre)
            a.e("s_add_u32 s28, s28, 1"); a.e("s_xor_b32 s29, s29, 0x80008000")
        if fuse:
            cntf = [0]
            def aftf():
                aft()
                for it in vsh: a.e("\n".join(it))
                a.e("s_add_u32 s28, s28, 1"); a.e("s_xor_b32 s29, s29, 0x80008000")
                if prof:
                    a.e("s_sub_u32 s28, s28, 1"); ts(a, prof, 6); prof_dump(a, prof, pre + str(cntf[0])); cntf[0] += 1; a.e("s_add_u32 s28, s28, 1")
            assert not use2
            retry = h2_stage(a, pre, PR, None, None, vSB, vStW, vH2, vMk, 1, mk_sleep, prof, pollw=pw, after=aftf, fused=lambda: a.e("s_waitcnt lgkmcnt(0)"), w4="s85")
            for w in range(3):
                a.e(f"s_cmp_eq_u32 s24, {w}"); a.e(f"s_cbranch_scc1 {pre}_fz{w}")
            for w in (3, 0, 1, 2):
                a.label(f"{pre}_fz{w}")
                vhead_fused(w, na + ush)
        else:
            retry = h2_stage(a, pre, PR, None, None, vSB, vStW, vH2, vMk, 1, mk_sleep, prof, pollw=pw, after=aft, nafter=na, after2=aft2 if use2 else None, nafter2=n2, nobar=True, w4="s85")
            fin()
            a.e(f"s_branch {pre}_loop")
        retry()
        if dbl:
            a.label(f"{pre}_pbad1")
            if prof: a.e("s_add_u32 s83, s83, 0x1000000")
            a.nop(4)
            for q in range(12): a.e(f"v_mov_b32 v{RA+q}, 0")
            consume(Px2, Pm2, Y2, 0, f"{pre}_pbad")
            a.e(f"s_branch {pre}_pok")
        if ppipe:
            a.label(f"{pre}_y2bad")
            yload()
            if prof: a.e("s_add_u32 s83, s83, 0x1000000")
            a.e("s_sub_u32 s82, s82, 1"); a.e("s_cbranch_scc1 L_abort")
            a.e("s_waitcnt vmcnt(0)")
            ychk()
            a.e(f"s_cbranch_vccnz {pre}_y2bad")
            pl(P0, P0+8); pl(Px2, Pm2)
            a.e(f"s_branch {pre}_y2ok")
            a.label(f"{pre}_pp1")
            pl(P0, P0+8)
            if prof: a.e("s_add_u32 s83, s83, 0x10000")
            a.e("s_sub_u32 s82, s82, 1"); a.e("s_cbranch_scc1 L_abort")
            for q in range(12): a.e(f"v_mov_b32 v{RA+q}, 0")
            attempt(Px2, Pm2, 3)
            a.e(f"s_cbranch_vccz {pre}_pok")
            pl(Px2, Pm2)
            if prof: a.e("s_add_u32 s83, s83, 0x10000")
            a.nop(2)
            for q in range(12): a.e(f"v_mov_b32 v{RA+q}, 0")
            attempt(P0, P0+8, 3)
            a.e(f"s_cbranch_vccz {pre}_pok")
            a.e(f"s_branch {pre}_pp1")
        if pearly:
            a.label(f"{pre}_pe")
            pload(P0)
            a.e("s_waitcnt vmcnt(3)")
            for q in range(3): a.e(f"v_bitop3_b32 v{2+q}, v{YS+2*q}, v{YS+2*q+1}, s91 bitop3:{tb}")
            a.e("v_or3_b32 v2, v2, v3, v4")
            for q in range(2): a.e(f"v_bitop3_b32 v{3+q}, v{YS+6+2*q}, v{YS+7+2*q}, s91 bitop3:{tb}")
            a.e("v_or3_b32 v2, v2, v3, v4"); a.e(f"v_bitop3_b32 v3, v{YS+10}, v{YS+11}, s91 bitop3:{tb}"); a.e("v_or_b32 v2, v2, v3")
            a.e("v_and_b32 v2, 1, v2"); a.e("v_cmp_ne_u32 vcc, 0, v2")
            a.e(f"s_cbranch_vccnz {pre}_ybad")
            a.e(f"s_branch {pre}_pbad2")
        a.label(f"{pre}_pbad")
        pload(P0)
        if ponly:
            a.e("v_and_b32 v2, 1, v2"); a.e("v_cmp_ne_u32 vcc, 0, v2")
            a.e(f"s_cbranch_vccnz {pre}_ybad")
            a.label(f"{pre}_pbad2")
            if prof: a.e("s_add_u32 s83, s83, 0x10000")
            a.e("s_sub_u32 s82, s82, 1"); a.e("s_cbranch_scc1 L_abort")
            for q in range(12): a.e(f"v_mov_b32 v{RA+q}, 0")
            a.e("s_waitcnt vmcnt(2)")
            for t in range(3):
                a.e(f"{SM64} {vr(RA+4*t,4)}, {vr(P0,4)}, {vr(U+16*t,8)}, v{vIdx} abid:1")
                if t < 2: a.e(f"v_bitop3_b32 v{1+t}, v{P0+2*t}, v{P0+2*t+1}, s29 bitop3:{tb}")
            a.e("s_waitcnt vmcnt(1)")
            for t in range(3):
                a.e(f"{SM64} {vr(RA+4*t,4)}, {vr(P0+4,4)}, {vr(U+16*t+8,8)}, v{vIdx} abid:1")
                if t < 2: a.e(f"v_bitop3_b32 v{3+t}, v{P0+4+2*t}, v{P0+4+2*t+1}, s29 bitop3:{tb}")
                else: a.e("v_or3_b32 v1, v1, v2, v3")
            a.e("s_waitcnt vmcnt(0)")
            for t in range(3):
                a.e(f"{SM32} {vr(RA+4*t,4)}, {vr(P0+8,2)}, {vr(YS+4*t,4)}, v{vIdx} abid:2")
                if t == 0: a.e(f"v_bitop3_b32 v2, v{P0+8}, v{P0+9}, s29 bitop3:{tb}")
                elif t == 1: a.e("v_or3_b32 v1, v1, v4, v2")
            a.e("v_cmp_gt_i32 vcc, 0, v1")
            a.e(f"s_cbranch_vccz {pre}_pok")
            pload(P0)
            a.e(f"s_branch {pre}_pbad2")
            a.label(f"{pre}_ybad")
            if prof: a.e("s_add_u32 s83, s83, 0x1000000")
        yload()
        if prof: a.e("s_add_u32 s83, s83, 0x10000")
        a.e("s_sub_u32 s82, s82, 1"); a.e("s_cbranch_scc1 L_abort")
        for q in range(12): a.e(f"v_mov_b32 v{RA+q}, 0")
        consume(P0, P0+8, YS, 0, f"{pre}_pbad")
        a.e(f"s_branch {pre}_pok")
        a.label(f"{pre}_last")
        ystores("s54", "sc1")
        a.e("s_waitcnt vmcnt(0)")
        a.e("s_barrier")
        a.e(f"v_mov_b32 v2, {nsteps}"); a.e("v_mov_b32 v3, 0"); a.e("s_mov_b64 exec, 1")
        a.e(f"buffer_store_dword v2, v3, s[8:11], s34 offen offset:4 sc1")
        if not QARCH[0]: a.e(f"buffer_store_dword v2, v3, s[8:11], s34 offen sc1")
        a.e("s_waitcnt vmcnt(0)")
        a.e("s_mov_b64 exec, -1")
        a.e(f"s_branch {pre0}_end")
    pre0 = pre
    if cw:
        a.e("s_cmp_lt_u32 s81, 32"); a.e(f"s_cbranch_scc1 {pre}S_loop")
        emit_loop(pre, "", prof)
        emit_loop(pre + "S", "sc1", 0)
    else:
        emit_loop(pre, LST, prof)
    a.label(f"{pre}_end")
```

```python
import math, struct
from asmlib import *
from layout import *
def fbits(x): return struct.unpack("<I", struct.pack("<f", x))[0]

ACC = 64
GP = dict(dma_start=16, xper=2, st='sc1', slp1=16, slp2=48, slpf=2, ost='', ld='')
MF = "v_mfma_f32_32x32x16_bf16"
GUARD = 'a.e("s_sub_u32 s82, s82, 1"); a.e("s_cbranch_scc1 L_abort")'
def guard(a): a.e("s_sub_u32 s82, s82, 1"); a.e("s_cbranch_scc1 W_abort")

def wait_flags(a, lab, soff, nwords, stride_sh, thresh, sleep=16, imm=0):
    a.e(f"v_min_u32 v3, {nwords-1}, v1")
    a.e(f"v_lshlrev_b32 v3, {stride_sh}, v3")
    a.label(lab)
    a.e(f"buffer_load_dword v2, v3, s[8:11], {soff} offen offset:{imm} sc1")
    guard(a)
    a.e("s_waitcnt vmcnt(0)")
    a.e(f"v_cmp_gt_u32 vcc, {thresh}, v2")
    a.e(f"s_cbranch_vccz {lab}_ok")
    a.e(f"s_sleep {sleep}")
    a.e(f"s_branch {lab}")
    a.label(f"{lab}_ok")

def wait_progress(a, lab, soff, thresh):
    a.e("s_mov_b64 exec, 1")
    a.label(lab)
    a.e(f"buffer_load_dword v2, off, s[8:11], {soff} sc1")
    guard(a)
    a.e("s_waitcnt vmcnt(0)")
    a.e("v_readfirstlane_b32 s30, v2")
    a.e("s_add_u32 s30, s30, 1")
    a.e(f"s_cmp_ge_u32 s30, {thresh}"); a.e(f"s_cbranch_scc1 {lab}_ok")
    a.e("s_add_u32 s30, s30, 1")
    a.e(f"s_sleep {GP['slp1']}")
    a.e(f"s_cmp_ge_u32 s30, {thresh}"); a.e(f"s_cbranch_scc1 {lab}")
    a.e(f"s_sleep {GP['slp2']}")
    a.e(f"s_branch {lab}")
    a.label(f"{lab}_ok")
    a.e("s_mov_b64 exec, -1")

def set_flag(a, soff, val="1", add=False):
    lab = a.newlabel("W_fl")
    a.e("s_waitcnt vmcnt(0)")
    a.e("s_barrier")
    a.e("s_cmp_lg_u32 s24, 0"); a.e(f"s_cbranch_scc1 {lab}")
    a.e(f"v_mov_b32 v2, {val}"); a.e("v_mov_b32 v3, 0"); a.e("s_mov_b64 exec, 1")
    if add: a.e(f"buffer_atomic_add v2, v3, s[8:11], {soff} offen sc1")
    else: a.e(f"buffer_store_dword v2, v3, s[8:11], {soff} offen sc1")
    a.e("s_mov_b64 exec, -1")
    a.label(lab)

CW = [None]
def spec_check(a):
    lab = a.newlabel("W_sp")
    a.e("s_cmp_eq_u32 s81, 0"); a.e(f"s_cbranch_scc1 {lab}")
    CW[0](a, lab + "c")
    a.e("s_mov_b32 s81, 0")
    a.e("s_and_b32 s25, s84, s85")
    for i in range(86, 92): a.e(f"s_and_b32 s25, s25, s{i}")
    a.e("s_cmp_eq_u32 s25, 32"); a.e(f"s_cbranch_scc1 {lab}r")
    a.e("s_waitcnt vmcnt(0) lgkmcnt(0)"); a.e("s_barrier"); a.e("s_branch M_worker")
    a.label(f"{lab}r")
    a.e("s_load_dwordx2 s[84:85], s[0:1], 0"); a.e("s_load_dwordx2 s[86:87], s[0:1], 56"); a.e("s_waitcnt lgkmcnt(0)")
    a.label(lab)
NS = 4; SLOT = 24576
FW = [0, 24]; XF = [48, 56]; VOP = 128
XB = 98304
WPROF = [0]
def wts(a, i):
    if WPROF[0]: a.e(f"s_memtime s[{88+2*i}:{89+2*i}]")
vW = 8; vTB = 14; vTC = 16; vW2 = 18; vT2 = 23; vXD = 24; vXR = 32; vST = 36
STG = [40, 48, 56, 224, 232, 240, 248]
def w_voffsets(a, NT, dst, ld):
    UPR = NT*4; NW = NT
    for i in range(NW):
        a.e(f"s_mul_i32 s25, s24, {NW*64}")
        a.e(f"s_add_u32 s25, s25, {i*64}")
        a.e("v_add_u32 v4, s25, v1")
        a.e(f"v_mul_u32_u24 v5, {(65536+UPR-1)//UPR}, v4")
        a.e("v_lshrrev_b32 v5, 16, v5")
        a.e(f"v_mul_u32_u24 v6, {UPR}, v5")
        a.e("v_sub_u32 v6, v4, v6")
        if NT == 6:
            a.e("v_lshlrev_b32 v7, 1, v5"); a.e("v_and_b32 v7, 4, v7"); a.e("v_xor_b32 v6, v6, v7")
        if isinstance(ld, int): a.e(f"v_mul_u32_u24 v5, {ld}, v5")
        else: a.e(f"v_mul_lo_u32 v5, v5, {ld}")
        a.e(f"v_lshl_add_u32 v{dst+i}, v6, 4, v5")
def tr_bases(a, NT, dst, khmul, two):
    RB = NT*64
    a.e("v_lshrrev_b32 v4, 5, v1"); a.e("v_bfe_u32 v5, v1, 2, 2")
    a.e(f"v_mul_u32_u24 v4, {khmul}, v4"); a.e("v_add_u32 v4, v4, v5")
    a.e(f"v_mul_u32_u24 v4, {RB}, v4")
    a.e("v_bfe_u32 v6, v1, 4, 1"); a.e("v_lshl_add_u32 v4, v6, 5, v4")
    a.e("v_and_b32 v6, 3, v1"); a.e("v_lshl_add_u32 v4, v6, 3, v4")
    if NT == 6:
        a.e("v_bfe_u32 v5, v1, 3, 1"); a.e("v_lshlrev_b32 v5, 6, v5")
        a.e(f"v_add_u32 v{dst}, v4, v5"); a.e(f"v_sub_u32 v{dst+1}, v4, v5")
    else:
        a.e(f"v_mov_b32 v{dst}, v4")
        if two: a.e(f"v_mov_b32 v{dst+1}, v4")
ADV = [f"s_add_u32 s29, s29, {SLOT}", f"s_cmp_eq_u32 s29, {NS*SLOT}", "s_cselect_b32 s29, 0, s29"]
def dmas(NW, vbase, srd, sreg, sinc, woff):
    it = []
    for i in range(NW):
        pre = [f"s_add_u32 m0, s29, {woff}"] if i == 0 else ["s_add_u32 m0, m0, 1024"]
        it.append(pre + ["s_nop 0", f"buffer_load_dwordx4 v{vbase+i}, {srd}, {sreg} offen lds"])
    it[-1] += [f"s_add_u32 {sreg}, {sreg}, {sinc}"] + ADV
    return it
def xdmas(MB, st, xsrd, sreg):
    SET = 16384*MB
    it = [[f"s_add_u32 m0, s52, {st*SET + i*1024}", "s_nop 0", f"buffer_load_dwordx4 v{vXD+i}, {xsrd}, {sreg} offen lds"] for i in range(4*MB)]
    it[-1].append(f"s_add_u32 {sreg}, {sreg}, 128")
    return it
def adv_read(a, base, two):
    a.e(f"s_add_u32 s30, s30, {SLOT}"); a.e(f"s_cmp_eq_u32 s30, {NS*SLOT}"); a.e("s_cselect_b32 s30, 0, s30")
    a.e(f"v_add_u32 v{vTC}, s30, v{base}")
    if two: a.e(f"v_add_u32 v{vTC+1}, s30, v{base+1}")
def cond(a, items, sreg):
    out = []
    for it in items:
        lab = a.newlabel("W_c")
        out.append([f"s_cmp_eq_u32 {sreg}, 0", f"s_cbranch_scc1 {lab}"] + it + [f"{lab}:"])
    return out
def main_reads(NT, MB, f, ks, st):
    RB = NT*64
    r = [[f"ds_read_b64_tr_b16 {ar(FW[f]+4*t+2*h,2)}, v{vTC+(t&1)} offset:{(8*ks+4*h)*RB + t*64}" for h in range(2)] for t in range(NT)]
    x = [[f"ds_read_b128 {ar(XF[f]+4*tb,4)}, v{vXR+ks} offset:{st*16384*MB + tb*4096}" for tb in range(MB)]]
    return x + r

def gemm_setup(a, NT, MB, withU):
    a.e("v_lshrrev_b32 v4, 3, v1"); a.e(f"s_mul_i32 s25, s24, {32*MB}"); a.e("v_add_u32 v4, s25, v4"); a.e("v_mul_u32_u24 v4, 1280, v4")
    a.e("v_lshrrev_b32 v5, 4, v1"); a.e("v_and_b32 v6, 7, v1"); a.e("v_xor_b32 v5, v5, v6")
    a.e(f"v_lshl_add_u32 v{vXD}, v5, 4, v4"); a.e("v_xor_b32 v5, 4, v5"); a.e(f"v_lshl_add_u32 v{vXD+1}, v5, 4, v4"); a.e(f"v_add_u32 v{vXD+1}, 10240, v{vXD+1}")
    for i in range(2, 4*MB): a.e(f"v_add_u32 v{vXD+i}, 20480, v{vXD+i-2}")
    a.e(f"s_mul_i32 s52, s24, {4096*MB}"); a.e(f"s_add_u32 s52, s52, {XB}")
    w_voffsets(a, NT, vW, "s33")
    a.e("s_lshl_b32 s28, s33, 6")
    a.e(f"s_mul_i32 s32, s24, {NT*1024}")
    a.e("s_mov_b32 s29, 0")
def gemm_setup2(a, NT, MB, withU):
    a.e(f"s_mul_i32 s25, s24, {32*MB}")
    a.e("v_and_b32 v4, 31, v1"); a.e("v_bfe_u32 v5, v1, 1, 3"); a.e("v_lshrrev_b32 v6, 5, v1"); a.e("v_lshlrev_b32 v6, 2, v6"); a.e("v_xor_b32 v5, v5, v6")
    a.e("v_add_u32 v4, s25, v4"); a.e("v_lshlrev_b32 v4, 7, v4"); a.e(f"v_add_u32 v4, {XB}, v4")
    for ks in range(4):
        a.e(f"v_xor_b32 v6, {ks}, v5"); a.e(f"v_lshl_add_u32 v{vXR+ks}, v6, 4, v4")
    tr_bases(a, NT, vTB, 32, True)
    a.e(f"v_lshlrev_b32 v{vST}, 4, v1")
    if withU:
        w_voffsets(a, 5, vW2, 1280)
        tr_bases(a, 5, vT2, 4, False)
        a.e("s_mul_i32 s34, s24, 5120")

def gemm_cold(a, NT, MB, xsrd, withU):
    PD = 2 if MB == 2 else 3
    gemm_setup(a, NT, MB, withU)
    for p in range(PD):
        for it in dmas(NT, vW, "s[12:15]", "s27", "s28", "s32"): a.e("\n".join(it))
        if p < PD-1:
            for it in xdmas(MB, p, xsrd, "s26"): a.e("\n".join(it))
    gemm_setup2(a, NT, MB, withU)
    a.e("s_mov_b32 s54, 0")
    a.e(f"s_waitcnt vmcnt({(PD-1)*NT + (PD-2)*4*MB})")
    a.e("s_barrier")
    wts(a, 1)
    a.e(f"v_mov_b32 v{vTC}, v{vTB}"); a.e(f"v_mov_b32 v{vTC+1}, v{vTB+1}")
    a.e("s_mov_b32 s30, 0")
    for it in main_reads(NT, MB, 0, 0, 0): a.e("\n".join(it))

def pend_flag(a):
    lab = a.newlabel("W_pf")
    a.e("s_cmp_eq_u32 s54, 0"); a.e(f"s_cbranch_scc1 {lab}")
    a.e("v_mov_b32 v2, 1"); a.e("v_lshlrev_b32 v3, 2, v1"); a.e("s_mov_b32 exec_hi, 0"); a.e("s_mov_b32 exec_lo, s54")
    a.e("buffer_store_dword v2, v3, s[8:11], s53 offen sc1")
    a.e("s_mov_b64 exec, -1"); a.e("s_mov_b32 s54, 0")
    a.label(lab)

def next_items(a):
    A = cond(a, dmas(6, vW, "s[56:59]", "s61", "s28", "s32"), "s62")
    B = cond(a, xdmas(2, 0, "s[48:51]", "s60") + dmas(6, vW, "s[56:59]", "s61", "s28", "s32"), "s62")
    return [A, B]

def gemm_loop(a, NT, MB, xsrd, tail):
    PD = 2 if MB == 2 else 3
    NX = PD
    nst = 10; NM = MB*NT
    dma_start, xper = (GP['dma_start'], GP['xper']) if MB == 2 else (0, 2)
    def mfmas(f, first):
        m = []
        for t in range(NT):
            for tb in range(MB):
                d = ACC + (tb*NT+t)*16
                m.append(f"{MF} {vr(d,16)}, {ar(FW[f]+4*t,4)}, {ar(XF[f]+4*tb,4)}, {'0' if first else vr(d,16)}")
        return m
    q = []
    for p in range(1, PD):
        q += [("W", p)]*NT
        if p < PD-1: q += [("X", p)]*(4*MB)
    for s in range(nst):
        last = s == nst-1
        ext = [[] for _ in range(4*NM)]
        tg = [[] for _ in range(4*NM)]
        xs = xdmas(MB, (s+PD-1) % NX, xsrd, "s26") if s+PD-1 < nst else []
        certain = True
        if s+PD < nst: ws = dmas(NT, vW, "s[12:15]", "s27", "s28", "s32")
        else:
            k = s+PD-nst
            ws = tail[1][k] if tail and k < len(tail[1]) else []
            certain = tail[0] if tail else True
        pos = 0
        for it in xs: ext[pos] += it; tg[pos].append(("X", s+PD-1)); pos += xper
        pos = max(pos, dma_start if xs else 0)
        if not certain and not last: pos = 3*NM
        step = max(1, ((4*NM if certain or not last else 4*NM - 6) - pos)//max(1, len(ws)))
        for it in ws:
            ext[pos] += it
            if certain: tg[pos].append(("W", s+PD))
            pos += step
        for ks in range(4):
            f = ks & 1
            if ks < 3 or last: a.e("s_waitcnt lgkmcnt(0)")
            else:
                idx = [i for i, t in enumerate(q) if t in (("W", s+1), ("X", s+1))]
                n = len(q) - 1 - max(idx) if idx else len(q)
                if idx: q = q[max(idx)+1:]
                a.e(f"s_waitcnt vmcnt({n}) lgkmcnt(0)")
                a.e("s_barrier")
                adv_read(a, vTB, True)
                if s == 0 and MB == 2 and NT == 6:
                    pend_flag(a)
                    a.e("s_add_u32 s25, s79, 4"); a.e("s_load_dword s55, s[76:77], s25")
            rd = main_reads(NT, MB, f ^ 1, ks+1, s % NX) if ks < 3 else ([] if last else main_reads(NT, MB, 0, 0, (s+1) % NX))
            per = 1 if NM >= len(rd) else 2
            fl = merge(spread(rd, NM, 0, per=per), ext[ks*NM:(ks+1)*NM])
            for ins in interleave(mfmas(f, s == 0 and ks == 0), fl): a.e(ins)
            for g in range(ks*NM, (ks+1)*NM): q += tg[g]
    wts(a, 2)

def warm_handoff(a, nyoung):
    lab = a.newlabel("W_wh")
    a.e("s_cmp_eq_u32 s62, 0"); a.e(f"s_cbranch_scc1 {lab}")
    a.e(f"s_waitcnt vmcnt({nyoung})")
    a.e("s_barrier")
    adv_read(a, vTB, True)
    for it in main_reads(6, 2, 0, 0, 0): a.e("\n".join(it))
    a.label(lab)

def finish(a, maskreg):
    lab = a.newlabel("W_fin")
    spec_check(a)
    a.e("s_cmp_eq_u32 s62, 0"); a.e(f"s_cbranch_scc1 {lab}")
    a.e("s_mov_b32 s53, s36"); a.e("s_cmp_eq_u32 s24, 0"); a.e(f"s_cselect_b32 s54, {maskreg}, 0")
    a.e("s_branch W_warm")
    a.label(lab)
    a.e("s_waitcnt vmcnt(0)"); a.e("s_barrier")
    a.e("s_mov_b32 s53, s36"); a.e("s_cmp_eq_u32 s24, 0"); a.e(f"s_cselect_b32 s54, {maskreg}, 0")
    pend_flag(a)
    a.e("s_branch W_next")

def epi_chunks(a, MB, segstride):
    a.nop(8)
    k = 0
    for tb in range(MB):
        for t in range(6):
            d = ACC + (tb*6+t)*16
            for j in range(2):
                r = 40 + (k % 6)*4; k += 1
                for q in range(4): a.e(f"v_cvt_pk_bf16_f32 v{r+q}, v{d+8*j+2*q}, v{d+8*j+2*q+1}")
                off = t*2048 + j*1024
                if off % 4096 == 0:
                    if tb == 0: a.e(f"s_add_u32 s25, s31, {off}")
                    else: a.e(f"s_add_u32 s25, {segstride}, s31"); a.e(f"s_add_u32 s25, s25, {off}")
                a.e(f"buffer_store_dwordx4 {vr(r,4)}, v{vST}, s[8:11], s25 offen offset:{off % 4096} {GP['st']}")

def task_kq(a, MB):
    if MB == 2:
        gemm_cold(a, 6, 2, "s[48:51]", True)
        a.label("W_kq_warm")
        gemm_loop(a, 6, 2, "s[48:51]", (False, next_items(a)))
        warm_handoff(a, 6)
    else:
        gemm_cold(a, 6, 1, "s[48:51]", False)
        gemm_loop(a, 6, 1, "s[48:51]", None)
    epi_chunks(a, MB, "s35")
    wts(a, 3); wts(a, 4)
    finish(a, "s39")

def task_vu(a, MB):
    RB = 320; NTL = 5*MB
    def wd2():
        it = dmas(5, vW2, "s[16:19]", "s37", 81920, "s34")
        it[-1] += ["s_add_u32 s40, s40, 1", "s_cmp_eq_u32 s40, 3", "s_cselect_b32 s40, 0, s40", f"s_cselect_b32 s42, {(320 - 3*81920) & 0xffffffff}, 0", "s_add_u32 s37, s37, s42"]
        return it
    PD = 2 if MB == 2 else 3
    gemm_cold(a, 6, MB, "s[48:51]", True)
    if MB == 2: a.label("W_vu_warm")
    a.e("s_mov_b32 s40, 0")
    gemm_loop(a, 6, MB, "s[48:51]", (True, [wd2() for _ in range(PD)]))
    a.e(f"s_waitcnt vmcnt({5*(PD-1)})")
    a.e("s_barrier")
    adv_read(a, vT2, False)
    def wreads(f, ks):
        return [[f"ds_read_b64_tr_b16 {ar(FW[f]+4*t+2*h,2)}, v{vTC} offset:{(16*ks+8*h)*RB + t*64}" for h in range(2)] for t in range(5)]
    for it in wreads(0, 0): a.e("\n".join(it))
    k = 0
    for tb in range(MB):
        for T in range(6):
            d = ACC + (tb*6+T)*16
            for q in range(8):
                r = 40 + (k % 8); k += 1
                a.e(f"v_cvt_pk_bf16_f32 v{r}, v{d+2*q}, v{d+2*q+1}")
                a.e(f"v_accvgpr_write_b32 a{VOP + (tb*6+T)*8 + q}, v{r}")
    wts(a, 3)
    ND = max(0, NTL - len(STG))
    def grp(i): return STG[0] if i < ND else STG[i-ND]
    def cvts(i):
        d = ACC + i*16; r = grp(i)
        return [f"v_cvt_pk_bf16_f32 v{r+q}, v{d+2*q}, v{d+2*q+1}" for q in range(8)]
    def stores(i):
        tb, t = divmod(i, 5); off = t*2048; r = grp(i)
        return [[f"s_add_u32 s25, s31, {tb*32*40960 + (off & ~4095)}", f"buffer_store_dwordx4 {vr(r,4)}, v{vST}, s[8:11], s25 offen offset:{off % 4096} {GP['st']}"],
                [f"buffer_store_dwordx4 {vr(r+4,4)}, v{vST}, s[8:11], s25 offen offset:{off % 4096 + 1024} {GP['st']}"]]
    def mf(f, sg, ks, i):
        tb, t = divmod(i, 5); T = 2*sg + (ks >> 1); j = ks & 1; d = ACC + i*16
        return f"{MF} {vr(d,16)}, {ar(VOP + ((tb*6+T)*2+j)*4,4)}, {ar(FW[f]+4*t,4)}, {'0' if sg == 0 and ks == 0 else vr(d,16)}"
    def pass_body(pending, final):
        NM = NTL
        st_items = []
        if pending:
            for i in range(ND, NTL): st_items += stores(i)
        nx = next_items(a) if (final and MB == 2) else [[], []]
        prev_w = 5*(PD-1)
        for sg in range(3):
            ext = [[] for _ in range(4*NM)]
            nU = (not final) or sg + PD < 3
            ws = wd2() if nU else (nx[sg - (3-2)] if sg >= 1 else [])
            nmine = (len(st_items) + (2-sg))//(3-sg) if sg < 2 else len(st_items)
            mine = st_items[:nmine]; st_items = st_items[nmine:]
            p0 = NM if (sg == 0 and pending) else 0
            if nU:
                seq = []
                wi = list(ws); si = list(mine)
                while wi or si:
                    if wi: seq.append(wi.pop(0))
                    if si: seq.append(si.pop(0))
                for n, it in enumerate(seq): ext[p0 + (n*(3*NM - p0))//len(seq)] += it
            elif sg < 2:
                for n, it in enumerate(mine): ext[p0 + (n*(3*NM - p0))//len(mine)] += it
                for n, it in enumerate(ws): ext[3*NM + (n*NM)//len(ws)] += it
            else:
                seq = list(mine) + list(ws)
                for n, it in enumerate(seq): ext[(n*(4*NM - 4))//len(seq)] += it
            if sg == 2 and pending: ext[4*NM-1] += [f"s_add_u32 s31, s31, {5*2048}"]
            for ks in range(4):
                f = ks & 1
                lastst = final and sg == 2
                if ks < 3 or lastst: a.e("s_waitcnt lgkmcnt(0)")
                else:
                    thisn = len(mine) + (5 if nU else 0)
                    older = 5*(PD-2) if (PD > 2 and ((not final) or sg + PD - 1 < 3)) else 0
                    a.e(f"s_waitcnt vmcnt({thisn + older}) lgkmcnt(0)")
                    a.e("s_barrier")
                    adv_read(a, vT2, False)
                rd = wreads(f ^ 1, ks+1) if ks < 3 else ([] if lastst else wreads(0, 0))
                fl = merge(spread(rd, NM, 0, per=1), ext[ks*NM:(ks+1)*NM])
                for i in range(NM):
                    if pending and sg == 0 and ks == 0:
                        for ins in cvts(i): a.e(ins)
                        if i < ND:
                            for it in stores(i): a.e("\n".join(it))
                    a.e(mf(f, sg, ks, i))
                    for ins in fl[i]: a.e(ins)
    lp = a.newlabel("W_pass")
    pass_body(False, False)
    a.e("s_cmp_eq_u32 s38, 2"); a.e(f"s_cbranch_scc1 {lp}_fin")
    if MB == 2:
        a.label(lp)
        pass_body(True, False)
        a.e("s_sub_u32 s38, s38, 1"); a.e("s_cmp_lg_u32 s38, 2"); a.e(f"s_cbranch_scc1 {lp}")
    a.label(f"{lp}_fin")
    pass_body(True, True)
    wts(a, 4)
    if MB == 2: warm_handoff(a, 6)
    a.nop(8)
    for i in range(NTL):
        r = 40 + 8*(i % 3)
        d = ACC + i*16; tb, t = divmod(i, 5); off = t*2048
        for q in range(8): a.e(f"v_cvt_pk_bf16_f32 v{r+q}, v{d+2*q}, v{d+2*q+1}")
        a.e(f"s_add_u32 s25, s31, {tb*32*40960 + (off & ~4095)}")
        a.e(f"buffer_store_dwordx4 {vr(r,4)}, v{vST}, s[8:11], s25 offen offset:{off % 4096} {GP['st']}")
        a.e(f"buffer_store_dwordx4 {vr(r+4,4)}, v{vST}, s[8:11], s25 offen offset:{off % 4096 + 1024} {GP['st']}")
    finish(a, "s39")

def task_bout(a):
    gemm_cold(a, 5, 2, "s[8:11]", False)
    gemm_loop(a, 5, 2, "s[8:11]", None)
    a.e("v_and_b32 v4, 31, v1"); a.e("s_lshl_b32 s25, s24, 6"); a.e("v_add_u32 v4, s25, v4"); a.e("v_mul_u32_u24 v4, 2560, v4")
    a.e("v_lshrrev_b32 v5, 5, v1"); a.e("v_lshl_add_u32 v4, v5, 4, v4"); a.e(f"v_add_u32 v5, {32*2560}, v4")
    a.nop(4)
    k = 0
    for tb in range(2):
        for t in range(5):
            d = ACC + (tb*5+t)*16
            for j in range(2):
                r = 40 + (k % 6)*4; k += 1
                for q in range(4): a.e(f"v_cvt_pk_bf16_f32 v{r+q}, v{d+8*j+2*q}, v{d+8*j+2*q+1}")
                a.nop(2)
                a.e(f"v_permlane32_swap_b32 v{r}, v{r+2}"); a.e(f"v_permlane32_swap_b32 v{r+1}, v{r+3}")
                a.e(f"buffer_store_dwordx4 {vr(r,4)}, v{4+tb}, s[20:23], s31 offen offset:{t*64 + j*32} {GP['ost']}")
    a.e("s_barrier")

NEGINF = 0xff800000
def task_tp(a):
    C = 192**-0.5 * math.log2(math.e)
    KR = 64; QR = 112; MR = 160; S = 16; SM = 32
    a.e("s_lshl_b32 s46, s45, 2"); a.e("s_add_u32 s46, s46, s24")
    a.e("s_lshl_b32 s47, s44, 5"); a.e("s_add_u32 s47, s47, s46")
    a.e("s_lshr_b32 s25, s44, 3"); a.e("s_lshl_b32 s25, s25, 5"); a.e("s_add_u32 s25, s25, s46"); a.e("s_lshl_b32 s25, s25, 4"); a.e(f"s_add_u32 s26, s25, {WS_FLAGS+F_Q}"); a.e(f"s_add_u32 s25, s25, {WS_FLAGS+F_K}")
    wait_flags(a, a.newlabel("W_k"), "s25", 2, 2, 1)
    wait_flags(a, a.newlabel("W_q"), "s26", 2, 2, 1)
    a.e("v_lshlrev_b32 v4, 4, v1")
    a.e("s_mul_i32 s26, s47, 12288"); a.e(f"s_add_u32 s27, s26, {WS_Q}"); a.e(f"s_add_u32 s26, s26, {WS_K}")
    for i in range(12):
        if i and i % 4 == 0: a.e("s_add_u32 s26, s26, 4096"); a.e("s_add_u32 s27, s27, 4096")
        a.e(f"buffer_load_dwordx4 {vr(KR+4*i,4)}, v4, s[8:11], s26 offen offset:{1024*(i%4)} {GP['ld']}")
        a.e(f"buffer_load_dwordx4 {vr(QR+4*i,4)}, v4, s[8:11], s27 offen offset:{1024*(i%4)} {GP['ld']}")
    a.e("v_and_b32 v5, 31, v1"); a.e("v_lshrrev_b32 v6, 5, v1"); a.e("v_lshlrev_b32 v7, 2, v6"); a.e("v_sub_u32 v8, v5, v7")
    a.e("v_and_b32 v7, 7, v1"); a.e("v_lshlrev_b32 v7, 4, v7"); a.e("v_lshl_add_u32 v7, v6, 7, v7"); a.e("s_mul_i32 s25, s24, 3072"); a.e("v_add_u32 v9, s25, v7")
    a.e("v_lshlrev_b32 v10, 4, v5"); a.e("v_lshl_add_u32 v10, v6, 3, v10")
    a.e(f"v_mov_b32 v11, {NEGINF}")
    for i in range(12):
        a.e(f"s_waitcnt vmcnt({22-2*i})")
        a.e(f"{MF} {vr(S,16)}, {vr(KR+4*i,4)}, {vr(QR+4*i,4)}, {'0' if i == 0 else vr(S,16)}")
    a.e("s_lshl_b32 s25, s46, 7"); a.e(f"s_add_u32 s25, s25, {WS_FLAGS+F_KM}"); a.e("s_add_u32 s28, s44, 1")
    a.nop(8)
    for r in range(16):
        kr = (r & 3) + 8*(r >> 2)
        a.e(f"v_cmp_le_i32 vcc, {kr}, v8")
        a.nop(2)
        a.e(f"v_cndmask_b32 v{S+r}, v11, v{S+r}, vcc")
    a.e(f"v_max3_f32 v12, v{S}, v{S+1}, v{S+2}")
    for r in range(3, 15, 2): a.e(f"v_max3_f32 v12, v{S+r}, v{S+r+1}, v12")
    a.e(f"v_max_f32 v12, v{S+15}, v12")
    a.e("s_min_u32 s29, s28, 63")
    wait_progress(a, a.newlabel("W_kp"), "s25", "s29")
    wait_flags(a, a.newlabel("W_km"), "s25", 1, 2, "s28", sleep=GP['slpf'])
    a.e("s_mul_i32 s26, s47, 3072"); a.e(f"s_add_u32 s26, s26, {WS_KM}"); a.e("s_mul_i32 s25, s24, 3072")
    for i in range(3):
        a.e(f"s_add_u32 m0, s25, {1024*i}"); a.e("s_nop 0")
        a.e(f"buffer_load_dwordx4 v4, s[8:11], s26 offen sc1 lds")
        a.e("s_add_u32 s26, s26, 1024")
    a.e("s_waitcnt vmcnt(0)")
    for i in range(12): a.e(f"ds_read_b128 {vr(MR+4*i,4)}, v9 offset:{256*i}")
    for i in range(12):
        a.e(f"s_waitcnt lgkmcnt({11-i})")
        a.e(f"{MF} {vr(SM,16)}, {vr(MR+4*i,4)}, {vr(QR+4*i,4)}, {'0' if i == 0 else vr(SM,16)}")
    a.e("s_mul_i32 s26, s47, 2560"); a.e(f"s_add_u32 s26, s26, {WS_PT}")
    a.e("s_lshl_b32 s27, s44, 3"); a.e("s_add_u32 s27, s27, s45"); a.e("s_lshl_b32 s27, s27, 7"); a.e(f"s_add_u32 s27, s27, {WS_FLAGS+F_PT}")
    a.e(f"s_mov_b32 s28, {fbits(C)}")
    a.nop(12)
    a.e(f"v_max3_f32 v12, v{SM}, v{SM+1}, v12"); a.e(f"v_max3_f32 v12, v{SM+2}, v{SM+3}, v12")
    a.e("v_mov_b32 v13, v12"); a.nop(2); a.e("v_permlane32_swap_b32 v12, v13"); a.nop(1); a.e("v_max_f32 v12, v12, v13")
    a.e("v_mul_f32 v12, s28, v12")
    vals = list(range(S, S+16)) + list(range(SM, SM+4))
    for v in vals: a.e(f"v_fma_f32 v{v}, v{v}, s28, -v12")
    for v in vals: a.e(f"v_exp_f32 v{v}, v{v}")
    a.e(f"v_add_f32 v13, v{S}, v{S+1}")
    for v in vals[2:]: a.e(f"v_add_f32 v13, v13, v{v}")
    a.e("v_mov_b32 v14, v13"); a.nop(2); a.e("v_permlane32_swap_b32 v13, v14"); a.nop(1); a.e("v_add_f32 v13, v13, v14")
    a.e("v_rcp_f32 v13, v13"); a.nop(1)
    for v in vals: a.e(f"v_mul_f32 v{v}, v{v}, v13")
    for q in range(8): a.e(f"v_cvt_pk_bf16_f32 v{48+q}, v{S+2*q}, v{S+2*q+1}")
    for q in range(2): a.e(f"v_cvt_pk_bf16_f32 v{56+q}, v{SM+2*q}, v{SM+2*q+1}")
    a.e("buffer_store_dwordx4 v[48:51], v4, s[8:11], s26 offen sc1")
    a.e("buffer_store_dwordx4 v[52:55], v4, s[8:11], s26 offen offset:1024 sc1")
    a.e("buffer_store_dwordx2 v[56:57], v10, s[8:11], s26 offen offset:2048 sc1")
    set_flag(a, "s27")

def task_pz(a):
    a.e("s_lshr_b32 s25, s44, 3"); a.e("s_lshl_b32 s25, s25, 9"); a.e("s_lshl_b32 s26, s24, 7"); a.e("s_add_u32 s25, s25, s26"); a.e(f"s_add_u32 s25, s25, {WS_FLAGS+F_U}")
    wait_flags(a, a.newlabel("W_u"), "s25", 32, 2, 1)
    a.e("s_lshl_b32 s46, s44, 5"); a.e("s_lshl_b32 s25, s24, 3"); a.e("s_add_u32 s46, s46, s25")
    a.e("v_and_b32 v5, 31, v1"); a.e("v_lshrrev_b32 v6, 5, v1")
    a.e("v_lshlrev_b32 v4, 4, v1")
    a.e("v_lshlrev_b32 v7, 4, v1")
    a.e("v_mul_u32_u24 v8, 2560, v6"); a.e("v_lshl_add_u32 v8, v5, 4, v8")
    a.e("v_mul_u32_u24 v9, 10240, v6"); a.e("v_lshl_add_u32 v9, v5, 4, v9")
    a.e("s_mul_i32 s26, s46, 40960"); a.e("s_lshl_b32 s25, s45, 12"); a.e("s_add_u32 s26, s26, s25"); a.e(f"s_add_u32 s26, s26, {WS_U}")
    for h in range(8):
        for i in range(4): a.e(f"buffer_load_dwordx4 {ar(16*h+4*i,4)}, v4, s[8:11], s26 offen offset:{1024*i} {GP['ld']}")
        a.e("s_add_u32 s26, s26, 40960")
    a.e("s_lshl_b32 s25, s24, 13"); a.e("v_add_u32 v10, s25, v7")
    a.e("v_and_b32 v11, 7, v0"); a.e("v_lshrrev_b32 v12, 3, v0")
    a.e("v_lshlrev_b32 v13, 10, v11"); a.e("v_lshl_add_u32 v13, v12, 4, v13")
    a.e("v_mul_u32_u24 v14, 2560, v12"); a.e("v_lshl_add_u32 v14, v11, 4, v14")
    a.e("s_lshl_b32 s27, s44, 10"); a.e("s_lshl_b32 s25, s24, 8"); a.e("s_add_u32 s27, s27, s25"); a.e(f"s_add_u32 s27, s27, {WS_FLAGS+F_PT}")
    a.e("s_add_u32 s28, s44, 1"); a.e("s_lshl_b32 s25, s24, 10"); a.e(f"s_add_u32 s25, s25, {WS_FLAGS+F_YR}")
    a.e("s_min_u32 s28, s28, 63")
    a.e("s_min_u32 s29, s28, 62")
    wait_progress(a, a.newlabel("W_yp"), "s25", "s29")
    wait_flags(a, a.newlabel("W_y"), "s25", 8, 7, "s28", sleep=GP['slpf'])
    a.e("s_cmp_lg_u32 s44, 63"); a.e("s_cbranch_scc1 W_pz_nf")
    wait_flags(a, a.newlabel("W_yf"), "s25", 8, 7, 1, sleep=GP['slpf'], imm=4)
    a.label("W_pz_nf")
    a.e("s_mul_i32 s29, s46, 10240"); a.e("s_lshl_b32 s25, s45, 10"); a.e("s_add_u32 s29, s29, s25"); a.e(f"s_add_u32 s29, s29, {WS_YA}")
    for p in range(4):
        for t in range(2): a.e(f"buffer_load_dwordx4 {vr(144+8*p+4*t,4)}, v9, s[8:11], s29 offen offset:{512*t} sc1")
        a.e("s_add_u32 s29, s29, 20480")
    wait_flags(a, a.newlabel("W_p"), "s27", 2, 7, 1, sleep=GP['slpf'])
    a.e("s_mul_i32 s26, s46, 2560"); a.e(f"s_add_u32 s26, s26, {WS_PT}")
    for p in range(4):
        a.e("s_add_u32 s25, s26, 2560")
        for j in range(2): a.e(f"buffer_load_dwordx4 {vr(64+16*p+4*j,4)}, v7, s[8:11], s26 offen offset:{1024*j} sc1")
        for j in range(2): a.e(f"buffer_load_dwordx4 {vr(64+16*p+8+4*j,4)}, v7, s[8:11], s25 offen offset:{1024*j} sc1")
        a.e(f"buffer_load_dwordx4 {vr(128+4*p,4)}, v8, s[8:11], s26 offen offset:2048 sc1")
        a.e("s_add_u32 s26, s26, 5120")
    first = True
    for p in range(4):
        for k in range(5):
            a.e(f"s_waitcnt vmcnt({19-5*p-k})")
            for t in range(2):
                d = 16+16*t
                if k < 4:
                    h = 2*p + (k >> 1); j = k & 1
                    A = ar(16*h + 8*t + 4*j, 4); B = vr(64+16*p+4*k, 4)
                else:
                    A = vr(144+8*p+4*t, 4); B = vr(128+4*p, 4)
                a.e(f"{MF} {vr(d,16)}, {A}, {B}, {'0' if first else vr(d,16)}")
            first = False
    a.e("s_mul_i32 s26, s44, 81920"); a.e("s_lshl_b32 s25, s45, 7"); a.e("s_add_u32 s26, s26, s25")
    a.nop(10)
    for t in range(2):
        if t: a.nop(4)
        for q in range(4): a.e(f"ds_write_b128 v10, {vr(16+16*t+4*q,4)} offset:{(t*4+q)*1024}")
    a.e("s_waitcnt lgkmcnt(0)")
    a.e("s_barrier")
    for w in range(4):
        for hf in range(2): a.e(f"ds_read_b128 {vr(64+8*w+4*hf,4)}, v13 offset:{8192*w + 512*hf}")
    a.e("s_waitcnt lgkmcnt(0)")
    for q in range(0, 8, 2):
        a.e(f"v_pk_add_f32 {vr(64+q,2)}, {vr(64+q,2)}, {vr(72+q,2)}"); a.e(f"v_pk_add_f32 {vr(80+q,2)}, {vr(80+q,2)}, {vr(88+q,2)}")
    for q in range(0, 8, 2): a.e(f"v_pk_add_f32 {vr(64+q,2)}, {vr(64+q,2)}, {vr(80+q,2)}")
    for q in range(4): a.e(f"v_cvt_pk_bf16_f32 v{48+q}, v{64+2*q}, v{64+2*q+1}")
    a.e(f"buffer_store_dwordx4 v[48:51], v14, s[20:23], s26 offen {GP['ost']}")
    a.e("s_barrier")

def piece_off(a, dst, c4reg):
    a.e(f"s_lshr_b32 s25, {c4reg}, 4"); a.e(f"s_lshl_b32 {dst}, s25, 10")
    a.e(f"s_bfe_u32 s25, {c4reg}, 0x10002"); a.e("s_lshl_b32 s25, s25, 9"); a.e(f"s_add_u32 {dst}, {dst}, s25")
    a.e(f"s_and_b32 s25, {c4reg}, 8"); a.e(f"s_add_u32 {dst}, {dst}, s25")
def task_batt(a):
    C = 20**-0.5 * math.log2(math.e)
    SEG = 122880; VL = 18432
    S = 64; Q0 = 16; Q1 = 20; KA = 24; DAT = 208; O = 40
    a.e("s_lshr_b32 s26, s44, 1"); a.e("s_max_u32 s27, s26, 1"); a.e("s_sub_u32 s27, s27, 1")
    a.e("s_lshl_b32 s26, s26, 6"); a.e("s_lshl_b32 s27, s27, 6"); a.e(f"s_add_u32 s26, s26, {WS_FLAGS+F_BQ}"); a.e(f"s_add_u32 s27, s27, {WS_FLAGS+F_BQ}")
    wait_flags(a, a.newlabel("W_b1"), "s26", 10, 2, 1)
    wait_flags(a, a.newlabel("W_b2"), "s27", 10, 2, 1)
    a.e("s_mul_i32 s28, s45, 20")
    for part in range(3):
        for c in range(5):
            a.e(f"s_add_u32 s29, s28, {640*part + 4*c}")
            piece_off(a, f"s{48 + 5*part + c}", "s29")
    a.e("v_and_b32 v5, 31, v1"); a.e("v_lshrrev_b32 v6, 5, v1")
    a.e(f"v_mul_u32_u24 v4, {SEG}, v6"); a.e("v_lshl_add_u32 v4, v5, 4, v4")
    a.e("v_mul_u32_u24 v7, 48, v1")
    for i in range(3):
        a.e("s_mul_i32 s29, s24, 3"); a.e(f"s_add_u32 s29, s29, {i}")
        a.e("s_cmp_ge_u32 s29, 6"); a.e("s_cselect_b32 s30, 6, 0"); a.e("s_cselect_b32 s33, 1, 0"); a.e("s_sub_u32 s29, s29, s30")
        a.e("s_lshl_b32 s30, s44, 1"); a.e("s_add_u32 s30, s30, s29"); a.e("s_max_u32 s30, s30, 4"); a.e("s_sub_u32 s30, s30, 4")
        a.e(f"s_mul_i32 s30, s30, {2*SEG}"); a.e(f"s_add_u32 s30, s30, {WS_BQKV}")
        a.e("s_mul_i32 s29, s29, 3072"); a.e(f"s_mul_i32 s34, s33, {VL}"); a.e("s_add_u32 s29, s29, s34")
        a.e(f"v_add_u32 v{8+i}, s29, v7")
        a.e("s_cmp_eq_u32 s33, 1")
        for c in range(5):
            a.e(f"s_cselect_b32 s31, s{58+c}, s{53+c}"); a.e(f"s_mov_b32 s{35+c}, s31")
        for c in range(5):
            a.e(f"s_add_u32 s31, s{35+c}, s30")
            a.e(f"buffer_load_dwordx2 {vr(DAT+10*i+2*c,2)}, v4, s[8:11], s31 offen")
    a.e("s_lshl_b32 s30, s44, 2"); a.e("s_add_u32 s30, s30, s24"); a.e(f"s_mul_i32 s30, s30, {SEG}"); a.e(f"s_add_u32 s30, s30, {WS_BQKV}")
    a.e("v_cmp_eq_u32 vcc, 0, v6"); a.e("v_lshlrev_b32 v11, 4, v5")
    for k in range(2):
        a.e(f"v_mov_b32 v12, s{50+k}"); a.e(f"v_mov_b32 v13, s{48+k}"); a.e("v_cndmask_b32 v12, v12, v13, vcc"); a.e("v_add_u32 v12, v12, v11")
        a.e(f"buffer_load_dwordx2 {vr(Q0+2*k,2)}, v12, s[8:11], s30 offen")
    a.e("s_add_u32 s30, s30, s52")
    a.e(f"buffer_load_dwordx2 {vr(Q1,2)}, v11, s[8:11], s30 offen")
    a.e("v_mov_b32 v14, 0x3f80"); a.e("v_mov_b32 v15, 0"); a.e("v_mul_u32_u24 v12, 48, v0"); a.e("v_and_b32 v13, 127, v0"); a.e("v_mul_u32_u24 v13, 48, v13")
    a.e(f"ds_write_b64 v12, v[14:15] offset:{VL+40}"); a.e(f"ds_write_b64 v13, v[14:15] offset:{VL+40+256*48}")
    for i in range(3):
        for c in range(5):
            a.e(f"s_waitcnt vmcnt({17-5*i-c})")
            a.e(f"ds_write_b64 v{8+i}, {vr(DAT+10*i+2*c,2)} offset:{8*c}")
    a.e("s_mul_i32 s29, s24, 1536")
    a.e("v_mul_u32_u24 v8, 48, v5"); a.e("v_add_u32 v8, s29, v8"); a.e("v_lshl_add_u32 v9, v6, 4, v8")
    a.e("v_bfe_u32 v10, v1, 2, 2"); a.e("v_lshl_add_u32 v10, v6, 2, v10"); a.e("v_mul_u32_u24 v10, 48, v10")
    a.e("v_bfe_u32 v12, v1, 4, 1"); a.e("v_and_b32 v13, 3, v1"); a.e("v_lshl_add_u32 v12, v12, 2, v13"); a.e("v_min_u32 v12, 5, v12"); a.e("v_lshl_add_u32 v10, v12, 3, v10")
    a.e(f"s_add_u32 s29, s29, {VL}"); a.e("v_add_u32 v10, s29, v10")
    a.e("v_lshlrev_b32 v12, 2, v6"); a.e("v_sub_u32 v12, v5, v12")
    a.e(f"v_mov_b32 v13, {NEGINF}")
    a.e("s_waitcnt vmcnt(0)")
    a.e(f"v_cndmask_b32 v{Q1}, 0, v{Q1}, vcc"); a.e(f"v_cndmask_b32 v{Q1+1}, 0, v{Q1+1}, vcc")
    a.e("s_lshl_b32 s33, s44, 2"); a.e("s_add_u32 s33, s33, s24")
    a.e("s_waitcnt lgkmcnt(0)")
    a.e("s_barrier")
    def kread(i):
        r = KA + 6*(i % 3)
        a.e(f"ds_read_b128 {vr(r,4)}, v9 offset:{1536*i}"); a.e(f"ds_read_b64 {vr(r+4,2)}, v8 offset:{1536*i+32}")
    def m8(i):
        a.e(f"v_mfma_f32_32x32x8_bf16 {vr(S+16*i,16)}, {vr(KA+6*(i%3)+4,2)}, {vr(Q1,2)}, {vr(S+16*i,16)}")
    kread(0)
    for i in range(9):
        if i < 8: kread(i+1)
        a.e(f"s_waitcnt lgkmcnt({2 if i < 8 else 0})")
        a.e(f"{MF} {vr(S+16*i,16)}, {vr(KA+6*(i%3),4)}, {vr(Q0,4)}, 0")
        if i == 1: a.nop(4)
        if i > 0: m8(i-1)
    a.nop(4)
    m8(8)
    a.nop(16)
    lab = a.newlabel("W_neg")
    for i in range(8):
        a.e(f"s_cmp_ge_u32 s33, {8-i}"); a.e(f"s_cbranch_scc1 {lab}")
        for r in range(16): a.e(f"v_mov_b32 v{S+16*i+r}, v13")
    a.label(lab)
    for r in range(16):
        kr = (r & 3) + 8*(r >> 2)
        a.e(f"v_cmp_le_i32 vcc, {kr}, v12")
        a.nop(2)
        a.e(f"v_cndmask_b32 v{S+128+r}, v13, v{S+128+r}, vcc")
        a.e(f"v_cndmask_b32 v{S+r}, v{S+r}, v13, vcc")
    a.e(f"v_max3_f32 v14, v{S}, v{S+1}, v{S+2}"); a.e(f"v_max3_f32 v15, v{S+3}, v{S+4}, v{S+5}")
    for r in range(6, 142, 4):
        a.e(f"v_max3_f32 v14, v{S+r}, v{S+r+1}, v14"); a.e(f"v_max3_f32 v15, v{S+r+2}, v{S+r+3}, v15")
    a.e(f"v_max3_f32 v14, v{S+142}, v{S+143}, v14"); a.e("v_max_f32 v14, v14, v15")
    a.e("v_mov_b32 v15, v14"); a.e(f"s_mov_b32 s28, {fbits(C)}"); a.nop(1); a.e("v_permlane32_swap_b32 v14, v15"); a.nop(1); a.e("v_max_f32 v14, v14, v15")
    a.e("v_mul_f32 v14, s28, v14")
    def vread(i):
        for jj in range(2):
            for h in range(2):
                a.e(f"ds_read_b64_tr_b16 {vr(KA+8*(i&1)+4*jj+2*h,2)}, v10 offset:{(32*i+16*jj+8*h)*48}")
    vread(0)
    for i in range(9):
        d = S+16*i
        for r in range(16): a.e(f"v_fma_f32 v{d+r}, v{d+r}, s28, -v14")
        for r in range(16): a.e(f"v_exp_f32 v{d+r}, v{d+r}")
        for q in range(8): a.e(f"v_cvt_pk_bf16_f32 v{d+q}, v{d+2*q}, v{d+2*q+1}")
        if i < 8: vread(i+1)
        a.e(f"s_waitcnt lgkmcnt({4 if i < 8 else 0})")
        if i == 8: a.nop(1)
        for jj in range(2):
            a.e(f"{MF} {vr(O,16)}, {vr(KA+8*(i&1)+4*jj,4)}, {vr(d+4*jj,4)}, {'0' if i == 0 and jj == 0 else vr(O,16)}")
    a.e(f"s_mul_i32 s30, s33, 40960"); a.e(f"s_add_u32 s30, s30, {WS_BO}"); a.e("s_mul_i32 s28, s45, 40"); a.e("s_add_u32 s30, s30, s28")
    a.e("v_mul_u32_u24 v16, 1280, v5"); a.e("v_lshl_add_u32 v16, v6, 3, v16")
    a.nop(12)
    a.e(f"v_mov_b32 v8, v{O+8}"); a.e(f"v_mov_b32 v9, v{O+8}"); a.nop(1); a.e("v_permlane32_swap_b32 v8, v9")
    a.nop(1); a.e("v_rcp_f32 v9, v9"); a.nop(1)
    for r in range(12): a.e(f"v_mul_f32 v{O+r}, v{O+r}, v9")
    for q in range(6): a.e(f"v_cvt_pk_bf16_f32 v{24+q}, v{O+2*q}, v{O+2*q+1}")
    a.e("buffer_store_dwordx2 v[24:25], v16, s[8:11], s30 offen sc1")
    a.e("buffer_store_dwordx2 v[26:27], v16, s[8:11], s30 offen offset:16 sc1")
    a.e("s_mov_b32 exec_hi, 0")
    a.e("buffer_store_dwordx2 v[28:29], v16, s[8:11], s30 offen offset:32 sc1")
    a.e("s_mov_b64 exec, -1")
    a.e("s_lshr_b32 s26, s44, 1"); a.e("s_lshl_b32 s26, s26, 7"); a.e(f"s_add_u32 s26, s26, {WS_FLAGS+F_BA}")
    set_flag(a, "s26", add=True)

T_END, T_K, T_Q, T_VU, T_BQ, T_BA, T_BO, T_P, T_PZ, T_W = range(10)
def enc(t, x, y, z=0): return t | (x << 8) | (y << 16) | (z << 24)

def worker(a, table_label, maxlen, cw):
    CW[0] = cw
    a.e("s_load_dwordx8 s[64:71], s[0:1], 16")
    a.e("s_load_dwordx4 s[72:75], s[0:1], 64")
    a.e("s_load_dwordx2 s[20:21], s[0:1], 80")
    a.e("s_load_dwordx2 s[84:85], s[0:1], 0"); a.e("s_load_dwordx2 s[86:87], s[0:1], 56")
    a.e("s_getpc_b64 s[76:77]")
    a.label("W_pc")
    a.e(f"s_add_u32 s76, s76, {table_label}-W_pc"); a.e("s_addc_u32 s77, s77, 0")
    a.e(f"s_mul_i32 s79, s79, {4*maxlen}")
    a.e("s_waitcnt lgkmcnt(0)")
    a.e("s_mov_b32 s22, 5242880"); a.e("s_mov_b32 s23, 0x20000")
    a.e("s_mov_b32 s16, s70"); a.e("s_mov_b32 s17, s71"); a.e("s_mov_b32 s18, 7864320"); a.e("s_mov_b32 s19, 0x20000")
    a.e("s_mov_b32 s12, s64"); a.e("s_mov_b32 s13, s65"); a.e("s_mov_b32 s14, 7864320"); a.e("s_mov_b32 s15, 0x20000")
    a.e("v_and_b32 v1, 63, v0")
    def fetch(warm=False):
        if warm:
            a.e("s_mov_b32 s78, s63"); a.e("s_mov_b32 s63, s55"); a.e("s_add_u32 s79, s79, 4")
        else:
            a.e("s_load_dword s78, s[76:77], s79")
            a.e("s_add_u32 s79, s79, 4")
            a.e("s_load_dword s63, s[76:77], s79")
            a.e("s_waitcnt lgkmcnt(0)")
        a.e("PROFTASK")
        a.e("s_and_b32 s47, s78, 255"); a.e("s_bfe_u32 s44, s78, 0x80008"); a.e("s_bfe_u32 s45, s78, 0x80010"); a.e("s_lshr_b32 s46, s78, 24")
    def nextparams():
        a.e("s_and_b32 s25, s63, 255"); a.e("s_cmp_eq_u32 s25, 1")
        a.e("s_cselect_b32 s56, s66, s64"); a.e("s_cselect_b32 s57, s67, s65")
        a.e("s_cmp_eq_u32 s25, 3"); a.e("s_cselect_b32 s56, s68, s56"); a.e("s_cselect_b32 s57, s69, s57")
        a.e("s_mov_b32 s58, 7864320"); a.e("s_mov_b32 s59, 0x20000")
        a.e("s_sub_u32 s25, s25, 1"); a.e("s_cmp_lt_u32 s25, 3"); a.e("s_cselect_b32 s62, 1, 0")
        a.e("s_bitcmp1_b32 s63, 26"); a.e("s_cselect_b32 s62, 0, s62")
        a.e("s_bfe_u32 s60, s63, 0x80008"); a.e("s_mul_i32 s60, s60, 327680")
        a.e("s_bfe_u32 s61, s63, 0x80010"); a.e("s_mul_i32 s61, s61, 384")
    def aout():
        a.e("s_lshl_b32 s36, s44, 5"); a.e("s_add_u32 s36, s36, s45"); a.e("s_lshl_b32 s36, s36, 4")
        a.e("s_lshl_b32 s31, s44, 3")
        a.e("s_bitcmp1_b32 s46, 2"); a.e("s_cselect_b32 s25, 0, 1"); a.e("s_lshl_b32 s25, s24, s25"); a.e("s_add_u32 s31, s31, s25")
        a.e("s_bfe_u32 s25, s46, 0x10003"); a.e("s_lshl_b32 s25, s25, 2"); a.e("s_add_u32 s31, s31, s25")
        a.e("s_lshl_b32 s31, s31, 5"); a.e("s_add_u32 s31, s31, s45")
        a.e("s_cmp_eq_u32 s47, 3"); a.e("s_cbranch_scc1 W_ao_v" + str(a.uid))
        a.e("s_mul_i32 s31, s31, 12288"); a.e("s_mov_b32 s35, 393216")
        a.e("s_cmp_eq_u32 s47, 1"); a.e(f"s_cselect_b32 s25, 0, {WS_Q-WS_K}"); a.e("s_add_u32 s31, s31, s25"); a.e(f"s_add_u32 s31, s31, {WS_K}")
        a.e("s_cmp_eq_u32 s47, 1"); a.e(f"s_cselect_b32 s25, 0, {F_Q-F_K}"); a.e("s_add_u32 s36, s36, s25"); a.e(f"s_add_u32 s36, s36, {WS_FLAGS+F_K}")
        a.e("s_bfe_u32 s25, s46, 0x10003"); a.e("s_lshl_b32 s39, 1, s25"); a.e("s_bitcmp1_b32 s46, 2"); a.e("s_cselect_b32 s39, s39, 3")
        a.e("s_branch W_ao_d" + str(a.uid))
        a.label("W_ao_v" + str(a.uid))
        a.e("s_mul_i32 s31, s31, 40960"); a.e(f"s_add_u32 s31, s31, {WS_U}"); a.e(f"s_add_u32 s36, s36, {WS_FLAGS+F_U}")
        a.e("s_mul_i32 s37, s45, 245760")
        a.e("s_and_b32 s25, s46, 3"); a.e("s_cmp_eq_u32 s25, 0"); a.e("s_cselect_b32 s38, 4, 2"); a.e("s_cselect_b32 s39, 3, s25")
        a.e("s_cmp_eq_u32 s25, 2"); a.e("s_cselect_b32 s25, 640, 0"); a.e("s_add_u32 s37, s37, s25"); a.e("s_lshl_b32 s25, s25, 5"); a.e("s_add_u32 s31, s31, s25")
        a.e("s_bfe_u32 s25, s46, 0x10003"); a.e("s_lshl_b32 s25, s25, 1"); a.e("s_lshl_b32 s25, s39, s25"); a.e("s_mul_i32 s39, s39, 5")
        a.e("s_bitcmp1_b32 s46, 2"); a.e("s_cselect_b32 s39, s25, s39")
        a.label("W_ao_d" + str(a.uid)); a.uid += 1
    a.e("s_branch W_next")
    a.label("W_abort")
    a.e("s_endpgm")
    a.label("W_warm")
    fetch(True)
    a.e("s_mov_b32 s12, s56"); a.e("s_mov_b32 s13, s57"); a.e("s_mov_b32 s26, s60"); a.e("s_mov_b32 s27, s61")
    nextparams(); aout()
    wts(a, 1)
    a.e("s_cmp_eq_u32 s47, 3"); a.e("s_cbranch_scc1 W_vu_warm"); a.e("s_branch W_kq_warm")
    a.label("W_next")
    fetch()
    for t, l in ((T_P, "W_tp"), (T_PZ, "W_pz"), (T_BA, "W_ba"), (T_BQ, "W_bq"), (T_BO, "W_bo"), (T_W, "W_w"), (T_END, "W_done")):
        a.e(f"s_cmp_eq_u32 s47, {t}"); a.e(f"s_cbranch_scc1 {l}")
    a.e("s_cmp_eq_u32 s47, 1"); a.e("s_cselect_b32 s12, s66, s64"); a.e("s_cselect_b32 s13, s67, s65")
    a.e("s_cmp_eq_u32 s47, 3"); a.e("s_cselect_b32 s12, s68, s12"); a.e("s_cselect_b32 s13, s69, s13"); a.e("s_mov_b32 s14, 7864320")
    a.e("s_mul_i32 s26, s44, 327680"); a.e("s_bfe_u32 s25, s46, 0x10003"); a.e("s_mul_i32 s25, s25, 163840"); a.e("s_add_u32 s26, s26, s25")
    a.e("s_mov_b32 s48, s84"); a.e("s_mov_b32 s49, s85"); a.e("s_mov_b32 s50, 2621440"); a.e("s_mov_b32 s51, 0x20000")
    a.e("s_mul_i32 s27, s45, 384"); a.e("s_mov_b32 s33, 12288")
    nextparams(); aout()
    a.e("s_bitcmp1_b32 s46, 2"); a.e("s_cbranch_scc1 W_mb1")
    a.e("s_cmp_eq_u32 s47, 3"); a.e("s_cbranch_scc1 W_vu"); a.e("s_branch W_kq")
    a.label("W_mb1"); a.e("s_mov_b32 s62, 0")
    a.e("s_cmp_eq_u32 s47, 3"); a.e("s_cbranch_scc1 W_vu1")
    task_kq(a, 1)
    a.label("W_vu1"); task_vu(a, 1)
    a.label("W_bq")
    a.e("s_mov_b32 s12, s72"); a.e("s_mov_b32 s13, s73"); a.e("s_mov_b32 s14, 2457600")
    a.e("s_mul_i32 s26, s44, 327680"); a.e("s_mov_b32 s48, s86"); a.e("s_mov_b32 s49, s87"); a.e("s_mov_b32 s50, 2621440"); a.e("s_mov_b32 s51, 0x20000")
    a.e("s_mul_i32 s27, s45, 384"); a.e("s_mov_b32 s33, 3840")
    a.e("s_lshl_b32 s36, s44, 4"); a.e("s_add_u32 s36, s36, s45"); a.e("s_lshl_b32 s36, s36, 2"); a.e(f"s_add_u32 s36, s36, {WS_FLAGS+F_BQ}")
    a.e("s_lshl_b32 s31, s44, 3"); a.e("s_lshl_b32 s25, s24, 1"); a.e("s_add_u32 s31, s31, s25"); a.e("s_mul_i32 s31, s31, 10"); a.e("s_add_u32 s31, s31, s45")
    a.e("s_mul_i32 s31, s31, 12288"); a.e(f"s_add_u32 s31, s31, {WS_BQKV}"); a.e("s_mov_b32 s35, 122880")
    a.e("s_mov_b32 s39, 1"); a.e("s_mov_b32 s62, 0")
    a.e("s_mov_b32 s56, s64"); a.e("s_mov_b32 s57, s65"); a.e("s_mov_b32 s58, 7864320"); a.e("s_mov_b32 s59, 0x20000")
    a.label("W_kq"); task_kq(a, 2)
    a.label("W_vu"); task_vu(a, 2)
    a.label("W_bo")
    a.e("s_lshl_b32 s26, s44, 7"); a.e(f"s_add_u32 s26, s26, {WS_FLAGS+F_BA}")
    wait_flags(a, "W_bow", "s26", 1, 2, 64)
    a.e("s_mov_b32 s12, s74"); a.e("s_mov_b32 s13, s75"); a.e("s_mov_b32 s14, 819200")
    a.e("s_mul_i32 s26, s44, 327680"); a.e(f"s_add_u32 s26, s26, {WS_BO}")
    a.e("s_mul_i32 s27, s45, 320"); a.e("s_mov_b32 s33, 1280")
    a.e(f"s_mul_i32 s31, s44, {256*2560}"); a.e("s_add_u32 s31, s31, s27"); a.e("s_add_u32 s31, s31, 1280")
    task_bout(a); a.e("s_branch W_next")
    a.label("W_w")
    a.e("s_lshl_b32 s25, s45, 7"); a.e(f"s_add_u32 s25, s25, {WS_FLAGS+F_KM}")
    wait_progress(a, "W_wp", "s25", "s44")
    a.e("s_branch W_next")
    a.label("W_tp"); task_tp(a); a.e("s_branch W_next")
    a.label("W_pz"); task_pz(a); a.e("s_branch W_next")
    a.label("W_ba"); task_batt(a); a.e("s_branch W_next")
    a.label("W_done")
```

```python
import sys
sys.path.insert(0, "work")
from asmlib import *
from layout import *
import chain
from worker import *

NAME = "concat_heads__memory_aug_recurrent_mem_tr__sliding_block__prompt_kernel"

SP = dict(pace=1.0, tend=150.0, pw=6.0, dtw=2.3, fast=(1,), split=(), t0=19.0, dt=2.1, t0F=24.0, dtF=2.7, slack=3.0, lead=20.0, K=12.5, VU=25.0, VU2=23.0, VU1=15.0, K1=10.5, BQ=16.0, BA=5.8, BO=15.0, P=3.5, PZ=5.0, cold=1.4, groups=((2,3),(4,5),(6,7)), qlag=5.0, bstart=0.0)
def schedule(**kw):
    import heapq
    S = dict(SP); S.update(kw)
    heads3 = [list(range(0,6)), list(range(6,12)), list(range(12,17)), list(range(17,22)), list(range(22,27)), list(range(27,32))]
    headsq = [list(range(0,4)), list(range(4,8)), list(range(8,14)), list(range(14,20)), list(range(20,26)), list(range(26,32))]
    t0, dt = S['t0'], S['dt']
    AQ = []
    for x in range(6):
        H = heads3[x]; q = []
        r0 = []
        for h in range(32):
            r0 += [(-3, enc(T_VU, 0, h, 4 + 8*hm + z), S['VU1'], ('U', 0)) for hm in (0, 1) for z in (1, 2)]
            r0 += [(-2, enc(T_K, 0, h, 4 + 8*hm), S['K1'], ('K', 0)) for hm in (0, 1)]
        q += r0[32*x:32*x+32]
        for bi, m in enumerate(S['fast']):
            r1 = []
            for h in range(32):
                r1 += [(-1 + 0.1*bi, enc(T_VU, m, h, 4 + 8*hm + z), S['VU1'], ('U', m)) for hm in (0, 1) for z in (1, 2)] + [(-1 + 0.1*bi + 0.05, enc(T_K, m, h), S['K'], ('K', m))]
            q += r1[(160*x)//6:(160*(x+1))//6]
        for bi, m in enumerate(S['split']):
            r1 = []
            for h in range(32):
                r1 += [(-0.5 + 0.1*bi, enc(T_VU, m, h, z), S['VU2'], ('U', m)) for z in (1, 2)] + [(-0.5 + 0.1*bi + 0.05, enc(T_K, m, h), S['K'], ('K', m))]
            q += r1[16*x:16*x+16]
        for g in S['groups']:
            dl = t0 + 8*g[0]*dt - S['lead']
            q += [(dl - S['VU'], enc(T_VU, m, h), S['VU'], ('U', m)) for h in H for m in g]
            q += [(dl - S['K'], enc(T_K, m, h), S['K'], ('K', m)) for h in H for m in g]
        for g in [(0, 1), (2, 3), (4, 5), (6, 7)]:
            dl = t0 + (8*g[0] + 2)*dt + S['qlag'] - (S['lead'] if g[0] == 6 else 0)
            q += [(dl - S['K'], enc(T_Q, m, h), S['K'], ('Q', m)) for h in headsq[x] for m in g]
        q.sort(key=lambda e: e[0])
        AQ.append(q)
    done = {}
    remain = {}
    for q in AQ:
        for e in q: remain[e[3]] = remain.get(e[3], 0) + 1
    BQs = [(enc(T_BQ, m, n), ('BQ', m)) for m in range(8) for n in range(10)]
    BAs = [(enc(T_BA, b, h), ('BA', b >> 1)) for b in range(16) for h in range(32)]
    BOs = [(enc(T_BO, m, n), ('BO', m)) for m in range(8) for n in range(4)]
    for w, k in BQs + BAs: remain[k] = remain.get(k, 0) + 1
    Fs = []
    for s in range(64):
        Fs += [(enc(T_P, s, hg), ('P', s)) for hg in range(8)] + [(enc(T_PZ, s, cg), ('PZ', s)) for cg in range(10)]
        remain[('P', s)] = 8
    fin = {}
    def ready(keys):
        t = 0
        for k in keys:
            if remain.get(k, 0) > 0: return None
            t = max(t, fin.get(k, 0))
        return t
    def chain_t(s): return S['t0F'] + S['dtF']*(s + 1.6)
    lists = [[] for _ in range(192)]
    last = [0]*192
    heap = [(1.5, i) for i in range(192)]
    heapq.heapify(heap)
    end = 0
    while heap:
        t, i = heapq.heappop(heap)
        x = i >> 5
        pick = None
        def fready():
            w, k = Fs[0]; s = k[1]
            r = ready([('K', s >> 3), ('Q', s >> 3)]) if k[0] == 'P' else ready([('U', s >> 3), ('P', s)])
            if r is None: return None
            return max(r + S['slack'], chain_t(s) + (0 if k[0] == 'P' else dt))
        def take_a():
            e = AQ[x].pop(0); d = e[2] + (0 if (last[i] in (1, 2, 3) and not (lists[i][-1] >> 26) & 1) else S['cold'])
            return e[1], e[3], t + d
        def take_b():
            if BOs:
                r = ready([('BA', BOs[0][1][1])])
                if r is not None and r + S['slack'] <= t: w, k = BOs.pop(0); return w, k, t + S['BO']
            if BAs:
                m = BAs[0][1][1]; r = ready([('BQ', m), ('BQ', max(m-1, 0))])
                if r is not None and r + S['slack'] <= t: w, k = BAs.pop(0); return w, k, t + S['BA']
            if BQs and t >= S['bstart']: w, k = BQs.pop(0); return w, k, t + S['BQ']
            return None
        if AQ[x] and AQ[x][0][0] <= t: pick = take_a()
        if not pick and Fs:
            r = fready()
            if r is not None and r <= t:
                w, k = Fs.pop(0); pick = (w, k, max(t + S[k[0]], r + (1.0 if k[0] == 'P' else 1.8)))
        if not pick and S['pace'] and t > S['t0F'] and (AQ[x] or BQs or BAs or BOs):
            left = sum(e[2] for q in AQ for e in q) + len(BQs)*S['BQ'] + len(BAs)*S['BA'] + len(BOs)*S['BO'] + sum(S[k[0]] for _, k in Fs)
            if left < 192*S['pace']*(S['tend'] - t - 10):
                n = int((t + S['pw'] - S['t0'])/S['dtw'])
                if last[i] != T_W and 2 <= n <= 60:
                    lists[i].append(enc(T_W, n + 1, i & 31)); last[i] = T_W
                    heapq.heappush(heap, (t + S['pw'], i)); continue
        if not pick: pick = take_b()
        if not pick and AQ[x]: pick = take_a()
        if not pick and not any(AQ) and not BQs:
            cand = []
            if BAs:
                m = BAs[0][1][1]; r = ready([('BQ', m), ('BQ', max(m-1, 0))]); cand.append((r, 'BA'))
            elif BOs:
                r = ready([('BA', BOs[0][1][1])]); cand.append((r, 'BO'))
            if Fs:
                r = fready()
                if r is not None: cand.append((r, 'F'))
            if cand:
                r, c = min(cand)
                if c == 'F': w, k = Fs.pop(0); pick = (w, k, max(t + S[k[0]], r + (1.0 if k[0] == 'P' else 1.8)))
                elif c == 'BA': w, k = BAs.pop(0); pick = (w, k, max(t, r) + S['BA'])
                else: w, k = BOs.pop(0); pick = (w, k, max(t, r) + S['BO'])
        if not pick:
            if any(AQ) or BQs or BAs or BOs or Fs: heapq.heappush(heap, (t + 0.5, i))
            continue
        w, k, tf = pick
        lists[i].append(w); last[i] = w & 255
        remain[k] = remain.get(k, 1) - 1; fin[k] = max(fin.get(k, 0), tf); end = max(end, tf)
        heapq.heappush(heap, (tf, i))
    return lists, fin

def init_work(a):
    a.e("v_and_b32 v1, 63, v0"); a.e("v_lshlrev_b32 v4, 4, v1")
    for q in range(4): a.e(f"v_mov_b32 v{28+q}, -1"); a.e(f"v_mov_b32 v{32+q}, 0")
    a.e("s_lshr_b32 s28, s2, 2"); a.e("s_lshl_b32 s29, s28, 17"); a.e("s_and_b32 s28, s2, 1"); a.e("s_lshl_b32 s28, s28, 13"); a.e("s_add_u32 s29, s29, s28"); a.e(f"s_add_u32 s29, s29, {WS_H2}")
    a.e("s_and_b32 s28, s2, 2"); a.e("s_lshl_b32 s28, s28, 14"); a.e("s_add_u32 s30, s29, s28"); a.e("s_lshl_b32 s28, s24, 11"); a.e("s_add_u32 s30, s30, s28")
    for i in range(2): a.e(f"buffer_store_dwordx4 v[28:31], v4, s[8:11], s30 offen offset:{1024*i} sc1")
    a.e("s_lshr_b32 s28, s24, 1"); a.e("s_lshl_b32 s28, s28, 12"); a.e("s_add_u32 s29, s29, s28"); a.e("s_and_b32 s28, s24, 1"); a.e("s_lshl_b32 s28, s28, 10"); a.e("s_add_u32 s29, s29, s28"); a.e("s_add_u32 s29, s29, 65536")
    a.e("buffer_store_dwordx4 v[28:31], v4, s[8:11], s29 offen sc1")
    a.e("s_cmp_eq_u32 s24, 3"); a.e("s_cbranch_scc1 I_w3")
    a.e("s_mul_i32 s28, s2, 3"); a.e("s_add_u32 s28, s28, s24"); a.e("s_cmp_ge_u32 s28, 384"); a.e("s_cselect_b32 s29, 384, 0"); a.e(f"s_cselect_b32 s30, {LOC_STRIDE}, 0"); a.e(f"s_add_u32 s30, s30, {WS_LOC}")
    a.e("s_sub_u32 s28, s28, s29"); a.e("s_lshl_b32 s29, s28, 10"); a.e("s_add_u32 s29, s29, s30");
    if chain.QARCH[0] == 2:
        a.e("s_cmp_ge_u32 s28, 160"); a.e("s_cbranch_scc1 I_x"); a.e("s_add_u32 s30, s29, 393216"); a.e("buffer_store_dwordx4 v[28:31], v4, s[8:11], s30 offen sc1"); a.label("I_x")
    a.e("s_lshr_b32 s28, s28, 3"); a.e("s_cmp_eq_u32 s28, 2"); a.e("s_cbranch_scc1 I_z")
    a.e("buffer_store_dwordx4 v[28:31], v4, s[8:11], s29 offen sc1"); a.e("s_branch I_d")
    a.label("I_w3")
    a.e("s_cmp_ge_u32 s2, 128"); a.e("s_cbranch_scc1 I_d")
    a.e("s_lshl_b32 s29, s2, 10"); a.e(f"s_add_u32 s29, s29, {WS_FLAGS}")
    a.label("I_z")
    a.e("buffer_store_dwordx4 v[32:35], v4, s[8:11], s29 offen sc1")
    a.label("I_d")

def census_wait(a, lab):
    a.e("v_mbcnt_lo_u32_b32 v3, -1, 0"); a.e("v_and_b32 v3, 15, v3"); a.e("v_min_u32 v3, 8, v3")
    a.e("v_and_b32 v4, 1, v3"); a.e("v_lshlrev_b32 v3, 2, v3"); a.e("v_lshl_add_u32 v3, v4, 7, v3")
    a.label(lab)
    a.e("buffer_load_dword v2, v3, s[4:7], 0 offen sc1")
    guard(a)
    a.e("s_waitcnt vmcnt(0)")
    for i in range(9): a.e(f"v_readlane_b32 s{84+i}, v2, {i}")
    a.e("s_cmp_eq_u32 s92, 256"); a.e(f"s_cbranch_scc1 {lab}_ok"); a.e("s_sleep 8"); a.e(f"s_branch {lab}")
    a.label(f"{lab}_ok")

def arrive(a, lab):
    a.e("s_cmp_lg_u32 s24, 1"); a.e(f"s_cbranch_scc1 {lab}")
    a.e("v_mov_b32 v5, 1"); a.e("s_mov_b64 exec, 1")
    a.e("buffer_atomic_add v5, off, s[4:7], 0 offset:32 sc1"); a.e("s_mov_b64 exec, -1")
    a.label(lab)

def atomic_rank(a, lab, voff_expr, dst):
    a.e("s_cmp_lg_u32 s24, 0"); a.e(f"s_cbranch_scc1 {lab}")
    a.e("v_mov_b32 v3, 1"); a.e("v_mov_b32 v4, s25"); a.e("s_mov_b64 exec, 1")
    a.e("buffer_atomic_add v3, v4, s[4:7], 0 offen sc0 sc1")
    a.e("s_waitcnt vmcnt(0)")
    a.e("v_mov_b32 v4, 0"); a.e("ds_write_b32 v4, v3"); a.e("s_waitcnt lgkmcnt(0)"); a.e("s_mov_b64 exec, -1")
    a.label(lab)
    a.e("s_waitcnt vmcnt(0)")
    a.e("s_barrier")
    a.e("v_mov_b32 v4, 0"); a.e("ds_read_b32 v8, v4")
    a.e("s_cmp_lg_u32 s24, 1"); a.e(f"s_cbranch_scc1 {lab}b")
    a.e("v_mov_b32 v5, 1"); a.e("v_mov_b32 v6, 32"); a.e("s_mov_b64 exec, 1")
    a.e("buffer_atomic_add v5, v6, s[4:7], 0 offen sc1"); a.e("s_mov_b64 exec, -1")
    a.label(f"{lab}b")
    a.e("s_waitcnt lgkmcnt(0)")
    a.e(f"v_readfirstlane_b32 {dst}, v8")
    a.e("s_barrier")

def build(pair13=0, csh=15, pub24=1, hm=0, diag=False, mkpv=0, mkpq=0, h2rd=0, ctlb=0, mkg=0, qarch=1, rperm=0, tlbw=0, wpf=0, cpf=0, wdelay=0, wsb=0, mke=0, mkpost=0, mkgap=24, mks=128, ctime=False, wpol='', wpol2='', wmax=24, hint=0, sp={}, gp={}, steplog=0, psel=0, profstart=False, prof=0, only=None, lists=None, nochain=False, budget=1 << 22, force_slow=False, qk={}, vo={}, proftask=False, flip=None):
    chain.CSH[0] = csh; chain.PUB24[0] = pub24; chain.HM[0] = hm; chain.MKPV[0] = mkpv; chain.MKPQ[0] = mkpq; chain.H2RD[0] = h2rd; chain.TLBW[0] = ctlb; chain.MKG[0] = mkg; chain.QARCH[0] = qarch; chain.MKE[0] = mke; chain.MKPOST[0] = mkpost; chain.MKGAP[0] = mkgap; chain.MKS[0] = mks; chain.WPOL[:] = [wpol, wpol2]; chain.WMAX[0] = wmax; chain.HINT[0] = hint; chain.PSEL[0] = psel; chain.CAL[0] = flip is None
    chain.STEPLOG[0] = (WS_PROF + 524288) if steplog else 0
    import worker as WK
    WK.WPROF[0] = proftask == 2
    WK.GP.update(gp)
    a = Asm()
    if lists is None: lists, _ = schedule(**sp)
    if only is not None: lists = [[w for w in l if (w & 255) in only] for l in lists]
    maxlen = max(len(l) for l in lists) + 3
    a.e("s_cmp_ge_u32 s2, 256"); a.e("s_cbranch_scc1 W_abort")
    a.e("""
s_load_dwordx2 s[8:9], s[0:1], 96
s_load_dwordx2 s[4:5], s[0:1], 88
s_getreg_b32 s3, hwreg(HW_REG_XCC_ID)
s_and_b32 s3, s3, 7
v_lshrrev_b32 v1, 6, v0
s_nop 0
v_readfirstlane_b32 s24, v1
s_waitcnt lgkmcnt(0)
WSBASE
s_mov_b32 s11, 0x20000
s_mov_b32 s6, 256
s_mov_b32 s7, 0x20000
""")
    a.e(f"s_mov_b32 s82, {budget}")
    if prof or proftask or ctime:
        a.e("s_mov_b32 s56, s8"); a.e("s_mov_b32 s57, s9"); a.e("s_mov_b32 s58, s10"); a.e("s_mov_b32 s59, 0x20000"); a.e("s_mov_b32 s83, 0")
        a.e("s_memrealtime s[96:97]")
    if diag: a.e("s_or_b32 s25, s2, s24\n s_cmp_lg_u32 s25, 0\n s_cbranch_scc1 D_0\n s_memrealtime s[100:101]\n s_waitcnt lgkmcnt(0)\n s_not_b32 s100, s100\n v_mov_b32 v2, s100\n s_mov_b64 exec, 1\n buffer_atomic_umax v2, off, s[4:7], 0 offset:40 sc1\n s_mov_b64 exec, -1\nD_0:")
    if profstart: a.e("s_memrealtime s[60:61]")
    if profstart: a.e("s_memrealtime s[62:63]")
    if profstart: a.e("s_memrealtime s[64:65]")
    if pair13: a.e("s_lshl_b32 s3, s3, 2"); a.e("s_lshr_b32 s3, 0x76541302, s3"); a.e("s_and_b32 s3, s3, 7")
    if force_slow: a.e("s_lshr_b32 s3, s2, 5"); a.e("s_mul_i32 s3, s3, 3"); a.e("s_and_b32 s3, s3, 7"); a.e("s_max_u32 s3, s3, 1")
    a.e("s_and_b32 s25, s3, 1"); a.e("s_lshl_b32 s25, s25, 7"); a.e("s_lshl_b32 s26, s3, 2"); a.e("s_add_u32 s95, s25, s26")
    def code_pf(ranges, lab):
        a.e("s_getpc_b64 s[26:27]"); a.label(lab)
        a.e("v_and_b32 v1, 63, v0"); a.e("v_lshlrev_b32 v10, 7, v1"); a.e("s_sub_u32 s25, s24, 1"); a.e("s_lshl_b32 s25, s25, 13"); a.e("v_add_u32 v10, s25, v10")
        for (st, n) in ranges:
            a.e(f"s_add_u32 s28, s26, {st}-{lab}"); a.e("s_addc_u32 s29, s27, 0")
            for i in range(n):
                a.e(f"global_load_dword v11, v10, s[28:29]")
                if i < n-1: a.e("s_add_u32 s28, s28, 24576"); a.e("s_addc_u32 s29, s29, 0")
    def tlb_warm():
        a.e("s_load_dwordx8 s[64:71], s[0:1], 16")
        a.e("v_and_b32 v12, 7, v0"); a.e("v_lshlrev_b32 v12, 20, v12")
        a.e("s_mov_b32 s14, 7864320"); a.e("s_mov_b32 s15, 0x20000")
        a.e("s_waitcnt lgkmcnt(0)")
        for m in range(4):
            a.e(f"s_mov_b32 s12, s{64+2*m}"); a.e(f"s_mov_b32 s13, s{65+2*m}")
            a.e("buffer_load_dword v13, v12, s[12:15], 0 offen")
    if tlbw:
        a.e("s_cmp_lg_u32 s24, 1"); a.e("s_cbranch_scc1 M_tw")
        tlb_warm()
        a.label("M_tw")
    a.e("s_cmp_ge_u32 s3, 2"); a.e("s_cbranch_scc1 M_late")
    a.e("s_cmp_lg_u32 s24, 0"); a.e("s_cbranch_scc1 M_e1")
    a.e("v_mov_b32 v3, 1"); a.e("v_mov_b32 v8, s95"); a.e("s_mov_b64 exec, 1")
    a.e("buffer_atomic_add v3, v8, s[4:7], 0 offen sc0 sc1")
    a.e("s_mov_b64 exec, -1")
    a.e("s_waitcnt vmcnt(0)")
    a.e("v_mov_b32 v4, 0"); a.e("s_mov_b64 exec, 1"); a.e("ds_write_b32 v4, v3"); a.e("s_mov_b64 exec, -1"); a.e("s_waitcnt lgkmcnt(0)")
    a.e("s_branch M_e2")
    a.label("M_e1")
    if cpf & 8: code_pf([("M_chain", 1), ("M_vo-8192", 1)], "M_pf1")
    a.label("M_e2")
    a.e("s_barrier")
    a.e("v_mov_b32 v4, 0"); a.e("ds_read_b32 v8, v4"); a.e("s_waitcnt lgkmcnt(0)")
    a.e("v_readfirstlane_b32 s80, v8")
    a.e("s_barrier")
    a.e("s_cmp_lt_u32 s80, 32"); a.e("s_cbranch_scc0 M_e3")
    a.e("s_mov_b32 s25, s3"); a.e("s_mov_b32 s26, s80"); a.e("s_mov_b32 s81, 1"); a.e("s_branch M_chain")
    a.label("M_e3")
    a.L += [l.replace("I_", "J_") for l in _sub(init_work)]
    a.e("s_waitcnt vmcnt(0)"); a.e("s_barrier")
    arrive(a, "M_e4")
    a.e("s_branch M_worker")
    a.label("M_late")
    if cpf & 7:
        a.e("s_cmp_eq_u32 s24, 0"); a.e("s_cbranch_scc1 M_pf2x")
        code_pf([("W_warm", cpf & 7)], "M_pf2")
        a.label("M_pf2x")
    init_work(a)
    a.e("s_mov_b32 s25, s95")
    atomic_rank(a, "M_a1", None, "s80")
    if profstart: a.e("s_memrealtime s[62:63]")
    if profstart:
        a.e("s_memrealtime s[66:67]"); a.e("s_waitcnt lgkmcnt(0)"); a.e("s_lshl_b32 s25, s2, 5"); a.e(f"s_add_u32 s25, s25, {WS_PROF+262144}")
        a.e("v_mov_b32 v4, s60"); a.e("v_mov_b32 v5, s62"); a.e("v_mov_b32 v6, s64"); a.e("v_mov_b32 v7, s66"); a.e("v_mov_b32 v2, 0"); a.e("v_mov_b32 v8, s3")
        a.e("s_mov_b64 exec, 1"); a.e("buffer_store_dwordx4 v[4:7], v2, s[8:11], s25 offen"); a.e("buffer_store_dword v8, v2, s[8:11], s25 offen offset:16"); a.e("s_mov_b64 exec, -1")
    a.e("s_cmp_ge_u32 s80, 32"); a.e("s_cbranch_scc1 M_worker")
    a.e("s_sub_u32 s79, s3, 2"); a.e("s_lshl_b32 s79, s79, 5"); a.e("s_add_u32 s79, s79, s80")
    a.e("s_mov_b32 s81, 1")
    if flip is None:
        a.e("s_cmp_lg_u32 s79, 31"); a.e("s_cbranch_scc1 C_skip"); a.e("s_cmp_lg_u32 s24, 0"); a.e("s_cbranch_scc1 C_skip")
        a.e(f"s_mov_b32 s25, {WS_CAL}")
        a.e("s_load_dword s27, s[8:9], s25 glc"); a.e("s_waitcnt lgkmcnt(0)")
        a.e("s_mov_b32 s32, -1"); a.e("s_mov_b32 s33, -1")
        for i in range(1, 9):
            a.e(f"s_add_u32 s25, s25, 8192")
            a.e("s_memtime s[28:29]"); a.e("s_waitcnt lgkmcnt(0)")
            a.e("s_load_dword s27, s[8:9], s25 glc"); a.e("s_waitcnt lgkmcnt(0)")
            a.e("s_memtime s[30:31]"); a.e("s_waitcnt lgkmcnt(0)")
            a.e("s_sub_u32 s30, s30, s28"); a.e(f"s_min_u32 s{32 + (i & 1)}, s{32 + (i & 1)}, s30")
        a.e("s_cmp_le_u32 s33, s32"); a.e("s_cselect_b32 s27, 1, 0x2001")
        a.e("v_mov_b32 v2, s27"); a.e("buffer_store_dword v2, off, s[4:7], 0 offset:64 sc1")
        a.label("C_skip")
    if wpf:
        a.e("s_load_dwordx8 s[64:71], s[0:1], 16")
        a.e("s_mul_i32 s25, s79, 1366"); a.e("s_lshr_b32 s25, s25, 16"); a.e("s_mul_i32 s26, s25, 48"); a.e("s_sub_u32 s26, s79, s26")
        a.e("s_mul_i32 s26, s26, 163840"); a.e("s_mul_i32 s27, s24, 40960"); a.e("s_add_u32 s26, s26, s27")
        a.e("v_and_b32 v10, 63, v0"); a.e("v_lshlrev_b32 v10, 7, v10")
        a.e("s_waitcnt lgkmcnt(0)")
        a.e("s_mov_b32 s12, s64"); a.e("s_mov_b32 s13, s65")
        for m in (1, 2, 3):
            a.e(f"s_cmp_eq_u32 s25, {m}"); a.e(f"s_cselect_b32 s12, s{64+2*m}, s12"); a.e(f"s_cselect_b32 s13, s{65+2*m}, s13")
        a.e("s_mov_b32 s14, 7864320"); a.e("s_mov_b32 s15, 0x20000")
        for i in range(5):
            a.e(f"buffer_load_dword v63, v10, s[12:15], s26 offen {wpf if wpf != 1 else ''}"); a.e("s_add_u32 s26, s26, 8192")
    for i in range(wdelay): a.e("s_sleep 37")
    a.e("s_branch M_go")
    a.label("M_worker")
    census_wait(a, "M_cw")
    a.e("s_mov_b32 s79, s80")
    a.e("s_cmp_lt_u32 s3, 2"); a.e("s_cselect_b32 s25, 32, 0"); a.e("s_sub_u32 s79, s79, s25")
    for x in range(7):
        if x < 2: a.e(f"s_max_u32 s25, s{84+x}, 32"); a.e("s_sub_u32 s25, s25, 32")
        else: a.e(f"s_mov_b32 s25, s{84+x}")
        a.e(f"s_cmp_gt_u32 s3, {x}"); a.e("s_cselect_b32 s25, s25, 0"); a.e("s_add_u32 s79, s79, s25")
    a.e("s_min_u32 s25, s84, 32"); a.e("s_sub_u32 s27, 32, s25"); a.e("s_min_u32 s26, s85, 32"); a.e("s_sub_u32 s28, 32, s26")
    a.e("s_cmp_lt_u32 s79, s27"); a.e("s_cbranch_scc0 M_n0")
    a.e("s_add_u32 s26, s25, s79"); a.e("s_mov_b32 s25, 0"); a.e("s_mov_b32 s81, 0"); a.e("s_branch M_chain")
    a.label("M_n0"); a.e("s_sub_u32 s79, s79, s27")
    a.e("s_cmp_lt_u32 s79, s28"); a.e("s_cbranch_scc0 M_n1")
    a.e("s_add_u32 s26, s26, s79"); a.e("s_mov_b32 s25, 1"); a.e("s_mov_b32 s81, 0"); a.e("s_branch M_chain")
    a.label("M_n1"); a.e("s_sub_u32 s79, s79, s28")
    a.e("s_mov_b32 s81, 0")
    a.label("M_go")
    if proftask: a.e(f"s_lshl_b32 s98, s79, {9 if proftask != 2 else 10}"); a.e(f"s_add_u32 s98, s98, {WS_PROF+65536}")
    worker(a, "W_table", maxlen, census_wait)
    if diag: a.e("s_memrealtime s[100:101]\n s_waitcnt lgkmcnt(0)\n s_cmp_eq_u32 s24, 0\n s_cselect_b64 exec, 1, 0\n v_mov_b32 v2, s100\n s_cbranch_execz 2\n buffer_atomic_umax v2, off, s[4:7], 0 offset:52 sc1\n s_mov_b64 exec, -1")
    a.e("s_branch L_fin")
    a.label("M_chain")
    if rperm: a.e("s_and_b32 s27, s26, 1"); a.e("s_lshl_b32 s27, s27, 4"); a.e("s_lshr_b32 s26, s26, 1"); a.e("s_add_u32 s26, s26, s27")
    a.e(f"s_mov_b32 s47, {WS_H2 + (flip or 0)*8192}")
    if prof or proftask or ctime:
        a.e("s_mov_b32 s56, s8"); a.e("s_mov_b32 s57, s9"); a.e("s_mov_b32 s58, s10"); a.e("s_mov_b32 s59, 0x20000")
    if nochain: a.e("s_branch L_fin")
    if prof or proftask or ctime:
        a.e("s_lshl_b32 s39, s25, 5"); a.e("s_add_u32 s39, s39, s26"); a.e("s_lshl_b32 s39, s39, 2"); a.e("s_add_u32 s39, s39, s24"); a.e("s_lshl_b32 s39, s39, 6"); a.e(f"s_add_u32 s39, s39, {WS_PROF}")
    a.e("s_cmp_ge_u32 s26, 16"); a.e("s_cbranch_scc1 M_vo")
    (a.e("s_lshl_b32 s27, s26, 1"), a.e("s_add_u32 s27, s27, s25")) if hm else (a.e("s_lshl_b32 s27, s25, 4"), a.e("s_add_u32 s27, s27, s26"))
    chain.ARRIVE[0] = arrive
    def init2(a, lab):
        L = _sub(init_work)
        import re
        for l in L:
            l = l.replace("I_", lab + "_")
            l = re.sub(r"\bs28\b", "s60", l); l = re.sub(r"\bs29\b", "s61", l); l = re.sub(r"\bs30\b", "s62", l)
            l = re.sub(r"\bv4\b", "v60", l)
            for q in range(8): l = re.sub(rf"\bv{28+q}\b", f"v{62+q}", l)
            l = l.replace("v[28:31]", "v[62:65]").replace("v[32:35]", "v[66:69]")
            a.L.append(l)
    chain.INIT[0] = init2
    chain.qk_role(a, prof=prof, cw=census_wait, **qk)
    a.e("s_branch L_cfin")
    a.label("M_vo")
    a.e("s_sub_u32 s26, s26, 16"); (a.e("s_lshl_b32 s27, s26, 1"), a.e("s_add_u32 s27, s27, s25")) if hm else (a.e("s_lshl_b32 s27, s25, 4"), a.e("s_add_u32 s27, s27, s26"))
    chain.vo_role(a, prof=prof, cw=census_wait, **vo)
    a.label("L_cfin")
    if diag: a.e("s_memrealtime s[100:101]\n s_waitcnt lgkmcnt(0)\n s_cmp_eq_u32 s24, 0\n s_cselect_b64 exec, 1, 0\n v_mov_b32 v2, s100\n s_cbranch_execz 2\n buffer_atomic_umax v2, off, s[4:7], 0 offset:48 sc1\n s_mov_b64 exec, -1")
    if prof or proftask or ctime:
        a.e("""
s_memrealtime s[80:81]
s_memtime s[78:79]
s_waitcnt lgkmcnt(0)
s_sub_u32 s78, s78, s76
v_mov_b32 v8, s78
v_mov_b32 v9, s39
buffer_store_dword v8, v9, s[56:59], 0 offen offset:60
s_mov_b64 exec, 1
v_mov_b32 v2, s39
v_mov_b32 v4, s96
v_mov_b32 v5, s98
v_mov_b32 v6, s80
v_mov_b32 v7, s83
buffer_store_dwordx4 v[4:7], v2, s[56:59], 0 offen offset:32
s_waitcnt vmcnt(0)
""")
    a.label("L_abort")
    a.label("L_fin")
    a.label("L_end")
    a.e("s_endpgm")
    a.e(".p2align 2")
    a.label("W_table")
    for l in lists:
        a.e(".long " + ",".join(str(w) for w in l + [0]*(maxlen-len(l))))
    txt = a.text()
    if proftask == 2:
        pt = "s_memtime s[100:101]\n  s_waitcnt lgkmcnt(0)\n  v_mov_b32 v2, s78\n  v_mov_b32 v3, s100\n  v_mov_b32 v4, s90\n v_mov_b32 v5, s92\n v_mov_b32 v6, s94\n v_mov_b32 v7, s96\n v_mov_b32 v8, s98\n  s_mov_b64 exec, 1\n  buffer_store_dwordx4 v[2:5], v8, s[8:11], 0 offen\n buffer_store_dwordx2 v[6:7], v8, s[8:11], 0 offen offset:16\n  s_mov_b64 exec, -1\n  s_add_u32 s98, s98, 32"
        txt = txt.replace("PROFTASK", pt)
    pt = "s_memrealtime s[100:101]\n  s_waitcnt lgkmcnt(0)\n  v_mov_b32 v2, s78\n  v_mov_b32 v3, s100\n  v_mov_b32 v4, s98\n  s_mov_b64 exec, 1\n  buffer_store_dwordx2 v[2:3], v4, s[8:11], 0 offen\n  s_mov_b64 exec, -1\n  s_add_u32 s98, s98, 8" if proftask else "s_nop 0"
    txt = txt.replace("PROFTASK", pt)
    if diag: txt = txt.replace("LOOPSTART", "s_memrealtime s[100:101]\n s_waitcnt lgkmcnt(0)\n s_cmp_eq_u32 s24, 0\n s_cselect_b64 exec, 1, 0\n v_mov_b32 v2, s100\n s_cbranch_execz 2\n buffer_atomic_umax v2, off, s[4:7], 0 offset:44 sc1\n s_mov_b64 exec, -1").replace("WLOADED", "s_memrealtime s[100:101]\n s_waitcnt lgkmcnt(0)\n s_cmp_eq_u32 s24, 0\n s_cselect_b64 exec, 1, 0\n v_mov_b32 v2, s100\n s_cbranch_execz 2\n buffer_atomic_umax v2, off, s[4:7], 0 offset:56 sc1\n s_mov_b64 exec, -1")
    txt = txt.replace("WSBASE", f"s_add_u32 s8, s8, {wsb*MB}\n  s_addc_u32 s9, s9, 0\n  s_mov_b32 s10, {(256-wsb)*MB}")
    for i in range(3): txt = txt.replace(f"WSTAMP{i}", f"s_memrealtime s[{70+2*i}:{71+2*i}]\n s_waitcnt lgkmcnt(0)\n s_mov_b32 s{76+i}, s{70+2*i}" if (prof or proftask or ctime) else "s_nop 0")
    txt = txt.replace("WLOADED", "s_memrealtime s[100:101]\n  s_waitcnt lgkmcnt(0)\n v_mov_b32 v2, s100\n v_mov_b32 v3, s39\n s_mov_b64 exec, 1\n v_mov_b32 v60, s76\n v_mov_b32 v61, s77\n v_mov_b32 v62, s78\n buffer_store_dword v2, v3, s[56:59], 0 offen offset:48\n buffer_store_dwordx3 v[60:62], v3, s[56:59], 0 offen offset:52\n s_nop 2\n s_mov_b64 exec, -1" if (prof or proftask or ctime) else "s_nop 0")
    txt = txt.replace("LOOPSTART", "s_memrealtime s[98:99]\n s_memtime s[76:77]\n  s_waitcnt lgkmcnt(0)" if (prof or proftask or ctime) else "s_nop 0")
    return txt
WS_PROF = 186*MB
def _sub(f):
    b = Asm(); f(b); return b.L

HEADER = open("concat_heads__memory_aug_recurrent_mem_tr__sliding_block__prompt.s.ref").read().split("; Override")[0] if __name__ == "__main__" else ""
def full(body, name=NAME, header=""):
    return f"""{header}; @launch grid=(256,1,1) block=(256,1,1) lds=163840
.amdgcn_target "amdgcn-amd-amdhsa--gfx950"
.text
.globl {name}
.p2align 8
.type {name},@function
{name}:
{body}
.section .rodata,"a"
.p2align 6
.amdhsa_kernel {name}
  .amdhsa_next_free_vgpr 512
  .amdhsa_next_free_sgpr 102
  .amdhsa_accum_offset 256
  .amdhsa_group_segment_fixed_size 0
  .amdhsa_kernarg_size 104
  .amdhsa_user_sgpr_count 2
  .amdhsa_user_sgpr_kernarg_segment_ptr 1
  .amdhsa_system_sgpr_workgroup_id_x 1
  .amdhsa_float_denorm_mode_32 3
.end_amdhsa_kernel
"""
if __name__ == "__main__":
    kw = eval(sys.argv[2]) if len(sys.argv) > 2 else {}
    txt = full(build(**kw), header=HEADER)
    open(sys.argv[1] if len(sys.argv) > 1 else "concat_heads__memory_aug_recurrent_mem_tr__sliding_block__prompt.s", "w").write(txt)
    print(len(txt))
```
